```python
import torch

def _softmax(x, axis=-1):
    return torch.softmax(x, dim=axis)
def _gelu(x):
    return torch.nn.functional.gelu(x, approximate="tanh")
def _silu(x):
    return torch.nn.functional.silu(x)
def _sigmoid(x):
    return torch.sigmoid(x)
def _layernorm(x, axis=-1, eps=1e-5):
    m = x.mean(dim=axis, keepdim=True)
    v = x.var(dim=axis, keepdim=True, unbiased=False)
    return (x - m) / torch.sqrt(v + eps)
def _scatter_add(tgt, idx, src, axis=0):
    return tgt.clone().index_add_(axis, idx, src)
def _segment_sum(src, seg, n):
    out = torch.zeros((n,) + src.shape[1:], dtype=src.dtype)
    return out.index_add_(0, seg, src)
def _pad(x, pw):
    flat = tuple(v for pair in reversed(pw) for v in pair)
    return torch.nn.functional.pad(x, flat)

kernel_name = 'parallel_sum__sliding_block__dense_activation_gelu__prompt'

def setup_inputs():

    _w = (lambda a: (lambda t: t.to(torch.bfloat16) if t.is_floating_point() else t)(torch.as_tensor(a)))
    def _A_setup():
        B, S, D = 1, 2048, 512
        return {
            "x": _w((lambda *s: torch.randn(*s, dtype=torch.bfloat16) * 0.05)(B, S, D)),
            "wqkv": _w((lambda *s: torch.randn(*s, dtype=torch.bfloat16) * 0.05)(D, 3 * D)),
            "wo": _w((lambda *s: torch.randn(*s, dtype=torch.bfloat16) * 0.05)(D, D)),
        }
    _A_in = _A_setup()

    def _B_setup():
        B, S, D, F = 1, 2048, 512, 1792
        return {
            "x": _w((lambda *s: torch.randn(*s, dtype=torch.bfloat16) * 0.05)(B, S, D)),
            "w1": _w((lambda *s: torch.randn(*s, dtype=torch.bfloat16) * 0.8)(D, F) * (D ** -0.5)),
            "b1": _w((lambda *s: torch.randn(*s, dtype=torch.bfloat16) * 0.8)(F) * 0.01),
            "w2": _w((lambda *s: torch.randn(*s, dtype=torch.bfloat16) * 0.8)(F, D) * (F ** -0.5)),
            "b2": _w((lambda *s: torch.randn(*s, dtype=torch.bfloat16) * 0.8)(D) * 0.01),
        }
    _B_in = _B_setup()

    return {
        "A_x": _A_in["x"],
        "A_wqkv": _A_in["wqkv"],
        "A_wo": _A_in["wo"],
        "B_x": _B_in["x"],
        "B_w1": _B_in["w1"],
        "B_b1": _B_in["b1"],
        "B_w2": _B_in["w2"],
        "B_b2": _B_in["b2"],
    }

def reference(A_x, A_wqkv, A_wo, B_x, B_w1, B_b1, B_w2, B_b2):
    def _A_ref(x, wqkv, wo):
        B, S, D = x.shape
        H = 32; Dh = D // H; W = 256
        qkv = (lambda x, *d: x.permute(*d))((x @ wqkv).reshape(B, S, 3, H, Dh), 2, 0, 3, 1, 4)
        q, k, v = qkv[0], qkv[1], qkv[2]
        scores = torch.einsum("bhqd,bhkd->bhqk", q, k) * (Dh ** -0.5)
        idx = torch.arange(S)
        mask = (idx[:, None] - idx[None, :] >= 0) & (idx[:, None] - idx[None, :] < W)
        scores = torch.where(mask[None, None], scores, -1e9)
        p = _softmax(scores, axis=-1)
        o = torch.einsum("bhqk,bhkd->bhqd", p, v)
        return (lambda x, *d: x.permute(*d))(o, 0, 2, 1, 3).reshape(B, S, D) @ wo

    def _B_ref(x, w1, b1, w2, b2):
        h = torch.einsum("bsd,df->bsf", x, w1) + b1
        h = _gelu(h)
        return torch.einsum("bsf,fd->bsd", h, w2) + b2

    x = A_x
    xn = _layernorm(x, axis=-1)
    return x + _A_ref(xn, A_wqkv, A_wo) + _B_ref(xn, B_w1, B_b1, B_w2, B_b2)
```

```python
import re

REG_RE = re.compile(r'(?<![\w.])(-?\|?)(?:(v|s|a)\[(\d+):(\d+)\]|(v|s|a)(\d+)|(vcc|exec|m0|scc))(?![\w])')

def regs_of(tok):
    out = []
    for m in REG_RE.finditer(tok):
        if m.group(2):
            out += [(m.group(2), i) for i in range(int(m.group(3)), int(m.group(4)) + 1)]
        elif m.group(5):
            out.append((m.group(5), int(m.group(6))))
        else:
            n = m.group(7)
            if n == 'vcc': out += [('vcc', 0)]
            elif n == 'exec': out += [('exec', 0)]
            elif n == 'm0': out += [('m0', 0)]
    return out

def split_ops(s):
    ops, depth, cur = [], 0, ''
    for ch in s:
        if ch == '[': depth += 1
        if ch == ']': depth -= 1
        if ch == ',' and depth == 0:
            ops.append(cur.strip()); cur = ''
        else:
            cur += ch
    if cur.strip(): ops.append(cur.strip())
    return ops

TRANS = ('v_exp_f32', 'v_log_f32', 'v_rcp_f32', 'v_rsq_f32', 'v_sqrt_f32', 'v_sin_f32', 'v_cos_f32')

class Em:
    def __init__(self):
        self.lines = []
        self.t = 0
        self.vm = []
        self.lg = []
        self.valu_w = {}
        self.trans_w = {}
        self.dot_w = {}
        self.mfma_w = {}
        self.mfma_c = {}
        self.valu_sw = {}
        self.st_data = {}
        self.m0_w = -100
        self.uid = 0
        self.ninstr = 0
        self.nnops = 0
        self.drop = None
    def raw(self, s):
        self.lines.append('    ' + s)
    def label(self, l):
        self.lines.append(l + ':')
    def newlabel(self, p='L'):
        self.uid += 1
        return f'{p}_{self.uid}'
    def comment(self, s):
        self.lines.append('    ; ' + s)
    def nop(self, n):
        while n > 0:
            k = min(n, 16)
            self.raw(f's_nop {k-1}')
            self.t += k; n -= k; self.nnops += 1
    def text(self):
        return '\n'.join(self.lines) + '\n'
    def _wait(self, vm=None, lg=None):
        parts = []
        if vm is not None:
            if vm < len(self.vm):
                parts.append(f'vmcnt({min(vm,63)})')
                self.vm = self.vm[len(self.vm) - vm:] if vm > 0 else []
        if lg is not None:
            if lg < len(self.lg):
                if any(o['smem'] for o in self.lg): lg = 0
                parts.append(f'lgkmcnt({min(lg,15)})')
                self.lg = self.lg[len(self.lg) - lg:] if lg > 0 else []
        if parts:
            self.raw('s_waitcnt ' + ' '.join(parts)); self.t += 1; self.ninstr += 1
    def wait_vm_tag(self, tag):
        idx = max([i for i, o in enumerate(self.vm) if o.get('tag') == tag], default=-1)
        if idx >= 0: self._wait(vm=len(self.vm) - 1 - idx)
    def wait_lg_tag(self, tag):
        idx = max([i for i, o in enumerate(self.lg) if o.get('tag') == tag], default=-1)
        if idx >= 0: self._wait(lg=len(self.lg) - 1 - idx)
    def wait_vm0(self, force=False):
        if force and not self.vm:
            self.raw('s_waitcnt vmcnt(0)'); self.t += 1
        self._wait(vm=0)
    def wait_lg0(self, force=False):
        if force and not self.lg:
            self.raw('s_waitcnt lgkmcnt(0)'); self.t += 1
        self._wait(lg=0)
    def settle(self, n=20):
        need = 0
        for d, w in ((self.valu_w, 2), (self.valu_sw, 5), (self.st_data, 2)):
            for r, t in d.items(): need = max(need, t + w - self.t)
        for r, (t, p, _) in self.mfma_w.items(): need = max(need, t + (12 if p == 8 else 8) - self.t)
        for r, (t, p) in self.mfma_c.items(): need = max(need, t + (7 if p == 8 else 3) - self.t)
        for r, (t, o) in self.dot_w.items(): need = max(need, t + 3 - self.t)
        need = max(need, self.m0_w + 1 - self.t)
        if need > 0: self.nop(need)
    def __call__(self, text, tag=None):
        for l in text.strip('\n').split('\n'):
            l = l.split(';')[0].strip()
            if not l: continue
            if l.endswith(':'):
                self.label(l[:-1]); continue
            self.I(l, tag)
        return self
    def I(self, l, tag=None):
        if self.drop and re.search(self.drop, l): return
        sp = l.split(None, 1)
        mn = sp[0]; rest = sp[1] if len(sp) > 1 else ''
        if mn == 'WAITVM':
            self.wait_vm_tag(rest.strip()); return
        if mn == 'WAITLG':
            self.wait_lg_tag(rest.strip()); return
        if mn == 'WAITVM0': self.wait_vm0(); return
        if mn == 'WAITLG0': self.wait_lg0(); return
        if '#' in rest:
            rest, tag = rest.split('#'); rest = rest.strip(); tag = tag.strip()
            l = mn + ' ' + rest
        ops = split_ops(rest)
        dst, src = [], []
        kind = None
        srcA = srcB = srcC = []
        if mn.startswith('v_mfma'):
            kind = 'mfma'
            dst = regs_of(ops[0]); srcA = regs_of(ops[1]); srcB = regs_of(ops[2]); srcC = regs_of(ops[3].split()[0])
            src = srcA + srcB + srcC
            passes = 8 if '32x32x16' in mn else 4
        elif mn.startswith('ds_read') or mn.startswith('ds_bpermute') or mn.startswith('ds_swizzle') or '_rtn_' in mn:
            kind = 'dsr'; dst = regs_of(ops[0]); src = [r for o in ops[1:] for r in regs_of(o)]
        elif mn.startswith('ds_'):
            kind = 'dsw'; src = [r for o in ops for r in regs_of(o)]
        elif mn.startswith('buffer_load') or mn.startswith('global_load'):
            if re.search(r'\blds\b', rest) or '_lds_' in mn:
                kind = 'dma'; src = [r for o in ops for r in regs_of(o)] + [('m0', 0)]
            else:
                kind = 'vml'; dst = regs_of(ops[0]); src = [r for o in ops[1:] for r in regs_of(o)]
                if 'd16' in mn: src += dst
        elif mn.startswith('buffer_store') or mn.startswith('global_store') or mn.startswith('buffer_atomic') or mn.startswith('global_atomic'):
            kind = 'vms'; src = [r for o in ops for r in regs_of(o)]
        elif mn.startswith('buffer_'):
            kind = 'vms'
        elif mn.startswith('s_load') or mn.startswith('s_memtime') or mn.startswith('s_memrealtime') or mn.startswith('s_buffer_load'):
            kind = 'smem'; dst = regs_of(ops[0]); src = [r for o in ops[1:] for r in regs_of(o)]
        elif mn.startswith('v_'):
            kind = 'valu'
            if mn.startswith('v_cmp'):
                dst = regs_of(ops[0]); src = [r for o in ops[1:] for r in regs_of(o)]
            elif 'permlane' in mn and 'swap' in mn:
                dst = regs_of(ops[0]) + regs_of(ops[1]); src = list(dst)
            elif mn.startswith(('v_add_co', 'v_sub_co', 'v_addc_co', 'v_subb_co', 'v_subrev_co')):
                dst = regs_of(ops[0]) + regs_of(ops[1]); src = [r for o in ops[2:] for r in regs_of(o)]
            else:
                dst = regs_of(ops[0]); src = [r for o in ops[1:] for r in regs_of(o)]
                if mn.startswith(('v_fmac', 'v_dot2c', 'v_writelane', 'v_pk_fmac')): src += dst
                if 'dpp' in mn or 'row_' in rest or 'quad_perm' in rest: src += dst
        elif mn.startswith('s_'):
            kind = 'salu'
            if mn.startswith(('s_cmp', 's_cbranch', 's_branch', 's_waitcnt', 's_barrier', 's_nop', 's_setprio', 's_sleep', 's_endpgm', 's_bitcmp', 's_setpc')):
                src = [r for o in ops for r in regs_of(o)]
            else:
                dst = regs_of(ops[0]); src = [r for o in ops[1:] for r in regs_of(o)]
                if 'saveexec' in mn: dst += [('exec', 0)]
                if mn.startswith(('s_addk', 's_mulk', 's_cmov')): src += dst
        else:
            raise ValueError('unknown instr ' + l)
        touched = set(dst) | set(src)
        vmi = max([i for i, o in enumerate(self.vm) if o['dst'] & touched], default=-1)
        lgi = max([i for i, o in enumerate(self.lg) if o['dst'] & touched], default=-1)
        if vmi >= 0 or lgi >= 0:
            self._wait(vm=(len(self.vm) - 1 - vmi) if vmi >= 0 else None, lg=(len(self.lg) - 1 - lgi) if lgi >= 0 else None)
        if mn == 's_nop':
            self.raw(l); self.t += int(rest) + 1; return
        if mn == 's_waitcnt':
            m = re.search(r'vmcnt\((\d+)\)', rest)
            if m:
                n = int(m.group(1)); self.vm = self.vm[max(0, len(self.vm) - n):] if n > 0 else []
            m = re.search(r'lgkmcnt\((\d+)\)', rest)
            if m:
                n = int(m.group(1)); self.lg = self.lg[max(0, len(self.lg) - n):] if n > 0 else []
            self.raw(l); self.t += 1; return
        need = self.t
        def req(tprod, ws):
            nonlocal need
            need = max(need, tprod + ws)
        vsrc = [r for r in src if r[0] in ('v', 'a')]
        vdst = [r for r in dst if r[0] in ('v', 'a')]
        ssrc = [r for r in src if r[0] in ('s', 'vcc')]
        if kind == 'mfma':
            for r in src:
                if r in self.valu_w: req(self.valu_w[r], 2)
                if r in self.dot_w: req(self.dot_w[r][0], 3)
            for r in srcA + srcB:
                if r in self.mfma_w:
                    t, p, _ = self.mfma_w[r]; req(t, 12 if p == 8 else 8)
            crange = (srcC[0], srcC[-1]) if srcC else None
            for r in srcC:
                if r in self.mfma_w:
                    t, p, rng = self.mfma_w[r]
                    if not (rng == crange and p == passes): req(t, 10 if p == 8 else 6)
            for r in dst:
                if r in self.mfma_w and r not in srcC:
                    t, p, rng = self.mfma_w[r]; req(t, 10 if p == 8 else 6)
                if r in self.mfma_c and r not in srcC:
                    t, p = self.mfma_c[r]; req(t, 7 if p == 8 else 3)
        else:
            if kind in ('valu', 'dsr', 'dsw', 'dma', 'vml', 'vms'):
                for r in vsrc + vdst:
                    if r in self.mfma_w:
                        t, p, _ = self.mfma_w[r]; req(t, 12 if p == 8 else 8)
                for r in vsrc + vdst:
                    if r in self.dot_w:
                        t, o = self.dot_w[r]
                        same_c = (o == mn and r in vdst)
                        if not same_c: req(t, 3)
            if kind in ('valu', 'dsr', 'vml'):
                for r in vdst:
                    if r in self.mfma_c:
                        t, p = self.mfma_c[r]; req(t, 7 if p == 8 else 3)
                    if r in self.st_data: req(self.st_data[r], 2)
            if kind == 'valu':
                if mn not in TRANS and not mn.startswith(TRANS):
                    for r in vsrc:
                        if r in self.trans_w: req(self.trans_w[r], 1)
                for r in ssrc:
                    if r in self.valu_sw: req(self.valu_sw[r], 4 if 'lane' in mn else 2)
                if mn.startswith(('v_readfirstlane', 'v_readlane')):
                    for r in vsrc:
                        if r in self.valu_w: req(self.valu_w[r], 1)
                if 'permlane' in mn or 'dpp' in mn or 'row_' in rest or 'quad_perm' in rest:
                    for r in vsrc:
                        if r in self.valu_w: req(self.valu_w[r], 2)
            if kind in ('dma', 'vml', 'vms', 'dsr', 'dsw'):
                for r in ssrc:
                    if r in self.valu_sw: req(self.valu_sw[r], 5)
                for r in vsrc:
                    if r in self.trans_w: req(self.trans_w[r], 1)
            if kind == 'dma': req(self.m0_w, 1)
            if kind in ('salu', 'smem'):
                for r in ssrc:
                    if r in self.valu_sw: req(self.valu_sw[r], 1)
        if need > self.t: self.nop(need - self.t)
        self.raw(l); self.t += 1; self.ninstr += 1
        now = self.t
        for r in dst:
            for d in (self.valu_w, self.trans_w, self.dot_w, self.mfma_w, self.valu_sw):
                d.pop(r, None)
        if kind == 'mfma':
            rng = (dst[0], dst[-1])
            for r in dst: self.mfma_w[r] = (now, passes, rng)
            for r in srcC: self.mfma_c[r] = (now, passes)
        elif kind == 'valu':
            for r in dst:
                if r[0] in ('v', 'a'):
                    self.valu_w[r] = now
                    if mn.startswith(TRANS): self.trans_w[r] = now
                    if mn.startswith('v_dot'): self.dot_w[r] = (now, mn)
                else:
                    self.valu_sw[r] = now
        elif kind == 'salu':
            if ('m0', 0) in dst: self.m0_w = now
        if kind in ('dsr', 'dsw'):
            self.lg.append(dict(dst=set(dst), smem=False, tag=tag))
        elif kind == 'smem':
            self.lg.append(dict(dst=set(dst), smem=True, tag=tag))
        elif kind in ('dma', 'vml', 'vms'):
            self.vm.append(dict(dst=set(dst), tag=tag))
            if kind == 'vms' and ('x4' in mn or 'x3' in mn):
                for r in regs_of(ops[0] if mn.startswith('buffer') else ops[1]): self.st_data[r] = now

def lines(text):
    out = []
    for l in text.strip('\n').split('\n'):
        l = l.split(';')[0].strip()
        if l: out.append(l)
    return out

def interleave(main, fill, slots=None, start=0):
    if slots is None: slots = lambda s: s.startswith('v_mfma')
    anchors = [i for i, s in enumerate(main) if slots(s)][start:]
    if not anchors: return main + fill
    n = len(anchors); out = []; k = 0; ai = 0
    aset = {a: j for j, a in enumerate(anchors)}
    for i, s in enumerate(main):
        out.append(s)
        if i in aset:
            j = aset[i]
            upto = (len(fill) * (j + 1) + n - 1) // n
            out += fill[k:upto]; k = upto
    out += fill[k:]
    return out
```

```python
import sys, math, struct
from em import Em, lines, interleave

NAME = "parallel_sum__sliding_block__dense_activation_gelu__prompt"

WS_AH = 0
AH_T = 144 * 1024
WS_K = 0x1000000
WS_V = 0x1200000
WS_Q = 0x1400000
WS_FL = 0x1600000
FL_T = 1536
WS_PROF = 0x1800000
WS_SIZE = 0x2000000
SLOT = 32768
L_MASKD = 131072
L_MASKF = 135168
L_STATS = 139264
L_KST = 143360
L_RV = 143360
L_CS = 159744
L_VST = 114688
LDS_BYTES = 163840

def f32(x): return struct.unpack('<I', struct.pack('<f', x))[0]
LOG2E = 1.4426950408889634
GA = -2.0 * math.sqrt(2.0 / math.pi) * LOG2E
GB = GA * 0.044715
NEGBIG = f32(-1e30)
ONES = 0x3f803f80

S_X, S_QKV, S_W1, S_W2, S_WO, S_WS, S_OUT, S_DBG, S_B1, S_B2 = [8 + 4 * i for i in range(10)]
def srd(b): return f's[{b}:{b+3}]'
sW = 's48'; sNH = 's49'; sTT = 's50'; sRB = 's51'; sG = 's52'; sROT = 's53'; sT = 's54'; sTYPE = 's55'
sWB1K = 's56'
sWB2K = 's57'
sCOLA = 's58'; sCOLB = 's59'; sCOLC = 's60'; sCOLD = 's61'
sT0, sT1, sT2, sT3, sT4, sT5 = 's62', 's63', 's86', 's87', 's88', 's89'
sEX = 's[90:91]'
sGA, sGB = 's92', 's93'
sCNT = 's94'
sR2 = 's95'; sC64 = 's96'; sROT2 = 's97'; sIMIN = 's98'; sHEAD = 's99'; sAHB = 's100'; sPART = 's101'
PROF = False

class G:
    def __init__(self, stop_after=None, prof=False):
        self.e = Em()
        self.stop_after = stop_after
        self.prof = prof
        self.nprof = 0

    def stamp(self, idx):
        if not self.prof: return
        e = self.e
        e.raw(f's_memrealtime s[4:5]')
        e.raw('s_waitcnt lgkmcnt(0)'); e.lg = []
        e.raw(f's_mov_b32 s{64+idx}, s4'); e.t += 3

    def prologue(self):
        e = self.e
        e(f"""
        s_cmp_ge_u32 s2, 256
        s_cbranch_scc1 L_end
        s_load_dwordx16 s[64:79], s[0:1], 0
        s_load_dwordx4 s[80:83], s[0:1], 64
        s_load_dwordx2 s[84:85], s[0:1], 80
        v_lshrrev_b32 v1, 6, v0
        v_and_b32 v0, 63, v0
        v_readfirstlane_b32 {sW}, v1
        s_and_b32 {sT0}, s2, 7
        s_lshr_b32 {sT1}, s2, 3
        s_and_b32 {sRB}, {sT0}, 1
        s_lshl_b32 {sRB}, {sRB}, 3
        s_and_b32 {sT2}, {sT1}, 7
        s_add_u32 {sRB}, {sRB}, {sT2}
        s_lshr_b32 {sT3}, {sT1}, 3
        s_lshr_b32 {sTYPE}, {sT3}, 1
        s_and_b32 {sG}, {sT0}, 6
        s_and_b32 {sT4}, {sT3}, 1
        s_add_u32 {sG}, {sG}, {sT4}
        s_lshl_b32 {sT4}, {sT3}, 1
        s_add_u32 {sROT}, {sT2}, {sT4}
        s_and_b32 {sROT}, {sROT}, 7
        s_lshr_b32 {sNH}, {sW}, 2
        s_lshl_b32 {sT4}, {sNH}, 1
        s_add_u32 {sTT}, {sW}, {sT4}
        s_and_b32 {sTT}, {sTT}, 3
        s_lshl_b32 {sT}, {sRB}, 2
        s_add_u32 {sT}, {sT}, {sTT}
        s_lshl_b32 {sWB1K}, {sW}, 10
        s_lshl_b32 {sWB2K}, {sW}, 11
        s_mov_b32 {sGA}, {f32(GA)}
        s_mov_b32 {sGB}, {f32(GB)}
        """)
        e(f"""
        s_lshl_b32 {sR2}, {sT0}, 2
        s_and_b32 {sT4}, {sT1}, 3
        s_add_u32 {sR2}, {sR2}, {sT4}
        s_lshr_b32 {sC64}, {sT1}, 2
        s_and_b32 {sHEAD}, s2, 31
        """)
        e(f"""
        v_lshrrev_b32 v27, 3, v0
        v_and_b32 v28, 7, v0
        v_lshlrev_b32 v22, 4, v0
        v_mov_b32 v14, {ONES}
        s_lshl_b32 {sT4}, {sRB}, 7
        s_lshl_b32 {sT5}, {sW}, 4
        s_add_u32 {sT4}, {sT4}, {sT5}
        v_add_u32 v29, {sT4}, v27
        v_lshrrev_b32 v30, 1, v27
        v_xor_b32 v30, v30, v28
        v_lshlrev_b32 v30, 4, v30
        v_lshl_add_u32 v10, v29, 10, v30
        v_xor_b32 v11, 64, v10
        v_add_u32 v11, 0x2000, v11
        v_and_b32 v30, 2, v27
        v_lshlrev_b32 v30, 1, v30
        v_xor_b32 v30, v30, v28
        v_lshlrev_b32 v30, 4, v30
        s_lshl_b32 {sT5}, {sW}, 3
        v_add_u32 v29, {sT5}, v27
        v_mul_u32_u24 v12, 3072, v29
        v_add_u32 v12, v12, v30
        v_mul_u32_u24 v13, 3584, v29
        v_add_u32 v13, v13, v30
        v_lshl_add_u32 v1, v29, 10, v30
        """)
        e.wait_lg0()
        def mk(b, lo, size):
            e(f"""
            s_mov_b32 s{b}, s{lo}
            s_and_b32 s{b+1}, s{lo+1}, 0xffff
            s_mov_b32 s{b+2}, {size}
            s_mov_b32 s{b+3}, 0x20000
            """)
        mk(S_X, 64, 2048 * 1024)
        mk(S_QKV, 66, 512 * 3072)
        mk(S_W1, 72, 512 * 3584)
        mk(S_WS, 84, WS_SIZE)
        self.mk = mk

    def prologue2(self):
        e = self.e
        mk = self.mk
        mk(S_WO, 68, 512 * 1024)
        mk(S_B1, 74, 1792 * 2)
        mk(S_W2, 76, 1792 * 1024)
        mk(S_B2, 78, 1024)
        mk(S_OUT, 80, 2048 * 1024)
        mk(S_DBG, 82, 256)
        e(f"""
        v_and_b32 v27, 31, v0
        v_lshrrev_b32 v28, 5, v0
        v_bfe_u32 v29, v27, 1, 3
        v_xor_b32 v29, v29, v28
        v_lshlrev_b32 v29, 4, v29
        s_lshl_b32 {sT4}, {sTT}, 12
        v_lshl_add_u32 v29, v27, 7, v29
        v_add_u32 v29, {sT4}, v29
        """)
        e(f"""
        v_bfe_u32 v31, v0, 2, 2
        v_lshl_add_u32 v30, v28, 3, v31
        v_lshlrev_b32 v30, 7, v30
        v_bfe_u32 v32, v0, 4, 1
        v_bfe_u32 v33, v0, 1, 1
        v_lshl_add_u32 v32, v32, 1, v33
        v_and_b32 v33, 2, v31
        v_lshlrev_b32 v33, 1, v33
        v_xor_b32 v32, v32, v33
        v_lshl_add_u32 v30, v32, 4, v30
        v_and_b32 v33, 1, v0
        v_lshl_add_u32 v30, v33, 3, v30
        s_lshl_b32 {sT4}, {sNH}, 6
        v_xor_b32 v30, {sT4}, v30
        """)
        for s in range(4):
            e(f"""
            s_add_u32 {sT4}, {sW}, {s}
            s_and_b32 {sT4}, {sT4}, 3
            s_lshl_b32 {sT5}, {sT4}, 5
            v_xor_b32 v{2+s}, {sT5}, v29
            s_lshl_b32 {sT5}, {sT4}, 11
            v_add_u32 v{6+s}, {sT5}, v30
            """)
        for r in range(15, 22): e(f"v_mov_b32 v{r}, 0")
        e(f"""
        s_and_b32 {sT4}, {sW}, 3
        s_lshl_b32 {sT5}, {sT4}, 3
        v_lshl_add_u32 v32, v28, 2, {sT5}
        v_sub_u32 v32, v27, v32
        v_mov_b32 v33, {NEGBIG}
        s_lshl_b32 {sT5}, {sT4}, 10
        v_add_u32 v34, {sT5}, v22
        v_add_u32 v34, {L_MASKD}, v34
        """)
        for j in range(4):
            e(f"""
            v_cmp_le_i32 vcc, {j}, v32
            v_cndmask_b32 v{36+j}, v33, 0, vcc
            v_cndmask_b32 v{40+j}, 0, v33, vcc
            """)
        e(f"""
        ds_write_b128 v34, v[36:39]
        ds_write_b128 v34, v[40:43] offset:4096
        """)

    def dma_stage1(self, c, units):
        slot = (c % 4) * SLOT
        out = [f's_add_u32 {sT0}, {sROT}, {c}', f's_and_b32 {sT0}, {sT0}, 7', f's_lshl_b32 {sT1}, {sT0}, 7']
        for i in range(2):
            out += [f's_add_u32 m0, {sWB2K}, {slot + 1024 * i}',
                    f'buffer_load_dwordx4 v{10+i}, {srd(S_X)}, {sT1} offen lds #c{c}']
        for u, (sr, vo, pitch, scol) in enumerate(units):
            out += [f's_mul_i32 {sT1}, {sT0}, {64 * pitch}', f's_add_u32 {sT1}, {sT1}, {scol}',
                    f's_add_u32 m0, {sWB1K}, {slot + 16384 + 8192 * u}',
                    f'buffer_load_dwordx4 {vo}, {srd(sr)}, {sT1} offen lds #c{c}']
        return out

    def dma_stage2(self, c, half, scol):
        slot = (c % 4) * SLOT
        out = []
        for i in range(4):
            cc = 4 * half + i
            out += [f's_add_u32 {sT0}, {sROT}, {cc}', f's_and_b32 {sT0}, {sT0}, 7',
                    f's_mul_i32 {sT1}, {sT0}, {64 * 3584}', f's_add_u32 {sT1}, {sT1}, {scol}',
                    f's_add_u32 m0, {sWB1K}, {slot + 8192 * i}',
                    f'buffer_load_dwordx4 v13, {srd(S_W1)}, {sT1} offen lds #c{c}']
        return out

    def win(self, want):
        out = []
        if want != self.curwin:
            out = [f'v_xor_b32 v{r}, 0x10000, v{r}' for r in range(2, 10)]
            self.curwin = want
        return out

    def cs_write(self, reg, unit, part_s):
        return lines(f"""
        v_mov_b32 v32, v{reg}
        v_permlane32_swap_b32 v32, v{reg}
        v_add_f32 v{reg}, v{reg}, v32
        v_add_u32 v33, {part_s}, v24
        ds_write_b32 v33, v{reg} offset:{unit * 1024}
        """)

    def nf_build(self, unit, nf, bias, nparts=4):
        o = [f'ds_read_b128 v[32:35], v24 offset:{unit * 1024}']
        if nparts == 4:
            o += ['v_add_f32 v32, v32, v33', 'v_add_f32 v34, v34, v35', 'v_add_f32 v32, v32, v34']
        else:
            o += ['v_add_f32 v32, v32, v33']
        o += lines(f"""
        v_cvt_pk_bf16_f32 v33, v32, v32
        v_lshlrev_b32 v33, 16, v33
        v_sub_f32 v33, v32, v33
        v_cvt_pk_bf16_f32 v{nf}, v32, v33
        v_and_b32 v34, 0xffff0000, v{nf}
        v_sub_f32 v33, v33, v34
        v_cvt_pk_bf16_f32 v{nf+1}, v33, {bias}
        """)
        return o

    def epi_qk(self, acc, rreg, base, tag):
        o = []
        for i in range(16): o.append(f'v_mul_f32 v{acc+i}, v{rreg}, v{acc+i}')
        for i in range(8): o.append(f'v_cvt_pk_bf16_f32 v{acc+i}, v{acc+2*i}, v{acc+2*i+1}')
        o += lines(f"""
        s_lshl_b32 {sT2}, {sG}, 2
        s_lshl_b32 {sT3}, {sNH}, 1
        s_add_u32 {sT2}, {sT2}, {sT3}
        s_lshl_b32 {sT2}, {sT2}, 16
        s_lshl_b32 {sT3}, {sT}, 10
        s_add_u32 {sT2}, {sT2}, {sT3}
        s_add_u32 {sT2}, {sT2}, {base}
        s_add_u32 {sT3}, {sT2}, 65536
        buffer_store_dwordx4 v[{acc}:{acc+3}], v22, {srd(S_WS)}, {sT2} offen sc1 #{tag}
        buffer_store_dwordx4 v[{acc+4}:{acc+7}], v22, {srd(S_WS)}, {sT3} offen sc1 #{tag}
        """)
        return o

    def epi_v(self, acc, tmp, tag):
        o = lines(f"""
        s_lshl_b32 {sT2}, {sW}, 7
        s_add_u32 {sT2}, {sT2}, {L_RV}
        v_lshl_add_u32 v32, v27, 2, {sT2}
        v_lshl_add_u32 v33, v28, 4, {sT2}
        ds_write_b32 v32, v26
        """)
        for q in range(4): o.append(f'ds_read_b128 v[{tmp+4*q}:{tmp+4*q+3}], v33 offset:{32*q}')
        for i in range(16): o.append(f'v_mul_f32 v{acc+i}, v{tmp+i}, v{acc+i}')
        for i in range(8): o.append(f'v_cvt_pk_bf16_f32 v{acc+i}, v{acc+2*i}, v{acc+2*i+1}')
        o += lines(f"""
        v_bfe_u32 v32, v0, 4, 1
        v_and_b32 v33, 15, v0
        v_lshl_add_u32 v33, v28, 4, v33
        v_lshlrev_b32 v33, 4, v33
        v_lshl_add_u32 v32, v32, 16, v33
        s_lshl_b32 {sT2}, {sG}, 2
        s_lshl_b32 {sT3}, {sNH}, 1
        s_add_u32 {sT2}, {sT2}, {sT3}
        s_lshl_b32 {sT2}, {sT2}, 16
        s_lshl_b32 {sT3}, {sT}, 10
        s_add_u32 {sT2}, {sT2}, {sT3}
        s_add_u32 {sT2}, {sT2}, {WS_V}
        buffer_store_dwordx4 v[{acc}:{acc+3}], v32, {srd(S_WS)}, {sT2} offen sc1 #{tag}
        buffer_store_dwordx4 v[{acc+4}:{acc+7}], v32, {srd(S_WS)}, {sT2} offen offset:512 sc1 #{tag}
        """)
        return o

    def epi_h(self, acc, tmp, scol, tag):
        o = []
        for half in range(2):
            a = acc + 8 * half
            for i in range(8): o.append(f'v_mul_f32 v{a+i}, v26, v{a+i}')
            for i in range(8): o.append(f'v_mul_f32 v{tmp+i}, v{a+i}, v{a+i}')
            for i in range(8): o.append(f'v_fma_f32 v{tmp+i}, v{tmp+i}, {sGB}, v25')
            for i in range(8): o.append(f'v_mul_f32 v{tmp+i}, v{tmp+i}, v{a+i}')
            for i in range(8): o.append(f'v_exp_f32 v{tmp+i}, v{tmp+i}')
            for i in range(8): o.append(f'v_add_f32 v{tmp+i}, 1.0, v{tmp+i}')
            for i in range(8): o.append(f'v_rcp_f32 v{tmp+i}, v{tmp+i}')
            for i in range(8): o.append(f'v_mul_f32 v{a+i}, v{a+i}, v{tmp+i}')
            for i in range(4): o.append(f'v_cvt_pk_bf16_f32 v{a+i}, v{a+2*i}, v{a+2*i+1}')
            if half == 0:
                o += lines(f"""
                s_lshl_b32 {sT2}, {scol}, 5
                s_lshl_b32 {sT3}, {sNH}, 11
                s_add_u32 {sT2}, {sT2}, {sT3}
                s_add_u32 {sT2}, {sT2}, {sAHB}
                """)
            o.append(f'buffer_store_dwordx4 v[{a}:{a+3}], v22, {srd(S_WS)}, {sT2} offen offset:{1024*half} sc1 #{tag}')
        return o

    def flag_set(self, tag, off_s):
        return lines(f"""
        v_lshl_add_u32 v32, v0, 26, {off_s}
        v_mov_b32 v33, 1
        WAITVM {tag}
        buffer_store_dword v33, v32, {srd(S_WS)}, 0 offen sc1
        """)

    def unit_stream(self, c, acc, csreg, cs_slots=(0,), first=False):
        half = c & 1
        slot = (c % 4) * SLOT
        o = self.win(slot & 0x10000)
        base = slot & 0xffff
        steps = [(i, s) for i in range(4) for s in range(4)]
        def rd(k):
            i, s = steps[k]; b = 48 + 4 * (k % 4)
            return [f'ds_read_b64_tr_b16 v[{b}:{b+1}], v{6+s} offset:{base + 8192*i}',
                    f'ds_read_b64_tr_b16 v[{b+2}:{b+3}], v{6+s} offset:{base + 8192*i + 512}']
        for k in range(3): o += rd(k)
        for k, (i, s) in enumerate(steps):
            b = 48 + 4 * (k % 4)
            x = 128 + 4 * (16 * half + k)
            cin = '0' if (first and k == 0) else f'v[{acc}:{acc+15}]'
            o.append(f'v_mfma_f32_32x32x16_bf16 v[{acc}:{acc+15}], v[{b}:{b+3}], v[{x}:{x+3}], {cin}')
            if s in cs_slots:
                for j in range(4): o.append(f'v_dot2_f32_bf16 v{csreg}, v{b+j}, v14, v{csreg}')
            if k + 3 < 16: o += rd(k + 3)
        return o

    def p1(self, typ):
        e = self.e
        L = f'T{typ}'
        accA, accB, accC = 96, 112, 80
        if typ == 1:
            units = [(S_QKV, 'v12', 3072, sCOLA), (S_QKV, 'v12', 3072, sCOLB)]
            e(f"""
            s_lshl_b32 {sCOLC}, {sG}, 7
            s_add_u32 {sCOLA}, {sCOLC}, 1024
            s_add_u32 {sCOLB}, {sCOLC}, 2048
            s_lshr_b32 {sCOLD}, {sG}, 1
            s_add_u32 {sCOLD}, {sCOLD}, 24
            s_lshl_b32 {sCOLD}, {sCOLD}, 7
            """)
        else:
            units = [(S_QKV, 'v12', 3072, sCOLA), (S_W1, 'v13', 3584, sCOLB)]
            e(f"""
            s_lshl_b32 {sCOLA}, {sG}, 7
            s_lshl_b32 {sCOLB}, {sG}, 8
            s_add_u32 {sCOLB}, {sCOLB}, 1024
            s_add_u32 {sCOLC}, {sCOLB}, 128
            """)
        if typ == 1:
            lab = e.newlabel('NORST')
            e(f"""
            s_lshl_b32 {sT0}, {sG}, 3
            s_add_u32 {sT0}, {sT0}, {sW}
            s_cmp_lg_u32 {sT0}, 7
            s_cbranch_scc1 {lab}
            s_mul_i32 {sT0}, {sRB}, {4 * FL_T}
            s_add_u32 {sT0}, {sT0}, {WS_FL}
            v_mov_b32 v32, 0
            v_mov_b32 v33, 0
            v_mov_b32 v34, 0
            v_mov_b32 v35, 0
            """)
            saved = list(e.vm)
            for i in range(6):
                if i == 4: e(f's_add_u32 {sT0}, {sT0}, 4096')
                e(f'buffer_store_dwordx4 v[32:35], v22, {srd(S_WS)}, {sT0} offen offset:{1024 * (i % 4)} sc1')
            e.vm = saved
            e.label(lab)
        for c in range(4):
            for l in self.dma_stage1(c, units): e.I(l)
        self.prologue2()
        e(f"""
        s_lshl_b32 {sT4}, {sNH}, 6
        v_lshl_add_u32 v32, v27, 1, {sT4}
        v_mov_b32 v25, {sGA}
        s_mul_i32 {sAHB}, {sT}, {AH_T}
        s_lshl_b32 {sT4}, {sNH}, 9
        s_add_u32 {sT4}, {sT4}, {L_CS}
        v_lshl_add_u32 v24, v27, 4, {sT4}
        """)
        if typ == 1:
            e(f"""
            buffer_load_ushort v44, v32, {srd(S_B1)}, {sCOLC} offen
            buffer_load_ushort v45, v32, {srd(S_B1)}, {sCOLD} offen
            """)
        else:
            e(f"""
            buffer_load_ushort v44, v32, {srd(S_B1)}, {sCOLC} offen
            buffer_load_ushort v45, v32, {srd(S_B1)}, {sCOLB} offen
            """)
        self.curwin = 0
        self.stamp(0)
        for c in range(8):
            e.wait_vm_tag(f'c{c}')
            e.wait_lg0()
            e('s_barrier')
            if c == 0: self.stamp(1)
            if c == 0 and typ == 1:
                lab = e.newlabel('NOARM')
                e(f"""
                s_lshl_b32 {sT0}, {sG}, 3
                s_add_u32 {sT0}, {sT0}, {sW}
                s_cmp_lg_u32 {sT0}, 7
                s_cbranch_scc1 {lab}
                s_lshl_b32 {sT0}, {sRB}, 2
                v_mov_b32 v32, {sT0}
                v_mov_b32 v33, 1
                s_mov_b64 exec, 1
                """)
                saved = list(e.vm)
                e(f'buffer_store_dword v33, v32, {srd(S_DBG)}, 0 offen sc1')
                e.vm = saved
                e('s_mov_b64 exec, -1')
                e.label(lab)
            nxt = c + 3
            dm = []
            if c >= 1:
                if nxt < 8: dm = self.dma_stage1(nxt, units)
                elif nxt < 10: dm = self.dma_stage2(nxt, nxt - 8, sCOLC)
                elif typ == 1: dm = self.dma_stage2(nxt, nxt - 10, sCOLD)
            slot = (c % 4) * SLOT
            o = self.win(slot & 0x10000)
            base = slot & 0xffff
            rds = []
            for s in range(4):
                x = 128 + 4 * (4 * c + s); b = 48 + 8 * s
                rds.append([f'ds_read_b128 v[{x}:{x+3}], v{2+s} offset:{base}',
                      f'ds_read_b64_tr_b16 v[{b}:{b+1}], v{6+s} offset:{base + 16384}',
                      f'ds_read_b64_tr_b16 v[{b+2}:{b+3}], v{6+s} offset:{base + 16384 + 512}',
                      f'ds_read_b64_tr_b16 v[{b+4}:{b+5}], v{6+s} offset:{base + 24576}',
                      f'ds_read_b64_tr_b16 v[{b+6}:{b+7}], v{6+s} offset:{base + 24576 + 512}'])
            o += rds[0] + rds[1] + dm + rds[2]
            for s in range(4):
                x = 128 + 4 * (4 * c + s); b = 48 + 8 * s
                first = (c == 0 and s == 0)
                ca = '0' if first else f'v[{accA}:{accA+15}]'
                cb = '0' if first else f'v[{accB}:{accB+15}]'
                o.append(f'v_mfma_f32_32x32x16_bf16 v[{accA}:{accA+15}], v[{b}:{b+3}], v[{x}:{x+3}], {ca}')
                if typ == 1:
                    o.append(f'v_mfma_f32_32x32x16_bf16 v[{accB}:{accB+15}], v[{x}:{x+3}], v[{b+4}:{b+7}], {cb}')
                else:
                    o.append(f'v_mfma_f32_32x32x16_bf16 v[{accB}:{accB+15}], v[{b+4}:{b+7}], v[{x}:{x+3}], {cb}')
                if s == 0: o += rds[3]
                if s < 2:
                    for j in range(4):
                        o.append(f'v_dot2_f32_bf16 v{15 + (j & 1)}, v{x+j}, v14, v{15 + (j & 1)}')
                        o.append(f'v_dot2_f32_bf16 v{17 + (j & 1)}, v{x+j}, v{x+j}, v{17 + (j & 1)}')
                if s == 0:
                    for j in range(4):
                        o.append(f'v_dot2_f32_bf16 v19, v{b+j}, v14, v19')
                        o.append(f'v_dot2_f32_bf16 v20, v{b+4+j}, v14, v20')
            if c == 5:
                o.append(f'v_and_b32 v46, 15, v0')
                o.append(f'v_lshlrev_b32 v46, 2, v46')
                o.append(f'buffer_load_dword v47, v46, {srd(S_DBG)}, 0 offen sc1')
            for l in o: e.I(l)
        self.stamp(2)
        e(f"""
        v_add_f32 v34, v15, v16
        v_add_f32 v35, v17, v18
        s_lshl_b32 {sT4}, {sTT}, 10
        s_lshl_b32 {sT5}, {sNH}, 4
        s_add_u32 {sT4}, {sT4}, {L_STATS}
        v_lshl_add_u32 v23, v27, 5, {sT4}
        v_lshl_add_u32 v36, v28, 3, {sT5}
        v_add_u32 v36, v36, v23
        ds_write_b64 v36, v[34:35]
        s_lshl_b32 {sPART}, {sTT}, 2
        """)
        for l in self.cs_write(19, 0, sPART) + self.cs_write(20, 1, sPART): e.I(l)
        lab = e.newlabel('ARMOK'); lp = e.newlabel('ARMLP')
        e(f"""
        v_cmp_ne_u32 vcc, 1, v47
        s_cmp_eq_u64 vcc, 0
        s_cbranch_scc1 {lab}
        s_mov_b32 {sCNT}, 0
        """)
        e.label(lp)
        e.raw(f'buffer_load_dword v47, v46, {srd(S_DBG)}, 0 offen sc1')
        e.raw('s_waitcnt vmcnt(0)')
        e.raw('v_cmp_ne_u32 vcc, 1, v47')
        e.raw(f's_add_u32 {sCNT}, {sCNT}, 1')
        e.raw(f's_cmp_gt_u32 {sCNT}, 0x100000')
        e.raw(f's_cbranch_scc1 {lab}')
        e.raw('s_cmp_lg_u64 vcc, 0')
        e.raw(f's_cbranch_scc1 {lp}')
        e.label(lab)
        e.wait_vm_tag('c8'); e.wait_lg0(); e('s_barrier')
        dm = self.dma_stage2(11, 1, sCOLD) if typ == 1 else []
        for l in dm: e.I(l)
        pre = lines(f"""
        ds_read_b128 v[64:67], v23
        ds_read_b128 v[68:71], v23 offset:16
        v_mov_b32 v38, 0
        v_mov_b32 v39, 0
        v_mov_b32 v42, 0
        v_mov_b32 v43, 0
        v_lshlrev_b32 v44, 16, v44
        v_lshlrev_b32 v45, 16, v45
        v_add_f32 v64, v64, v66
        v_add_f32 v65, v65, v67
        v_add_f32 v68, v68, v70
        v_add_f32 v69, v69, v71
        v_add_f32 v64, v64, v68
        v_add_f32 v65, v65, v69
        v_mul_f32 v64, {f32(1/512)}, v64
        v_mul_f32 v65, {f32(1/512)}, v65
        v_fma_f32 v65, -v64, v64, v65
        v_max_f32 v65, 0, v65
        v_cvt_pk_bf16_f32 v66, v65, v65
        v_lshlrev_b32 v66, 16, v66
        v_add_f32 v66, {f32(1e-5)}, v66
        v_cvt_pk_bf16_f32 v66, v66, v66
        v_lshlrev_b32 v66, 16, v66
        v_sqrt_f32 v66, v66
        v_cvt_pk_bf16_f32 v36, -v64, -v64
        v_cvt_pk_bf16_f32 v37, -v64, v66
        v_and_b32 v66, 0xffff0000, v37
        v_rcp_f32 v26, v66
        v_cmp_eq_u32 vcc, 0, v28
        v_cndmask_b32 v36, 0, v36, vcc
        v_cndmask_b32 v37, 0, v37, vcc
        """)
        TF, NF = 'v[36:39]', 'v[40:43]'
        fl_base = lines(f"""
        s_mul_i32 {sT4}, {sT}, {FL_T}
        s_lshl_b32 {sT5}, {sG}, 5
        s_add_u32 {sT4}, {sT4}, {sT5}
        s_lshl_b32 {sT5}, {sNH}, 4
        s_add_u32 {sT4}, {sT4}, {sT5}
        s_add_u32 {sT4}, {sT4}, {WS_FL}
        """)
        if typ == 1:
            epi = pre + self.nf_build(0, 40, '0') + [f'v_mfma_f32_32x32x16_bf16 v[{accA}:{accA+15}], {NF}, {TF}, v[{accA}:{accA+15}]']
            epi += self.nf_build(1, 40, '0') + [f'v_mfma_f32_32x32x16_bf16 v[{accB}:{accB+15}], {TF}, {NF}, v[{accB}:{accB+15}]']
            epi += self.epi_qk(accA, 26, WS_K, 'kv') + self.epi_v(accB, 64, 'kv')
            epi2 = fl_base + self.flag_set('kv', sT4)
        else:
            epi = pre + self.nf_build(0, 40, '0') + [f'v_mfma_f32_32x32x16_bf16 v[{accA}:{accA+15}], {NF}, {TF}, v[{accA}:{accA+15}]']
            epi += self.nf_build(1, 40, 'v45') + [f'v_mfma_f32_32x32x16_bf16 v[{accB}:{accB+15}], {NF}, {TF}, v[{accB}:{accB+15}]']
            epi += [f'v_mul_f32 v64, {f32(0.25 * LOG2E)}, v26'] + self.epi_qk(accA, 64, WS_Q, 'kv')
            hh = self.epi_h(accB, 64, sCOLB, 'h')
            epi += hh[:len(hh) // 2]
            epi2 = fl_base + [f's_add_u32 {sT4}, {sT4}, 256'] + self.flag_set('kv', sT4) + hh[len(hh) // 2:]
        is_main = lambda s: s.startswith('v_mfma') and f'v[{accC}:{accC+15}], v[' in s
        st = self.unit_stream(8, accC, 21, first=True)
        for l in interleave(st, epi, is_main): e.I(l)
        self.stamp(3)
        e.wait_vm_tag('c9'); e.wait_lg0(); e('s_barrier')
        st = self.unit_stream(9, accC, 21)
        for l in interleave(st, epi2, is_main): e.I(l)
        for l in self.cs_write(21, 2, sPART): e.I(l)
        if typ == 1:
            e.wait_vm_tag('c11')
        e.wait_lg0(); e('s_barrier')
        self.stamp(4)
        epi3 = self.nf_build(2, 40, 'v44') + [f'v_mfma_f32_32x32x16_bf16 v[{accC}:{accC+15}], {NF}, {TF}, v[{accC}:{accC+15}]']
        epi3 += self.epi_h(accC, 64, sCOLC, 'h')
        hfl = fl_base + [f's_add_u32 {sT4}, {sT4}, {512 + (256 if typ == 2 else 0)}'] + self.flag_set('h', sT4)
        if typ == 2:
            for l in epi3 + hfl: e.I(l)
        else:
            lnp = e.newlabel('NOPART'); ljoin = e.newlabel('PJOIN')
            e(f"""
            s_lshr_b32 {sT0}, {sTT}, 1
            s_and_b32 {sT1}, {sG}, 1
            s_cmp_lg_u32 {sT0}, {sT1}
            s_cbranch_scc1 {lnp}
            """)
            import copy
            snap = copy.deepcopy({k: v for k, v in e.__dict__.items() if k != 'lines'}); cw = self.curwin
            is_main = lambda s: s.startswith('v_mfma') and f'v[{accA}:{accA+15}], v[' in s
            e('v_mov_b32 v19, 0')
            st = self.unit_stream(10, accA, 19, cs_slots=(0, 2), first=True) + self.unit_stream(11, accA, 19, cs_slots=(0, 2))
            for l in interleave(st, epi3, is_main): e.I(l)
            e(f"""
            s_and_b32 {sT0}, {sTT}, 1
            s_lshl_b32 {sT0}, {sT0}, 2
            """)
            for l in self.cs_write(19, 3, sT0): e.I(l)
            e.wait_lg0(); e('s_barrier')
            epi4 = self.nf_build(3, 40, 'v45', nparts=2) + [f'v_mfma_f32_32x32x16_bf16 v[{accA}:{accA+15}], {NF}, {TF}, v[{accA}:{accA+15}]']
            epi4 += self.epi_h(accA, 64, sCOLD, 'h')
            for l in epi4 + hfl: e.I(l)
            e.settle()
            e(f's_branch {ljoin}')
            uid = e.uid
            e.__dict__.update(snap); e.uid = uid; self.curwin = cw
            e.label(lnp)
            for l in epi3 + hfl: e.I(l)
            e.wait_lg0(); e('s_barrier')
            e.settle()
            e.label(ljoin)
        e.wait_lg0(force=True)
        e.settle()
        e.vm = []
        self.stamp(5)

    def poll(self, vaddr, vtmp, name):
        e = self.e
        lskip = e.newlabel('PSKIP'); lp = e.newlabel('PLP')
        e.settle()
        e(f"""
        s_cmp_lg_u32 {sW}, 0
        s_cbranch_scc1 {lskip}
        s_mov_b32 {sCNT}, 0
        """)
        e.label(lp)
        e.raw(f'buffer_load_dword {vtmp}, {vaddr}, {srd(S_WS)}, 0 offen sc1')
        e.raw(f's_add_u32 {sCNT}, {sCNT}, 1')
        e.raw('s_waitcnt vmcnt(0)')
        e.raw(f'v_cmp_ne_u32 vcc, 1, {vtmp}')
        e.raw(f's_cmp_gt_u32 {sCNT}, 0x100000')
        e.raw(f's_cbranch_scc1 {lskip}')
        e.raw(f's_and_b64 vcc, vcc, {sEX}')
        e.raw(f's_cbranch_scc1 {lp}')
        e.label(lskip)
        e.t += 4

    def w2_dma(self, jb):
        pos = self.w2_pos(jb)
        if jb < 28:
            o = [f's_add_u32 {sT0}, {sROT2}, {jb}', f's_cmp_ge_u32 {sT0}, 28', f's_cselect_b32 {sT1}, 28, 0', f's_sub_u32 {sT0}, {sT0}, {sT1}']
            sr = S_W2
        else:
            o = [f's_add_u32 {sT0}, {sC64}, {jb - 28}', f's_and_b32 {sT0}, {sT0}, 7']
            sr = S_WO
        o += [f's_lshl_b32 {sT0}, {sT0}, 16', f's_lshl_b32 {sT1}, {sC64}, 7', f's_add_u32 {sT0}, {sT0}, {sT1}',
              f's_add_u32 m0, {sWB1K}, {pos}',
              f'buffer_load_dwordx4 v1, {srd(sr)}, {sT0} offen lds #w{jb // 2}']
        return o

    def w2_pos(self, jb):
        return (jb % 18) * 8192

    def att(self):
        e = self.e
        e(f"""
        s_lshr_b32 {sT5}, s2, 5
        s_lshl_b32 {sT}, {sT5}, 3
        s_add_u32 {sT}, {sT}, {sW}
        s_sub_u32 {sIMIN}, 8, {sT}
        s_cmp_gt_u32 {sT}, 8
        s_cselect_b32 {sIMIN}, 0, {sIMIN}
        s_mul_i32 {sROT2}, {sC64}, 3
        """)
        e(f"""
        s_lshl_b32 {sT0}, {sT5}, 3
        s_sub_u32 {sT0}, {sT0}, 8
        v_add_u32 v32, {sT0}, v0
        v_subrev_u32 v33, 8, v32
        v_cmp_gt_u32 vcc, 16, v0
        v_cndmask_b32 v32, v33, v32, vcc
        v_mov_b32 v33, 256
        v_cndmask_b32 v33, v33, 0, vcc
        s_movk_i32 {sT1}, {FL_T}
        v_mad_i32_i24 v32, v32, {sT1}, v33
        s_lshr_b32 {sT1}, {sHEAD}, 1
        s_lshl_b32 {sT1}, {sT1}, 4
        s_add_u32 {sT1}, {sT1}, {WS_FL}
        v_add_u32 v32, {sT1}, v32
        s_mov_b32 s90, 0xffffff
        s_cmp_eq_u32 {sT5}, 0
        s_cselect_b32 s90, 0xffff00, s90
        s_mov_b32 s91, 0
        """)
        self.poll('v32', 'v33', 'att')
        e('s_barrier')
        self.stamp(6)
        e(f"""
        s_lshl_b32 {sT0}, {sT5}, 3
        s_sub_u32 {sT0}, {sT0}, 8
        s_lshl_b32 {sT0}, {sT0}, 10
        s_add_u32 {sT0}, {sT0}, {sWB2K}
        s_lshl_b32 {sT1}, {sHEAD}, 16
        s_add_u32 {sT0}, {sT0}, {sT1}
        s_add_u32 {sT2}, {sT0}, {WS_K}
        s_add_u32 {sT3}, {sT0}, {WS_V}
        s_lshl_b32 {sT4}, {sT}, 10
        s_add_u32 {sT4}, {sT4}, {sT1}
        s_add_u32 {sT4}, {sT4}, {WS_Q}
        buffer_load_dwordx4 v[32:35], v22, {srd(S_WS)}, {sT2} offen sc1
        buffer_load_dwordx4 v[36:39], v22, {srd(S_WS)}, {sT2} offen offset:1024 sc1
        buffer_load_dwordx4 v[40:43], v22, {srd(S_WS)}, {sT3} offen sc1
        buffer_load_dwordx4 v[44:47], v22, {srd(S_WS)}, {sT3} offen offset:1024 sc1
        buffer_load_dwordx4 v[4:7], v22, {srd(S_WS)}, {sT4} offen sc1
        """)
        for jb in range(14):
            for l in self.w2_dma(jb): e.I(l)
        Q = 'v[4:7]'
        MD, MF, NM, O = 96, 112, 128, 208
        SB = [144, 160]; PB = [176, 184]; VB = [192, 200]
        e(f"""
        v_add_u32 v2, {sWB2K}, v22
        v_add_u32 v3, {L_KST}, v2
        v_add_u32 v2, {L_VST}, v2
        v_add_u32 v12, {L_MASKD}, v22
        v_add_u32 v13, {sWB1K}, v22
        v_add_u32 v13, {L_KST}, v13
        v_and_b32 v15, 15, v0
        v_lshl_add_u32 v15, v28, 4, v15
        v_lshlrev_b32 v15, 4, v15
        v_add_u32 v15, {sWB1K}, v15
        v_add_u32 v15, {L_VST}, v15
        """)
        for r in list(range(8, 12)) + list(range(192, 208)): e(f'v_mov_b32 v{r}, v14')
        e('v_mov_b32 v18, 0\nv_mov_b32 v19, 0\nv_mov_b32 v17, 0')
        for q in range(4):
            e(f'ds_read_b128 v[{MD+4*q}:{MD+4*q+3}], v12 offset:{1024*q}')
            e(f'ds_read_b128 v[{MF+4*q}:{MF+4*q+3}], v12 offset:{4096+1024*q}')
        e(f"""
        ds_write_b128 v3, v[32:35]
        ds_write_b128 v3, v[36:39] offset:1024
        ds_write_b128 v2, v[40:43]
        ds_write_b128 v2, v[44:47] offset:1024
        """)
        e.wait_lg0(); e('s_barrier')
        self.stamp(7)
        for i in range(8, -1, -1):
            e(f'ds_read_b128 v[{48+4*i}:{51+4*i}], v13 offset:{1024*i}')
        def KF(i): return f'v[{48+4*i}:{51+4*i}]'
        def blk(b): return f'v[{b}:{b+15}]'
        lend1 = e.newlabel('P1END')
        e(f'v_mov_b32 v20, {NEGBIG}\nv_mov_b32 v21, {NEGBIG}')
        e(f'v_mfma_f32_32x32x16_bf16 {blk(SB[0])}, {KF(8)}, {Q}, {blk(MD)}')
        for n, i in enumerate(range(8, -1, -1)):
            cur = SB[n % 2]; nx = SB[(n + 1) % 2]
            if i > 0:
                c = blk(MF) if i - 1 == 0 else '0'
                e(f'v_mfma_f32_32x32x16_bf16 {blk(nx)}, {KF(i-1)}, {Q}, {c}')
            for j in range(8):
                e(f'v_max3_f32 v{20 + (j & 1)}, v{cur+2*j}, v{cur+2*j+1}, v{20 + (j & 1)}')
            if i > 0:
                e(f's_cmp_eq_u32 {sIMIN}, {i}\ns_cbranch_scc1 {lend1}')
        e.settle()
        e.label(lend1)
        e.nop(12)
        e(f"""
        v_max_f32 v20, v20, v21
        v_mov_b32 v21, v20
        v_permlane32_swap_b32 v20, v21
        v_max_f32 v20, v20, v21
        v_cvt_pk_bf16_f32 v21, v20, v20
        v_lshlrev_b32 v21, 16, v21
        v_sub_f32 v21, v21, v20
        v_cvt_pk_bf16_f32 v16, -v20, v21
        v_cmp_eq_u32 vcc, 0, v28
        v_cndmask_b32 v16, 0, v16, vcc
        v_mfma_f32_32x32x16_bf16 {blk(MD)}, v[8:11], v[16:19], {blk(MD)}
        v_mfma_f32_32x32x16_bf16 {blk(NM)}, v[8:11], v[16:19], 0
        v_mfma_f32_32x32x16_bf16 {blk(MF)}, v[8:11], v[16:19], {blk(MF)}
        s_mov_b32 s90, 0xffff
        s_mov_b32 s91, 0xffff
        """)
        def vread(i, b):
            e(f"""
            s_mov_b64 exec, {sEX}
            ds_read_b128 v[{b}:{b+3}], v15 offset:{1024*i}
            ds_read_b128 v[{b+4}:{b+7}], v15 offset:{1024*i+512}
            s_mov_b64 exec, -1
            """)
        lend2 = e.newlabel('P2END')
        vread(8, VB[0])
        e(f'v_mfma_f32_32x32x16_bf16 {blk(SB[0])}, {KF(8)}, {Q}, {blk(MD)}')
        for n, i in enumerate(range(8, -1, -1)):
            cur = SB[n % 2]; nx = SB[(n + 1) % 2]; P = PB[n % 2]; V = VB[n % 2]
            if i > 0:
                c = blk(MF) if i - 1 == 0 else blk(NM)
                e(f'v_mfma_f32_32x32x16_bf16 {blk(nx)}, {KF(i-1)}, {Q}, {c}')
                vread(i - 1, VB[(n + 1) % 2])
            for kb in range(2):
                for j in range(8): e(f'v_exp_f32 v{cur+8*kb+j}, v{cur+8*kb+j}')
                for j in range(4): e(f'v_cvt_pk_bf16_f32 v{P+4*kb+j}, v{cur+8*kb+2*j}, v{cur+8*kb+2*j+1}')
                if kb == 1:
                    c = '0' if n == 0 else blk(O)
                    e(f'v_mfma_f32_32x32x16_bf16 {blk(O)}, v[{V}:{V+3}], v[{P}:{P+3}], {c}')
                    e(f'v_mfma_f32_32x32x16_bf16 {blk(O)}, v[{V+4}:{V+7}], v[{P+4}:{P+7}], {blk(O)}')
            if i > 0:
                e(f's_cmp_eq_u32 {sIMIN}, {i}\ns_cbranch_scc1 {lend2}')
        e.label(lend2)
        e.wait_lg0(force=True)
        e.nop(12)
        e(f'v_rcp_f32 v20, v{O+8}')
        for j in range(8): e(f'v_mul_f32 v{O+j}, v20, v{O+j}')
        for j in range(4): e(f'v_cvt_pk_bf16_f32 v{O+j}, v{O+2*j}, v{O+2*j+1}')
        e(f"""
        s_mul_i32 {sT2}, {sT}, {AH_T}
        s_lshl_b32 {sT3}, {sHEAD}, 10
        s_add_u32 {sT2}, {sT2}, {sT3}
        s_add_u32 {sT2}, {sT2}, {112 * 1024}
        buffer_store_dwordx4 v[{O}:{O+3}], v22, {srd(S_WS)}, {sT2} offen sc1 #o
        s_mul_i32 {sT4}, {sT}, {FL_T}
        s_lshl_b32 {sT3}, {sHEAD}, 4
        s_add_u32 {sT4}, {sT4}, {sT3}
        s_add_u32 {sT4}, {sT4}, {WS_FL + 1024}
        """)
        for l in self.flag_set('o', sT4): e.I(l)
        self.stamp(8)

    def g2(self):
        e = self.e
        D = 6
        HB = 64
        NHB = 2 * (D + 1)
        ACC = [208, 224]
        e(f"""
        s_lshl_b32 {sT}, {sR2}, 1
        s_add_u32 {sT5}, {sT}, {sNH}
        s_mul_i32 {sAHB}, {sT5}, {AH_T}
        s_and_b32 {sT4}, {sW}, 3
        s_lshl_b32 {sT3}, {sT4}, 10
        s_add_u32 {sAHB}, {sAHB}, {sT3}
        """)
        e(f"""
        v_bfe_u32 v31, v0, 2, 2
        v_lshl_add_u32 v30, v28, 2, v31
        v_lshlrev_b32 v30, 7, v30
        v_bfe_u32 v32, v0, 4, 1
        v_bfe_u32 v33, v0, 1, 1
        v_lshl_add_u32 v32, v32, 1, v33
        v_and_b32 v33, 2, v31
        v_lshlrev_b32 v33, 1, v33
        v_xor_b32 v32, v32, v33
        v_lshl_add_u32 v30, v32, 4, v30
        v_and_b32 v33, 1, v0
        v_lshl_add_u32 v30, v33, 3, v30
        s_lshl_b32 {sT3}, {sT4}, 11
        v_add_u32 v2, {sT3}, v30
        v_xor_b32 v3, 64, v2
        v_add_u32 v4, 0x10000, v2
        v_add_u32 v5, 0x10000, v3
        v_add_u32 v6, 0x20000, v2
        v_add_u32 v7, 0x20000, v3
        """)
        e(f"""
        s_mul_i32 {sT3}, {sT}, {FL_T}
        s_add_u32 {sT3}, {sT3}, {WS_FL + 512}
        v_mul_u32_u24 v32, {FL_T}, v28
        v_lshl_add_u32 v32, v27, 4, v32
        v_add_u32 v32, {sT3}, v32
        v_add_u32 v34, 512, v32
        s_mov_b64 {sEX}, -1
        """)
        self.poll('v32', 'v33', 'h')
        e.wait_lg0(force=True)
        e('s_barrier')
        self.stamp(9)
        def hload(jb):
            b = HB + 4 * (jb % NHB)
            if jb < 28:
                o = [f's_add_u32 {sT0}, {sROT2}, {jb}', f's_cmp_ge_u32 {sT0}, 28', f's_cselect_b32 {sT1}, 28, 0', f's_sub_u32 {sT0}, {sT0}, {sT1}']
            else:
                o = [f's_add_u32 {sT0}, {sC64}, {jb - 28}', f's_and_b32 {sT0}, {sT0}, 7', f's_add_u32 {sT0}, {sT0}, 28']
            o += [f's_lshl_b32 {sT0}, {sT0}, 12', f's_add_u32 {sT0}, {sT0}, {sAHB}',
                  f'buffer_load_dwordx4 v[{b}:{b+3}], v22, {srd(S_WS)}, {sT0} offen sc1']
            return o
        for jb in range(2 * D):
            for l in hload(jb): e.I(l)
        for jb in range(14, 18):
            for l in self.w2_dma(jb): e.I(l)
        e(f"""
        v_lshrrev_b32 v35, 3, v0
        v_and_b32 v36, 7, v0
        s_lshl_b32 {sT3}, {sR2}, 6
        s_lshl_b32 {sT4}, {sW}, 3
        s_add_u32 {sT3}, {sT3}, {sT4}
        v_add_u32 v37, {sT3}, v35
        s_lshl_b32 {sT4}, {sC64}, 7
        v_lshl_add_u32 v38, v36, 4, {sT4}
        v_lshl_add_u32 v8, v37, 10, v38
        buffer_load_dwordx4 v[40:43], v8, {srd(S_X)}, 0 offen
        buffer_load_dwordx4 v[44:47], v38, {srd(S_B2)}, 0 offen
        """)
        for g in range(18):
            if g + D == 14:
                self.poll('v34', 'v33', 'o')
                self.stamp(10)
            e.wait_vm_tag(f'w{g}')
            e.wait_lg0()
            e('s_barrier')
            o = []
            rds = []
            for k in range(2):
                jb = 2 * g + k
                pos = self.w2_pos(jb); wdw = pos >> 16; off = pos & 0xffff
                b = 48 + 8 * k
                a0, a1 = f'v{2 + 2*wdw}', f'v{3 + 2*wdw}'
                rds += [f'ds_read_b64_tr_b16 v[{b}:{b+1}], {a0} offset:{off}',
                        f'ds_read_b64_tr_b16 v[{b+2}:{b+3}], {a0} offset:{off + 1024}',
                        f'ds_read_b64_tr_b16 v[{b+4}:{b+5}], {a1} offset:{off}',
                        f'ds_read_b64_tr_b16 v[{b+6}:{b+7}], {a1} offset:{off + 1024}']
            o += rds
            if g >= 1 and g + 8 < 18:
                o += self.w2_dma(2 * (g + 8)) + self.w2_dma(2 * (g + 8) + 1)
            if g + D < 18:
                o += hload(2 * (g + D)) + hload(2 * (g + D) + 1)
            for k in range(2):
                jb = 2 * g + k
                b = 48 + 8 * k; hb = HB + 4 * (jb % NHB)
                for nt in range(2):
                    c = '0' if jb == 0 else f'v[{ACC[nt]}:{ACC[nt]+15}]'
                    o.append(f'v_mfma_f32_32x32x16_bf16 v[{ACC[nt]}:{ACC[nt]+15}], v[{b+4*nt}:{b+4*nt+3}], v[{hb}:{hb+3}], {c}')
            for l in o: e.I(l)
        self.stamp(11)
        PS = 1056
        e.wait_lg0(); e('s_barrier')
        e(f"""
        s_and_b32 {sT4}, {sW}, 3
        s_lshl_b32 {sT4}, {sT4}, 1
        s_add_u32 {sT4}, {sT4}, {sNH}
        s_mul_i32 {sT4}, {sT4}, {8 * PS}
        v_add_u32 v9, {sT4}, v22
        """)
        for nt in range(2):
            for q in range(4):
                e(f'ds_write_b128 v9, v[{ACC[nt]+4*q}:{ACC[nt]+4*q+3}] offset:{(nt*4+q)*PS}')
        e(f"""
        s_and_b32 {sT4}, {sW}, 3
        s_lshl_b32 {sT4}, {sT4}, 7
        s_mul_i32 {sT3}, {sNH}, {8 * PS}
        s_add_u32 {sT4}, {sT4}, {sT3}
        v_mul_u32_u24 v9, {PS}, v36
        v_lshl_add_u32 v9, v35, 4, v9
        v_add_u32 v9, {sT4}, v9
        """)
        e.wait_lg0(); e('s_barrier')
        for kq in range(4):
            for hf in range(2):
                b = 64 + 8 * kq + 4 * hf
                e(f'ds_read_b128 v[{b}:{b+3}], v9 offset:{kq * 16 * PS + hf * 512}')
        for j in range(4):
            e(f"""
            v_lshlrev_b32 v{96+2*j}, 16, v{40+j}
            v_and_b32 v{97+2*j}, 0xffff0000, v{40+j}
            v_lshlrev_b32 v{104+2*j}, 16, v{44+j}
            v_and_b32 v{105+2*j}, 0xffff0000, v{44+j}
            """)
        for j in range(8): e(f'v_add_f32 v{96+j}, v{96+j}, v{104+j}')
        for j in range(8):
            e(f"""
            v_add_f32 v{64+j}, v{64+j}, v{72+j}
            v_add_f32 v{80+j}, v{80+j}, v{88+j}
            v_add_f32 v{64+j}, v{64+j}, v{80+j}
            v_add_f32 v{64+j}, v{64+j}, v{96+j}
            """)
        for j in range(4): e(f'v_cvt_pk_bf16_f32 v{64+j}, v{64+2*j}, v{64+2*j+1}')
        e(f'buffer_store_dwordx4 v[64:67], v8, {srd(S_OUT)}, 0 offen')
        self.stamp(12)

    def prof_out(self):
        if not self.prof: return
        e = self.e
        e(f"""
        s_lshl_b32 {sT0}, s2, 3
        s_add_u32 {sT0}, {sT0}, {sW}
        s_lshl_b32 {sT0}, {sT0}, 6
        s_add_u32 {sT0}, {sT0}, {WS_PROF}
        v_mov_b32 v2, {sT0}
        s_mov_b64 exec, 1
        """)
        for q in range(4):
            for j in range(4): e(f'v_mov_b32 v{4+j}, s{64+4*q+j}')
            e(f'buffer_store_dwordx4 v[4:7], v2, {srd(S_WS)}, 0 offen offset:{16*q}')
            e.nop(2)

    def build(self):
        e = self.e
        if self.prof:
            e.raw('s_memrealtime s[6:7]')
        self.prologue()
        e(f"""
        s_cmp_eq_u32 {sTYPE}, 1
        s_cbranch_scc1 L_type2
        """)
        import copy
        snap = copy.deepcopy({k: v for k, v in e.__dict__.items() if k != 'lines'})
        self.p1(1)
        e('s_branch L_att')
        uid = e.uid
        e.__dict__.update(snap); e.uid = uid
        e.label('L_type2')
        self.p1(2)
        e.label('L_att')
        if self.stop_after != 'p1':
            self.att()
            if self.stop_after != 'att':
                self.g2()
        if self.prof:
            e.raw('s_mov_b32 s79, s6')
            self.prof_out()
        e.label('L_end')
        e.raw('s_endpgm')
        hdr = open('cdna_kernels/' + NAME + '.s.ref').read().split('\n')
        cm = [l for l in hdr if l.startswith(';') and '@launch' not in l]
        out = '\n'.join(cm) + f'\n; @launch grid=(256,1,1) block=(512,1,1) lds={LDS_BYTES}\n'
        out += f""".amdgcn_target "amdgcn-amd-amdhsa--gfx950"
.text
.globl {NAME}_kernel
.p2align 8
.type {NAME}_kernel,@function
{NAME}_kernel:
"""
        out += e.text()
        out += f""".section .rodata,"a"
.p2align 6
.amdhsa_kernel {NAME}_kernel
  .amdhsa_next_free_vgpr 256
  .amdhsa_next_free_sgpr 102
  .amdhsa_accum_offset 256
  .amdhsa_group_segment_fixed_size 0
  .amdhsa_kernarg_size 88
  .amdhsa_user_sgpr_count 2
  .amdhsa_user_sgpr_kernarg_segment_ptr 1
  .amdhsa_system_sgpr_workgroup_id_x 1
.end_amdhsa_kernel
"""
        return out

if __name__ == '__main__':
    import argparse
    ap = argparse.ArgumentParser()
    ap.add_argument('-o', default='k.s')
    ap.add_argument('--stop', default=None)
    ap.add_argument('--prof', action='store_true')
    a = ap.parse_args()
    g = G(stop_after=a.stop, prof=a.prof)
    txt = g.build()
    open(a.o, 'w').write(txt)
    print('instrs', g.e.ninstr, 'nops', g.e.nnops)
```

```python
import sys, math, struct, copy
from em import Em, lines, interleave

NAME = "parallel_sum__sliding_block__dense_activation_gelu__prompt"

WS_AH = 0
AH_T = 144 * 1024
WS_K = 0x1000000
WS_V = 0x1200000
WS_Q = 0x1400000
WS_Z = 0x1600000
Z_RB = 16384
FL_T = 1536
Z_ROW = 6144
Z_CSG = 8192
WS_PROF = 0x1800000
WS_SIZE = 0x2000000
SLOT = 32768
L_MASKD = 131072
L_MASKF = 135168
L_CSP = 139264
L_RV = 141312
L_KST = 143360
L_VST = 114688
LDS_BYTES = 163840

def f32(x): return struct.unpack('<I', struct.pack('<f', x))[0]
LOG2E = 1.4426950408889634
GA = -2.0 * math.sqrt(2.0 / math.pi) * LOG2E
GB = GA * 0.044715
NEGBIG = f32(-1e30)
ONES = 0x3f803f80

S_X, S_QKV, S_W1, S_W2, S_WO, S_WS, S_OUT, S_DBG, S_B1, S_B2 = [8 + 4 * i for i in range(10)]
S_TMP = 80
def srd(b): return f's[{b}:{b+3}]'
sW = 's48'; sNH = 's49'; sTT = 's50'; sRB = 's51'; sG = 's52'; sROT = 's53'; sT = 's54'; sTYPE = 's55'
sWB1K = 's56'; sWB2K = 's57'
sCOLA = 's58'; sCOLB = 's59'; sCOLC = 's60'; sCOLD = 's61'
sT0, sT1, sT2, sT3, sT4, sT5 = 's62', 's63', 's86', 's87', 's88', 's89'
sEX = 's[90:91]'
sGB = 's93'; sFLB = 's92'
sCNT = 's94'
sR2 = 's95'; sC64 = 's96'; sROT2 = 's97'; sIMIN = 's98'; sHEAD = 's99'; sAHB = 's100'; sUID = 's101'
sPIT = 's3'; sQTR = 's98'; sROW = 's90'
vW2 = 'v1'; vONE = 'v14'; vL16 = 'v15'; TF = 16; NF = 20; vGA = 'v24'; vR = 'v25'; vTOK = 'v26'; vHF = 'v27'
vBC = 'v28'; vBX = 'v29'; vCSA = 'v30'
accC, accA, accB = 80, 96, 112
def blk(b): return f'v[{b}:{b+15}]'
def q4(b): return f'v[{b}:{b+3}]'
MFMA = 'v_mfma_f32_32x32x16_bf16'

class G:
    def __init__(self, stop_after=None, prof=False):
        self.e = Em()
        self.stop_after = stop_after
        self.prof = prof

    def stamp(self, name):
        if not self.prof: return
        name = str(name)
        if name not in self.prof: return
        idx = self.prof.index(name)
        e = self.e
        e.raw(f's_memrealtime s[4:5]')
        e.raw('s_waitcnt lgkmcnt(0)'); e.lg = []
        e.raw(f'v_writelane_b32 v31, s4, {idx}'); e.t += 3

    def snap(self):
        return copy.deepcopy({k: v for k, v in self.e.__dict__.items() if k != 'lines'}), self.curwin
    def restore(self, s):
        uid = self.e.uid; ni = self.e.ninstr; nn = self.e.nnops
        self.e.__dict__.update(copy.deepcopy(s[0])); self.e.uid = uid; self.e.ninstr = ni; self.e.nnops = nn
        self.curwin = s[1]
    def run(self, ls):
        for l in ls: self.e.I(l)

    def mk(self, b, lo, size):
        self.e(f"""
        s_mov_b32 s{b}, s{lo}
        s_and_b32 s{b+1}, s{lo+1}, 0xffff
        s_mov_b32 s{b+2}, {size}
        s_mov_b32 s{b+3}, 0x20000
        """)

    def prologue(self):
        e = self.e
        self.curwin = 0
        e(f"""
        s_cmp_ge_u32 s2, 256
        s_cbranch_scc1 L_end
        s_load_dwordx16 s[64:79], s[0:1], 0
        s_load_dwordx4 s[80:83], s[0:1], 64
        s_load_dwordx2 s[84:85], s[0:1], 80
        v_lshrrev_b32 v1, 6, v0
        v_and_b32 v0, 63, v0
        v_readfirstlane_b32 {sW}, v1
        s_and_b32 {sT0}, s2, 7
        s_lshr_b32 {sT1}, s2, 3
        s_and_b32 {sRB}, {sT0}, 1
        s_lshl_b32 {sRB}, {sRB}, 3
        s_and_b32 {sT2}, {sT1}, 7
        s_add_u32 {sRB}, {sRB}, {sT2}
        s_lshr_b32 {sT3}, {sT1}, 3
        s_lshr_b32 {sTYPE}, {sT3}, 1
        s_and_b32 {sG}, {sT0}, 6
        s_and_b32 {sT4}, {sT3}, 1
        s_add_u32 {sG}, {sG}, {sT4}
        s_lshl_b32 {sT4}, {sT3}, 1
        s_add_u32 {sROT}, {sT2}, {sT4}
        s_and_b32 {sROT}, {sROT}, 7
        s_lshr_b32 {sNH}, {sW}, 2
        s_lshl_b32 {sT4}, {sNH}, 1
        s_add_u32 {sTT}, {sW}, {sT4}
        s_and_b32 {sTT}, {sTT}, 3
        s_lshl_b32 {sT}, {sRB}, 2
        s_add_u32 {sT}, {sT}, {sTT}
        s_lshl_b32 {sWB1K}, {sW}, 10
        s_lshl_b32 {sWB2K}, {sW}, 11
        s_mov_b32 {sGB}, {f32(GB)}
        s_lshl_b32 {sR2}, {sT0}, 2
        s_and_b32 {sT4}, {sT1}, 3
        s_add_u32 {sR2}, {sR2}, {sT4}
        s_lshr_b32 {sC64}, {sT1}, 2
        s_and_b32 {sHEAD}, s2, 31
        s_mul_i32 {sROT2}, {sC64}, 3
        s_mul_i32 {sT4}, {sT4}, 7
        s_add_u32 {sROT2}, {sROT2}, {sT4}
        s_cmp_ge_u32 {sROT2}, 28
        s_cselect_b32 {sT4}, 28, 0
        s_sub_u32 {sROT2}, {sROT2}, {sT4}
        s_and_b32 {sT2}, {sT0}, 1
        s_lshl_b32 {sT2}, {sT2}, 5
        s_add_u32 {sT2}, {sT2}, {sT1}
        s_and_b32 {sQTR}, {sT2}, 3
        s_lshr_b32 {sT2}, {sT2}, 2
        s_lshr_b32 {sT3}, {sT0}, 1
        s_lshr_b32 {sUID}, {sT2}, 1
        s_lshl_b32 {sUID}, {sUID}, 3
        s_and_b32 {sT4}, {sT2}, 1
        s_add_u32 {sUID}, {sUID}, {sT4}
        s_lshl_b32 {sT4}, {sT3}, 1
        s_add_u32 {sUID}, {sUID}, {sT4}
        s_lshl_b32 {sT4}, {sT3}, 2
        s_add_u32 {sT4}, {sT4}, {sT2}
        s_add_u32 {sT4}, {sT4}, 24
        s_cmp_ge_u32 {sT2}, 8
        s_cselect_b32 {sUID}, {sT4}, {sUID}
        s_add_u32 {sT4}, {sT3}, 48
        s_cmp_eq_u32 {sT2}, 12
        s_cselect_b32 {sUID}, {sT4}, {sUID}
        s_cmp_gt_u32 {sT2}, 12
        s_cselect_b32 {sUID}, 52, {sUID}
        s_and_b32 {sROW}, {sT0}, 1
        s_lshl_b32 {sROW}, {sROW}, 10
        s_lshl_b32 {sT4}, {sT3}, 8
        s_add_u32 {sROW}, {sROW}, {sT4}
        s_lshl_b32 {sT4}, {sT1}, 3
        s_add_u32 {sROW}, {sROW}, {sT4}
        s_add_u32 {sROW}, {sROW}, {sW}
        s_movk_i32 {sPIT}, 3072
        s_cmp_ge_u32 {sUID}, 24
        s_cselect_b32 {sPIT}, 3584, {sPIT}
        """)
        e(f"""
        v_lshrrev_b32 v32, 3, v0
        v_and_b32 v33, 7, v0
        v_lshlrev_b32 {vL16}, 4, v0
        v_mov_b32 {vONE}, {ONES}
        s_lshl_b32 {sT4}, {sRB}, 7
        s_lshl_b32 {sT5}, {sW}, 4
        s_add_u32 {sT4}, {sT4}, {sT5}
        v_add_u32 v34, {sT4}, v32
        v_lshrrev_b32 v35, 1, v32
        v_xor_b32 v35, v35, v33
        v_lshlrev_b32 v35, 4, v35
        v_lshl_add_u32 v10, v34, 10, v35
        v_xor_b32 v11, 64, v10
        v_add_u32 v11, 0x2000, v11
        v_and_b32 v35, 2, v32
        v_lshlrev_b32 v35, 1, v35
        v_xor_b32 v35, v35, v33
        v_lshlrev_b32 v35, 4, v35
        v_add_u32 v34, {sT5}, v32
        v_mad_u32_u24 v20, v34, {sPIT}, v35
        s_lshl_b32 {sT5}, {sW}, 3
        v_add_u32 v34, {sT5}, v32
        v_mul_u32_u24 v12, 3072, v34
        v_add_u32 v12, v12, v35
        v_mul_u32_u24 v13, 3584, v34
        v_add_u32 v13, v13, v35
        v_lshl_add_u32 {vW2}, v34, 10, v35
        """)
        e(f"""
        v_and_b32 {vTOK}, 31, v0
        v_lshrrev_b32 {vHF}, 5, v0
        v_bfe_u32 v34, {vTOK}, 1, 3
        v_xor_b32 v34, v34, {vHF}
        v_lshlrev_b32 v34, 4, v34
        s_lshl_b32 {sT4}, {sTT}, 12
        v_lshl_add_u32 v34, {vTOK}, 7, v34
        v_add_u32 v34, {sT4}, v34
        v_bfe_u32 v36, v0, 2, 2
        v_lshl_add_u32 v35, {vHF}, 3, v36
        v_lshlrev_b32 v35, 7, v35
        v_bfe_u32 v32, v0, 4, 1
        v_bfe_u32 v33, v0, 1, 1
        v_lshl_add_u32 v32, v32, 1, v33
        v_and_b32 v33, 2, v36
        v_lshlrev_b32 v33, 1, v33
        v_xor_b32 v32, v32, v33
        v_lshl_add_u32 v35, v32, 4, v35
        v_and_b32 v33, 1, v0
        v_lshl_add_u32 v35, v33, 3, v35
        s_add_u32 {sT4}, {sWB2K}, {L_KST}
        v_add_u32 v250, {sT4}, v35
        v_xor_b32 v251, 64, v250
        s_lshl_b32 {sT4}, {sNH}, 6
        v_xor_b32 v35, {sT4}, v35
        """)
        for s in range(4):
            e(f"""
            v_xor_b32 v{2+s}, {s << 5}, v34
            v_add_u32 v{6+s}, {s << 11}, v35
            """)
        e.wait_lg0()
        self.mk(S_X, 64, 2048 * 1024)
        self.mk(S_QKV, 66, 512 * 3072)
        self.mk(S_W1, 72, 512 * 3584)
        self.mk(S_WS, 84, WS_SIZE)
        self.mk(S_OUT, 80, 2048 * 1024)
        self.mk(S_DBG, 82, 256)
        if self.prof:
            self.mk(S_WO, 68, 512 * 1024)
            self.mk(S_B1, 74, 1792 * 2)
            self.mk(S_W2, 76, 1792 * 1024)
            self.mk(S_B2, 78, 1024)
        self.stamp('ka')
        lab = e.newlabel('NORST')
        e(f"""
        s_or_b32 {sT0}, {sG}, {sTYPE}
        s_cmp_lg_u32 {sT0}, 0
        s_cbranch_scc1 {lab}
        s_lshl_b32 {sT0}, {sRB}, 14
        s_add_u32 {sT0}, {sT0}, {sWB2K}
        s_add_u32 {sT0}, {sT0}, {WS_Z}
        v_mov_b32 v32, 0
        v_mov_b32 v33, 0
        v_mov_b32 v34, 0
        v_mov_b32 v35, 0
        buffer_store_dwordx4 v[32:35], {vL16}, {srd(S_WS)}, {sT0} offen sc1 #zero
        buffer_store_dwordx4 v[32:35], {vL16}, {srd(S_WS)}, {sT0} offen offset:1024 sc1 #zero
        """)
        e.settle()
        e.label(lab)

    def stats_loads(self):
        e = self.e
        e(f"""
        s_lshl_b32 {sT0}, {sROW}, 10
        buffer_load_dwordx4 v[240:243], {vL16}, {srd(S_X)}, {sT0} offen
        s_cmp_ge_u32 {sUID}, 24
        s_cselect_b32 s{S_TMP}, s{S_W1}, s{S_QKV}
        s_cselect_b32 s{S_TMP+1}, s{S_W1+1}, s{S_QKV+1}
        s_cselect_b32 s{S_TMP+2}, s{S_W1+2}, s{S_QKV+2}
        s_mov_b32 s{S_TMP+3}, 0x20000
        s_cselect_b32 {sT1}, 24, 0
        s_sub_u32 {sT1}, {sUID}, {sT1}
        s_lshl_b32 {sT1}, {sT1}, 7
        s_lshl_b32 {sT0}, {sQTR}, 7
        s_mul_i32 {sT0}, {sT0}, {sPIT}
        s_add_u32 {sT0}, {sT0}, {sT1}
        s_lshl_b32 {sT1}, {sPIT}, 3
        s_add_u32 {sT1}, {sT1}, {sT0}
        s_add_u32 m0, {sWB2K}, {L_KST}
        buffer_load_dwordx4 v20, {srd(S_TMP)}, {sT0} offen lds #cs
        s_add_u32 m0, {sWB2K}, {L_KST + 1024}
        buffer_load_dwordx4 v20, {srd(S_TMP)}, {sT1} offen lds #cs
        """)

    def prologue2(self):
        e = self.e
        if not self.prof:
            self.mk(S_WO, 68, 512 * 1024)
            self.mk(S_B1, 74, 1792 * 2)
            self.mk(S_W2, 76, 1792 * 1024)
            self.mk(S_B2, 78, 1024)
        e(f"""
        s_and_b32 {sT4}, {sW}, 3
        s_lshl_b32 {sT5}, {sT4}, 3
        v_lshl_add_u32 v32, {vHF}, 2, {sT5}
        v_sub_u32 v32, {vTOK}, v32
        v_mov_b32 v33, {NEGBIG}
        s_lshl_b32 {sT5}, {sT4}, 10
        v_add_u32 v34, {sT5}, {vL16}
        v_add_u32 v34, {L_MASKD}, v34
        """)
        for j in range(4):
            e(f"""
            v_cmp_le_i32 vcc, {j}, v32
            v_cndmask_b32 v{36+j}, v33, 0, vcc
            v_cndmask_b32 v{40+j}, 0, v33, vcc
            """)
        e(f"""
        ds_write_b128 v34, v[36:39]
        ds_write_b128 v34, v[40:43] offset:4096
        v_mov_b32 {vGA}, {f32(GA)}
        s_mul_i32 {sAHB}, {sT}, {AH_T}
        v_mov_b32 v{TF+2}, 0
        v_mov_b32 v{TF+3}, 0
        v_mov_b32 v{NF+2}, 0
        v_mov_b32 v{NF+3}, 0
        s_lshl_b32 {sT4}, {sNH}, 10
        v_lshl_add_u32 {vCSA}, {vTOK}, 5, {sT4}
        s_lshl_b32 {sFLB}, {sRB}, 14
        s_mul_i32 {sT4}, {sTT}, {FL_T}
        s_add_u32 {sFLB}, {sFLB}, {sT4}
        s_lshl_b32 {sT5}, {sG}, 5
        s_add_u32 {sFLB}, {sFLB}, {sT5}
        s_lshl_b32 {sT5}, {sNH}, 4
        s_add_u32 {sFLB}, {sFLB}, {sT5}
        s_add_u32 {sFLB}, {sFLB}, {WS_Z}
        """)
        e(f"""
        v_dot2_f32_bf16 v244, v240, {vONE}, 0
        v_dot2_f32_bf16 v245, v240, v240, 0
        """)
        for j in range(1, 4):
            e(f"""
            v_dot2_f32_bf16 v244, v{240+j}, {vONE}, v244
            v_dot2_f32_bf16 v245, v{240+j}, v{240+j}, v245
            """)
        for dpp in ('quad_perm:[1,0,3,2]', 'quad_perm:[2,3,0,1]', 'row_half_mirror', 'row_mirror'):
            e(f"""
            v_add_f32_dpp v244, v244, v244 {dpp} row_mask:0xf bank_mask:0xf
            v_add_f32_dpp v245, v245, v245 {dpp} row_mask:0xf bank_mask:0xf
            """)
        for sw in ('v_permlane16_swap_b32', 'v_permlane32_swap_b32'):
            e(f"""
            v_mov_b32 v246, v244
            v_mov_b32 v247, v245
            {sw} v244, v246
            {sw} v245, v247
            v_add_f32 v244, v244, v246
            v_add_f32 v245, v245, v247
            """)
        e(f"""
        v_mul_f32 v244, {f32(1/512)}, v244
        v_mul_f32 v245, {f32(1/512)}, v245
        v_fma_f32 v245, -v244, v244, v245
        v_max_f32 v245, 0, v245
        v_cvt_pk_bf16_f32 v246, v245, v245
        v_lshlrev_b32 v246, 16, v246
        v_add_f32 v246, {f32(1e-5)}, v246
        v_cvt_pk_bf16_f32 v246, v246, v246
        v_lshlrev_b32 v246, 16, v246
        v_sqrt_f32 v246, v246
        v_cvt_pk_bf16_f32 v240, -v244, v246
        v_mov_b32 v241, 1
        """)
        e(f"""
        s_lshr_b32 {sT1}, {sROW}, 7
        s_lshl_b32 {sT1}, {sT1}, 14
        s_and_b32 {sT0}, {sROW}, 127
        s_lshl_b32 {sT0}, {sT0}, 3
        s_add_u32 {sT0}, {sT0}, {sT1}
        s_add_u32 {sT0}, {sT0}, {WS_Z + Z_ROW}
        v_lshl_add_u32 v242, v0, 26, {sT0}
        """)
        e(f"""
        WAITVM cs
        ds_read_b64_tr_b16 v[232:233], v250
        ds_read_b64_tr_b16 v[234:235], v250 offset:512
        ds_read_b64_tr_b16 v[236:237], v251
        ds_read_b64_tr_b16 v[238:239], v251 offset:512
        v_dot2_f32_bf16 v244, v232, {vONE}, 0
        v_dot2_f32_bf16 v245, v236, {vONE}, 0
        """)
        for j in range(1, 4):
            e(f"""
            v_dot2_f32_bf16 v244, v{232+j}, {vONE}, v244
            v_dot2_f32_bf16 v245, v{236+j}, {vONE}, v245
            """)
        e(f"""
        v_permlane32_swap_b32 v244, v245
        v_add_f32 v244, v244, v245
        s_lshl_b32 {sT0}, {sW}, 2
        s_add_u32 {sT0}, {sT0}, {L_CSP}
        v_lshl_add_u32 v246, v0, 5, {sT0}
        ds_write_b32 v246, v244
        v_lshlrev_b32 v246, 5, v0
        v_add_u32 v246, {L_CSP}, v246
        v_and_b32 v248, 15, v0
        v_lshlrev_b32 v248, 2, v248
        """)

    def dma_stage1(self, c, units):
        slot = (c % 4) * SLOT
        pre = [f's_add_u32 {sT0}, {sROT}, {c}', f's_and_b32 {sT0}, {sT0}, 7']
        out = []
        for i in range(2):
            out.append(pre + [f's_lshl_b32 {sT1}, {sT0}, 7', f's_add_u32 m0, {sWB2K}, {slot + 1024 * i}',
                       f'buffer_load_dwordx4 v{10+i}, {srd(S_X)}, {sT1} offen lds #c{c}'])
        for u, (sr, vo, pitch, scol) in enumerate(units):
            out.append(pre + [f's_mul_i32 {sT1}, {sT0}, {64 * pitch}', f's_add_u32 m0, {sWB1K}, {slot + 16384 + 8192 * u}',
                       f's_add_u32 {sT1}, {sT1}, {scol}',
                       f'buffer_load_dwordx4 {vo}, {srd(sr)}, {sT1} offen lds #c{c}'])
        return out

    def dma_stage2(self, c, half, scol):
        slot = (c % 4) * SLOT
        out = []
        for i in range(4):
            cc = 4 * half + i
            out.append([f's_add_u32 {sT0}, {sROT}, {cc}', f's_and_b32 {sT0}, {sT0}, 7',
                    f's_mul_i32 {sT1}, {sT0}, {64 * 3584}', f's_add_u32 m0, {sWB1K}, {slot + 8192 * i}',
                    f's_add_u32 {sT1}, {sT1}, {scol}',
                    f'buffer_load_dwordx4 v13, {srd(S_W1)}, {sT1} offen lds #c{c}'])
        return out

    def win(self, want, regs=range(2, 10)):
        out = []
        if want != self.curwin:
            out = [f'v_xor_b32 v{r}, 0x10000, v{r}' for r in regs]
            self.curwin = want
        return out

    def cs_load(self, scol, isq, dst):
        return lines(f"""
        s_lshr_b32 {sT2}, {scol}, 7
        s_add_u32 {sT2}, {sT2}, {0 if isq else 24}
        s_lshr_b32 {sT3}, {sT2}, 2
        s_lshl_b32 {sT3}, {sT3}, 14
        s_and_b32 {sT2}, {sT2}, 3
        s_lshl_b32 {sT2}, {sT2}, 11
        s_add_u32 {sT2}, {sT2}, {sT3}
        s_add_u32 {sT2}, {sT2}, {WS_Z + Z_CSG}
        buffer_load_dwordx4 v[{dst}:{dst+3}], {vCSA}, {srd(S_WS)}, {sT2} offen sc1
        buffer_load_dwordx4 v[{dst+4}:{dst+7}], {vCSA}, {srd(S_WS)}, {sT2} offen offset:16 sc1
        """)

    def nf_build(self, cs, bias):
        return lines(f"""
        v_cvt_pk_bf16_f32 v46, v{cs}, v{cs}
        v_lshlrev_b32 v46, 16, v46
        v_sub_f32 v46, v{cs}, v46
        v_cvt_pk_bf16_f32 v{NF}, v{cs}, v46
        v_and_b32 v47, 0xffff0000, v{NF}
        v_sub_f32 v46, v46, v47
        v_cvt_pk_bf16_f32 v{NF+1}, v46, {bias}
        """)

    def hd_off(self, base):
        return lines(f"""
        s_lshl_b32 {sT2}, {sG}, 2
        s_lshl_b32 {sT3}, {sNH}, 1
        s_add_u32 {sT2}, {sT2}, {sT3}
        s_lshl_b32 {sT2}, {sT2}, 16
        s_lshl_b32 {sT3}, {sT}, 10
        s_add_u32 {sT2}, {sT2}, {sT3}
        s_add_u32 {sT2}, {sT2}, {base}
        """)

    def epi_qk(self, acc, rreg, base, tag):
        o = []
        for i in range(16): o.append(f'v_mul_f32 v{acc+i}, {rreg}, v{acc+i}')
        for i in range(8): o.append(f'v_cvt_pk_bf16_f32 v{acc+i}, v{acc+2*i}, v{acc+2*i+1}')
        o += self.hd_off(base) + lines(f"""
        s_add_u32 {sT3}, {sT2}, 65536
        buffer_store_dwordx4 v[{acc}:{acc+3}], {vL16}, {srd(S_WS)}, {sT2} offen sc1 #{tag}
        buffer_store_dwordx4 v[{acc+4}:{acc+7}], {vL16}, {srd(S_WS)}, {sT3} offen sc1 #{tag}
        """)
        return o

    def epi_v_pre(self, tmp):
        o = lines(f"""
        s_lshl_b32 {sT2}, {sW}, 7
        s_add_u32 {sT2}, {sT2}, {L_RV}
        v_lshl_add_u32 v46, {vTOK}, 2, {sT2}
        v_lshl_add_u32 v47, {vHF}, 4, {sT2}
        ds_write_b32 v46, {vR}
        """)
        for q in range(4): o.append(f'ds_read_b128 v[{tmp+4*q}:{tmp+4*q+3}], v47 offset:{32*q}')
        return o

    def epi_v(self, acc, tmp, tag):
        o = []
        for i in range(16): o.append(f'v_mul_f32 v{acc+i}, v{tmp+i}, v{acc+i}')
        for i in range(8): o.append(f'v_cvt_pk_bf16_f32 v{acc+i}, v{acc+2*i}, v{acc+2*i+1}')
        o += lines(f"""
        v_bfe_u32 v46, v0, 4, 1
        v_and_b32 v47, 15, v0
        v_lshl_add_u32 v47, {vHF}, 4, v47
        v_lshlrev_b32 v47, 4, v47
        v_lshl_add_u32 v46, v46, 16, v47
        """) + self.hd_off(WS_V) + lines(f"""
        buffer_store_dwordx4 v[{acc}:{acc+3}], v46, {srd(S_WS)}, {sT2} offen sc1 #{tag}
        buffer_store_dwordx4 v[{acc+4}:{acc+7}], v46, {srd(S_WS)}, {sT2} offen offset:512 sc1 #{tag}
        """)
        return o

    def epi_h(self, acc, tmp, scol, tag):
        o = []
        for half in range(2):
            a = acc + 8 * half
            for i in range(8): o.append(f'v_mul_f32 v{a+i}, {vR}, v{a+i}')
            for i in range(8): o.append(f'v_mul_f32 v{tmp+i}, v{a+i}, v{a+i}')
            for i in range(8): o.append(f'v_fma_f32 v{tmp+i}, v{tmp+i}, {sGB}, {vGA}')
            for i in range(8): o.append(f'v_mul_f32 v{tmp+i}, v{tmp+i}, v{a+i}')
            for i in range(8): o.append(f'v_exp_f32 v{tmp+i}, v{tmp+i}')
            for i in range(8): o.append(f'v_add_f32 v{tmp+i}, 1.0, v{tmp+i}')
            for i in range(8): o.append(f'v_rcp_f32 v{tmp+i}, v{tmp+i}')
            for i in range(8): o.append(f'v_mul_f32 v{a+i}, v{a+i}, v{tmp+i}')
            for i in range(4): o.append(f'v_cvt_pk_bf16_f32 v{a+i}, v{a+2*i}, v{a+2*i+1}')
            o += lines(f"""
            s_lshl_b32 {sT2}, {scol}, 5
            s_lshl_b32 {sT3}, {sNH}, 11
            s_add_u32 {sT2}, {sT2}, {sT3}
            s_add_u32 {sT2}, {sT2}, {sAHB}
            """)
            o.append(f'buffer_store_dwordx4 v[{a}:{a+3}], {vL16}, {srd(S_WS)}, {sT2} offen offset:{1024*half} sc1 #{tag}')
        return o

    def flag_set(self, tag, base_s, off):
        return lines(f"""
        v_lshl_add_u32 v46, v0, 26, {base_s}
        v_mov_b32 v47, 1
        WAITVM {tag}
        buffer_store_dword v47, v46, {srd(S_WS)}, 0 offen offset:{off} sc1
        """)

    def u_rd(self, c0, m):
        c = c0 + (m >> 4); k = m & 15
        slot = (c % 4) * SLOT
        o = self.win(slot & 0x10000, regs=range(6, 10))
        base = (slot & 0xffff) + 8192 * (k >> 2); s = k & 3
        b = 48 + 4 * (m % 4)
        return o + [f'ds_read_b64_tr_b16 v[{b}:{b+1}], v{6+s} offset:{base}',
                    f'ds_read_b64_tr_b16 v[{b+2}:{b+3}], v{6+s} offset:{base + 512}']

    def u_mfma(self, acc, m):
        b = 48 + 4 * (m % 4); x = 128 + 4 * m
        cin = '0' if m == 0 else blk(acc)
        return f'{MFMA} {blk(acc)}, {q4(b)}, {q4(x)}, {cin}'

    def retry(self, check_lines, reload_lines, name):
        e = self.e
        lok = e.newlabel(name + 'OK'); lp = e.newlabel(name + 'LP')
        self.run(check_lines)
        e(f's_cbranch_scc1 {lok}\ns_mov_b32 {sCNT}, 0')
        e.label(lp)
        st = self.snap()
        e.settle()
        self.run(reload_lines)
        e.raw('s_waitcnt vmcnt(0)'); e.vm = []
        e(f's_add_u32 {sCNT}, {sCNT}, 1\ns_cmp_gt_u32 {sCNT}, 0x40000\ns_cbranch_scc1 {lok}')
        self.run(check_lines)
        e(f's_cbranch_scc0 {lp}')
        e.settle()
        self.restore(st)
        e.label(lok)

    def p1(self, typ):
        e = self.e
        if typ == 1:
            units = [(S_QKV, 'v12', 3072, sCOLA), (S_QKV, 'v12', 3072, sCOLB)]
            e(f"""
            s_lshl_b32 {sCOLC}, {sG}, 7
            s_add_u32 {sCOLA}, {sCOLC}, 1024
            s_add_u32 {sCOLB}, {sCOLC}, 2048
            s_lshr_b32 {sCOLD}, {sG}, 1
            s_add_u32 {sCOLD}, {sCOLD}, 24
            s_lshl_b32 {sCOLD}, {sCOLD}, 7
            """)
        else:
            units = [(S_QKV, 'v12', 3072, sCOLA), (S_W1, 'v13', 3584, sCOLB)]
            e(f"""
            s_lshl_b32 {sCOLA}, {sG}, 7
            s_lshl_b32 {sCOLB}, {sG}, 8
            s_add_u32 {sCOLB}, {sCOLB}, 1024
            s_add_u32 {sCOLC}, {sCOLB}, 128
            """)
        def arm():
            lab = e.newlabel('NOARM')
            e(f"""
            s_lshl_b32 {sT0}, {sG}, 3
            s_add_u32 {sT0}, {sT0}, {sW}
            s_cmp_lg_u32 {sT0}, 0
            s_cbranch_scc1 {lab}
            s_lshl_b32 {sT0}, {sRB}, 2
            v_lshl_add_u32 v32, v0, 26, {sT0}
            v_mov_b32 v33, 1
            """)
            saved = list(e.vm)
            e(f'buffer_store_dword v33, v32, {srd(S_DBG)}, 0 offen sc1')
            e.vm = saved
            e.label(lab)
        for c in range(4):
            for grp in self.dma_stage1(c, units): self.run(grp)
            if c == 0: self.stats_loads()
            self.stamp(f'i{c}')
            if c < 3:
                if c == 1: e.wait_vm_tag('zero')
                e('s_barrier')
                if c == 1 and typ == 1: arm()
        self.stamp(0)
        self.prologue2()
        e(f"""
        s_lshl_b32 {sT4}, {sNH}, 6
        v_lshl_add_u32 v32, {vTOK}, 1, {sT4}
        buffer_load_ushort {vBC}, v32, {srd(S_B1)}, {sCOLC} offen
        buffer_load_ushort {vBX}, v32, {srd(S_B1)}, {sCOLD if typ == 1 else sCOLB} offen
        """)
        dq = []
        def chunk_dmas(c):
            if c < 8: return self.dma_stage1(c, units)
            if c < 10: return self.dma_stage2(c, c - 8, sCOLC)
            if typ == 1 and c < 12: return self.dma_stage2(c, c - 10, sCOLD)
            return []
        def rd1(n):
            c, s = n >> 2, n & 3
            slot = (c % 4) * SLOT
            o = self.win(slot & 0x10000)
            base = slot & 0xffff
            x = 128 + 4 * n; b = 48 + 8 * (n % 4)
            return o + [f'ds_read_b128 {q4(x)}, v{2+s} offset:{base}',
                  f'ds_read_b64_tr_b16 v[{b}:{b+1}], v{6+s} offset:{base + 16384}',
                  f'ds_read_b64_tr_b16 v[{b+2}:{b+3}], v{6+s} offset:{base + 16384 + 512}',
                  f'ds_read_b64_tr_b16 v[{b+4}:{b+5}], v{6+s} offset:{base + 24576}',
                  f'ds_read_b64_tr_b16 v[{b+6}:{b+7}], v{6+s} offset:{base + 24576 + 512}']
        def barrier(tag):
            e.wait_vm_tag(tag); e.wait_lg0(); e('s_barrier')
        self.stamp('p2')
        e.wait_vm_tag('c0')
        self.stamp('w0')
        barrier('c0')
        self.stamp(1)
        self.run(rd1(0) + rd1(1))
        e(f"""
        ds_read_b128 v[232:235], v246
        ds_read_b128 v[236:239], v246 offset:16
        """)
        armed_chk = [f'v_cmp_ne_u32 vcc, 1, v249', 's_cmp_eq_u64 vcc, 0']
        armed_ld = [f'buffer_load_dword v249, v248, {srd(S_DBG)}, 0 offen sc1']
        for n in range(32):
            c, s = n >> 2, n & 3
            if s == 2:
                self.stamp(f'a{c+1}')
                e.wait_vm_tag(f'c{c+1}')
                self.stamp(f'w{c+1}')
                barrier(f'c{c+1}')
                self.stamp(f'b{c+1}')
                dq += chunk_dmas(c + 4)
            if n + 2 < 32: self.run(rd1(n + 2))
            elif n == 30: self.run(self.u_rd(8, 0) + self.u_rd(8, 1))
            else: self.run(self.u_rd(8, 2))
            x = 128 + 4 * n; b = 48 + 8 * (n % 4)
            ca = '0' if n == 0 else blk(accA)
            cb = '0' if n == 0 else blk(accB)
            e.I(f'{MFMA} {blk(accA)}, {q4(b)}, {q4(x)}, {ca}')
            if typ == 1: e.I(f'{MFMA} {blk(accB)}, {q4(x)}, {q4(b+4)}, {cb}')
            else: e.I(f'{MFMA} {blk(accB)}, {q4(b+4)}, {q4(x)}, {cb}')
            if dq: self.run(dq.pop(0))
            if n == 1:
                e(f"""
                v_add_f32 v232, v232, v233
                v_add_f32 v234, v234, v235
                v_add_f32 v236, v236, v237
                v_add_f32 v238, v238, v239
                v_add_f32 v232, v232, v234
                v_add_f32 v236, v236, v238
                v_add_f32 v244, v232, v236
                v_mov_b32 v245, 1
                s_lshr_b32 {sT2}, {sUID}, 2
                s_lshl_b32 {sT2}, {sT2}, 14
                s_and_b32 {sT3}, {sUID}, 3
                s_lshl_b32 {sT3}, {sT3}, 11
                s_add_u32 {sT2}, {sT2}, {sT3}
                s_lshl_b32 {sT3}, {sQTR}, 3
                s_add_u32 {sT2}, {sT2}, {sT3}
                s_add_u32 {sT2}, {sT2}, {WS_Z + Z_CSG}
                s_cmp_ge_u32 {sUID}, 52
                s_cselect_b32 {sT3}, 1, {sW}
                s_lshl_b32 {sT3}, {sT3}, 26
                s_add_u32 {sT2}, {sT2}, {sT3}
                v_lshl_add_u32 v246, v0, 5, {sT2}
                """)
            if n == 4: self.run(armed_ld)
            if n == 8:
                self.retry(armed_chk, armed_ld, 'ARM')
                e(f"""
                buffer_store_dwordx2 v[240:241], v242, {srd(S_WS)}, 0 offen sc1
                buffer_store_dwordx2 v[244:245], v246, {srd(S_WS)}, 0 offen sc1
                """)
            if n == 25:
                rowg = lines(f"""
                s_lshl_b32 {sT2}, {sRB}, 14
                s_lshl_b32 {sT3}, {sTT}, 8
                s_add_u32 {sT2}, {sT2}, {sT3}
                s_add_u32 {sT2}, {sT2}, {WS_Z + Z_ROW}
                v_lshlrev_b32 v20, 3, {vTOK}
                buffer_load_dwordx2 v[{TF}:{TF+1}], v20, {srd(S_WS)}, {sT2} offen sc1
                """)
                ldA = self.cs_load(sCOLA, True, 32); ldB = self.cs_load(sCOLB, typ == 1, 40 - 0)
                self.run(rowg + ldA)
            if n == 27: self.run(ldB)
        self.stamp(2)
        chk = lines(f"""
        v_and_b32 v20, v{TF+1}, v33
        v_and_b32 v20, v20, v35
        v_and_b32 v20, v20, v37
        v_and_b32 v20, v20, v39
        v_and_b32 v20, v20, v41
        v_and_b32 v20, v20, v43
        v_and_b32 v20, v20, v45
        v_and_b32 v20, v20, v47
        v_cmp_ne_u32 vcc, 1, v20
        s_cmp_eq_u64 vcc, 0
        """)
        self.retry(chk, rowg + ldA + ldB, 'GR')
        pre = lines(f"""
        v_add_f32 v32, v32, v34
        v_add_f32 v36, v36, v38
        v_add_f32 v40, v40, v42
        v_add_f32 v44, v44, v46
        v_add_f32 v32, v32, v36
        v_add_f32 v33, v40, v44
        v_and_b32 v34, 0xffff0000, v{TF}
        v_rcp_f32 {vR}, v34
        v_cmp_eq_u32 vcc, 0, {vHF}
        v_cndmask_b32 v{TF+1}, 0, v{TF}, vcc
        v_and_b32 v{TF}, 0xffff, v{TF+1}
        v_lshl_or_b32 v{TF}, v{TF}, 16, v{TF}
        v_lshlrev_b32 {vBC}, 16, {vBC}
        v_lshlrev_b32 {vBX}, 16, {vBX}
        """)
        ldC = self.cs_load(sCOLC, False, 36)
        if typ == 1:
            epi = pre + self.nf_build(32, '0') + [f'{MFMA} {blk(accA)}, {q4(NF)}, {q4(TF)}, {blk(accA)}']
            epi += self.epi_v_pre(64)
            epi += self.nf_build(33, '0') + [f'{MFMA} {blk(accB)}, {q4(TF)}, {q4(NF)}, {blk(accB)}']
            epi += self.epi_qk(accA, vR, WS_K, 'kv') + self.epi_v(accB, 64, 'kv') + ldC
            epi2 = self.flag_set('kv', sFLB, 0)
        else:
            epi = pre + self.nf_build(32, '0') + [f'{MFMA} {blk(accA)}, {q4(NF)}, {q4(TF)}, {blk(accA)}']
            epi += self.nf_build(33, vBX) + [f'{MFMA} {blk(accB)}, {q4(NF)}, {q4(TF)}, {blk(accB)}']
            epi += [f'v_mul_f32 v64, {f32(0.25 * LOG2E)}, {vR}'] + self.epi_qk(accA, 'v64', WS_Q, 'kv') + ldC
            hh = self.epi_h(accB, 64, sCOLB, 'h')
            epi += hh[:len(hh) // 4]
            epi2 = hh[len(hh) // 4:len(hh) // 2] + self.flag_set('kv', sFLB, 256) + hh[len(hh) // 2:]
        def ustream(c0, acc, m0, m1, nxt=None):
            o = []
            for m in range(m0, m1):
                if m + 3 < 32: o += self.u_rd(c0, m + 3)
                elif nxt is not None: o += self.u_rd(nxt, m + 3 - 32)
                o.append(self.u_mfma(acc, m))
                if dq: o += dq.pop(0)
            return o
        is_main = lambda acc: (lambda s: s.startswith('v_mfma') and f'{blk(acc)}, v[4' in s or s.startswith('v_mfma') and f'{blk(acc)}, v[5' in s or s.startswith('v_mfma') and f'{blk(acc)}, v[6' in s)
        self.run(interleave(ustream(8, accC, 0, 13), epi, is_main(accC)))
        self.stamp(3)
        barrier('c9')
        chkC = lines(f"""
        v_and_b32 v20, v37, v39
        v_and_b32 v20, v20, v41
        v_and_b32 v20, v20, v43
        v_cmp_ne_u32 vcc, 1, v20
        s_cmp_eq_u64 vcc, 0
        """)
        sumC = ['v_add_f32 v36, v36, v38', 'v_add_f32 v40, v40, v42', 'v_add_f32 v36, v36, v40']
        epi3 = self.nf_build(36, vBC) + [f'{MFMA} {blk(accC)}, {q4(NF)}, {q4(TF)}, {blk(accC)}']
        epi3 += self.epi_h(accC, 64, sCOLC, 'h')
        hfl = self.flag_set('h', sFLB, 512 + (256 if typ == 2 else 0))
        if typ == 2:
            self.run(interleave(ustream(8, accC, 13, 32), epi2, is_main(accC)))
            self.stamp(4)
            self.retry(chkC, ldC, 'GC')
            self.run(sumC + epi3 + hfl)
        else:
            self.run(interleave(ustream(8, accC, 13, 29), epi2, is_main(accC)))
            self.retry(chkC, ldC, 'GC')
            self.run(sumC)
            barrier('c11')
            self.stamp(4)
            lnp = e.newlabel('NOPART'); ljoin = e.newlabel('PJOIN')
            e(f"""
            s_lshr_b32 {sT0}, {sTT}, 1
            s_and_b32 {sT1}, {sG}, 1
            s_cmp_lg_u32 {sT0}, {sT1}
            s_cbranch_scc1 {lnp}
            """)
            st = self.snap()
            ldD = self.cs_load(sCOLD, False, 72)
            self.run(ldD + ustream(8, accC, 29, 32, nxt=10))
            self.run(interleave(ustream(10, accA, 0, 32), epi3, is_main(accA)))
            chkD = lines(f"""
            v_and_b32 v20, v73, v75
            v_and_b32 v20, v20, v77
            v_and_b32 v20, v20, v79
            v_cmp_ne_u32 vcc, 1, v20
            s_cmp_eq_u64 vcc, 0
            """)
            self.retry(chkD, ldD, 'GD')
            epi4 = ['v_add_f32 v72, v72, v74', 'v_add_f32 v76, v76, v78', 'v_add_f32 v36, v72, v76']
            epi4 += self.nf_build(36, vBX) + [f'{MFMA} {blk(accA)}, {q4(NF)}, {q4(TF)}, {blk(accA)}']
            epi4 += self.epi_h(accA, 64, sCOLD, 'h')
            self.run(epi4 + hfl)
            e.settle()
            e(f's_branch {ljoin}')
            self.restore(st)
            e.label(lnp)
            self.run(ustream(8, accC, 29, 32) + epi3 + hfl)
            e.settle()
            e.label(ljoin)
        e.wait_lg0(force=True)
        e.settle()
        e.vm = []
        self.stamp(5)

    def poll(self, vaddr, vtmp, name):
        e = self.e
        lskip = e.newlabel('PSKIP'); lp = e.newlabel('PLP')
        e.settle()
        e(f"""
        s_cmp_lg_u32 {sW}, 0
        s_cbranch_scc1 {lskip}
        s_mov_b32 {sCNT}, 0
        """)
        e.label(lp)
        e.raw(f'buffer_load_dword {vtmp}, {vaddr}, {srd(S_WS)}, 0 offen sc1')
        e.raw(f's_add_u32 {sCNT}, {sCNT}, 1')
        e.raw('s_waitcnt vmcnt(0)')
        e.raw(f'v_cmp_ne_u32 vcc, 1, {vtmp}')
        e.raw(f's_cmp_gt_u32 {sCNT}, 0x40000')
        e.raw(f's_cbranch_scc1 {lskip}')
        e.raw(f's_and_b64 vcc, vcc, {sEX}')
        e.raw(f's_cbranch_scc1 {lp}')
        e.label(lskip)
        e.t += 4

    def blk_idx(self, jb):
        if jb < 28:
            return [f's_add_u32 {sT0}, {sROT2}, {jb}', f's_cmp_ge_u32 {sT0}, 28', f's_cselect_b32 {sT1}, 28, 0', f's_sub_u32 {sT0}, {sT0}, {sT1}']
        return [f's_add_u32 {sT0}, {sC64}, {jb - 28}', f's_and_b32 {sT0}, {sT0}, 7']

    def w2_dma(self, jb):
        pos = self.w2_pos(jb)
        sr = S_W2 if jb < 28 else S_WO
        return self.blk_idx(jb) + [f's_lshl_b32 {sT0}, {sT0}, 16', f's_lshl_b32 {sT1}, {sC64}, 7',
              f's_add_u32 m0, {sWB1K}, {pos}', f's_add_u32 {sT0}, {sT0}, {sT1}',
              f'buffer_load_dwordx4 {vW2}, {srd(sr)}, {sT0} offen lds #w{jb // 2}']

    def w2_pos(self, jb):
        return (jb % 18) * 8192

    def fl_addr(self, vT, vtmp):
        return lines(f"""
        v_ashrrev_i32 {vtmp}, 2, {vT}
        v_lshlrev_b32 {vtmp}, 14, {vtmp}
        v_and_b32 {vT}, 3, {vT}
        v_mul_u32_u24 {vT}, {FL_T}, {vT}
        v_add_u32 {vT}, {vT}, {vtmp}
        """)

    def att(self):
        e = self.e
        e(f"""
        s_lshr_b32 {sT5}, s2, 5
        s_lshl_b32 {sT}, {sT5}, 3
        s_add_u32 {sT}, {sT}, {sW}
        s_sub_u32 {sIMIN}, 8, {sT}
        s_cmp_gt_u32 {sT}, 8
        s_cselect_b32 {sIMIN}, 0, {sIMIN}
        s_lshl_b32 {sT0}, {sT5}, 3
        s_sub_u32 {sT0}, {sT0}, 8
        v_add_u32 v32, {sT0}, v0
        v_subrev_u32 v33, 8, v32
        v_cmp_gt_u32 vcc, 16, v0
        v_cndmask_b32 v32, v33, v32, vcc
        v_mov_b32 v34, 256
        v_cndmask_b32 v34, v34, 0, vcc
        """)
        self.run(self.fl_addr('v32', 'v33'))
        e(f"""
        s_lshr_b32 {sT1}, {sHEAD}, 1
        s_lshl_b32 {sT1}, {sT1}, 4
        s_add_u32 {sT1}, {sT1}, {WS_Z}
        v_add3_u32 v32, v32, v34, {sT1}
        s_mov_b32 s90, 0xffffff
        s_cmp_eq_u32 {sT5}, 0
        s_cselect_b32 s90, 0xffff00, s90
        s_mov_b32 s91, 0
        """)
        self.poll('v32', 'v33', 'att')
        e('s_barrier')
        self.stamp(6)
        e(f"""
        s_lshl_b32 {sT0}, {sT5}, 3
        s_sub_u32 {sT0}, {sT0}, 8
        s_lshl_b32 {sT0}, {sT0}, 10
        s_add_u32 {sT0}, {sT0}, {sWB2K}
        s_lshl_b32 {sT1}, {sHEAD}, 16
        s_add_u32 {sT0}, {sT0}, {sT1}
        s_add_u32 {sT2}, {sT0}, {WS_K}
        s_add_u32 {sT3}, {sT0}, {WS_V}
        s_lshl_b32 {sT4}, {sT}, 10
        s_add_u32 {sT4}, {sT4}, {sT1}
        s_add_u32 {sT4}, {sT4}, {WS_Q}
        buffer_load_dwordx4 v[32:35], {vL16}, {srd(S_WS)}, {sT2} offen sc1
        buffer_load_dwordx4 v[36:39], {vL16}, {srd(S_WS)}, {sT2} offen offset:1024 sc1
        buffer_load_dwordx4 v[4:7], {vL16}, {srd(S_WS)}, {sT4} offen sc1
        buffer_load_dwordx4 v[40:43], {vL16}, {srd(S_WS)}, {sT3} offen sc1
        buffer_load_dwordx4 v[44:47], {vL16}, {srd(S_WS)}, {sT3} offen offset:1024 sc1
        """)
        dq = [self.w2_dma(jb) for jb in range(14)]
        self.run(dq.pop(0) + dq.pop(0))
        Q = 'v[4:7]'
        MD, MF, NM, O = 96, 112, 128, 208
        SB = [144, 160]; PB = [176, 184]; VB = [192, 200]
        e(f"""
        v_add_u32 v2, {sWB2K}, {vL16}
        v_add_u32 v3, {L_KST}, v2
        v_add_u32 v2, {L_VST}, v2
        v_add_u32 v12, {L_MASKD}, {vL16}
        v_add_u32 v13, {sWB1K}, {vL16}
        v_add_u32 v13, {L_KST}, v13
        v_and_b32 v22, 15, v0
        v_lshl_add_u32 v22, {vHF}, 4, v22
        v_lshlrev_b32 v22, 4, v22
        v_add_u32 v22, {sWB1K}, v22
        v_add_u32 v22, {L_VST}, v22
        """)
        for r in list(range(8, 12)) + list(range(192, 208)): e(f'v_mov_b32 v{r}, {vONE}')
        e('v_mov_b32 v17, 0')
        for q in range(4):
            e(f'ds_read_b128 v[{MD+4*q}:{MD+4*q+3}], v12 offset:{1024*q}')
            e(f'ds_read_b128 v[{MF+4*q}:{MF+4*q+3}], v12 offset:{4096+1024*q}')
        e(f"""
        ds_write_b128 v3, v[32:35]
        ds_write_b128 v3, v[36:39] offset:1024
        ds_write_b128 v2, v[40:43]
        ds_write_b128 v2, v[44:47] offset:1024
        """)
        e.wait_lg0(); e('s_barrier')
        self.stamp(7)
        for i in range(8, -1, -1):
            e(f'ds_read_b128 v[{48+4*i}:{51+4*i}], v13 offset:{1024*i}')
        def KF(i): return f'v[{48+4*i}:{51+4*i}]'
        self.run(dq.pop(0) + dq.pop(0))
        lend1 = e.newlabel('P1END')
        e(f'v_mov_b32 v20, {NEGBIG}\nv_mov_b32 v21, {NEGBIG}')
        e(f'{MFMA} {blk(SB[0])}, {KF(8)}, {Q}, {blk(MD)}')
        for n, i in enumerate(range(8, -1, -1)):
            cur = SB[n % 2]; nx = SB[(n + 1) % 2]
            if i > 0:
                c = blk(MF) if i - 1 == 0 else '0'
                e(f'{MFMA} {blk(nx)}, {KF(i-1)}, {Q}, {c}')
            for j in range(8):
                e(f'v_max3_f32 v{20 + (j & 1)}, v{cur+2*j}, v{cur+2*j+1}, v{20 + (j & 1)}')
            if i > 0:
                e(f's_cmp_eq_u32 {sIMIN}, {i}\ns_cbranch_scc1 {lend1}')
        e.settle()
        e.label(lend1)
        e(f"""
        v_max_f32 v20, v20, v21
        v_mov_b32 v21, v20
        v_permlane32_swap_b32 v20, v21
        v_max_f32 v20, v20, v21
        v_cvt_pk_bf16_f32 v21, v20, v20
        v_lshlrev_b32 v21, 16, v21
        v_sub_f32 v21, v21, v20
        v_cvt_pk_bf16_f32 v16, -v20, v21
        v_cmp_eq_u32 vcc, 0, {vHF}
        v_cndmask_b32 v16, 0, v16, vcc
        {MFMA} {blk(MD)}, v[8:11], v[16:19], {blk(MD)}
        {MFMA} {blk(NM)}, v[8:11], v[16:19], 0
        {MFMA} {blk(MF)}, v[8:11], v[16:19], {blk(MF)}
        s_mov_b32 s90, 0xffff
        s_mov_b32 s91, 0xffff
        """)
        self.run(dq.pop(0))
        def vread(i, b):
            e(f"""
            s_mov_b64 exec, {sEX}
            ds_read_b128 v[{b}:{b+3}], v22 offset:{1024*i}
            ds_read_b128 v[{b+4}:{b+7}], v22 offset:{1024*i+512}
            s_mov_b64 exec, -1
            """)
        tails = {i: e.newlabel(f'TAIL{i}') for i in range(1, 9)}
        lend2 = e.newlabel('P2END')
        vread(8, VB[0])
        e(f'{MFMA} {blk(SB[0])}, {KF(8)}, {Q}, {blk(MD)}')
        dmas = list(dq); assert len(dmas) == 9
        for n, i in enumerate(range(8, -1, -1)):
            cur = SB[n % 2]; nx = SB[(n + 1) % 2]; P = PB[n % 2]; V = VB[n % 2]
            if i > 0:
                c = blk(MF) if i - 1 == 0 else blk(NM)
                e(f'{MFMA} {blk(nx)}, {KF(i-1)}, {Q}, {c}')
                vread(i - 1, VB[(n + 1) % 2])
            self.run(dmas[n])
            for kb in range(2):
                for j in range(8): e(f'v_exp_f32 v{cur+8*kb+j}, v{cur+8*kb+j}')
                for j in range(4): e(f'v_cvt_pk_bf16_f32 v{P+4*kb+j}, v{cur+8*kb+2*j}, v{cur+8*kb+2*j+1}')
                if kb == 1:
                    c = '0' if n == 0 else blk(O)
                    e(f'{MFMA} {blk(O)}, v[{V}:{V+3}], v[{P}:{P+3}], {c}')
                    e(f'{MFMA} {blk(O)}, v[{V+4}:{V+7}], v[{P+4}:{P+7}], {blk(O)}')
            if i > 0:
                e(f's_cmp_eq_u32 {sIMIN}, {i}\ns_cbranch_scc1 {tails[i]}')
        e(f's_branch {lend2}')
        st = self.snap()
        for i in range(8, 0, -1):
            e.label(tails[i])
            self.run(dmas[8 - i + 1])
        self.restore(st)
        e.label(lend2)
        e.wait_lg0(force=True)
        e.nop(12)
        e(f'v_rcp_f32 v20, v{O+8}')
        for j in range(8): e(f'v_mul_f32 v{O+j}, v20, v{O+j}')
        for j in range(4): e(f'v_cvt_pk_bf16_f32 v{O+j}, v{O+2*j}, v{O+2*j+1}')
        e(f"""
        s_mul_i32 {sT2}, {sT}, {AH_T}
        s_lshl_b32 {sT3}, {sHEAD}, 10
        s_add_u32 {sT2}, {sT2}, {sT3}
        s_add_u32 {sT2}, {sT2}, {112 * 1024}
        buffer_store_dwordx4 v[{O}:{O+3}], {vL16}, {srd(S_WS)}, {sT2} offen sc1 #o
        s_lshr_b32 {sT4}, {sT}, 2
        s_lshl_b32 {sT4}, {sT4}, 14
        s_and_b32 {sT3}, {sT}, 3
        s_mul_i32 {sT3}, {sT3}, {FL_T}
        s_add_u32 {sT4}, {sT4}, {sT3}
        s_lshl_b32 {sT3}, {sHEAD}, 4
        s_add_u32 {sT4}, {sT4}, {sT3}
        s_add_u32 {sT4}, {sT4}, {WS_Z}
        """)
        self.run(self.flag_set('o', sT4, 1024))
        self.stamp(8)

    def g2(self):
        e = self.e
        D = 6
        HB = 80
        NHB = 2 * (D + 1)
        ACC = [208, 224]
        e(f"""
        s_lshl_b32 {sT}, {sR2}, 1
        s_add_u32 {sT5}, {sT}, {sNH}
        s_mul_i32 {sAHB}, {sT5}, {AH_T}
        s_and_b32 {sT4}, {sW}, 3
        s_lshl_b32 {sT3}, {sT4}, 10
        s_add_u32 {sAHB}, {sAHB}, {sT3}
        v_bfe_u32 v39, v0, 2, 2
        v_lshl_add_u32 v30, {vHF}, 2, v39
        v_lshlrev_b32 v30, 7, v30
        v_bfe_u32 v32, v0, 4, 1
        v_bfe_u32 v33, v0, 1, 1
        v_lshl_add_u32 v32, v32, 1, v33
        v_and_b32 v33, 2, v39
        v_lshlrev_b32 v33, 1, v33
        v_xor_b32 v32, v32, v33
        v_lshl_add_u32 v30, v32, 4, v30
        v_and_b32 v33, 1, v0
        v_lshl_add_u32 v30, v33, 3, v30
        s_lshl_b32 {sT3}, {sT4}, 11
        v_add_u32 v2, {sT3}, v30
        v_xor_b32 v3, 64, v2
        v_add_u32 v4, 0x10000, v2
        v_add_u32 v5, 0x10000, v3
        v_add_u32 v6, 0x20000, v2
        v_add_u32 v7, 0x20000, v3
        v_add_u32 v32, {sT}, {vHF}
        """)
        self.run(self.fl_addr('v32', 'v33'))
        e(f"""
        v_lshl_add_u32 v32, {vTOK}, 4, v32
        v_add_u32 v32, {WS_Z + 512}, v32
        v_add_u32 v34, 512, v32
        s_mov_b64 {sEX}, -1
        """)
        self.poll('v32', 'v33', 'h')
        e.wait_vm_tag('w0')
        e.wait_lg0(force=True)
        e('s_barrier')
        self.stamp(9)
        def hload(jb):
            b = HB + 4 * (jb % NHB)
            o = self.blk_idx(jb)
            if jb >= 28: o.append(f's_add_u32 {sT0}, {sT0}, 28')
            o += [f's_lshl_b32 {sT0}, {sT0}, 12', f's_add_u32 {sT0}, {sT0}, {sAHB}',
                  f'buffer_load_dwordx4 {q4(b)}, {vL16}, {srd(S_WS)}, {sT0} offen sc1']
            return o
        def wrd(g):
            o = []
            for k in range(2):
                jb = 2 * g + k
                pos = self.w2_pos(jb); wdw = pos >> 16; off = pos & 0xffff
                b = 48 + 16 * (g & 1) + 8 * k
                a0, a1 = f'v{2 + 2*wdw}', f'v{3 + 2*wdw}'
                o += [f'ds_read_b64_tr_b16 v[{b}:{b+1}], {a0} offset:{off}',
                      f'ds_read_b64_tr_b16 v[{b+2}:{b+3}], {a0} offset:{off + 1024}',
                      f'ds_read_b64_tr_b16 v[{b+4}:{b+5}], {a1} offset:{off}',
                      f'ds_read_b64_tr_b16 v[{b+6}:{b+7}], {a1} offset:{off + 1024}']
            return o
        for jb in range(2 * D): self.run(hload(jb))
        self.run(wrd(0))
        for jb in range(14, 18): self.run(self.w2_dma(jb))
        e(f"""
        v_lshrrev_b32 v35, 3, v0
        v_and_b32 v36, 7, v0
        s_lshl_b32 {sT3}, {sR2}, 6
        s_lshl_b32 {sT4}, {sW}, 3
        s_add_u32 {sT3}, {sT3}, {sT4}
        v_add_u32 v37, {sT3}, v35
        s_lshl_b32 {sT4}, {sC64}, 7
        v_lshl_add_u32 v38, v36, 4, {sT4}
        v_lshl_add_u32 v8, v37, 10, v38
        buffer_load_dwordx4 v[40:43], v8, {srd(S_X)}, 0 offen
        buffer_load_dwordx4 v[44:47], v38, {srd(S_B2)}, 0 offen
        """)
        OP = 10
        hq = list(range(2 * D, 36))
        for g in range(18):
            if g == OP:
                self.poll('v34', 'v33', 'o')
                self.stamp(10)
            if g + 1 < 18:
                self.stamp(f'ga{g}')
                e.wait_vm_tag(f'w{g+1}')
                e.wait_lg0()
                e('s_barrier')
                self.stamp(f'g{g}')
            vm = []
            lim = 28 if g < OP else 36
            n = 0
            while hq and hq[0] < lim and hq[0] - NHB < 2 * g and n < 4:
                vm.append(hload(hq.pop(0))); n += 1
            if g + 9 < 18:
                vm += [self.w2_dma(2 * (g + 9)), self.w2_dma(2 * (g + 9) + 1)]
            if vm: self.run(vm.pop(0))
            if g + 1 < 18: self.run(wrd(g + 1))
            for k in range(2):
                jb = 2 * g + k
                b = 48 + 16 * (g & 1) + 8 * k; hb = HB + 4 * (jb % NHB)
                for nt in range(2):
                    c = '0' if jb == 0 else blk(ACC[nt])
                    e.I(f'{MFMA} {blk(ACC[nt])}, {q4(b+4*nt)}, {q4(hb)}, {c}')
                    if vm: self.run(vm.pop(0))
            for x in vm: self.run(x)
        assert not hq
        self.stamp(11)
        PS = 1056
        e.wait_lg0(); e('s_barrier')
        e(f"""
        s_and_b32 {sT4}, {sW}, 3
        s_lshl_b32 {sT4}, {sT4}, 1
        s_add_u32 {sT4}, {sT4}, {sNH}
        s_mul_i32 {sT4}, {sT4}, {8 * PS}
        v_add_u32 v9, {sT4}, {vL16}
        """)
        for nt in range(2):
            for q in range(4):
                e(f'ds_write_b128 v9, v[{ACC[nt]+4*q}:{ACC[nt]+4*q+3}] offset:{(nt*4+q)*PS}')
        e(f"""
        s_and_b32 {sT4}, {sW}, 3
        s_lshl_b32 {sT4}, {sT4}, 7
        s_mul_i32 {sT3}, {sNH}, {8 * PS}
        s_add_u32 {sT4}, {sT4}, {sT3}
        v_mul_u32_u24 v9, {PS}, v36
        v_lshl_add_u32 v9, v35, 4, v9
        v_add_u32 v9, {sT4}, v9
        """)
        for j in range(4):
            e(f"""
            v_lshlrev_b32 v{96+2*j}, 16, v{40+j}
            v_and_b32 v{97+2*j}, 0xffff0000, v{40+j}
            v_lshlrev_b32 v{104+2*j}, 16, v{44+j}
            v_and_b32 v{105+2*j}, 0xffff0000, v{44+j}
            """)
        for j in range(8): e(f'v_add_f32 v{96+j}, v{96+j}, v{104+j}')
        e.wait_lg0(); e('s_barrier')
        for kq in range(4):
            for hf in range(2):
                b = 48 + 8 * kq + 4 * hf
                e(f'ds_read_b128 v[{b}:{b+3}], v9 offset:{kq * 16 * PS + hf * 512}')
        for j in range(8):
            e(f"""
            v_add_f32 v{48+j}, v{48+j}, v{56+j}
            v_add_f32 v{64+j}, v{64+j}, v{72+j}
            v_add_f32 v{48+j}, v{48+j}, v{64+j}
            v_add_f32 v{48+j}, v{48+j}, v{96+j}
            """)
        for j in range(4): e(f'v_cvt_pk_bf16_f32 v{48+j}, v{48+2*j}, v{48+2*j+1}')
        e(f'buffer_store_dwordx4 v[48:51], v8, {srd(S_OUT)}, 0 offen')
        self.stamp(12)

    def prof_out(self):
        e = self.e
        e(f"""
        s_lshl_b32 {sT0}, s2, 3
        s_add_u32 {sT0}, {sT0}, {sW}
        s_lshl_b32 {sT0}, {sT0}, 8
        s_add_u32 {sT0}, {sT0}, {WS_PROF}
        v_lshlrev_b32 v2, 2, v0
        buffer_store_dword v31, v2, {srd(S_WS)}, {sT0} offen
        """)

    def build(self):
        e = self.e
        if self.prof:
            e.raw('s_memrealtime s[6:7]')
            e.raw('s_memtime s[4:5]')
            e.raw('s_waitcnt lgkmcnt(0)')
            e.raw('s_mov_b32 s7, s4')
            e.raw('v_mov_b32 v31, 0')
        self.prologue()
        e(f"""
        s_cmp_eq_u32 {sTYPE}, 1
        s_cbranch_scc1 L_type2
        """)
        st = self.snap()
        self.p1(1)
        e('s_branch L_att')
        self.restore(st)
        e.label('L_type2')
        self.p1(2)
        e.label('L_att')
        if self.stop_after != 'p1':
            self.att()
            if self.stop_after != 'att':
                self.g2()
        if self.prof:
            e.raw('v_writelane_b32 v31, s6, 63')
            e.raw('s_memtime s[4:5]')
            e.raw('s_memrealtime s[64:65]')
            e.raw('s_waitcnt lgkmcnt(0)')
            e.raw('s_sub_u32 s4, s4, s7')
            e.raw('v_writelane_b32 v31, s4, 62')
            e.raw('v_writelane_b32 v31, s64, 61')
            self.prof_out()
        e.label('L_end')
        e.raw('s_endpgm')
        hdr = open('cdna_kernels/' + NAME + '.s.ref').read().split('\n')
        cm = [l for l in hdr if l.startswith(';') and '@launch' not in l]
        out = '\n'.join(cm) + f'\n; @launch grid=(256,1,1) block=(512,1,1) lds={LDS_BYTES}\n'
        out += f""".amdgcn_target "amdgcn-amd-amdhsa--gfx950"
.text
.globl {NAME}_kernel
.p2align 8
.type {NAME}_kernel,@function
{NAME}_kernel:
"""
        out += e.text()
        out += f""".section .rodata,"a"
.p2align 6
.amdhsa_kernel {NAME}_kernel
  .amdhsa_next_free_vgpr 256
  .amdhsa_next_free_sgpr 102
  .amdhsa_accum_offset 256
  .amdhsa_group_segment_fixed_size 0
  .amdhsa_kernarg_size 88
  .amdhsa_user_sgpr_count 2
  .amdhsa_user_sgpr_kernarg_segment_ptr 1
  .amdhsa_system_sgpr_workgroup_id_x 1
.end_amdhsa_kernel
"""
        return out

if __name__ == '__main__':
    import argparse
    ap = argparse.ArgumentParser()
    ap.add_argument('-o', default='k.s')
    ap.add_argument('--stop', default=None)
    ap.add_argument('--prof', default=None)
    a = ap.parse_args()
    g = G(stop_after=a.stop, prof=a.prof.split(',') if a.prof else None)
    txt = g.build()
    open(a.o, 'w').write(txt)
    print('instrs', g.e.ninstr, 'nops', g.e.nnops)
```

```python
import sys, math, struct, copy
from em import Em, lines, interleave

NAME = "parallel_sum__sliding_block__dense_activation_gelu__prompt"

WS_AH = 0
AH_T = 144 * 1024
WS_K = 0x1000000
WS_V = 0x1200000
WS_Q = 0x1400000
WS_Z = 0x1600000
Z_RB = 16384
FL_T = 1792
F_KV, F_Q, F_HB, F_HC, F_O = 0, 256, 512, 768, 1280
Z_ROW = 7168
Z_CSG = 8192
WS_PROF = 0x1800000
WS_SIZE = 0x2000000
SLOT = 32768
L_MASKD = 0
L_MASKF = 4096
L_KST = 131072
L_VST = 147456
L_CSP = 147456
L_RV = 149504
LDS_BYTES = 163840

def f32(x): return struct.unpack('<I', struct.pack('<f', x))[0]
LOG2E = 1.4426950408889634
GA = -2.0 * math.sqrt(2.0 / math.pi) * LOG2E
GB = GA * 0.044715
NEGBIG = f32(-1e30)
ONES = 0x3f803f80

S_X, S_QKV, S_W1, S_W2, S_WO, S_WS, S_OUT, S_DBG, S_B1, S_B2 = [8 + 4 * i for i in range(10)]
S_TMP = 80
def srd(b): return f's[{b}:{b+3}]'
sW = 's48'; sNH = 's49'; sTT = 's50'; sRB = 's51'; sG = 's52'; sROT = 's53'; sT = 's54'; sTYPE = 's55'
sWB1K = 's56'; sWB2K = 's57'
sCOLA = 's58'; sCOLB = 's59'; sCOLC = 's60'; sCOLD = 's61'
sT0, sT1, sT2, sT3, sT4, sT5 = 's62', 's63', 's86', 's87', 's88', 's89'
sEX = 's[90:91]'
sGB = 's93'; sFLB = 's92'
sCNT = 's94'
sR2 = 's95'; sC64 = 's96'; sROT2 = 's97'; sIMIN = 's98'; sHEAD = 's99'; sAHB = 's100'; sUID = 's101'
sPIT = 's3'; sQTR = 's98'; sROW = 's90'
sTA = 's64'; sRA = 's65'; sKV = 's66'; sQO = 's67'; sMSK = 's[68:69]'; sT2G = 's70'; sAH2 = 's71'; sREDO = 's72'; sRC1 = 's73'; sRC2 = 's74'; sIMIN = 's75'; sKQ = 's76'; sFLO = 's77'; sXCH = 's85'; sFLIP = 's78'; sWLO = 's79'; sWHI = 's97'
vW2 = 'v1'; vONE = 'v14'; vL16 = 'v15'; TF = 16; NF = 20; vGA = 'v24'; vR = 'v25'; vTOK = 'v26'; vHF = 'v27'
vBC = 'v28'; vBX = 'v29'; vCSA = 'v30'
accC, accA, accB = 80, 96, 112
def blk(b): return f'v[{b}:{b+15}]'
def q4(b): return f'v[{b}:{b+3}]'
MFMA = 'v_mfma_f32_32x32x16_bf16'

OPT = {}
class G:
    def __init__(self, stop_after=None, prof=False):
        self.e = Em()
        self.stop_after = stop_after
        self.prof = prof
        self.cyc = False

    def stamp(self, name):
        if not self.prof: return
        name = str(name)
        if name not in self.prof: return
        idx = self.prof.index(name)
        e = self.e
        e.raw('s_memtime s[4:5]' if self.cyc else 's_memrealtime s[4:5]')
        e.raw('s_waitcnt lgkmcnt(0)'); e.lg = []
        e.raw(f'v_writelane_b32 v31, s4, {idx}'); e.t += 3

    def snap(self):
        return copy.deepcopy({k: v for k, v in self.e.__dict__.items() if k != 'lines'}), self.curwin
    def restore(self, s):
        uid = self.e.uid; ni = self.e.ninstr; nn = self.e.nnops
        self.e.__dict__.update(copy.deepcopy(s[0])); self.e.uid = uid; self.e.ninstr = ni; self.e.nnops = nn
        self.curwin = s[1]
    def run(self, ls):
        for l in ls: self.e.I(l)

    def rotcode(self):
        m = OPT.get('rot', 'xcd2')
        if m == 'wg': return f's_lshl_b32 {sT4}, {sT3}, 1\ns_add_u32 {sROT}, {sT2}, {sT4}\ns_and_b32 {sROT}, {sROT}, 7'
        if m == 'none': return f's_mov_b32 {sROT}, 0'
        if m == 'xcd': return f's_mov_b32 {sROT}, {sT0}'
        if m == 'xcd2': return f's_add_u32 {sT4}, {sT2}, {sT3}\ns_and_b32 {sT4}, {sT4}, 1\ns_lshl2_add_u32 {sROT}, {sT4}, {sT0}\ns_and_b32 {sROT}, {sROT}, 7'
        if m == 'xcd4': return f's_add_u32 {sT4}, {sT2}, {sT3}\ns_and_b32 {sT4}, {sT4}, 3\ns_lshl1_add_u32 {sROT}, {sT4}, {sT0}\ns_and_b32 {sROT}, {sROT}, 7'

    def mk(self, b, lo, size):
        self.e(f"""
        s_mov_b32 s{b}, s{lo}
        s_and_b32 s{b+1}, s{lo+1}, 0xffff
        s_mov_b32 s{b+2}, {size}
        s_mov_b32 s{b+3}, 0x20000
        """)

    def prologue(self):
        e = self.e
        self.curwin = 0
        e(f"""
        s_cmp_ge_u32 s2, 256
        s_cbranch_scc1 L_end
        s_load_dwordx16 s[64:79], s[0:1], 0
        s_load_dwordx4 s[80:83], s[0:1], 64
        s_load_dwordx2 s[84:85], s[0:1], 80
        v_lshrrev_b32 v1, 6, v0
        v_and_b32 v0, 63, v0
        v_readfirstlane_b32 {sW}, v1
        s_and_b32 {sT0}, s2, 7
        s_lshr_b32 {sT1}, s2, 3
        s_and_b32 {sRB}, {sT0}, 1
        s_lshl_b32 {sRB}, {sRB}, 3
        s_and_b32 {sT2}, {sT1}, 7
        s_add_u32 {sRB}, {sRB}, {sT2}
        s_lshr_b32 {sT3}, {sT1}, 3
        s_lshr_b32 {sTYPE}, {sT3}, 1
        s_and_b32 {sG}, {sT0}, 6
        s_and_b32 {sT4}, {sT3}, 1
        s_add_u32 {sG}, {sG}, {sT4}
        {self.rotcode()}
        s_lshr_b32 {sNH}, {sW}, 2
        s_lshl_b32 {sT4}, {sNH}, 1
        s_add_u32 {sTT}, {sW}, {sT4}
        s_and_b32 {sTT}, {sTT}, 3
        s_lshl_b32 {sT}, {sRB}, 2
        s_add_u32 {sT}, {sT}, {sTT}
        s_lshl_b32 {sWB1K}, {sW}, 10
        s_lshl_b32 {sWB2K}, {sW}, 11
        s_mov_b32 {sGB}, {f32(GB)}
        s_lshl_b32 {sR2}, {sT0}, 2
        s_and_b32 {sT4}, {sT1}, 3
        s_add_u32 {sR2}, {sR2}, {sT4}
        s_lshr_b32 {sC64}, {sT1}, 2
        s_and_b32 {sHEAD}, s2, 31
        s_mul_i32 {sROT2}, {sC64}, 3
        s_mul_i32 {sT4}, {sT4}, 7
        s_add_u32 {sROT2}, {sROT2}, {sT4}
        s_cmp_ge_u32 {sROT2}, 28
        s_cselect_b32 {sT4}, 28, 0
        s_sub_u32 {sROT2}, {sROT2}, {sT4}
        s_and_b32 {sT2}, {sT0}, 1
        s_lshl_b32 {sT2}, {sT2}, 5
        s_add_u32 {sT2}, {sT2}, {sT1}
        s_and_b32 {sQTR}, {sT2}, 3
        s_lshr_b32 {sT2}, {sT2}, 2
        s_lshr_b32 {sT3}, {sT0}, 1
        s_lshr_b32 {sUID}, {sT2}, 1
        s_lshl_b32 {sUID}, {sUID}, 3
        s_and_b32 {sT4}, {sT2}, 1
        s_add_u32 {sUID}, {sUID}, {sT4}
        s_lshl_b32 {sT4}, {sT3}, 1
        s_add_u32 {sUID}, {sUID}, {sT4}
        s_lshl_b32 {sT4}, {sT3}, 2
        s_add_u32 {sT4}, {sT4}, {sT2}
        s_add_u32 {sT4}, {sT4}, 24
        s_cmp_ge_u32 {sT2}, 8
        s_cselect_b32 {sUID}, {sT4}, {sUID}
        s_add_u32 {sT4}, {sT3}, 48
        s_cmp_eq_u32 {sT2}, 12
        s_cselect_b32 {sUID}, {sT4}, {sUID}
        s_cmp_gt_u32 {sT2}, 12
        s_cselect_b32 {sUID}, 52, {sUID}
        s_and_b32 {sROW}, {sT0}, 1
        s_lshl_b32 {sROW}, {sROW}, 10
        s_lshl_b32 {sT4}, {sT3}, 8
        s_add_u32 {sROW}, {sROW}, {sT4}
        s_lshl_b32 {sT4}, {sT1}, 3
        s_add_u32 {sROW}, {sROW}, {sT4}
        s_add_u32 {sROW}, {sROW}, {sW}
        s_movk_i32 {sPIT}, 3072
        s_cmp_ge_u32 {sUID}, 24
        s_cselect_b32 {sPIT}, 3584, {sPIT}
        """)
        e(f"""
        v_lshrrev_b32 v32, 3, v0
        v_and_b32 v33, 7, v0
        v_lshlrev_b32 {vL16}, 4, v0
        v_mov_b32 {vONE}, {ONES}
        s_lshl_b32 {sT4}, {sRB}, 7
        s_lshl_b32 {sT5}, {sW}, 4
        s_add_u32 {sT4}, {sT4}, {sT5}
        v_add_u32 v34, {sT4}, v32
        v_lshrrev_b32 v35, 1, v32
        v_xor_b32 v35, v35, v33
        v_lshlrev_b32 v35, 4, v35
        v_lshl_add_u32 v10, v34, 10, v35
        v_xor_b32 v11, 64, v10
        v_add_u32 v11, 0x2000, v11
        v_and_b32 v35, 2, v32
        v_lshlrev_b32 v35, 1, v35
        v_xor_b32 v35, v35, v33
        v_lshlrev_b32 v35, 4, v35
        v_add_u32 v34, {sT5}, v32
        v_mad_u32_u24 v20, v34, {sPIT}, v35
        s_lshl_b32 {sT5}, {sW}, 3
        v_add_u32 v34, {sT5}, v32
        v_mul_u32_u24 v12, 3072, v34
        v_add_u32 v12, v12, v35
        v_mul_u32_u24 v13, 3584, v34
        v_add_u32 v13, v13, v35
        v_lshl_add_u32 {vW2}, v34, 10, v35
        """)
        e(f"""
        v_and_b32 {vTOK}, 31, v0
        v_lshrrev_b32 {vHF}, 5, v0
        v_bfe_u32 v34, {vTOK}, 1, 3
        v_xor_b32 v34, v34, {vHF}
        v_lshlrev_b32 v34, 4, v34
        s_lshl_b32 {sT4}, {sTT}, 12
        v_lshl_add_u32 v34, {vTOK}, 7, v34
        v_add_u32 v34, {sT4}, v34
        v_bfe_u32 v36, v0, 2, 2
        v_lshl_add_u32 v35, {vHF}, 3, v36
        v_lshlrev_b32 v35, 7, v35
        v_bfe_u32 v32, v0, 4, 1
        v_bfe_u32 v33, v0, 1, 1
        v_lshl_add_u32 v32, v32, 1, v33
        v_and_b32 v33, 2, v36
        v_lshlrev_b32 v33, 1, v33
        v_xor_b32 v32, v32, v33
        v_lshl_add_u32 v35, v32, 4, v35
        v_and_b32 v33, 1, v0
        v_lshl_add_u32 v35, v33, 3, v35
        s_add_u32 {sT4}, {sWB2K}, {L_KST}
        v_add_u32 v250, {sT4}, v35
        v_xor_b32 v251, 64, v250
        s_lshl_b32 {sT4}, {sNH}, 6
        v_xor_b32 v35, {sT4}, v35
        """)
        e(f"""
        s_lshl_b32 {sT4}, {sNH}, 6
        v_xor_b32 v34, {sT4}, v34
        s_lshl_b32 {sT4}, {sNH}, 12
        v_add_u32 v35, {sT4}, v35
        """)
        for s in range(4):
            e(f"""
            v_xor_b32 v{2+s}, {s << 5}, v34
            v_xor_b32 v{6+s}, {s << 11}, v35
            v_add_u32 v{80+s}, 0x10000, v{2+s}
            v_add_u32 v{84+s}, 0x10000, v{6+s}
            """)
        e.wait_lg0()
        self.mk(S_X, 64, 2048 * 1024)
        self.mk(S_QKV, 66, 512 * 3072)
        self.mk(S_W1, 72, 512 * 3584)
        self.mk(S_WS, 84, WS_SIZE)
        self.mk(S_OUT, 80, 2048 * 1024)
        self.mk(S_DBG, 82, 256)
        self.stamp('ka')
        lab = e.newlabel('NORST')
        e(f"""
        s_or_b32 {sT0}, {sG}, {sTYPE}
        s_cmp_lg_u32 {sT0}, 0
        s_cbranch_scc1 {lab}
        s_lshl_b32 {sT0}, {sRB}, 14
        s_add_u32 {sT0}, {sT0}, {sWB2K}
        s_add_u32 {sT0}, {sT0}, {WS_Z}
        v_mov_b32 v32, 0
        v_mov_b32 v33, 0
        v_mov_b32 v34, 0
        v_mov_b32 v35, 0
        buffer_store_dwordx4 v[32:35], {vL16}, {srd(S_WS)}, {sT0} offen sc1 #zero
        buffer_store_dwordx4 v[32:35], {vL16}, {srd(S_WS)}, {sT0} offen offset:1024 sc1 #zero
        """)
        e.settle()
        e.label(lab)

    def stats_loads(self):
        e = self.e
        e(f"""
        s_lshl_b32 {sT0}, {sROW}, 10
        buffer_load_dwordx4 v[240:243], {vL16}, {srd(S_X)}, {sT0} offen
        s_cmp_ge_u32 {sUID}, 24
        s_cselect_b32 s{S_TMP}, s{S_W1}, s{S_QKV}
        s_cselect_b32 s{S_TMP+1}, s{S_W1+1}, s{S_QKV+1}
        s_cselect_b32 s{S_TMP+2}, s{S_W1+2}, s{S_QKV+2}
        s_mov_b32 s{S_TMP+3}, 0x20000
        s_cselect_b32 {sT1}, 24, 0
        s_sub_u32 {sT1}, {sUID}, {sT1}
        s_lshl_b32 {sT1}, {sT1}, 7
        s_lshl_b32 {sT0}, {sQTR}, 7
        s_mul_i32 {sT0}, {sT0}, {sPIT}
        s_add_u32 {sT0}, {sT0}, {sT1}
        s_lshl_b32 {sT1}, {sPIT}, 3
        s_add_u32 {sT1}, {sT1}, {sT0}
        s_add_u32 m0, {sWB2K}, {L_KST}
        buffer_load_dwordx4 v20, {srd(S_TMP)}, {sT0} offen lds #cs
        s_add_u32 m0, {sWB2K}, {L_KST + 1024}
        buffer_load_dwordx4 v20, {srd(S_TMP)}, {sT1} offen lds #cs
        """)

    def code_prefetch(self):
        e = self.e
        lab = e.newlabel('NOIPF')
        e(f"""
        s_cmp_lg_u32 {sW}, 2
        s_cbranch_scc1 {lab}
        s_getpc_b64 s[4:5]
        """)
        l2 = e.newlabel('PCREF')
        e.label(l2)
        e(f"""
        s_sub_u32 s4, s4, {l2}-{NAME}_kernel
        s_subb_u32 s5, s5, 0
        s_bfe_u32 {sT0}, s2, 0x20003
        s_lshl_b32 {sT0}, {sT0}, 13
        v_lshlrev_b32 v36, 7, v0
        v_add_u32 v36, {sT0}, v36
        v_min_u32 v36, L_end-{NAME}_kernel, v36
        """)
        saved = list(e.vm)
        e(f'global_load_dword v37, v36, s[4:5]')
        e.vm = saved
        e.label(lab)

    def prologue2(self):
        e = self.e
        self.mk(S_WO, 68, 512 * 1024)
        self.mk(S_B1, 74, 1792 * 2)
        self.mk(S_W2, 76, 1792 * 1024)
        self.mk(S_B2, 78, 1024)
        e(f"""
        v_mov_b32 {vGA}, {f32(GA)}
        s_mul_i32 {sAHB}, {sT}, {AH_T}
        v_mov_b32 v{TF+2}, 0
        v_mov_b32 v{TF+3}, 0
        v_mov_b32 v{NF+2}, 0
        v_mov_b32 v{NF+3}, 0
        s_lshl_b32 {sT4}, {sNH}, 10
        v_lshl_add_u32 {vCSA}, {vTOK}, 5, {sT4}
        s_lshl_b32 {sFLB}, {sRB}, 14
        s_mul_i32 {sT4}, {sTT}, {FL_T}
        s_add_u32 {sFLB}, {sFLB}, {sT4}
        s_lshl_b32 {sT5}, {sG}, 5
        s_add_u32 {sFLB}, {sFLB}, {sT5}
        s_lshl_b32 {sT5}, {sNH}, 4
        s_add_u32 {sFLB}, {sFLB}, {sT5}
        s_add_u32 {sFLB}, {sFLB}, {WS_Z}
        s_lshr_b32 {sT1}, {sROW}, 7
        s_lshl_b32 {sT1}, {sT1}, 14
        s_and_b32 {sT0}, {sROW}, 127
        s_lshl_b32 {sT0}, {sT0}, 3
        s_add_u32 {sT0}, {sT0}, {sT1}
        s_add_u32 {sT0}, {sT0}, {WS_Z + Z_ROW}
        v_lshl_add_u32 v252, v0, 26, {sT0}
        s_lshl_b32 {sT0}, {sW}, 2
        s_add_u32 {sT0}, {sT0}, {L_CSP}
        v_lshl_add_u32 v253, v0, 5, {sT0}
        v_lshlrev_b32 v254, 5, v0
        v_add_u32 v254, {L_CSP}, v254
        v_and_b32 v248, 15, v0
        v_lshlrev_b32 v248, 2, v248
        s_lshr_b32 {sT2}, {sUID}, 2
        s_lshl_b32 {sT2}, {sT2}, 14
        s_and_b32 {sT3}, {sUID}, 3
        s_lshl_b32 {sT3}, {sT3}, 11
        s_add_u32 {sT2}, {sT2}, {sT3}
        s_lshl_b32 {sT3}, {sQTR}, 3
        s_add_u32 {sT2}, {sT2}, {sT3}
        s_add_u32 {sT2}, {sT2}, {WS_Z + Z_CSG}
        s_cmp_ge_u32 {sUID}, 52
        s_cselect_b32 {sT3}, 1, {sW}
        s_lshl_b32 {sT3}, {sT3}, 26
        s_add_u32 {sT2}, {sT2}, {sT3}
        v_lshl_add_u32 v255, v0, 5, {sT2}
        """)

    def fill_stats(self):
        o = lines(f"""
        WAITVM cs
        ds_read_b64_tr_b16 v[232:233], v250
        ds_read_b64_tr_b16 v[234:235], v250 offset:512
        ds_read_b64_tr_b16 v[236:237], v251
        ds_read_b64_tr_b16 v[238:239], v251 offset:512
        v_dot2_f32_bf16 v244, v240, {vONE}, 0
        v_dot2_f32_bf16 v245, v240, v240, 0
        """)
        for j in range(1, 4):
            o += [f'v_dot2_f32_bf16 v244, v{240+j}, {vONE}, v244', f'v_dot2_f32_bf16 v245, v{240+j}, v{240+j}, v245']
        o += [f'v_dot2_f32_bf16 v228, v232, {vONE}, 0', f'v_dot2_f32_bf16 v229, v236, {vONE}, 0']
        for j in range(1, 4):
            o += [f'v_dot2_f32_bf16 v228, v{232+j}, {vONE}, v228', f'v_dot2_f32_bf16 v229, v{236+j}, {vONE}, v229']
        for dpp in ('quad_perm:[1,0,3,2]', 'quad_perm:[2,3,0,1]', 'row_half_mirror', 'row_mirror'):
            o += [f'v_add_f32_dpp v244, v244, v244 {dpp} row_mask:0xf bank_mask:0xf',
                  f'v_add_f32_dpp v245, v245, v245 {dpp} row_mask:0xf bank_mask:0xf']
            if dpp.startswith('quad_perm:[1'):
                o += ['v_permlane32_swap_b32 v228, v229', 'v_add_f32 v228, v228, v229', 'ds_write_b32 v253, v228']
        for sw in ('v_permlane16_swap_b32', 'v_permlane32_swap_b32'):
            o += lines(f"""
            v_mov_b32 v246, v244
            v_mov_b32 v247, v245
            {sw} v244, v246
            {sw} v245, v247
            v_add_f32 v244, v244, v246
            v_add_f32 v245, v245, v247
            """)
        o += lines(f"""
        v_mul_f32 v244, {f32(1/512)}, v244
        v_mul_f32 v245, {f32(1/512)}, v245
        v_fma_f32 v245, -v244, v244, v245
        v_max_f32 v245, 0, v245
        v_cvt_pk_bf16_f32 v246, v245, v245
        v_lshlrev_b32 v246, 16, v246
        v_add_f32 v246, {f32(1e-5)}, v246
        v_cvt_pk_bf16_f32 v246, v246, v246
        v_lshlrev_b32 v246, 16, v246
        v_sqrt_f32 v246, v246
        v_cvt_pk_bf16_f32 v240, -v244, v246
        v_mov_b32 v241, 1
        """)
        return o

    def fill_cs2(self):
        return lines(f"""
        ds_read_b128 v[232:235], v254
        ds_read_b128 v[236:239], v254 offset:16
        v_add_f32 v232, v232, v233
        v_add_f32 v234, v234, v235
        v_add_f32 v236, v236, v237
        v_add_f32 v238, v238, v239
        v_add_f32 v232, v232, v234
        v_add_f32 v236, v236, v238
        v_add_f32 v244, v232, v236
        v_mov_b32 v245, 1
        """)

    def dma_stage1(self, c, units):
        slot = (c % 4) * SLOT
        pre = [f's_add_u32 {sT0}, {sROT}, {c}', f's_and_b32 {sT0}, {sT0}, 7']
        out = []
        for i in range(2):
            out.append(pre + [f's_lshl_b32 {sT1}, {sT0}, 7', f's_add_u32 m0, {sWB2K}, {slot + 1024 * i}',
                       f'buffer_load_dwordx4 v{10+i}, {srd(S_X)}, {sT1} offen lds #c{c}'])
        for u, (sr, vo, pitch, scol) in enumerate(units):
            out.append(pre + [f's_mul_i32 {sT1}, {sT0}, {64 * pitch}', f's_add_u32 m0, {sWB1K}, {slot + 16384 + 8192 * u}',
                       f's_add_u32 {sT1}, {sT1}, {scol}',
                       f'buffer_load_dwordx4 {vo}, {srd(sr)}, {sT1} offen lds #c{c}'])
        return out

    def dma_stage2(self, c, half, scol):
        slot = (c % 4) * SLOT
        out = []
        for i in range(4):
            cc = 4 * half + i
            out.append([f's_add_u32 {sT0}, {sROT}, {cc}', f's_and_b32 {sT0}, {sT0}, 7',
                    f's_mul_i32 {sT1}, {sT0}, {64 * 3584}', f's_add_u32 m0, {sWB1K}, {slot + 8192 * i}',
                    f's_add_u32 {sT1}, {sT1}, {scol}',
                    f'buffer_load_dwordx4 v13, {srd(S_W1)}, {sT1} offen lds #c{c}'])
        return out

    def win(self, want, regs=range(2, 10)):
        out = []
        if want != self.curwin:
            out = [f'v_xor_b32 v{r}, 0x10000, v{r}' for r in regs]
            self.curwin = want
        return out

    def cs_load(self, scol, isq, dst):
        return lines(f"""
        s_lshr_b32 {sT2}, {scol}, 7
        s_add_u32 {sT2}, {sT2}, {0 if isq else 24}
        s_lshr_b32 {sT3}, {sT2}, 2
        s_lshl_b32 {sT3}, {sT3}, 14
        s_and_b32 {sT2}, {sT2}, 3
        s_lshl_b32 {sT2}, {sT2}, 11
        s_add_u32 {sT2}, {sT2}, {sT3}
        s_add_u32 {sT2}, {sT2}, {WS_Z + Z_CSG}
        buffer_load_dwordx4 v[{dst}:{dst+3}], {vCSA}, {srd(S_WS)}, {sT2} offen sc1
        buffer_load_dwordx4 v[{dst+4}:{dst+7}], {vCSA}, {srd(S_WS)}, {sT2} offen offset:16 sc1
        """)

    def nf_build(self, cs, bias):
        return lines(f"""
        v_cvt_pk_bf16_f32 v46, v{cs}, v{cs}
        v_lshlrev_b32 v46, 16, v46
        v_sub_f32 v46, v{cs}, v46
        v_cvt_pk_bf16_f32 v{NF}, v{cs}, v46
        v_and_b32 v47, 0xffff0000, v{NF}
        v_sub_f32 v46, v46, v47
        v_cvt_pk_bf16_f32 v{NF+1}, v46, {bias}
        """)

    def hd_off(self, base):
        return lines(f"""
        s_lshl_b32 {sT2}, {sG}, 2
        s_lshl_b32 {sT3}, {sNH}, 1
        s_add_u32 {sT2}, {sT2}, {sT3}
        s_lshl_b32 {sT2}, {sT2}, 16
        s_lshl_b32 {sT3}, {sT}, 10
        s_add_u32 {sT2}, {sT2}, {sT3}
        s_add_u32 {sT2}, {sT2}, {base}
        """)

    def epi_qk(self, acc, rreg, base, tag):
        o = []
        for i in range(16): o.append(f'v_mul_f32 v{acc+i}, {rreg}, v{acc+i}')
        for i in range(8): o.append(f'v_cvt_pk_bf16_f32 v{acc+i}, v{acc+2*i}, v{acc+2*i+1}')
        o += self.hd_off(base) + lines(f"""
        s_add_u32 {sT3}, {sT2}, 65536
        buffer_store_dwordx4 v[{acc}:{acc+3}], {vL16}, {srd(S_WS)}, {sT2} offen sc1 #{tag}
        buffer_store_dwordx4 v[{acc+4}:{acc+7}], {vL16}, {srd(S_WS)}, {sT3} offen sc1 #{tag}
        """)
        return o

    def epi_v_pre(self, tmp):
        o = lines(f"""
        s_lshl_b32 {sT2}, {sW}, 7
        s_add_u32 {sT2}, {sT2}, {L_RV}
        v_lshl_add_u32 v20, {vTOK}, 2, {sT2}
        v_lshl_add_u32 v21, {vHF}, 4, {sT2}
        ds_write_b32 v20, {vR}
        """)
        for q in range(4): o.append(f'ds_read_b128 v[{tmp+4*q}:{tmp+4*q+3}], v21 offset:{32*q}')
        return o

    def epi_v(self, acc, tmp, tag):
        o = []
        for i in range(16): o.append(f'v_mul_f32 v{acc+i}, v{tmp+i}, v{acc+i}')
        for i in range(8): o.append(f'v_cvt_pk_bf16_f32 v{acc+i}, v{acc+2*i}, v{acc+2*i+1}')
        o += lines(f"""
        v_bfe_u32 v64, v0, 4, 1
        v_and_b32 v65, 15, v0
        v_lshl_add_u32 v65, {vHF}, 4, v65
        v_lshlrev_b32 v65, 4, v65
        v_lshl_add_u32 v64, v64, 16, v65
        """) + self.hd_off(WS_V) + lines(f"""
        buffer_store_dwordx4 v[{acc}:{acc+3}], v64, {srd(S_WS)}, {sT2} offen sc1 #{tag}
        buffer_store_dwordx4 v[{acc+4}:{acc+7}], v64, {srd(S_WS)}, {sT2} offen offset:512 sc1 #{tag}
        """)
        return o

    def epi_h(self, acc, tmp, scol, tag, pk=None):
        if pk is None: pk = int(OPT.get('pk', 0))
        o = []
        for half in range(2):
            a = acc + 8 * half
            if pk:
                P = lambda r: f'v[{r}:{r+1}]'
                for i in range(0, 8, 2): o.append(f'v_pk_mul_f32 {P(tmp+i)}, {P(a+i)}, {P(a+i)}')
                for i in range(0, 8, 2): o.append(f'v_pk_fma_f32 {P(tmp+i)}, {P(tmp+i)}, v[10:11], v[24:25] op_sel_hi:[1,0,0]')
                for i in range(0, 8, 2): o.append(f'v_pk_mul_f32 {P(tmp+i)}, {P(tmp+i)}, {P(a+i)}')
                for i in range(8): o.append(f'v_exp_f32 v{tmp+i}, v{tmp+i}')
                for i in range(0, 8, 2): o.append(f'v_pk_fma_f32 {P(tmp+i)}, {P(tmp+i)}, v[2:3], v[2:3] op_sel_hi:[1,0,0]')
                for i in range(8): o.append(f'v_rcp_f32 v{tmp+i}, v{tmp+i}')
                for i in range(0, 8, 2): o.append(f'v_pk_mul_f32 {P(a+i)}, {P(a+i)}, {P(tmp+i)}')
            else:
                for i in range(8): o.append(f'v_mul_f32 v{tmp+i}, v{a+i}, v{a+i}')
                for i in range(8): o.append(f'v_fma_f32 v{tmp+i}, v{tmp+i}, v10, v24')
                for i in range(8): o.append(f'v_mul_f32 v{tmp+i}, v{tmp+i}, v{a+i}')
                for i in range(8): o.append(f'v_exp_f32 v{tmp+i}, v{tmp+i}')
                for i in range(8): o.append(f'v_fma_f32 v{tmp+i}, v{tmp+i}, v2, v2')
                for i in range(8): o.append(f'v_rcp_f32 v{tmp+i}, v{tmp+i}')
                for i in range(8): o.append(f'v_mul_f32 v{a+i}, v{a+i}, v{tmp+i}')
            for i in range(4): o.append(f'v_cvt_pk_bf16_f32 v{a+i}, v{a+2*i}, v{a+2*i+1}')
            o += lines(f"""
            s_lshl_b32 {sT2}, {scol}, 5
            s_lshl_b32 {sT3}, {sNH}, 11
            s_add_u32 {sT2}, {sT2}, {sT3}
            s_add_u32 {sT2}, {sT2}, {sAHB}
            """)
            o.append(f'buffer_store_dwordx4 v[{a}:{a+3}], {vL16}, {srd(S_WS)}, {sT2} offen offset:{1024*half} sc1 #{tag}')
        return o

    def flag_set(self, tag, base_s, off):
        return lines(f"""
        v_lshl_add_u32 v46, v0, 26, {base_s}
        v_mov_b32 v47, 1
        WAITVM {tag}
        buffer_store_dword v47, v46, {srd(S_WS)}, 0 offen offset:{off} sc1
        """)

    def u_rd(self, c0, m, nb=None):
        c = c0 + (m >> 4); k = m & 15
        slot = (c % 4) * SLOT
        assert (slot & 0x10000) == self.curwin
        base = (slot & 0xffff) + 8192 * (k >> 2); s = k & 3
        b = 48 + 4 * ((m if nb is None else nb) % 4)
        return [f'ds_read_b64_tr_b16 v[{b}:{b+1}], v{6+s} offset:{base}',
                f'ds_read_b64_tr_b16 v[{b+2}:{b+3}], v{6+s} offset:{base + 512}']

    def u_mfma(self, acc, m, nb=None):
        b = 48 + 4 * ((m if nb is None else nb) % 4); x = 128 + 4 * m
        return f'{MFMA} {blk(acc)}, {q4(b)}, {q4(x)}, {blk(acc)}'

    def retry(self, check_lines, reload_lines, name):
        e = self.e
        lok = e.newlabel(name + 'OK'); lp = e.newlabel(name + 'LP')
        self.run(check_lines)
        e(f's_cbranch_scc1 {lok}\ns_mov_b32 {sCNT}, 0')
        e.label(lp)
        st = self.snap()
        e.settle()
        e('s_sleep 2')
        self.run(reload_lines)
        e.raw('s_waitcnt vmcnt(0)'); e.vm = []
        e(f's_add_u32 {sCNT}, {sCNT}, 1\ns_cmp_gt_u32 {sCNT}, 0x40000\ns_cbranch_scc1 {lok}')
        self.run(check_lines)
        e(f's_cbranch_scc0 {lp}')
        e.settle()
        self.restore(st)
        e.label(lok)

    def att_ids(self):
        self.e(f"""
        s_lshr_b32 {sRA}, s2, 5
        s_lshl_b32 {sTA}, {sRA}, 3
        s_sub_u32 {sKV}, {sTA}, 8
        s_add_u32 {sTA}, {sTA}, {sW}
        s_sub_u32 {sIMIN}, 8, {sTA}
        s_cmp_gt_u32 {sTA}, 8
        s_cselect_b32 {sIMIN}, 0, {sIMIN}
        s_lshl_b32 {sKV}, {sKV}, 10
        s_add_u32 {sKV}, {sKV}, {sWB2K}
        s_lshl_b32 {sT1}, {sHEAD}, 16
        s_add_u32 {sKV}, {sKV}, {sT1}
        s_lshl_b32 {sQO}, {sTA}, 10
        s_add_u32 {sQO}, {sQO}, {sT1}
        s_add_u32 {sQO}, {sQO}, {WS_Q}
        s_lshl_b32 {sT2G}, {sR2}, 1
        s_add_u32 {sT2G}, {sT2G}, {sNH}
        s_and_b32 {sKQ}, {sW}, 3
        s_mul_i32 {sAH2}, {sT2G}, {AH_T}
        s_lshl_b32 {sT1}, {sKQ}, 10
        s_add_u32 {sAH2}, {sAH2}, {sT1}
        s_and_b32 {sT1}, {sR2}, 3
        s_lshl1_add_u32 {sRC1}, {sT1}, {sC64}
        s_lshl_b32 {sRC2}, {sRC1}, 1
        s_mov_b32 {sREDO}, 0
        s_lshr_b32 {sFLO}, {sTA}, 2
        s_lshl_b32 {sFLO}, {sFLO}, 14
        s_and_b32 {sT1}, {sTA}, 3
        s_mul_i32 {sT1}, {sT1}, {FL_T}
        s_add_u32 {sFLO}, {sFLO}, {sT1}
        s_lshl_b32 {sT1}, {sHEAD}, 4
        s_add_u32 {sFLO}, {sFLO}, {sT1}
        s_add_u32 {sFLO}, {sFLO}, {WS_Z}
        """)

    def kv_poll_setup(self):
        o = lines(f"""
        s_lshl_b32 {sT4}, {sRA}, 3
        s_lshl1_add_u32 {sT4}, {sW}, {sT4}
        s_sub_u32 {sT4}, {sT4}, 8
        v_add_u32 v42, {sT4}, v0
        v_mov_b32 v43, {sTA}
        v_cmp_gt_u32 vcc, 2, v0
        v_cndmask_b32 v42, v43, v42, vcc
        """) + self.fl_addr('v42', 'v43') + lines(f"""
        v_mov_b32 v43, {F_Q}
        v_cndmask_b32 v43, v43, 0, vcc
        s_lshr_b32 {sT5}, {sHEAD}, 1
        s_lshl_b32 {sT5}, {sT5}, 4
        s_add_u32 {sT5}, {sT5}, {WS_Z}
        v_add3_u32 v42, v42, v43, {sT5}
        v_lshrrev_b32 v43, 2, v0
        v_lshl_add_u32 v42, v43, 26, v42
        s_cmp_lt_i32 {sT4}, 0
        s_cselect_b32 s68, 4, 7
        s_mov_b32 s69, 0
        """)
        return o
    def kv_loads(self):
        return lines(f"""
        s_add_u32 {sT4}, {sKV}, {WS_K}
        s_add_u32 {sT5}, {sKV}, {WS_V}
        buffer_load_dwordx4 v[112:115], {vL16}, {srd(S_WS)}, {sT4} offen sc1
        buffer_load_dwordx4 v[116:119], {vL16}, {srd(S_WS)}, {sT4} offen offset:1024 sc1
        buffer_load_dwordx4 v[32:35], {vL16}, {srd(S_WS)}, {sQO} offen sc1
        buffer_load_dwordx4 v[120:123], {vL16}, {srd(S_WS)}, {sT5} offen sc1
        buffer_load_dwordx4 v[124:127], {vL16}, {srd(S_WS)}, {sT5} offen offset:1024 sc1
        """)
    def pl_ld(self, vaddr, vdst, off=0):
        return [f'buffer_load_dword {vdst}, {vaddr}, {srd(S_WS)}, 0 offen offset:{off} sc1']
    def pl_chk(self, vdst, mask):
        return [f'v_cmp_ne_u32 vcc, 1, {vdst}', f's_and_b64 vcc, vcc, {mask}', 's_cmp_eq_u64 vcc, 0']

    def last_gelu(self, epi, extra_mid=(), dmas=()):
        n = len(epi)
        dmas = list(dmas)
        body = list(epi)
        out = []
        step = max(1, (n * 5 // 8) // (len(dmas) + 1)) if dmas else n
        for i, l in enumerate(body):
            out.append(l)
            if dmas and i % step == step - 1: out += dmas.pop(0)
            if i == n // 3: out += list(extra_mid)
            if i == (n * 3) // 4 : out += self.kv_poll_setup() + self.pl_ld('v42', 'v43')
        for d in dmas: out += d
        self.run(out)
        self.stamp('pk')

    def p1(self, typ):
        e = self.e
        if typ == 1:
            units = [(S_QKV, 'v12', 3072, sCOLA), (S_QKV, 'v12', 3072, sCOLB)]
            e(f"""
            s_lshl_b32 {sCOLC}, {sG}, 7
            s_add_u32 {sCOLA}, {sCOLC}, 1024
            s_add_u32 {sCOLB}, {sCOLC}, 2048
            s_lshr_b32 {sCOLD}, {sG}, 1
            s_add_u32 {sCOLD}, {sCOLD}, 24
            s_lshl_b32 {sCOLD}, {sCOLD}, 7
            """)
        else:
            units = [(S_QKV, 'v12', 3072, sCOLA), (S_W1, 'v13', 3584, sCOLB)]
            e(f"""
            s_lshl_b32 {sCOLA}, {sG}, 7
            s_lshl_b32 {sCOLB}, {sG}, 8
            s_add_u32 {sCOLB}, {sCOLB}, 1024
            s_add_u32 {sCOLC}, {sCOLB}, 128
            """)
        def arm():
            lab = e.newlabel('NOARM')
            e(f"""
            s_lshl_b32 {sT0}, {sG}, 3
            s_add_u32 {sT0}, {sT0}, {sW}
            s_cmp_lg_u32 {sT0}, 0
            s_cbranch_scc1 {lab}
            s_lshl_b32 {sT0}, {sRB}, 2
            v_lshl_add_u32 v32, v0, 26, {sT0}
            v_mov_b32 v33, 1
            """)
            saved = list(e.vm)
            e(f'buffer_store_dword v33, v32, {srd(S_DBG)}, 0 offen sc1')
            e.vm = saved
            e.label(lab)
        def chunk_dmas(c):
            if c < 8: return self.dma_stage1(c, units)
            if c < 10: return self.dma_stage2(c, c - 8, sCOLC)
            if typ == 1 and c < 12: return self.dma_stage2(c, c - 10, sCOLD)
            return []
        self.stats_loads()
        for grp in chunk_dmas(0): self.run(grp)
        self.stamp('i0')
        if int(OPT.get('ipf', 1)): self.code_prefetch()
        self.prologue2()
        self.att_ids()
        e(f"""
        s_mov_b32 {sFLIP}, {0 if typ == 1 else 0x10000}
        s_add_u32 {sWLO}, {sWB1K}, {0 if typ == 1 else 0x10000}
        s_add_u32 {sWHI}, {sWB1K}, {0x10000 if typ == 1 else 0}
        s_lshl_b32 {sT4}, {sNH}, 6
        v_lshl_add_u32 v34, {vTOK}, 1, {sT4}
        """)
        e.wait_vm_tag('zero')
        e('s_barrier')
        if typ == 1: arm()
        c1 = chunk_dmas(1)
        fs = self.fill_stats()
        k = len(fs) // 4
        self.run(c1[0] + c1[1])
        self.run(fs[:2 * k] + c1[2] + fs[2 * k:3 * k] + c1[3] + fs[3 * k:])
        self.stamp('st')
        dq = chunk_dmas(2) + chunk_dmas(3)
        def rd1(n):
            c, s = n >> 2, n & 3
            slot = (c % 4) * SLOT
            hi = slot >> 16
            base = slot & 0xffff
            xa = (80 if hi else 2) + s; wa = (84 if hi else 6) + s
            x = 128 + 4 * n; b = 48 + 8 * (n % 4)
            return [f'ds_read_b128 {q4(x)}, v{xa} offset:{base}',
                  f'ds_read_b64_tr_b16 v[{b}:{b+1}], v{wa} offset:{base + 16384}',
                  f'ds_read_b64_tr_b16 v[{b+2}:{b+3}], v{wa} offset:{base + 16384 + 512}',
                  f'ds_read_b64_tr_b16 v[{b+4}:{b+5}], v{wa} offset:{base + 24576}',
                  f'ds_read_b64_tr_b16 v[{b+6}:{b+7}], v{wa} offset:{base + 24576 + 512}']
        def barrier(tag):
            e.wait_vm_tag(tag); e.wait_lg0(); e('s_barrier')
        barrier('c0')
        self.stamp(1)
        self.run(rd1(0) + rd1(1))
        armed_chk = [f'v_cmp_ne_u32 vcc, 1, v249', 's_cmp_eq_u64 vcc, 0']
        armed_ld = [f'buffer_load_dword v249, v248, {srd(S_DBG)}, 0 offen sc1']
        fills = {}
        fills[1] = self.fill_cs2()
        fills[5] = armed_ld
        fills[17] = [f'buffer_load_ushort {vBC}, v34, {srd(S_B1)}, {sCOLC} offen']
        if typ == 1:
            fills[17] += lines(f"""
            s_xor_b32 {sXCH}, {sNH}, {sG}
            s_and_b32 {sXCH}, {sXCH}, 1
            s_lshl_b32 {sXCH}, {sXCH}, 6
            v_xor_b32 v34, {sXCH}, v34
            buffer_load_ushort {vBX}, v34, {srd(S_B1)}, {sCOLD} offen
            """)
        else:
            fills[17] += [f'buffer_load_ushort {vBX}, v34, {srd(S_B1)}, {sCOLB} offen']
        fills[13] = lines(f"""
        s_lshl_b32 {sT2}, {sW}, 8
        s_add_u32 {sT2}, {sT2}, s2
        s_lshl_b32 {sT2}, {sT2}, 13
        s_sub_u32 {sT3}, {sT2}, {1792 * 1024}
        v_lshlrev_b32 v21, 7, v0
        buffer_load_dword v22, v21, {srd(S_W2)}, {sT2} offen
        buffer_load_dword v23, v21, {srd(S_WO)}, {sT3} offen
        """)
        rowg = lines(f"""
        s_lshl_b32 {sT2}, {sRB}, 14
        s_lshl_b32 {sT3}, {sTT}, 8
        s_add_u32 {sT2}, {sT2}, {sT3}
        s_add_u32 {sT2}, {sT2}, {WS_Z + Z_ROW}
        v_lshlrev_b32 v20, 3, {vTOK}
        buffer_load_dwordx2 v[{TF}:{TF+1}], v20, {srd(S_WS)}, {sT2} offen sc1
        """)
        ldA = self.cs_load(sCOLA, True, 32); ldB = self.cs_load(sCOLB, typ == 1, 40); ldC = self.cs_load(sCOLC, False, 88)
        GL = int(OPT.get('gl', 21))
        fills[GL] = rowg + ldA
        fills[GL + 1] = ldB
        fills[GL + 2] = ldC
        chk = lines(f"""
        v_and_b32 v20, v{TF+1}, v33
        v_and_b32 v21, v35, v37
        v_and_b32 v20, v20, v39
        v_and_b32 v21, v21, v41
        v_and_b32 v20, v20, v43
        v_and_b32 v21, v21, v45
        v_and_b32 v20, v20, v47
        v_and_b32 v21, v21, v89
        v_and_b32 v20, v20, v91
        v_and_b32 v21, v21, v93
        v_and_b32 v20, v20, v95
        v_and_b32 v20, v20, v21
        v_cmp_ne_u32 vcc, 1, v20
        s_cmp_eq_u64 vcc, 0
        """)
        pre = lines(f"""
        v_add_f32 v32, v32, v34
        v_add_f32 v36, v36, v38
        v_add_f32 v40, v40, v42
        v_add_f32 v44, v44, v46
        v_add_f32 v88, v88, v90
        v_add_f32 v92, v92, v94
        v_add_f32 v32, v32, v36
        v_add_f32 v33, v40, v44
        v_add_f32 v34, v88, v92
        v_and_b32 v2, 0xffff0000, v{TF}
        v_rcp_f32 {vR}, v2
        v_cmp_eq_u32 vcc, 0, {vHF}
        v_cndmask_b32 v{TF+1}, 0, v{TF}, vcc
        v_and_b32 v{TF}, 0xffff, v{TF+1}
        v_lshl_or_b32 v{TF}, v{TF}, 16, v{TF}
        v_mov_b32 v{NF+2}, 0
        v_mov_b32 v{NF+3}, 0
        v_lshlrev_b32 {vBC}, 16, {vBC}
        v_lshlrev_b32 {vBX}, 16, {vBX}
        """)
        pre2 = lines(f"""
        v_mul_f32 v10, {vR}, {vR}
        v_mul_f32 v24, {f32(GA)}, {vR}
        v_mul_f32 v10, {sGB}, v10
        v_mul_f32 v10, v10, {vR}
        """)
        fills[27] = pre
        fills[28] = self.nf_build(32, '0') + [f'{MFMA} {blk(accA)}, {q4(NF)}, {q4(TF)}, {blk(accA)}']
        if typ == 1:
            fills[29] = pre2 + self.nf_build(33, '0') + [f'{MFMA} {blk(accB)}, {q4(TF)}, {q4(NF)}, {blk(accB)}']
        else:
            fills[29] = pre2 + self.nf_build(33, vBX) + [f'{MFMA} {blk(accB)}, {q4(NF)}, {q4(TF)}, {blk(accB)}']
        fills[30] = self.nf_build(34, vBC) + [f'{MFMA} {blk(accC)}, {q4(NF)}, {q4(TF)}, 0']
        if typ == 1: fills[31] = self.epi_v_pre(32)
        else: fills[31] = [f'v_mul_f32 v32, {f32(0.25 * LOG2E)}, {vR}']
        for n in range(32):
            c, s = n >> 2, n & 3
            if s == 2:
                barrier(f'c{c+1}')
                self.stamp(f'b{c+1}')
                dq += chunk_dmas(c + 4)
            if n + 2 < 32: self.run(rd1(n + 2))
            elif n == 30: self.run(self.u_rd(8, 0) + self.u_rd(8, 1))
            else: self.run(self.u_rd(8, 2))
            x = 128 + 4 * n; b = 48 + 8 * (n % 4)
            ca = '0' if n == 0 else blk(accA)
            cb = '0' if n == 0 else blk(accB)
            e.I(f'{MFMA} {blk(accA)}, {q4(b)}, {q4(x)}, {ca}')
            if len(dq) > 4: self.run(dq.pop(0))
            if typ == 1: e.I(f'{MFMA} {blk(accB)}, {q4(x)}, {q4(b+4)}, {cb}')
            else: e.I(f'{MFMA} {blk(accB)}, {q4(b+4)}, {q4(x)}, {cb}')
            if dq: self.run(dq.pop(0))
            if n == 27: self.retry(chk, rowg + ldA + ldB + ldC, 'GR')
            self.run(fills.get(n, []))
            if n == 9:
                self.retry(armed_chk, armed_ld, 'ARM')
                e(f"""
                buffer_store_dwordx2 v[240:241], v252, {srd(S_WS)}, 0 offen sc1
                buffer_store_dwordx2 v[244:245], v255, {srd(S_WS)}, 0 offen sc1
                """)
        self.stamp(2)
        def ustream(c0, acc, ms, allms=None, nb0=0):
            o = []
            allms = allms or ms
            for m in ms:
                k = allms.index(m)
                if k + 3 < len(allms): o += self.u_rd(c0, allms[k + 3], (k + 3 + nb0) % 4)
                o.append(self.u_mfma(acc, m, (k + nb0) % 4))
                if dq: o += dq.pop(0)
            return o
        def is_main(acc):
            return lambda s: s.startswith('v_mfma') and any(f'{blk(acc)}, v[{d}' in s for d in '456')
        W7 = [self.w2_dma(jb) for jb in range(7)]
        allC = list(range(32))
        if typ == 1:
            epi = self.epi_qk(accA, vR, WS_K, 'kv') + self.epi_v(accB, 32, 'kv')
            ldD = [f'v_xor_b32 {vCSA}, {sT4}, {vCSA}'] + self.cs_load(sCOLD, False, 32)
            epi2 = self.flag_set('kv', sFLB, F_KV)
        else:
            epi = self.epi_qk(accA, 'v32', WS_Q, 'kv')
            hh = self.epi_h(accB, 64, sCOLB, 'hb')
            epi += hh[:len(hh) // 3]
            epi2 = self.flag_set('kv', sFLB, F_Q) + hh[len(hh) // 3:]
        self.run(ustream(8, accC, allC[0:1], allC))
        self.run(interleave(ustream(8, accC, allC[1:9 if typ == 1 else 13], allC), epi, is_main(accC)))
        if typ == 1:
            e(f's_lshl_b32 {sT4}, {sXCH}, 4')
            self.run(ldD + ustream(8, accC, allC[9:13], allC))
        self.stamp(3)
        barrier('c9')
        epi3 = self.epi_h(accC, 64, sCOLC, 'h')
        if typ == 2:
            for w in W7: dq += [w, []]
            self.run(interleave(ustream(8, accC, allC[13:32], allC), epi2, is_main(accC)))
            self.stamp(4)
            self.last_gelu(epi3, self.flag_set('hb', sFLB, F_HB))
        else:
            chkD = lines(f"""
            v_and_b32 v20, v33, v35
            v_and_b32 v20, v20, v37
            v_and_b32 v20, v20, v39
            v_cmp_ne_u32 vcc, 1, v20
            s_cmp_eq_u64 vcc, 0
            """)
            self.run(ustream(8, accC, allC[13:15], allC) + epi2)
            for w in W7[:3]: dq += [w, [], []]
            self.run(ustream(8, accC, allC[15:24], allC))
            self.retry(chkD, ldD[1:], 'GD')
            nfd = ['v_add_f32 v32, v32, v34', 'v_add_f32 v36, v36, v38', 'v_add_f32 v32, v32, v36'] + self.nf_build(32, vBX) + lines(f"""
            s_sub_u32 {sT4}, {sNH}, 1
            v_and_b32 v{NF}, {sT4}, v{NF}
            v_and_b32 v{NF+1}, {sT4}, v{NF+1}
            {MFMA} {blk(accA)}, {q4(NF)}, {q4(TF)}, 0
            """)
            self.run(interleave(ustream(8, accC, allC[24:29], allC), nfd, is_main(accC)))
            barrier('c11')
            self.stamp(4)
            allD = [m for m in range(32) if (m & 3) < 2]
            e(f"""
            s_or_b32 {sT4}, {sXCH}, 0x10000
            v_xor_b32 v6, {sT4}, v6
            v_xor_b32 v7, {sT4}, v7
            """)
            self.curwin = 0x10000
            self.run(self.u_rd(10, allD[0], 0) + [self.u_mfma(accC, 29, 1)] + self.u_rd(10, allD[1], 1) + [self.u_mfma(accC, 30, 2)]
                     + self.u_rd(10, allD[2], 2) + [self.u_mfma(accC, 31, 3)])
            for w in W7[3:]: dq += [w, [], []]
            n3 = len(epi3)
            self.run(interleave(ustream(10, accA, allD, allD), epi3[:n3 * 5 // 8], is_main(accA)))
            xw = lines(f"""
            s_lshl1_add_u32 {sT4}, {sTT}, {sNH}
            s_lshl_b32 {sT4}, {sT4}, 12
            s_add_u32 {sT4}, {sT4}, {L_KST}
            v_add_u32 v40, {sT4}, {vL16}
            s_lshl_b32 {sT4}, {sTT}, 13
            s_lshl_b32 {sT5}, {sNH}, 11
            s_add_u32 {sT4}, {sT4}, {sT5}
            s_add_u32 {sT4}, {sT4}, {L_KST}
            v_add_u32 v41, {sT4}, {vL16}
            """) + [f'ds_write_b128 v40, {q4(accA + 4*q)} offset:{1024*q}' for q in range(4)]
            self.run(epi3[n3 * 5 // 8:n3 * 6 // 8] + xw + epi3[n3 * 6 // 8:])
            self.run(self.kv_poll_setup() + self.pl_ld('v42', 'v43'))
            e.wait_lg0(); e('s_barrier')
            e(f"""
            ds_read_b128 {q4(accA)}, v41
            ds_read_b128 {q4(accA+4)}, v41 offset:1024
            ds_read_b128 {q4(accA+8)}, v41 offset:4096
            ds_read_b128 {q4(accA+12)}, v41 offset:5120
            """)
            for i in range(8): e(f'v_add_f32 v{accA+i}, v{accA+i}, v{accA+8+i}')
            hd = self.epi_h(accA, 64, sCOLD, 'h')
            hd = hd[:len(hd) // 2]
            k = [i for i, l in enumerate(hd) if l.startswith(f's_lshl_b32 {sT3}, {sNH}, 11')][0]
            hd[k:k+1] = [f's_and_b32 {sT3}, {sG}, 1', f's_lshl1_add_u32 {sT3}, {sT3}, {sNH}', f's_lshl_b32 {sT3}, {sT3}, 10']
            self.run(hd)
        tailv = e.vm[-2:]
        assert [bool(o['dst']) for o in tailv] == [True, False], tailv
        e.vm = tailv
        assert not dq or not any(dq), dq
        e.wait_lg0(force=True)
        e.settle()
        e(f's_add_u32 {sFLB}, {sFLB}, {F_HC + (256 if typ == 2 else 0)}')
        self.stamp(5)

    def blk_idx(self, jb):
        if jb < 8:
            return [f's_add_u32 {sT0}, {sRC1}, {jb}', f's_and_b32 {sT0}, {sT0}, 7', f's_lshl1_add_u32 {sT0}, {sT0}, 8']
        if jb < 24:
            return [f's_add_u32 {sT0}, {sRC2}, {jb - 8}', f's_and_b32 {sT0}, {sT0}, 15', f's_lshl1_add_u32 {sT1}, {sT0}, -7',
                    f's_cmp_ge_u32 {sT0}, 8', f's_cselect_b32 {sT0}, {sT1}, {sT0}']
        if jb < 28:
            return [f's_add_u32 {sT0}, {sC64}, {jb}', f's_and_b32 {sT0}, {sT0}, 3', f's_add_u32 {sT0}, {sT0}, 24']
        return [f's_add_u32 {sT0}, {sC64}, {jb - 28}', f's_and_b32 {sT0}, {sT0}, 7']

    def w2_dma(self, jb):
        pos = self.w2_pos(jb)
        sr = S_W2 if jb < 28 else S_WO
        base = [sWLO, sWHI, sWB1K][pos >> 16]
        off = pos & 0xffff if pos < 0x20000 else pos
        return self.blk_idx(jb) + [f's_lshl_b32 {sT0}, {sT0}, 16', f's_lshl_b32 {sT1}, {sC64}, 7',
              f's_add_u32 m0, {base}, {off}', f's_add_u32 {sT0}, {sT0}, {sT1}',
              f'buffer_load_dwordx4 {vW2}, {srd(sr)}, {sT0} offen lds #w{jb}']

    def w2_pos(self, jb):
        if jb < 7: return (1 + jb) * 8192
        order = list(range(8, 16)) + list(range(1, 8)) + [0, 16, 17, 18, 19]
        return order[(jb - 7) % 20] * 8192

    def hq(self, jb):
        if jb < 13: return 148 + 4 * jb
        if jb < 22: return 112 + 4 * (jb - 13)
        return 200 + 4 * (jb - 22)

    def wrd1(self, jb, b):
        pos = self.w2_pos(jb); wdw = pos >> 16; off = pos & 0xffff
        a0, a1 = self.WA2[2 * wdw], self.WA2[2 * wdw + 1]
        return [f'ds_read_b64_tr_b16 v[{b}:{b+1}], {a0} offset:{off}',
                f'ds_read_b64_tr_b16 v[{b+2}:{b+3}], {a0} offset:{off + 1024}',
                f'ds_read_b64_tr_b16 v[{b+4}:{b+5}], {a1} offset:{off}',
                f'ds_read_b64_tr_b16 v[{b+6}:{b+7}], {a1} offset:{off + 1024}']

    def hload(self, jb):
        o = self.blk_idx(jb)
        if jb >= 28: o.append(f's_add_u32 {sT0}, {sT0}, 28')
        o += [f's_lshl_b32 {sT0}, {sT0}, 12', f's_add_u32 {sT0}, {sT0}, {sAH2}',
              f'buffer_load_dwordx4 {q4(self.hq(jb))}, {vL16}, {srd(S_WS)}, {sT0} offen sc1']
        return o

    def fl_addr(self, vT, vtmp):
        return lines(f"""
        v_ashrrev_i32 {vtmp}, 2, {vT}
        v_lshlrev_b32 {vtmp}, 14, {vtmp}
        v_and_b32 {vT}, 3, {vT}
        v_mul_u32_u24 {vT}, {FL_T}, {vT}
        v_add_u32 {vT}, {vT}, {vtmp}
        """)

    def att(self):
        e = self.e
        KB = [36, 40]; VB = [44, 52]; P = 60; SB = [68, 84]; NM = 100; MK = 116; O = 132
        Q = 'v[32:35]'
        self.WA2 = ['v4', 'v5', 'v6', 'v7', 'v22', 'v23']
        e(f"""
        v_bfe_u32 v39, v0, 2, 2
        v_lshl_add_u32 v38, {vHF}, 2, v39
        v_lshlrev_b32 v38, 7, v38
        v_bfe_u32 v36, v0, 4, 1
        v_bfe_u32 v37, v0, 1, 1
        v_lshl_add_u32 v36, v36, 1, v37
        v_and_b32 v37, 2, v39
        v_lshlrev_b32 v37, 1, v37
        v_xor_b32 v36, v36, v37
        v_lshl_add_u32 v38, v36, 4, v38
        v_and_b32 v37, 1, v0
        v_lshl_add_u32 v38, v37, 3, v38
        s_lshl_b32 {sT3}, {sKQ}, 11
        v_add_u32 v4, {sT3}, v38
        v_add_u32 v22, 0x20000, v4
        v_add_u32 v4, {sFLIP}, v4
        v_xor_b32 v5, 64, v4
        v_xor_b32 v6, 0x10000, v4
        v_xor_b32 v7, 0x10000, v5
        v_xor_b32 v23, 64, v22
        s_lshl_b32 {sT5}, {sKQ}, 3
        v_lshl_add_u32 v20, {vHF}, 2, {sT5}
        v_sub_u32 v20, {vTOK}, v20
        s_cmp_eq_u32 {sNH}, 0
        s_cselect_b32 {sT2}, 0, {NEGBIG}
        s_cselect_b32 {sT3}, {NEGBIG}, 0
        v_mov_b32 v21, {sT2}
        v_mov_b32 v40, {sT3}
        v_add_u32 v13, {sWB1K}, {vL16}
        v_add_u32 v12, {sFLIP}, {vL16}
        v_add_u32 v41, {sFLIP}, v13
        v_add_u32 v2, {L_KST}, v13
        """)
        for j in range(4):
            e(f"""
            v_cmp_le_i32 vcc, {j}, v20
            v_cndmask_b32 v{36+j}, v40, v21, vcc
            """)
        e(f"""
        ds_write_b128 v41, v[36:39]
        v_add_u32 v41, {sWB1K}, v2
        v_and_b32 v3, 15, v0
        v_lshl_add_u32 v3, {vHF}, 4, v3
        v_lshlrev_b32 v3, 4, v3
        v_add_u32 v3, {sWB1K}, v3
        v_add_u32 v3, {L_VST}, v3
        v_mov_b32 v17, 0
        """)
        for r in list(range(8, 12)) + list(range(44, 60)): e(f'v_mov_b32 v{r}, {vONE}')
        e(f'v_mov_b32 v28, {sT2G}')
        self.run(self.fl_addr('v28', 'v29'))
        e(f"""
        v_lshl_add_u32 v28, {vHF}, 26, v28
        s_lshl_b32 {sT2}, {sKQ}, 4
        s_add_u32 {sT2}, {sT2}, {WS_Z + F_O}
        v_lshl_add_u32 v29, {vTOK}, 6, v28
        v_add_u32 v29, {sT2}, v29
        v_lshrrev_b32 v30, 3, {vTOK}
        v_lshl_add_u32 v29, v30, 26, v29
        s_lshr_b32 {sT2}, {sKQ}, 1
        s_lshl_b32 {sT2}, {sT2}, 4
        s_add_u32 {sT2}, {sT2}, {WS_Z + F_HB}
        v_lshl_add_u32 v13, {vTOK}, 4, v28
        v_add_u32 v13, {WS_Z + F_HC}, v13
        v_lshl_add_u32 v28, {vTOK}, 5, v28
        v_add_u32 v28, {sT2}, v28
        v_lshl_add_u32 v28, v30, 26, v28
        s_mov_b32 s90, 0xffff
        s_mov_b32 s91, 0xffff
        """)
        self.retry(self.pl_chk('v43', sMSK), self.pl_ld('v42', 'v43'), 'KV')
        self.run(self.kv_loads())
        self.stamp('kv')
        e('s_barrier')
        self.stamp(6)
        W = {jb: self.w2_dma(jb) for jb in range(7, 22)}
        for jb in range(7):
            self.run(self.wrd1(jb, 200 + 8 * jb))
            if jb in (1, 4): self.run(W.pop(7 + (jb == 4)))
        self.run(self.flag_set2('h', sFLB))
        e(f"""
        ds_write_b128 v41, v[112:115]
        ds_write_b128 v41, v[116:119] offset:1024
        ds_write_b128 v41, v[120:123] offset:16384
        ds_write_b128 v41, v[124:127] offset:17408
        """)
        self.run(self.pl_ld('v28', 'v30'))
        e.wait_lg0(); e('s_barrier')
        self.stamp(7)
        def kread(i, b): e(f'ds_read_b128 {q4(b)}, v2 offset:{1024*i}')
        def mread(off):
            for q in range(4): e(f'ds_read_b128 {q4(MK+4*q)}, v12 offset:{off + 1024*q}')
        def vread(i, b):
            e(f"""
            s_mov_b64 exec, {sEX}
            ds_read_b128 {q4(b)}, v3 offset:{1024*i}
            ds_read_b128 {q4(b+4)}, v3 offset:{1024*i+512}
            s_mov_b64 exec, -1
            """)
        H = [self.hload(jb) for jb in range(36)]
        def act_chk(vd, va, lo, hi, nm):
            def f():
                e(f's_mov_b32 s68, {lo}\ns_mov_b32 s69, 0')
                self.retry(self.pl_chk(vd, sMSK), self.pl_ld(va, vd), nm)
            return f
        acts = self.att_acts(W, H, act_chk)
        def do(a):
            if callable(a): a()
            else: self.run(a)
        kread(8, KB[0]); mread(L_MASKD); kread(7, KB[1])
        e(f'{MFMA} {blk(SB[0])}, {q4(KB[0])}, {Q}, {blk(MK)}')
        vread(8, VB[0])
        e(f'v_max3_f32 v20, v{SB[0]}, v{SB[0]+1}, v{SB[0]+2}')
        e(f'v_max3_f32 v21, v{SB[0]+3}, v{SB[0]+4}, v{SB[0]+5}')
        for j in range(3, 8):
            e(f'v_max3_f32 v{20 + (j & 1)}, v{SB[0]+2*j}, v{SB[0]+2*j+1}, v{20 + (j & 1)}')
        lp2 = e.newlabel('PASS2')
        e.label(lp2)
        e(f"""
        v_max_f32 v20, v20, v21
        v_mov_b32 v21, v20
        v_permlane32_swap_b32 v20, v21
        v_max_f32 v20, v20, v21
        v_cvt_pk_bf16_f32 v21, v20, v20
        v_lshlrev_b32 v21, 16, v21
        v_sub_f32 v21, v21, v20
        v_cvt_pk_bf16_f32 v16, -v20, v21
        v_cmp_eq_u32 vcc, 0, {vHF}
        v_cndmask_b32 v16, 0, v16, vcc
        {MFMA} {blk(SB[0])}, v[8:11], v[16:19], {blk(SB[0])}
        {MFMA} {blk(NM)}, v[8:11], v[16:19], 0
        """)
        mread(L_MASKF)
        tails = {i: e.newlabel(f'TAIL{i}') for i in range(1, 9)}
        lend2 = e.newlabel('P2END')
        exit_states = {}
        for n, i in enumerate(range(8, -1, -1)):
            cur = SB[n % 2]; nx = SB[(n + 1) % 2]; V = VB[n % 2]
            A = list(acts[n])
            if i > 0:
                c = blk(MK) if i - 1 == 0 else blk(NM)
                e(f'{MFMA} {blk(nx)}, {q4(KB[(n + 1) % 2])}, {Q}, {c}')
                if i > 1: kread(i - 2, KB[n % 2])
                vread(i - 1, VB[(n + 1) % 2])
            if n == 0: e(f'{MFMA} {blk(MK)}, v[8:11], v[16:19], {blk(MK)}')
            for kb in range(2):
                for j in range(8):
                    e(f'v_exp_f32 v{cur+8*kb+j}, v{cur+8*kb+j}')
                    if j == 3 and A: do(A.pop(0))
                for j in range(4): e(f'v_cvt_pk_bf16_f32 v{P+4*kb+j}, v{cur+8*kb+2*j}, v{cur+8*kb+2*j+1}')
                if kb == 0 and A: do(A.pop(0))
                c = '0' if (n == 0 and kb == 0) else blk(O)
                e(f'{MFMA} {blk(O)}, {q4(V+4*kb)}, {q4(P+4*kb)}, {c}')
            for a in A: do(a)
            self.stamp(f't{n}')
            if i > 0:
                e(f's_cmp_eq_u32 {sIMIN}, {i}\ns_cbranch_scc1 {tails[i]}')
                if i == 8: exit_st = self.snap()
        e(f's_branch {lend2}')
        st = self.snap()
        self.restore(exit_st)
        for i in range(8, 0, -1):
            e.label(tails[i])
            e.settle()
            for a in acts[8 - i + 1]: do(a)
        self.restore(st)
        e.label(lend2)
        e.wait_lg0(force=True)
        e.nop(12)
        lok = e.newlabel('SMOK'); lp1 = e.newlabel('P1LP')
        e(f"""
        v_mov_b32 v21, {f32(2.0**100)}
        v_cmp_nle_f32 vcc, v{O+8}, v21
        s_cmp_eq_u64 vcc, 0
        s_cbranch_scc1 {lok}
        s_cmp_lg_u32 {sREDO}, 0
        s_cbranch_scc1 {lok}
        s_mov_b32 {sREDO}, 1
        """)
        st = self.snap()
        e.raw('s_waitcnt vmcnt(0) lgkmcnt(0)'); e.vm = []; e.lg = []
        e(f'v_mov_b32 v20, {NEGBIG}\nv_mov_b32 v21, {NEGBIG}')
        ld = e.newlabel('RDONE')
        for i in range(0, 9):
            lsk = e.newlabel('RSK')
            if i < 8: e(f's_cmp_gt_u32 {sIMIN}, {i}\ns_cbranch_scc1 {lsk}')
            kread(i, KB[0])
            if i in (0, 8): mread(L_MASKF if i == 0 else L_MASKD)
            c = blk(MK) if i in (0, 8) else '0'
            e(f'{MFMA} {blk(SB[0])}, {q4(KB[0])}, {Q}, {c}')
            for j in range(8):
                e(f'v_max3_f32 v{20 + (j & 1)}, v{SB[0]+2*j}, v{SB[0]+2*j+1}, v{20 + (j & 1)}')
            e.settle()
            e.label(lsk)
        kread(7, KB[1]); vread(8, VB[0])
        e.raw('s_waitcnt lgkmcnt(0)'); e.lg = []
        e.settle()
        e(f's_branch {lp2}')
        self.restore(st)
        e.label(lok)
        e(f'v_rcp_f32 v20, v{O+8}')
        for j in range(8): e(f'v_mul_f32 v{O+j}, v20, v{O+j}')
        for j in range(4): e(f'v_cvt_pk_bf16_f32 v{O+j}, v{O+2*j}, v{O+2*j+1}')
        e(f"""
        s_mul_i32 {sT2}, {sTA}, {AH_T}
        s_lshl_b32 {sT3}, {sHEAD}, 10
        s_add_u32 {sT2}, {sT2}, {sT3}
        s_add_u32 {sT2}, {sT2}, {112 * 1024}
        buffer_store_dwordx4 {q4(O)}, {vL16}, {srd(S_WS)}, {sT2} offen sc1 #o
        """)
        self.stamp(8)

    def att_acts(self, W, H, act_chk):
        self.nh_att = 10
        return [
            [W[9], W[10], W[11]],
            [act_chk('v30', 'v28', 0xff, 0, 'HB'), H[0], H[1], W[12]],
            [H[2], H[3], W[13]],
            [H[4], H[5], W[14]],
            [H[6], H[7], W[15]],
            [self.pl_ld('v13', 'v30'), W[16], W[17], W[18]],
            [W[19], W[20], W[21]],
            [act_chk('v30', 'v13', 0xffffffff, 0, 'HC'), H[8], H[9]],
            [],
        ]

    def flag_set2(self, tag, base_s, off=0):
        return lines(f"""
        v_lshl_add_u32 v24, v0, 26, {base_s}
        v_mov_b32 v25, 1
        WAITVM {tag}
        buffer_store_dword v25, v24, {srd(S_WS)}, 0 offen offset:{off} sc1
        """)

    def g2(self):
        e = self.e
        ACC = [80, 96]
        def mm(jb, b):
            hb = self.hq(jb)
            assert any(f'buffer_load_dwordx4 {q4(hb)}, {vL16}, {srd(S_WS)}, {sT0} offen sc1' in l for l in e.lines), jb
            return [f'{MFMA} {blk(ACC[nt])}, {q4(b+4*nt)}, {q4(hb)}, {"0" if jb == 0 else blk(ACC[nt])}' for nt in range(2)]
        vq = [self.hload(jb) for jb in range(self.nh_att, 18)]
        e(f"""
        v_lshrrev_b32 v35, 3, v0
        v_and_b32 v36, 7, v0
        s_lshl_b32 {sT3}, {sR2}, 6
        s_lshl_b32 {sT4}, {sW}, 3
        s_add_u32 {sT3}, {sT3}, {sT4}
        v_add_u32 v37, {sT3}, v35
        s_lshl_b32 {sT4}, {sC64}, 7
        v_lshl_add_u32 v38, v36, 4, {sT4}
        v_lshl_add_u32 v8, v37, 10, v38
        """)
        for jb in range(7):
            for l in mm(jb, 200 + 8 * jb):
                e.I(l)
                if vq: self.run(vq.pop(0))
            if jb == 3: self.run(self.flag_set2('o', sFLO, F_O))
        e.wait_lg0(force=True)
        e('s_barrier')
        self.stamp(9)
        WB = [48, 56, 64, 72]
        self.run(self.wrd1(7, WB[7 % 4]) + self.wrd1(8, WB[8 % 4]))
        for i in range(5):
            vq += [self.hload(18 + i), self.w2_dma(22 + i)]
        for jb in range(23, 28): vq.append(self.hload(jb))
        def ochk():
            e('s_mov_b32 s68, 0xff\ns_mov_b32 s69, 0')
            self.retry(self.pl_chk('v30', sMSK), self.pl_ld('v29', 'v30'), 'OC')
        bar = {11: (None, range(27, 32)), 15: (None, range(32, 36)), 20: ('w26', ()), 25: ('w31', ()), 30: ('w35', ())}
        OPL, OPC = int(OPT.get('opl', 17)), int(OPT.get('opc', 21))
        for jb in range(7, 36):
            if jb in bar:
                tag, rel = bar[jb]
                while tag and vq and any(f'#{tag}' in l for x in vq for l in x): self.run(vq.pop(0))
                if tag: e.wait_vm_tag(tag)
                e.wait_lg0()
                e('s_barrier')
                self.stamp(f'g{jb}')
                for r in rel: vq.append(self.w2_dma(r))
            if jb == OPL: vq.insert(0, self.pl_ld('v29', 'v30'))
            if jb == OPC:
                ochk()
                vq = [self.hload(j) for j in range(28, 36)] + vq
            if jb == 26:
                vq.append([f'buffer_load_dwordx4 v[40:43], v8, {srd(S_X)}, 0 offen', f'buffer_load_dwordx4 v[44:47], v38, {srd(S_B2)}, 0 offen'])
            if jb + 2 < 36: self.run(self.wrd1(jb + 2, WB[(jb + 2) % 4]))
            need = [f'buffer_load_dwordx4 {q4(self.hq(j))},' for j in range(jb, min(36, jb + 4))]
            while vq and any(nd in l for x in vq for l in x for nd in need): self.run(vq.pop(0))
            for l in mm(jb, WB[jb % 4]):
                e.I(l)
                if vq: self.run(vq.pop(0))
        assert not vq, vq
        self.stamp(11)
        PS = 1056
        RED0 = 16384
        e(f"""
        s_mul_i32 {sT4}, {sKQ}, {16 * PS}
        s_add_u32 {sT4}, {sT4}, {sFLIP}
        s_add_u32 {sT4}, {sT4}, {RED0}
        s_cmp_eq_u32 {sKQ}, 2
        s_cselect_b32 {sT4}, 0x20000, {sT4}
        s_xor_b32 {sT5}, {sFLIP}, 0x10000
        s_cmp_eq_u32 {sKQ}, 3
        s_cselect_b32 {sT4}, {sT5}, {sT4}
        s_mul_i32 {sT3}, {sNH}, {8 * PS}
        s_add_u32 {sT4}, {sT4}, {sT3}
        v_add_u32 v9, {sT4}, {vL16}
        """)
        for nt in range(2):
            for q in range(4):
                e(f'ds_write_b128 v9, v[{ACC[nt]+4*q}:{ACC[nt]+4*q+3}] offset:{(nt*4+q)*PS}')
        e(f"""
        s_lshl_b32 {sT4}, {sKQ}, 7
        s_add_u32 {sT4}, {sT4}, {sT3}
        v_mul_u32_u24 v9, {PS}, v36
        v_lshl_add_u32 v9, v35, 4, v9
        v_add_u32 v9, {sT4}, v9
        v_add_u32 v10, 0x20000, v9
        v_add_u32 v11, {sT5}, v9
        v_add_u32 v9, {sFLIP}, v9
        """)
        for j in range(4):
            e(f"""
            v_lshlrev_b32 v{112+2*j}, 16, v{40+j}
            v_and_b32 v{113+2*j}, 0xffff0000, v{40+j}
            v_lshlrev_b32 v{120+2*j}, 16, v{44+j}
            v_and_b32 v{121+2*j}, 0xffff0000, v{44+j}
            """)
        for j in range(8): e(f'v_add_f32 v{112+j}, v{112+j}, v{120+j}')
        e.wait_lg0(); e('s_barrier')
        for kq in range(4):
            for hf in range(2):
                b = 48 + 8 * kq + 4 * hf
                if kq < 2: e(f'ds_read_b128 v[{b}:{b+3}], v9 offset:{RED0 + kq * 16 * PS + hf * 512}')
                else: e(f'ds_read_b128 v[{b}:{b+3}], v{8 + kq} offset:{hf * 512}')
        for j in range(8):
            e(f"""
            v_add_f32 v{48+j}, v{48+j}, v{56+j}
            v_add_f32 v{64+j}, v{64+j}, v{72+j}
            v_add_f32 v{48+j}, v{48+j}, v{64+j}
            v_add_f32 v{48+j}, v{48+j}, v{112+j}
            """)
        for j in range(4): e(f'v_cvt_pk_bf16_f32 v{48+j}, v{48+2*j}, v{48+2*j+1}')
        e(f'buffer_store_dwordx4 v[48:51], v8, {srd(S_OUT)}, 0 offen')
        self.stamp(12)

    def prof_out(self):
        e = self.e
        e(f"""
        s_lshl_b32 {sT0}, s2, 3
        s_add_u32 {sT0}, {sT0}, {sW}
        s_lshl_b32 {sT0}, {sT0}, 8
        s_add_u32 {sT0}, {sT0}, {WS_PROF}
        v_lshlrev_b32 v2, 2, v0
        buffer_store_dword v31, v2, {srd(S_WS)}, {sT0} offen
        """)

    def build(self):
        e = self.e
        if self.prof:
            e.raw('s_memrealtime s[6:7]')
            e.raw('s_memtime s[4:5]')
            e.raw('s_waitcnt lgkmcnt(0)')
            e.raw('s_mov_b32 s7, s4')
            e.raw('v_mov_b32 v31, 0')
        self.prologue()
        e(f"""
        s_cmp_eq_u32 {sTYPE}, 1
        s_cbranch_scc1 L_type2
        """)
        st = self.snap()
        self.p1(1)
        e('s_branch L_att')
        self.restore(st)
        e.label('L_type2')
        self.p1(2)
        e.label('L_att')
        if self.stop_after != 'p1':
            self.att()
            if self.stop_after != 'att':
                self.g2()
        if self.prof:
            e.raw('v_writelane_b32 v31, s6, 63')
            e.raw('v_writelane_b32 v31, s7, 60')
            e.raw('s_memtime s[4:5]')
            e.raw('s_memrealtime s[64:65]')
            e.raw('s_waitcnt lgkmcnt(0)')
            e.raw('s_sub_u32 s4, s4, s7')
            e.raw('v_writelane_b32 v31, s4, 62')
            e.raw('v_writelane_b32 v31, s64, 61')
            self.prof_out()
        e.label('L_end')
        e.raw('s_endpgm')
        hdr = open('cdna_kernels/' + NAME + '.s.ref').read().split('\n')
        cm = [l for l in hdr if l.startswith(';') and '@launch' not in l]
        out = '\n'.join(cm) + f'\n; @launch grid=(256,1,1) block=(512,1,1) lds={LDS_BYTES}\n'
        out += f""".amdgcn_target "amdgcn-amd-amdhsa--gfx950"
.text
.globl {NAME}_kernel
.p2align 8
.type {NAME}_kernel,@function
{NAME}_kernel:
"""
        out += e.text()
        out += f""".section .rodata,"a"
.p2align 6
.amdhsa_kernel {NAME}_kernel
  .amdhsa_next_free_vgpr 256
  .amdhsa_next_free_sgpr 102
  .amdhsa_accum_offset 256
  .amdhsa_group_segment_fixed_size 0
  .amdhsa_kernarg_size 88
  .amdhsa_user_sgpr_count 2
  .amdhsa_user_sgpr_kernarg_segment_ptr 1
  .amdhsa_system_sgpr_workgroup_id_x 1
.end_amdhsa_kernel
"""
        return out

if __name__ == '__main__':
    import argparse
    ap = argparse.ArgumentParser()
    ap.add_argument('-o', default='k.s')
    ap.add_argument('--stop', default=None)
    ap.add_argument('--prof', default=None)
    ap.add_argument('--cyc', action='store_true')
    ap.add_argument('--opt', default='')
    a = ap.parse_args()
    for kv in a.opt.split(','):
        if kv: OPT[kv.split('=')[0]] = kv.split('=')[1]
    g = G(stop_after=a.stop, prof=a.prof.split(',') if a.prof else None)
    g.cyc = a.cyc
    txt = g.build()
    open(a.o, 'w').write(txt)
    print('instrs', g.e.ninstr, 'nops', g.e.nnops)
```

```python
import sys, math, struct, copy
from em import Em, lines, interleave

NAME = "parallel_sum__sliding_block__dense_activation_gelu__prompt"

WS_AH = 0
AH_T = 144 * 1024
WS_K = 0x1000000
WS_V = 0x1200000
WS_Q = 0x1400000
WS_Z = 0x1600000
Z_RB = 16384
FL_T = 1792
F_KV, F_Q, F_HB, F_HC, F_O = 0, 256, 512, 768, 1280
Z_ROW = 7168
Z_CSG = 8192
WS_PROF = 0x1800000
WS_SIZE = 0x2000000
SLOT = 32768
L_MASKD = 0
L_MASKF = 4096
L_KST = 131072
L_VST = 147456
L_CSP = 147456
L_RV = 149504
LDS_BYTES = 163840

def f32(x): return struct.unpack('<I', struct.pack('<f', x))[0]
LOG2E = 1.4426950408889634
GA = -2.0 * math.sqrt(2.0 / math.pi) * LOG2E
GB = GA * 0.044715
NEGBIG = f32(-1e30)
ONES = 0x3f803f80

S_X, S_QKV, S_W1, S_W2, S_WO, S_WS, S_OUT, S_DBG, S_B1, S_B2 = [8 + 4 * i for i in range(10)]
S_TMP = 80
def srd(b): return f's[{b}:{b+3}]'
sW = 's48'; sNH = 's49'; sTT = 's50'; sRB = 's51'; sG = 's52'; sROT = 's53'; sT = 's54'; sTYPE = 's55'
sWB1K = 's56'; sWB2K = 's57'
sCOLA = 's58'; sCOLB = 's59'; sCOLC = 's60'; sCOLD = 's61'
sT0, sT1, sT2, sT3, sT4, sT5 = 's62', 's63', 's86', 's87', 's88', 's89'
sEX = 's[90:91]'
sGB = 's93'; sFLB = 's92'
sCNT = 's94'
sR2 = 's95'; sC64 = 's96'; sROT2 = 's97'; sIMIN = 's98'; sHEAD = 's99'; sAHB = 's100'; sUID = 's101'
sPIT = 's3'; sQTR = 's98'; sROW = 's90'
sTA = 's64'; sRA = 's65'; sKV = 's66'; sQO = 's67'; sMSK = 's[68:69]'; sT2G = 's70'; sAH2 = 's71'; sREDO = 's72'; sRC1 = 's73'; sRC2 = 's74'; sIMIN = 's75'; sKQ = 's76'; sFLO = 's77'; sXCH = 's85'; sFLIP = 's78'; sWLO = 's79'; sWHI = 's97'
vW2 = 'v1'; vONE = 'v14'; vL16 = 'v15'; TF = 16; NF = 20; vGA = 'v24'; vR = 'v25'; vTOK = 'v26'; vHF = 'v27'
vBC = 'v28'; vBX = 'v29'; vCSA = 'v30'
accC, accA, accB = 80, 96, 112
def blk(b): return f'v[{b}:{b+15}]'
def q4(b): return f'v[{b}:{b+3}]'
MFMA = 'v_mfma_f32_32x32x16_bf16'

OPT = {}
class G:
    def __init__(self, stop_after=None, prof=False):
        self.e = Em()
        self.stop_after = stop_after
        self.prof = prof
        self.cyc = False

    def stamp(self, name):
        if not self.prof: return
        name = str(name)
        if name not in self.prof: return
        idx = self.prof.index(name)
        e = self.e
        e.raw('s_memtime s[4:5]' if self.cyc else 's_memrealtime s[4:5]')
        e.raw('s_waitcnt lgkmcnt(0)'); e.lg = []
        e.raw(f'v_writelane_b32 v31, s4, {idx}'); e.t += 3

    def snap(self):
        return copy.deepcopy({k: v for k, v in self.e.__dict__.items() if k != 'lines'}), self.curwin
    def restore(self, s):
        uid = self.e.uid; ni = self.e.ninstr; nn = self.e.nnops
        self.e.__dict__.update(copy.deepcopy(s[0])); self.e.uid = uid; self.e.ninstr = ni; self.e.nnops = nn
        self.curwin = s[1]
    def run(self, ls):
        for l in ls: self.e.I(l)

    def rotcode(self):
        m = OPT.get('rot', 'xcd2')
        if m == 'wg': return f's_lshl_b32 {sT4}, {sT3}, 1\ns_add_u32 {sROT}, {sT2}, {sT4}\ns_and_b32 {sROT}, {sROT}, 7'
        if m == 'none': return f's_mov_b32 {sROT}, 0'
        if m == 'xcd': return f's_mov_b32 {sROT}, {sT0}'
        if m == 'xcd2': return f's_add_u32 {sT4}, {sT2}, {sT3}\ns_and_b32 {sT4}, {sT4}, 1\ns_lshl2_add_u32 {sROT}, {sT4}, {sT0}\ns_and_b32 {sROT}, {sROT}, 7'
        if m == 'xcd4': return f's_add_u32 {sT4}, {sT2}, {sT3}\ns_and_b32 {sT4}, {sT4}, 3\ns_lshl1_add_u32 {sROT}, {sT4}, {sT0}\ns_and_b32 {sROT}, {sROT}, 7'

    def mk(self, b, lo, size):
        self.e(f"""
        s_mov_b32 s{b}, s{lo}
        s_and_b32 s{b+1}, s{lo+1}, 0xffff
        s_mov_b32 s{b+2}, {size}
        s_mov_b32 s{b+3}, 0x20000
        """)

    def prologue(self):
        e = self.e
        self.curwin = 0
        e(f"""
        s_cmp_ge_u32 s2, 256
        s_cbranch_scc1 L_end
        s_load_dwordx16 s[64:79], s[0:1], 0
        s_load_dwordx4 s[80:83], s[0:1], 64
        s_load_dwordx2 s[84:85], s[0:1], 80
        v_lshrrev_b32 v1, 6, v0
        v_and_b32 v0, 63, v0
        v_readfirstlane_b32 {sW}, v1
        s_and_b32 {sT0}, s2, 7
        s_lshr_b32 {sT1}, s2, 3
        s_and_b32 {sRB}, {sT0}, 1
        s_lshl_b32 {sRB}, {sRB}, 3
        s_and_b32 {sT2}, {sT1}, 7
        s_add_u32 {sRB}, {sRB}, {sT2}
        s_lshr_b32 {sT3}, {sT1}, 3
        s_lshr_b32 {sTYPE}, {sT3}, 1
        s_and_b32 {sG}, {sT0}, 6
        s_and_b32 {sT4}, {sT3}, 1
        s_add_u32 {sG}, {sG}, {sT4}
        {self.rotcode()}
        s_lshr_b32 {sNH}, {sW}, 2
        s_lshl_b32 {sT4}, {sNH}, 1
        s_add_u32 {sTT}, {sW}, {sT4}
        s_and_b32 {sTT}, {sTT}, 3
        s_lshl_b32 {sT}, {sRB}, 2
        s_add_u32 {sT}, {sT}, {sTT}
        s_lshl_b32 {sWB1K}, {sW}, 10
        s_lshl_b32 {sWB2K}, {sW}, 11
        s_mov_b32 {sGB}, {f32(GB)}
        s_lshl_b32 {sR2}, {sT0}, 2
        s_and_b32 {sT4}, {sT1}, 3
        s_add_u32 {sR2}, {sR2}, {sT4}
        s_lshr_b32 {sC64}, {sT1}, 2
        s_and_b32 {sHEAD}, s2, 31
        s_mul_i32 {sROT2}, {sC64}, 3
        s_mul_i32 {sT4}, {sT4}, 7
        s_add_u32 {sROT2}, {sROT2}, {sT4}
        s_cmp_ge_u32 {sROT2}, 28
        s_cselect_b32 {sT4}, 28, 0
        s_sub_u32 {sROT2}, {sROT2}, {sT4}
        s_and_b32 {sT2}, {sT0}, 1
        s_lshl_b32 {sT2}, {sT2}, 5
        s_add_u32 {sT2}, {sT2}, {sT1}
        s_and_b32 {sQTR}, {sT2}, 3
        s_lshr_b32 {sT2}, {sT2}, 2
        s_lshr_b32 {sT3}, {sT0}, 1
        s_lshr_b32 {sUID}, {sT2}, 1
        s_lshl_b32 {sUID}, {sUID}, 3
        s_and_b32 {sT4}, {sT2}, 1
        s_add_u32 {sUID}, {sUID}, {sT4}
        s_lshl_b32 {sT4}, {sT3}, 1
        s_add_u32 {sUID}, {sUID}, {sT4}
        s_lshl_b32 {sT4}, {sT3}, 2
        s_add_u32 {sT4}, {sT4}, {sT2}
        s_add_u32 {sT4}, {sT4}, 24
        s_cmp_ge_u32 {sT2}, 8
        s_cselect_b32 {sUID}, {sT4}, {sUID}
        s_add_u32 {sT4}, {sT3}, 48
        s_cmp_eq_u32 {sT2}, 12
        s_cselect_b32 {sUID}, {sT4}, {sUID}
        s_cmp_gt_u32 {sT2}, 12
        s_cselect_b32 {sUID}, 52, {sUID}
        s_and_b32 {sROW}, {sT0}, 1
        s_lshl_b32 {sROW}, {sROW}, 10
        s_lshl_b32 {sT4}, {sT3}, 8
        s_add_u32 {sROW}, {sROW}, {sT4}
        s_lshl_b32 {sT4}, {sT1}, 3
        s_add_u32 {sROW}, {sROW}, {sT4}
        s_add_u32 {sROW}, {sROW}, {sW}
        s_movk_i32 {sPIT}, 3072
        s_cmp_ge_u32 {sUID}, 24
        s_cselect_b32 {sPIT}, 3584, {sPIT}
        """)
        e(f"""
        v_lshrrev_b32 v32, 3, v0
        v_and_b32 v33, 7, v0
        v_lshlrev_b32 {vL16}, 4, v0
        v_mov_b32 {vONE}, {ONES}
        s_lshl_b32 {sT4}, {sRB}, 7
        s_lshl_b32 {sT5}, {sW}, 4
        s_add_u32 {sT4}, {sT4}, {sT5}
        v_add_u32 v34, {sT4}, v32
        v_lshrrev_b32 v35, 1, v32
        v_xor_b32 v35, v35, v33
        v_lshlrev_b32 v35, 4, v35
        v_lshl_add_u32 v10, v34, 10, v35
        v_xor_b32 v11, 64, v10
        v_add_u32 v11, 0x2000, v11
        v_and_b32 v35, 2, v32
        v_lshlrev_b32 v35, 1, v35
        v_xor_b32 v35, v35, v33
        v_lshlrev_b32 v35, 4, v35
        v_add_u32 v34, {sT5}, v32
        v_mad_u32_u24 v20, v34, {sPIT}, v35
        s_lshl_b32 {sT5}, {sW}, 3
        v_add_u32 v34, {sT5}, v32
        v_mul_u32_u24 v12, 3072, v34
        v_add_u32 v12, v12, v35
        v_mul_u32_u24 v13, 3584, v34
        v_add_u32 v13, v13, v35
        v_lshl_add_u32 {vW2}, v34, 10, v35
        """)
        e(f"""
        v_and_b32 {vTOK}, 31, v0
        v_lshrrev_b32 {vHF}, 5, v0
        v_bfe_u32 v34, {vTOK}, 1, 3
        v_xor_b32 v34, v34, {vHF}
        v_lshlrev_b32 v34, 4, v34
        s_lshl_b32 {sT4}, {sTT}, 12
        v_lshl_add_u32 v34, {vTOK}, 7, v34
        v_add_u32 v34, {sT4}, v34
        v_bfe_u32 v36, v0, 2, 2
        v_lshl_add_u32 v35, {vHF}, 3, v36
        v_lshlrev_b32 v35, 7, v35
        v_bfe_u32 v32, v0, 4, 1
        v_bfe_u32 v33, v0, 1, 1
        v_lshl_add_u32 v32, v32, 1, v33
        v_and_b32 v33, 2, v36
        v_lshlrev_b32 v33, 1, v33
        v_xor_b32 v32, v32, v33
        v_lshl_add_u32 v35, v32, 4, v35
        v_and_b32 v33, 1, v0
        v_lshl_add_u32 v35, v33, 3, v35
        s_add_u32 {sT4}, {sWB2K}, {L_KST}
        v_add_u32 v250, {sT4}, v35
        v_xor_b32 v251, 64, v250
        s_lshl_b32 {sT4}, {sNH}, 6
        v_xor_b32 v35, {sT4}, v35
        """)
        e(f"""
        s_lshl_b32 {sT4}, {sNH}, 6
        v_xor_b32 v34, {sT4}, v34
        s_lshl_b32 {sT4}, {sNH}, 12
        v_add_u32 v35, {sT4}, v35
        """)
        for s in range(4):
            e(f"""
            v_xor_b32 v{2+s}, {s << 5}, v34
            v_xor_b32 v{6+s}, {s << 11}, v35
            v_add_u32 v{80+s}, 0x10000, v{2+s}
            v_add_u32 v{84+s}, 0x10000, v{6+s}
            """)
        e.wait_lg0()
        self.mk(S_X, 64, 2048 * 1024)
        self.mk(S_QKV, 66, 512 * 3072)
        self.mk(S_W1, 72, 512 * 3584)
        self.mk(S_WS, 84, WS_SIZE)
        self.mk(S_OUT, 80, 2048 * 1024)
        self.mk(S_DBG, 82, 256)
        self.stamp('ka')
        lab = e.newlabel('NORST')
        e(f"""
        s_or_b32 {sT0}, {sG}, {sTYPE}
        s_cmp_lg_u32 {sT0}, 0
        s_cbranch_scc1 {lab}
        s_lshl_b32 {sT0}, {sRB}, 14
        s_add_u32 {sT0}, {sT0}, {sWB2K}
        s_add_u32 {sT0}, {sT0}, {WS_Z}
        v_mov_b32 v32, 0
        v_mov_b32 v33, 0
        v_mov_b32 v34, 0
        v_mov_b32 v35, 0
        buffer_store_dwordx4 v[32:35], {vL16}, {srd(S_WS)}, {sT0} offen sc1 #zero
        buffer_store_dwordx4 v[32:35], {vL16}, {srd(S_WS)}, {sT0} offen offset:1024 sc1 #zero
        """)
        e.settle()
        e.label(lab)

    def stats_loads(self):
        e = self.e
        e(f"""
        s_lshl_b32 {sT0}, {sROW}, 10
        buffer_load_dwordx4 v[240:243], {vL16}, {srd(S_X)}, {sT0} offen
        s_cmp_ge_u32 {sUID}, 24
        s_cselect_b32 s{S_TMP}, s{S_W1}, s{S_QKV}
        s_cselect_b32 s{S_TMP+1}, s{S_W1+1}, s{S_QKV+1}
        s_cselect_b32 s{S_TMP+2}, s{S_W1+2}, s{S_QKV+2}
        s_mov_b32 s{S_TMP+3}, 0x20000
        s_cselect_b32 {sT1}, 24, 0
        s_sub_u32 {sT1}, {sUID}, {sT1}
        s_lshl_b32 {sT1}, {sT1}, 7
        s_lshl_b32 {sT0}, {sQTR}, 7
        s_mul_i32 {sT0}, {sT0}, {sPIT}
        s_add_u32 {sT0}, {sT0}, {sT1}
        s_lshl_b32 {sT1}, {sPIT}, 3
        s_add_u32 {sT1}, {sT1}, {sT0}
        s_add_u32 m0, {sWB2K}, {L_KST}
        buffer_load_dwordx4 v20, {srd(S_TMP)}, {sT0} offen lds #cs
        s_add_u32 m0, {sWB2K}, {L_KST + 1024}
        buffer_load_dwordx4 v20, {srd(S_TMP)}, {sT1} offen lds #cs
        """)

    def code_prefetch(self):
        e = self.e
        lab = e.newlabel('NOIPF')
        e(f"""
        s_cmp_lg_u32 {sW}, 2
        s_cbranch_scc1 {lab}
        s_getpc_b64 s[4:5]
        """)
        l2 = e.newlabel('PCREF')
        e.label(l2)
        e(f"""
        s_sub_u32 s4, s4, {l2}-{NAME}_kernel
        s_subb_u32 s5, s5, 0
        s_bfe_u32 {sT0}, s2, 0x20003
        s_lshl_b32 {sT0}, {sT0}, 13
        v_lshlrev_b32 v36, 7, v0
        v_add_u32 v36, {sT0}, v36
        v_min_u32 v36, L_end-{NAME}_kernel, v36
        """)
        saved = list(e.vm)
        e(f'global_load_dword v37, v36, s[4:5]')
        e.vm = saved
        e.label(lab)

    def prologue2(self):
        e = self.e
        self.mk(S_WO, 68, 512 * 1024)
        self.mk(S_B1, 74, 1792 * 2)
        self.mk(S_W2, 76, 1792 * 1024)
        self.mk(S_B2, 78, 1024)
        e(f"""
        v_mov_b32 {vGA}, {f32(GA)}
        s_mul_i32 {sAHB}, {sT}, {AH_T}
        v_mov_b32 v{TF+2}, 0
        v_mov_b32 v{TF+3}, 0
        v_mov_b32 v{NF+2}, 0
        v_mov_b32 v{NF+3}, 0
        s_lshl_b32 {sT4}, {sNH}, 10
        v_lshl_add_u32 {vCSA}, {vTOK}, 5, {sT4}
        s_lshl_b32 {sFLB}, {sRB}, 14
        s_mul_i32 {sT4}, {sTT}, {FL_T}
        s_add_u32 {sFLB}, {sFLB}, {sT4}
        s_lshl_b32 {sT5}, {sG}, 5
        s_add_u32 {sFLB}, {sFLB}, {sT5}
        s_lshl_b32 {sT5}, {sNH}, 4
        s_add_u32 {sFLB}, {sFLB}, {sT5}
        s_add_u32 {sFLB}, {sFLB}, {WS_Z}
        s_lshr_b32 {sT1}, {sROW}, 7
        s_lshl_b32 {sT1}, {sT1}, 14
        s_and_b32 {sT0}, {sROW}, 127
        s_lshl_b32 {sT0}, {sT0}, 3
        s_add_u32 {sT0}, {sT0}, {sT1}
        s_add_u32 {sT0}, {sT0}, {WS_Z + Z_ROW}
        v_lshl_add_u32 v252, v0, 26, {sT0}
        s_lshl_b32 {sT0}, {sW}, 2
        s_add_u32 {sT0}, {sT0}, {L_CSP}
        v_lshl_add_u32 v253, v0, 5, {sT0}
        v_lshlrev_b32 v254, 5, v0
        v_add_u32 v254, {L_CSP}, v254
        v_and_b32 v248, 15, v0
        v_lshlrev_b32 v248, 2, v248
        s_lshr_b32 {sT2}, {sUID}, 2
        s_lshl_b32 {sT2}, {sT2}, 14
        s_and_b32 {sT3}, {sUID}, 3
        s_lshl_b32 {sT3}, {sT3}, 11
        s_add_u32 {sT2}, {sT2}, {sT3}
        s_lshl_b32 {sT3}, {sQTR}, 3
        s_add_u32 {sT2}, {sT2}, {sT3}
        s_add_u32 {sT2}, {sT2}, {WS_Z + Z_CSG}
        s_cmp_ge_u32 {sUID}, 52
        s_cselect_b32 {sT3}, 1, {sW}
        s_lshl_b32 {sT3}, {sT3}, 26
        s_add_u32 {sT2}, {sT2}, {sT3}
        v_lshl_add_u32 v255, v0, 5, {sT2}
        """)

    def fill_stats(self):
        o = lines(f"""
        WAITVM cs
        ds_read_b64_tr_b16 v[232:233], v250
        ds_read_b64_tr_b16 v[234:235], v250 offset:512
        ds_read_b64_tr_b16 v[236:237], v251
        ds_read_b64_tr_b16 v[238:239], v251 offset:512
        v_dot2_f32_bf16 v244, v240, {vONE}, 0
        v_dot2_f32_bf16 v245, v240, v240, 0
        """)
        for j in range(1, 4):
            o += [f'v_dot2_f32_bf16 v244, v{240+j}, {vONE}, v244', f'v_dot2_f32_bf16 v245, v{240+j}, v{240+j}, v245']
        o += [f'v_dot2_f32_bf16 v228, v232, {vONE}, 0', f'v_dot2_f32_bf16 v229, v236, {vONE}, 0']
        for j in range(1, 4):
            o += [f'v_dot2_f32_bf16 v228, v{232+j}, {vONE}, v228', f'v_dot2_f32_bf16 v229, v{236+j}, {vONE}, v229']
        for dpp in ('quad_perm:[1,0,3,2]', 'quad_perm:[2,3,0,1]', 'row_half_mirror', 'row_mirror'):
            o += [f'v_add_f32_dpp v244, v244, v244 {dpp} row_mask:0xf bank_mask:0xf',
                  f'v_add_f32_dpp v245, v245, v245 {dpp} row_mask:0xf bank_mask:0xf']
            if dpp.startswith('quad_perm:[1'):
                o += ['v_permlane32_swap_b32 v228, v229', 'v_add_f32 v228, v228, v229', 'ds_write_b32 v253, v228']
        for sw in ('v_permlane16_swap_b32', 'v_permlane32_swap_b32'):
            o += lines(f"""
            v_mov_b32 v246, v244
            v_mov_b32 v247, v245
            {sw} v244, v246
            {sw} v245, v247
            v_add_f32 v244, v244, v246
            v_add_f32 v245, v245, v247
            """)
        o += lines(f"""
        v_mul_f32 v244, {f32(1/512)}, v244
        v_mul_f32 v245, {f32(1/512)}, v245
        v_fma_f32 v245, -v244, v244, v245
        v_max_f32 v245, 0, v245
        v_cvt_pk_bf16_f32 v246, v245, v245
        v_lshlrev_b32 v246, 16, v246
        v_add_f32 v246, {f32(1e-5)}, v246
        v_cvt_pk_bf16_f32 v246, v246, v246
        v_lshlrev_b32 v246, 16, v246
        v_sqrt_f32 v246, v246
        v_cvt_pk_bf16_f32 v240, -v244, v246
        v_mov_b32 v241, 1
        """)
        return o

    def fill_cs2(self):
        return lines(f"""
        ds_read_b128 v[232:235], v254
        ds_read_b128 v[236:239], v254 offset:16
        v_add_f32 v232, v232, v233
        v_add_f32 v234, v234, v235
        v_add_f32 v236, v236, v237
        v_add_f32 v238, v238, v239
        v_add_f32 v232, v232, v234
        v_add_f32 v236, v236, v238
        v_add_f32 v244, v232, v236
        v_mov_b32 v245, 1
        """)

    def dma_stage1(self, c, units):
        slot = (c % 4) * SLOT
        pre = [f's_add_u32 {sT0}, {sROT}, {c}', f's_and_b32 {sT0}, {sT0}, 7']
        out = []
        for i in range(2):
            out.append(pre + [f's_lshl_b32 {sT1}, {sT0}, 7', f's_add_u32 m0, {sWB2K}, {slot + 1024 * i}',
                       f'buffer_load_dwordx4 v{10+i}, {srd(S_X)}, {sT1} offen lds #c{c}'])
        for u, (sr, vo, pitch, scol) in enumerate(units):
            out.append(pre + [f's_mul_i32 {sT1}, {sT0}, {64 * pitch}', f's_add_u32 m0, {sWB1K}, {slot + 16384 + 8192 * u}',
                       f's_add_u32 {sT1}, {sT1}, {scol}',
                       f'buffer_load_dwordx4 {vo}, {srd(sr)}, {sT1} offen lds #c{c}'])
        return out

    def dma_stage2(self, c, half, scol):
        slot = (c % 4) * SLOT
        out = []
        for i in range(4):
            cc = 4 * half + i
            out.append([f's_add_u32 {sT0}, {sROT}, {cc}', f's_and_b32 {sT0}, {sT0}, 7',
                    f's_mul_i32 {sT1}, {sT0}, {64 * 3584}', f's_add_u32 m0, {sWB1K}, {slot + 8192 * i}',
                    f's_add_u32 {sT1}, {sT1}, {scol}',
                    f'buffer_load_dwordx4 v13, {srd(S_W1)}, {sT1} offen lds #c{c}'])
        return out

    def win(self, want, regs=range(2, 10)):
        out = []
        if want != self.curwin:
            out = [f'v_xor_b32 v{r}, 0x10000, v{r}' for r in regs]
            self.curwin = want
        return out

    def cs_load(self, scol, isq, dst):
        return lines(f"""
        s_lshr_b32 {sT2}, {scol}, 7
        s_add_u32 {sT2}, {sT2}, {0 if isq else 24}
        s_lshr_b32 {sT3}, {sT2}, 2
        s_lshl_b32 {sT3}, {sT3}, 14
        s_and_b32 {sT2}, {sT2}, 3
        s_lshl_b32 {sT2}, {sT2}, 11
        s_add_u32 {sT2}, {sT2}, {sT3}
        s_add_u32 {sT2}, {sT2}, {WS_Z + Z_CSG}
        buffer_load_dwordx4 v[{dst}:{dst+3}], {vCSA}, {srd(S_WS)}, {sT2} offen sc1
        buffer_load_dwordx4 v[{dst+4}:{dst+7}], {vCSA}, {srd(S_WS)}, {sT2} offen offset:16 sc1
        """)

    def nf_build(self, cs, bias):
        return lines(f"""
        v_cvt_pk_bf16_f32 v46, v{cs}, v{cs}
        v_lshlrev_b32 v46, 16, v46
        v_sub_f32 v46, v{cs}, v46
        v_cvt_pk_bf16_f32 v{NF}, v{cs}, v46
        v_and_b32 v47, 0xffff0000, v{NF}
        v_sub_f32 v46, v46, v47
        v_cvt_pk_bf16_f32 v{NF+1}, v46, {bias}
        """)

    def hd_off(self, base):
        return lines(f"""
        s_lshl_b32 {sT2}, {sG}, 2
        s_lshl_b32 {sT3}, {sNH}, 1
        s_add_u32 {sT2}, {sT2}, {sT3}
        s_lshl_b32 {sT2}, {sT2}, 16
        s_lshl_b32 {sT3}, {sT}, 10
        s_add_u32 {sT2}, {sT2}, {sT3}
        s_add_u32 {sT2}, {sT2}, {base}
        """)

    def epi_qk(self, acc, rreg, base, tag):
        o = []
        for i in range(16): o.append(f'v_mul_f32 v{acc+i}, {rreg}, v{acc+i}')
        for i in range(8): o.append(f'v_cvt_pk_bf16_f32 v{acc+i}, v{acc+2*i}, v{acc+2*i+1}')
        o += self.hd_off(base) + lines(f"""
        s_add_u32 {sT3}, {sT2}, 65536
        buffer_store_dwordx4 v[{acc}:{acc+3}], {vL16}, {srd(S_WS)}, {sT2} offen sc1 #{tag}
        buffer_store_dwordx4 v[{acc+4}:{acc+7}], {vL16}, {srd(S_WS)}, {sT3} offen sc1 #{tag}
        """)
        return o

    def epi_v_pre(self, tmp):
        o = lines(f"""
        s_lshl_b32 {sT2}, {sW}, 7
        s_add_u32 {sT2}, {sT2}, {L_RV}
        v_lshl_add_u32 v20, {vTOK}, 2, {sT2}
        v_lshl_add_u32 v21, {vHF}, 4, {sT2}
        ds_write_b32 v20, {vR}
        """)
        for q in range(4): o.append(f'ds_read_b128 v[{tmp+4*q}:{tmp+4*q+3}], v21 offset:{32*q}')
        return o

    def epi_v(self, acc, tmp, tag):
        o = []
        for i in range(16): o.append(f'v_mul_f32 v{acc+i}, v{tmp+i}, v{acc+i}')
        for i in range(8): o.append(f'v_cvt_pk_bf16_f32 v{acc+i}, v{acc+2*i}, v{acc+2*i+1}')
        o += lines(f"""
        v_bfe_u32 v64, v0, 4, 1
        v_and_b32 v65, 15, v0
        v_lshl_add_u32 v65, {vHF}, 4, v65
        v_lshlrev_b32 v65, 4, v65
        v_lshl_add_u32 v64, v64, 16, v65
        """) + self.hd_off(WS_V) + lines(f"""
        buffer_store_dwordx4 v[{acc}:{acc+3}], v64, {srd(S_WS)}, {sT2} offen sc1 #{tag}
        buffer_store_dwordx4 v[{acc+4}:{acc+7}], v64, {srd(S_WS)}, {sT2} offen offset:512 sc1 #{tag}
        """)
        return o

    def epi_h(self, acc, tmp, scol, tag, pk=None):
        if pk is None: pk = int(OPT.get('pk', 0))
        o = []
        for half in range(2):
            a = acc + 8 * half
            if pk:
                P = lambda r: f'v[{r}:{r+1}]'
                for i in range(0, 8, 2): o.append(f'v_pk_mul_f32 {P(tmp+i)}, {P(a+i)}, {P(a+i)}')
                for i in range(0, 8, 2): o.append(f'v_pk_fma_f32 {P(tmp+i)}, {P(tmp+i)}, v[10:11], v[24:25] op_sel_hi:[1,0,0]')
                for i in range(0, 8, 2): o.append(f'v_pk_mul_f32 {P(tmp+i)}, {P(tmp+i)}, {P(a+i)}')
                for i in range(8): o.append(f'v_exp_f32 v{tmp+i}, v{tmp+i}')
                for i in range(0, 8, 2): o.append(f'v_pk_fma_f32 {P(tmp+i)}, {P(tmp+i)}, v[2:3], v[2:3] op_sel_hi:[1,0,0]')
                for i in range(8): o.append(f'v_rcp_f32 v{tmp+i}, v{tmp+i}')
                for i in range(0, 8, 2): o.append(f'v_pk_mul_f32 {P(a+i)}, {P(a+i)}, {P(tmp+i)}')
            else:
                for i in range(8): o.append(f'v_mul_f32 v{tmp+i}, v{a+i}, v{a+i}')
                for i in range(8): o.append(f'v_fma_f32 v{tmp+i}, v{tmp+i}, v10, v24')
                for i in range(8): o.append(f'v_mul_f32 v{tmp+i}, v{tmp+i}, v{a+i}')
                for i in range(8): o.append(f'v_exp_f32 v{tmp+i}, v{tmp+i}')
                for i in range(8): o.append(f'v_fma_f32 v{tmp+i}, v{tmp+i}, v2, v2')
                for i in range(8): o.append(f'v_rcp_f32 v{tmp+i}, v{tmp+i}')
                for i in range(8): o.append(f'v_mul_f32 v{a+i}, v{a+i}, v{tmp+i}')
            for i in range(4): o.append(f'v_cvt_pk_bf16_f32 v{a+i}, v{a+2*i}, v{a+2*i+1}')
            o += lines(f"""
            s_lshl_b32 {sT2}, {scol}, 5
            s_lshl_b32 {sT3}, {sNH}, 11
            s_add_u32 {sT2}, {sT2}, {sT3}
            s_add_u32 {sT2}, {sT2}, {sAHB}
            """)
            o.append(f'buffer_store_dwordx4 v[{a}:{a+3}], {vL16}, {srd(S_WS)}, {sT2} offen offset:{1024*half} sc1 #{tag}')
        return o

    def flag_set(self, tag, base_s, off):
        return lines(f"""
        v_lshl_add_u32 v46, v0, 26, {base_s}
        v_mov_b32 v47, 1
        WAITVM {tag}
        buffer_store_dword v47, v46, {srd(S_WS)}, 0 offen offset:{off} sc1
        """)

    def u_rd(self, c0, m, nb=None):
        c = c0 + (m >> 4); k = m & 15
        slot = (c % 4) * SLOT
        assert (slot & 0x10000) == self.curwin
        base = (slot & 0xffff) + 8192 * (k >> 2); s = k & 3
        b = 48 + 4 * ((m if nb is None else nb) % 4)
        return [f'ds_read_b64_tr_b16 v[{b}:{b+1}], v{6+s} offset:{base}',
                f'ds_read_b64_tr_b16 v[{b+2}:{b+3}], v{6+s} offset:{base + 512}']

    def u_mfma(self, acc, m, nb=None):
        b = 48 + 4 * ((m if nb is None else nb) % 4); x = 128 + 4 * m
        return f'{MFMA} {blk(acc)}, {q4(b)}, {q4(x)}, {blk(acc)}'

    def retry(self, check_lines, reload_lines, name):
        e = self.e
        lok = e.newlabel(name + 'OK'); lp = e.newlabel(name + 'LP')
        self.run(check_lines)
        e(f's_cbranch_scc1 {lok}\ns_mov_b32 {sCNT}, 0')
        e.label(lp)
        st = self.snap()
        e.settle()
        e('s_sleep 2')
        self.run(reload_lines)
        e.raw('s_waitcnt vmcnt(0)'); e.vm = []
        e(f's_add_u32 {sCNT}, {sCNT}, 1\ns_cmp_gt_u32 {sCNT}, 0x40000\ns_cbranch_scc1 {lok}')
        self.run(check_lines)
        e(f's_cbranch_scc0 {lp}')
        e.settle()
        self.restore(st)
        e.label(lok)

    def att_ids(self):
        self.e(f"""
        s_lshr_b32 {sRA}, s2, 5
        s_lshl_b32 {sTA}, {sRA}, 3
        s_sub_u32 {sKV}, {sTA}, 8
        s_add_u32 {sTA}, {sTA}, {sW}
        s_sub_u32 {sIMIN}, 8, {sTA}
        s_cmp_gt_u32 {sTA}, 8
        s_cselect_b32 {sIMIN}, 0, {sIMIN}
        s_lshl_b32 {sKV}, {sKV}, 10
        s_add_u32 {sKV}, {sKV}, {sWB2K}
        s_lshl_b32 {sT1}, {sHEAD}, 16
        s_add_u32 {sKV}, {sKV}, {sT1}
        s_lshl_b32 {sQO}, {sTA}, 10
        s_add_u32 {sQO}, {sQO}, {sT1}
        s_add_u32 {sQO}, {sQO}, {WS_Q}
        s_lshl_b32 {sT2G}, {sR2}, 1
        s_add_u32 {sT2G}, {sT2G}, {sNH}
        s_and_b32 {sKQ}, {sW}, 3
        s_mul_i32 {sAH2}, {sT2G}, {AH_T}
        s_lshl_b32 {sT1}, {sKQ}, 10
        s_add_u32 {sAH2}, {sAH2}, {sT1}
        s_and_b32 {sT1}, {sR2}, 3
        s_lshl1_add_u32 {sRC1}, {sT1}, {sC64}
        s_lshl_b32 {sRC2}, {sRC1}, 1
        s_mov_b32 {sREDO}, 0
        s_lshr_b32 {sFLO}, {sTA}, 2
        s_lshl_b32 {sFLO}, {sFLO}, 14
        s_and_b32 {sT1}, {sTA}, 3
        s_mul_i32 {sT1}, {sT1}, {FL_T}
        s_add_u32 {sFLO}, {sFLO}, {sT1}
        s_lshl_b32 {sT1}, {sHEAD}, 4
        s_add_u32 {sFLO}, {sFLO}, {sT1}
        s_add_u32 {sFLO}, {sFLO}, {WS_Z}
        """)

    def kv_poll_setup(self):
        o = lines(f"""
        s_lshl_b32 {sT4}, {sRA}, 3
        s_lshl1_add_u32 {sT4}, {sW}, {sT4}
        s_sub_u32 {sT4}, {sT4}, 8
        v_add_u32 v42, {sT4}, v0
        v_mov_b32 v43, {sTA}
        v_cmp_gt_u32 vcc, 2, v0
        v_cndmask_b32 v42, v43, v42, vcc
        """) + self.fl_addr('v42', 'v43') + lines(f"""
        v_mov_b32 v43, {F_Q}
        v_cndmask_b32 v43, v43, 0, vcc
        s_lshr_b32 {sT5}, {sHEAD}, 1
        s_lshl_b32 {sT5}, {sT5}, 4
        s_add_u32 {sT5}, {sT5}, {WS_Z}
        v_add3_u32 v42, v42, v43, {sT5}
        v_lshrrev_b32 v43, 2, v0
        v_lshl_add_u32 v42, v43, 26, v42
        s_cmp_lt_i32 {sT4}, 0
        s_cselect_b32 s68, 4, 7
        s_mov_b32 s69, 0
        """)
        return o
    def kv_loads(self):
        return lines(f"""
        s_add_u32 {sT4}, {sKV}, {WS_K}
        s_add_u32 {sT5}, {sKV}, {WS_V}
        buffer_load_dwordx4 v[112:115], {vL16}, {srd(S_WS)}, {sT4} offen sc1
        buffer_load_dwordx4 v[116:119], {vL16}, {srd(S_WS)}, {sT4} offen offset:1024 sc1
        buffer_load_dwordx4 v[32:35], {vL16}, {srd(S_WS)}, {sQO} offen sc1
        buffer_load_dwordx4 v[120:123], {vL16}, {srd(S_WS)}, {sT5} offen sc1
        buffer_load_dwordx4 v[124:127], {vL16}, {srd(S_WS)}, {sT5} offen offset:1024 sc1
        """)
    def pl_ld(self, vaddr, vdst, off=0):
        return [f'buffer_load_dword {vdst}, {vaddr}, {srd(S_WS)}, 0 offen offset:{off} sc1']
    def pl_chk(self, vdst, mask):
        return [f'v_cmp_ne_u32 vcc, 1, {vdst}', f's_and_b64 vcc, vcc, {mask}', 's_cmp_eq_u64 vcc, 0']

    def last_gelu(self, epi, extra_mid=(), dmas=()):
        n = len(epi)
        dmas = list(dmas)
        body = list(epi)
        out = []
        step = max(1, (n * 5 // 8) // (len(dmas) + 1)) if dmas else n
        for i, l in enumerate(body):
            out.append(l)
            if dmas and i % step == step - 1: out += dmas.pop(0)
            if i == n // 3: out += list(extra_mid)
            if i == (n * 3) // 4 : out += self.kv_poll_setup() + self.pl_ld('v42', 'v43')
        for d in dmas: out += d
        self.run(out)
        self.stamp('pk')

    def p1(self, typ):
        e = self.e
        if typ == 1:
            units = [(S_QKV, 'v12', 3072, sCOLA), (S_QKV, 'v12', 3072, sCOLB)]
            e(f"""
            s_lshl_b32 {sCOLC}, {sG}, 7
            s_add_u32 {sCOLA}, {sCOLC}, 1024
            s_add_u32 {sCOLB}, {sCOLC}, 2048
            s_lshr_b32 {sCOLD}, {sG}, 1
            s_add_u32 {sCOLD}, {sCOLD}, 24
            s_lshl_b32 {sCOLD}, {sCOLD}, 7
            """)
        else:
            units = [(S_QKV, 'v12', 3072, sCOLA), (S_W1, 'v13', 3584, sCOLB)]
            e(f"""
            s_lshl_b32 {sCOLA}, {sG}, 7
            s_lshl_b32 {sCOLB}, {sG}, 8
            s_add_u32 {sCOLB}, {sCOLB}, 1024
            s_add_u32 {sCOLC}, {sCOLB}, 128
            """)
        def arm():
            lab = e.newlabel('NOARM')
            e(f"""
            s_lshl_b32 {sT0}, {sG}, 3
            s_add_u32 {sT0}, {sT0}, {sW}
            s_cmp_lg_u32 {sT0}, 0
            s_cbranch_scc1 {lab}
            s_lshl_b32 {sT0}, {sRB}, 2
            v_lshl_add_u32 v32, v0, 26, {sT0}
            v_mov_b32 v33, 1
            """)
            saved = list(e.vm)
            e(f'buffer_store_dword v33, v32, {srd(S_DBG)}, 0 offen offset:64 sc1')
            e.vm = saved
            e.label(lab)
        def chunk_dmas(c):
            if c < 8: return self.dma_stage1(c, units)
            if c < 10: return self.dma_stage2(c, c - 8, sCOLC)
            if typ == 1 and c < 12: return self.dma_stage2(c, c - 10, sCOLD)
            return []
        self.stats_loads()
        for grp in chunk_dmas(0): self.run(grp)
        self.stamp('i0')
        if int(OPT.get('ipf', 1)): self.code_prefetch()
        self.prologue2()
        self.att_ids()
        e(f"""
        s_mov_b32 {sFLIP}, {0 if typ == 1 else 0x10000}
        s_add_u32 {sWLO}, {sWB1K}, {0 if typ == 1 else 0x10000}
        s_add_u32 {sWHI}, {sWB1K}, {0x10000 if typ == 1 else 0}
        s_lshl_b32 {sT4}, {sNH}, 6
        v_lshl_add_u32 v34, {vTOK}, 1, {sT4}
        """)
        e.wait_vm_tag('zero')
        e('s_barrier')
        if typ == 1: arm()
        c1 = chunk_dmas(1)
        fs = self.fill_stats()
        k = len(fs) // 4
        self.run(c1[0] + c1[1])
        self.run(fs[:2 * k] + c1[2] + fs[2 * k:3 * k] + c1[3] + fs[3 * k:])
        self.stamp('st')
        dq = chunk_dmas(2) + chunk_dmas(3)
        def rd1(n):
            c, s = n >> 2, n & 3
            slot = (c % 4) * SLOT
            hi = slot >> 16
            base = slot & 0xffff
            xa = (80 if hi else 2) + s; wa = (84 if hi else 6) + s
            x = 128 + 4 * n; b = 48 + 8 * (n % 4)
            return [f'ds_read_b128 {q4(x)}, v{xa} offset:{base}',
                  f'ds_read_b64_tr_b16 v[{b}:{b+1}], v{wa} offset:{base + 16384}',
                  f'ds_read_b64_tr_b16 v[{b+2}:{b+3}], v{wa} offset:{base + 16384 + 512}',
                  f'ds_read_b64_tr_b16 v[{b+4}:{b+5}], v{wa} offset:{base + 24576}',
                  f'ds_read_b64_tr_b16 v[{b+6}:{b+7}], v{wa} offset:{base + 24576 + 512}']
        def barrier(tag):
            e.wait_vm_tag(tag); e.wait_lg0(); e('s_barrier')
        barrier('c0')
        self.stamp(1)
        self.run(rd1(0) + rd1(1))
        armed_chk = [f'v_cmp_ne_u32 vcc, 1, v249', 's_cmp_eq_u64 vcc, 0']
        armed_ld = [f'buffer_load_dword v249, v248, {srd(S_DBG)}, 0 offen offset:64 sc1']
        fills = {}
        fills[1] = self.fill_cs2()
        fills[5] = armed_ld
        fills[17] = [f'buffer_load_ushort {vBC}, v34, {srd(S_B1)}, {sCOLC} offen']
        if typ == 1:
            fills[17] += lines(f"""
            s_xor_b32 {sXCH}, {sNH}, {sG}
            s_and_b32 {sXCH}, {sXCH}, 1
            s_lshl_b32 {sXCH}, {sXCH}, 6
            v_xor_b32 v34, {sXCH}, v34
            buffer_load_ushort {vBX}, v34, {srd(S_B1)}, {sCOLD} offen
            """)
        else:
            fills[17] += [f'buffer_load_ushort {vBX}, v34, {srd(S_B1)}, {sCOLB} offen']
        fills[13] = lines(f"""
        s_lshl_b32 {sT2}, {sW}, 8
        s_add_u32 {sT2}, {sT2}, s2
        s_lshl_b32 {sT2}, {sT2}, 13
        s_sub_u32 {sT3}, {sT2}, {1792 * 1024}
        v_lshlrev_b32 v21, 7, v0
        buffer_load_dword v22, v21, {srd(S_W2)}, {sT2} offen
        buffer_load_dword v23, v21, {srd(S_WO)}, {sT3} offen
        """)
        rowg = lines(f"""
        s_lshl_b32 {sT2}, {sRB}, 14
        s_lshl_b32 {sT3}, {sTT}, 8
        s_add_u32 {sT2}, {sT2}, {sT3}
        s_add_u32 {sT2}, {sT2}, {WS_Z + Z_ROW}
        v_lshlrev_b32 v20, 3, {vTOK}
        buffer_load_dwordx2 v[{TF}:{TF+1}], v20, {srd(S_WS)}, {sT2} offen sc1
        """)
        ldA = self.cs_load(sCOLA, True, 32); ldB = self.cs_load(sCOLB, typ == 1, 40); ldC = self.cs_load(sCOLC, False, 88)
        GL = int(OPT.get('gl', 21))
        fills[GL] = rowg + ldA
        fills[GL + 1] = ldB
        fills[GL + 2] = ldC
        chk = lines(f"""
        v_and_b32 v20, v{TF+1}, v33
        v_and_b32 v21, v35, v37
        v_and_b32 v20, v20, v39
        v_and_b32 v21, v21, v41
        v_and_b32 v20, v20, v43
        v_and_b32 v21, v21, v45
        v_and_b32 v20, v20, v47
        v_and_b32 v21, v21, v89
        v_and_b32 v20, v20, v91
        v_and_b32 v21, v21, v93
        v_and_b32 v20, v20, v95
        v_and_b32 v20, v20, v21
        v_cmp_ne_u32 vcc, 1, v20
        s_cmp_eq_u64 vcc, 0
        """)
        pre = lines(f"""
        v_add_f32 v32, v32, v34
        v_add_f32 v36, v36, v38
        v_add_f32 v40, v40, v42
        v_add_f32 v44, v44, v46
        v_add_f32 v88, v88, v90
        v_add_f32 v92, v92, v94
        v_add_f32 v32, v32, v36
        v_add_f32 v33, v40, v44
        v_add_f32 v34, v88, v92
        v_and_b32 v2, 0xffff0000, v{TF}
        v_rcp_f32 {vR}, v2
        v_cmp_eq_u32 vcc, 0, {vHF}
        v_cndmask_b32 v{TF+1}, 0, v{TF}, vcc
        v_and_b32 v{TF}, 0xffff, v{TF+1}
        v_lshl_or_b32 v{TF}, v{TF}, 16, v{TF}
        v_mov_b32 v{NF+2}, 0
        v_mov_b32 v{NF+3}, 0
        v_lshlrev_b32 {vBC}, 16, {vBC}
        v_lshlrev_b32 {vBX}, 16, {vBX}
        """)
        pre2 = lines(f"""
        v_mul_f32 v10, {vR}, {vR}
        v_mul_f32 v24, {f32(GA)}, {vR}
        v_mul_f32 v10, {sGB}, v10
        v_mul_f32 v10, v10, {vR}
        """)
        fills[27] = pre
        fills[28] = self.nf_build(32, '0') + [f'{MFMA} {blk(accA)}, {q4(NF)}, {q4(TF)}, {blk(accA)}']
        if typ == 1:
            fills[29] = pre2 + self.nf_build(33, '0') + [f'{MFMA} {blk(accB)}, {q4(TF)}, {q4(NF)}, {blk(accB)}']
        else:
            fills[29] = pre2 + self.nf_build(33, vBX) + [f'{MFMA} {blk(accB)}, {q4(NF)}, {q4(TF)}, {blk(accB)}']
        fills[30] = self.nf_build(34, vBC) + [f'{MFMA} {blk(accC)}, {q4(NF)}, {q4(TF)}, 0']
        if typ == 1: fills[31] = self.epi_v_pre(32)
        else: fills[31] = [f'v_mul_f32 v32, {f32(0.25 * LOG2E)}, {vR}']
        for n in range(32):
            c, s = n >> 2, n & 3
            if s == 2:
                barrier(f'c{c+1}')
                self.stamp(f'b{c+1}')
                dq += chunk_dmas(c + 4)
            if n + 2 < 32: self.run(rd1(n + 2))
            elif n == 30: self.run(self.u_rd(8, 0) + self.u_rd(8, 1))
            else: self.run(self.u_rd(8, 2))
            x = 128 + 4 * n; b = 48 + 8 * (n % 4)
            ca = '0' if n == 0 else blk(accA)
            cb = '0' if n == 0 else blk(accB)
            e.I(f'{MFMA} {blk(accA)}, {q4(b)}, {q4(x)}, {ca}')
            if len(dq) > 4: self.run(dq.pop(0))
            if typ == 1: e.I(f'{MFMA} {blk(accB)}, {q4(x)}, {q4(b+4)}, {cb}')
            else: e.I(f'{MFMA} {blk(accB)}, {q4(b+4)}, {q4(x)}, {cb}')
            if dq: self.run(dq.pop(0))
            if n == 27: self.retry(chk, rowg + ldA + ldB + ldC, 'GR')
            self.run(fills.get(n, []))
            if n == 9:
                self.retry(armed_chk, armed_ld, 'ARM')
                e(f"""
                buffer_store_dwordx2 v[240:241], v252, {srd(S_WS)}, 0 offen sc1
                buffer_store_dwordx2 v[244:245], v255, {srd(S_WS)}, 0 offen sc1
                """)
        self.stamp(2)
        def ustream(c0, acc, ms, allms=None, nb0=0):
            o = []
            allms = allms or ms
            for m in ms:
                k = allms.index(m)
                if k + 3 < len(allms): o += self.u_rd(c0, allms[k + 3], (k + 3 + nb0) % 4)
                o.append(self.u_mfma(acc, m, (k + nb0) % 4))
                if dq: o += dq.pop(0)
            return o
        def is_main(acc):
            return lambda s: s.startswith('v_mfma') and any(f'{blk(acc)}, v[{d}' in s for d in '456')
        W7 = [self.w2_dma(jb) for jb in range(7)]
        allC = list(range(32))
        if typ == 1:
            epi = self.epi_qk(accA, vR, WS_K, 'kv') + self.epi_v(accB, 32, 'kv')
            ldD = [f'v_xor_b32 {vCSA}, {sT4}, {vCSA}'] + self.cs_load(sCOLD, False, 32)
            epi2 = self.flag_set('kv', sFLB, F_KV)
        else:
            epi = self.epi_qk(accA, 'v32', WS_Q, 'kv')
            hh = self.epi_h(accB, 64, sCOLB, 'hb')
            epi += hh[:len(hh) // 3]
            epi2 = self.flag_set('kv', sFLB, F_Q) + hh[len(hh) // 3:]
        self.run(ustream(8, accC, allC[0:1], allC))
        self.run(interleave(ustream(8, accC, allC[1:9 if typ == 1 else 13], allC), epi, is_main(accC)))
        if typ == 1:
            e(f's_lshl_b32 {sT4}, {sXCH}, 4')
            self.run(ldD + ustream(8, accC, allC[9:13], allC))
        self.stamp(3)
        barrier('c9')
        epi3 = self.epi_h(accC, 64, sCOLC, 'h')
        if typ == 2:
            for w in W7: dq += [w, []]
            self.run(interleave(ustream(8, accC, allC[13:32], allC), epi2, is_main(accC)))
            self.stamp(4)
            self.last_gelu(epi3, self.flag_set('hb', sFLB, F_HB))
        else:
            chkD = lines(f"""
            v_and_b32 v20, v33, v35
            v_and_b32 v20, v20, v37
            v_and_b32 v20, v20, v39
            v_cmp_ne_u32 vcc, 1, v20
            s_cmp_eq_u64 vcc, 0
            """)
            self.run(ustream(8, accC, allC[13:15], allC) + epi2)
            for w in W7[:3]: dq += [w, [], []]
            self.run(ustream(8, accC, allC[15:24], allC))
            self.retry(chkD, ldD[1:], 'GD')
            nfd = ['v_add_f32 v32, v32, v34', 'v_add_f32 v36, v36, v38', 'v_add_f32 v32, v32, v36'] + self.nf_build(32, vBX) + lines(f"""
            s_sub_u32 {sT4}, {sNH}, 1
            v_and_b32 v{NF}, {sT4}, v{NF}
            v_and_b32 v{NF+1}, {sT4}, v{NF+1}
            {MFMA} {blk(accA)}, {q4(NF)}, {q4(TF)}, 0
            """)
            self.run(interleave(ustream(8, accC, allC[24:29], allC), nfd, is_main(accC)))
            barrier('c11')
            self.stamp(4)
            allD = [m for m in range(32) if (m & 3) < 2]
            e(f"""
            s_or_b32 {sT4}, {sXCH}, 0x10000
            v_xor_b32 v6, {sT4}, v6
            v_xor_b32 v7, {sT4}, v7
            """)
            self.curwin = 0x10000
            self.run(self.u_rd(10, allD[0], 0) + [self.u_mfma(accC, 29, 1)] + self.u_rd(10, allD[1], 1) + [self.u_mfma(accC, 30, 2)]
                     + self.u_rd(10, allD[2], 2) + [self.u_mfma(accC, 31, 3)])
            for w in W7[3:]: dq += [w, [], []]
            n3 = len(epi3)
            self.run(interleave(ustream(10, accA, allD, allD), epi3[:n3 * 5 // 8], is_main(accA)))
            xw = lines(f"""
            s_lshl1_add_u32 {sT4}, {sTT}, {sNH}
            s_lshl_b32 {sT4}, {sT4}, 12
            s_add_u32 {sT4}, {sT4}, {L_KST}
            v_add_u32 v40, {sT4}, {vL16}
            s_lshl_b32 {sT4}, {sTT}, 13
            s_lshl_b32 {sT5}, {sNH}, 11
            s_add_u32 {sT4}, {sT4}, {sT5}
            s_add_u32 {sT4}, {sT4}, {L_KST}
            v_add_u32 v41, {sT4}, {vL16}
            """) + [f'ds_write_b128 v40, {q4(accA + 4*q)} offset:{1024*q}' for q in range(4)]
            self.run(epi3[n3 * 5 // 8:n3 * 6 // 8] + xw + epi3[n3 * 6 // 8:])
            self.run(self.kv_poll_setup() + self.pl_ld('v42', 'v43'))
            e.wait_lg0(); e('s_barrier')
            e(f"""
            ds_read_b128 {q4(accA)}, v41
            ds_read_b128 {q4(accA+4)}, v41 offset:1024
            ds_read_b128 {q4(accA+8)}, v41 offset:4096
            ds_read_b128 {q4(accA+12)}, v41 offset:5120
            """)
            for i in range(8): e(f'v_add_f32 v{accA+i}, v{accA+i}, v{accA+8+i}')
            hd = self.epi_h(accA, 64, sCOLD, 'h')
            hd = hd[:len(hd) // 2]
            k = [i for i, l in enumerate(hd) if l.startswith(f's_lshl_b32 {sT3}, {sNH}, 11')][0]
            hd[k:k+1] = [f's_and_b32 {sT3}, {sG}, 1', f's_lshl1_add_u32 {sT3}, {sT3}, {sNH}', f's_lshl_b32 {sT3}, {sT3}, 10']
            self.run(hd)
        tailv = e.vm[-2:]
        assert [bool(o['dst']) for o in tailv] == [True, False], tailv
        e.vm = tailv
        assert not dq or not any(dq), dq
        e.wait_lg0(force=True)
        e.settle()
        e(f's_add_u32 {sFLB}, {sFLB}, {F_HC + (256 if typ == 2 else 0)}')
        self.stamp(5)

    def blk_idx(self, jb):
        if jb < 8:
            return [f's_add_u32 {sT0}, {sRC1}, {jb}', f's_and_b32 {sT0}, {sT0}, 7', f's_lshl1_add_u32 {sT0}, {sT0}, 8']
        if jb < 24:
            return [f's_add_u32 {sT0}, {sRC2}, {jb - 8}', f's_and_b32 {sT0}, {sT0}, 15', f's_lshl1_add_u32 {sT1}, {sT0}, -7',
                    f's_cmp_ge_u32 {sT0}, 8', f's_cselect_b32 {sT0}, {sT1}, {sT0}']
        if jb < 28:
            return [f's_add_u32 {sT0}, {sC64}, {jb}', f's_and_b32 {sT0}, {sT0}, 3', f's_add_u32 {sT0}, {sT0}, 24']
        return [f's_add_u32 {sT0}, {sC64}, {jb - 28}', f's_and_b32 {sT0}, {sT0}, 7']

    def w2_dma(self, jb):
        pos = self.w2_pos(jb)
        sr = S_W2 if jb < 28 else S_WO
        base = [sWLO, sWHI, sWB1K][pos >> 16]
        off = pos & 0xffff if pos < 0x20000 else pos
        return self.blk_idx(jb) + [f's_lshl_b32 {sT0}, {sT0}, 16', f's_lshl_b32 {sT1}, {sC64}, 7',
              f's_add_u32 m0, {base}, {off}', f's_add_u32 {sT0}, {sT0}, {sT1}',
              f'buffer_load_dwordx4 {vW2}, {srd(sr)}, {sT0} offen lds #w{jb}']

    def w2_pos(self, jb):
        if jb < 7: return (1 + jb) * 8192
        order = list(range(8, 16)) + list(range(1, 8)) + [0, 16, 17, 18, 19]
        return order[(jb - 7) % 20] * 8192

    def hq(self, jb):
        if jb < 13: return 148 + 4 * jb
        if jb < 22: return 112 + 4 * (jb - 13)
        return 200 + 4 * (jb - 22)

    def wrd1(self, jb, b):
        pos = self.w2_pos(jb); wdw = pos >> 16; off = pos & 0xffff
        a0, a1 = self.WA2[2 * wdw], self.WA2[2 * wdw + 1]
        return [f'ds_read_b64_tr_b16 v[{b}:{b+1}], {a0} offset:{off}',
                f'ds_read_b64_tr_b16 v[{b+2}:{b+3}], {a0} offset:{off + 1024}',
                f'ds_read_b64_tr_b16 v[{b+4}:{b+5}], {a1} offset:{off}',
                f'ds_read_b64_tr_b16 v[{b+6}:{b+7}], {a1} offset:{off + 1024}']

    def hload(self, jb):
        o = self.blk_idx(jb)
        if jb >= 28: o.append(f's_add_u32 {sT0}, {sT0}, 28')
        o += [f's_lshl_b32 {sT0}, {sT0}, 12', f's_add_u32 {sT0}, {sT0}, {sAH2}',
              f'buffer_load_dwordx4 {q4(self.hq(jb))}, {vL16}, {srd(S_WS)}, {sT0} offen sc1']
        return o

    def fl_addr(self, vT, vtmp):
        return lines(f"""
        v_ashrrev_i32 {vtmp}, 2, {vT}
        v_lshlrev_b32 {vtmp}, 14, {vtmp}
        v_and_b32 {vT}, 3, {vT}
        v_mul_u32_u24 {vT}, {FL_T}, {vT}
        v_add_u32 {vT}, {vT}, {vtmp}
        """)

    def att(self):
        e = self.e
        KB = [36, 40]; VB = [44, 52]; P = 60; SB = [68, 84]; NM = 100; MK = 116; O = 132
        Q = 'v[32:35]'
        self.WA2 = ['v4', 'v5', 'v6', 'v7', 'v22', 'v23']
        e(f"""
        v_bfe_u32 v39, v0, 2, 2
        v_lshl_add_u32 v38, {vHF}, 2, v39
        v_lshlrev_b32 v38, 7, v38
        v_bfe_u32 v36, v0, 4, 1
        v_bfe_u32 v37, v0, 1, 1
        v_lshl_add_u32 v36, v36, 1, v37
        v_and_b32 v37, 2, v39
        v_lshlrev_b32 v37, 1, v37
        v_xor_b32 v36, v36, v37
        v_lshl_add_u32 v38, v36, 4, v38
        v_and_b32 v37, 1, v0
        v_lshl_add_u32 v38, v37, 3, v38
        s_lshl_b32 {sT3}, {sKQ}, 11
        v_add_u32 v4, {sT3}, v38
        v_add_u32 v22, 0x20000, v4
        v_add_u32 v4, {sFLIP}, v4
        v_xor_b32 v5, 64, v4
        v_xor_b32 v6, 0x10000, v4
        v_xor_b32 v7, 0x10000, v5
        v_xor_b32 v23, 64, v22
        s_lshl_b32 {sT5}, {sKQ}, 3
        v_lshl_add_u32 v20, {vHF}, 2, {sT5}
        v_sub_u32 v20, {vTOK}, v20
        s_cmp_eq_u32 {sNH}, 0
        s_cselect_b32 {sT2}, 0, {NEGBIG}
        s_cselect_b32 {sT3}, {NEGBIG}, 0
        v_mov_b32 v21, {sT2}
        v_mov_b32 v40, {sT3}
        v_add_u32 v13, {sWB1K}, {vL16}
        v_add_u32 v12, {sFLIP}, {vL16}
        v_add_u32 v41, {sFLIP}, v13
        v_add_u32 v2, {L_KST}, v13
        """)
        for j in range(4):
            e(f"""
            v_cmp_le_i32 vcc, {j}, v20
            v_cndmask_b32 v{36+j}, v40, v21, vcc
            """)
        e(f"""
        ds_write_b128 v41, v[36:39]
        v_add_u32 v41, {sWB1K}, v2
        v_and_b32 v3, 15, v0
        v_lshl_add_u32 v3, {vHF}, 4, v3
        v_lshlrev_b32 v3, 4, v3
        v_add_u32 v3, {sWB1K}, v3
        v_add_u32 v3, {L_VST}, v3
        v_mov_b32 v17, 0
        """)
        for r in list(range(8, 12)) + list(range(44, 60)): e(f'v_mov_b32 v{r}, {vONE}')
        e(f'v_mov_b32 v28, {sT2G}')
        self.run(self.fl_addr('v28', 'v29'))
        e(f"""
        v_lshl_add_u32 v28, {vHF}, 26, v28
        s_lshl_b32 {sT2}, {sKQ}, 4
        s_add_u32 {sT2}, {sT2}, {WS_Z + F_O}
        v_lshl_add_u32 v29, {vTOK}, 6, v28
        v_add_u32 v29, {sT2}, v29
        v_lshrrev_b32 v30, 3, {vTOK}
        v_lshl_add_u32 v29, v30, 26, v29
        s_lshr_b32 {sT2}, {sKQ}, 1
        s_lshl_b32 {sT2}, {sT2}, 4
        s_add_u32 {sT2}, {sT2}, {WS_Z + F_HB}
        v_lshl_add_u32 v13, {vTOK}, 4, v28
        v_add_u32 v13, {WS_Z + F_HC}, v13
        v_lshl_add_u32 v28, {vTOK}, 5, v28
        v_add_u32 v28, {sT2}, v28
        v_lshl_add_u32 v28, v30, 26, v28
        s_mov_b32 s90, 0xffff
        s_mov_b32 s91, 0xffff
        """)
        self.retry(self.pl_chk('v43', sMSK), self.pl_ld('v42', 'v43'), 'KV')
        self.run(self.kv_loads())
        self.stamp('kv')
        e('s_barrier')
        self.stamp(6)
        W = {jb: self.w2_dma(jb) for jb in range(7, 22)}
        for jb in range(7):
            self.run(self.wrd1(jb, 200 + 8 * jb))
            if jb in (1, 4): self.run(W.pop(7 + (jb == 4)))
        self.run(self.flag_set2('h', sFLB))
        e(f"""
        ds_write_b128 v41, v[112:115]
        ds_write_b128 v41, v[116:119] offset:1024
        ds_write_b128 v41, v[120:123] offset:16384
        ds_write_b128 v41, v[124:127] offset:17408
        """)
        self.run(self.pl_ld('v28', 'v30'))
        e.wait_lg0(); e('s_barrier')
        self.stamp(7)
        def kread(i, b): e(f'ds_read_b128 {q4(b)}, v2 offset:{1024*i}')
        def mread(off):
            for q in range(4): e(f'ds_read_b128 {q4(MK+4*q)}, v12 offset:{off + 1024*q}')
        def vread(i, b):
            e(f"""
            s_mov_b64 exec, {sEX}
            ds_read_b128 {q4(b)}, v3 offset:{1024*i}
            ds_read_b128 {q4(b+4)}, v3 offset:{1024*i+512}
            s_mov_b64 exec, -1
            """)
        H = [self.hload(jb) for jb in range(36)]
        def act_chk(vd, va, lo, hi, nm):
            def f():
                e(f's_mov_b32 s68, {lo}\ns_mov_b32 s69, 0')
                self.retry(self.pl_chk(vd, sMSK), self.pl_ld(va, vd), nm)
            return f
        acts = self.att_acts(W, H, act_chk)
        def do(a):
            if callable(a): a()
            else: self.run(a)
        kread(8, KB[0]); mread(L_MASKD); kread(7, KB[1])
        e(f'{MFMA} {blk(SB[0])}, {q4(KB[0])}, {Q}, {blk(MK)}')
        vread(8, VB[0])
        e(f'v_max3_f32 v20, v{SB[0]}, v{SB[0]+1}, v{SB[0]+2}')
        e(f'v_max3_f32 v21, v{SB[0]+3}, v{SB[0]+4}, v{SB[0]+5}')
        for j in range(3, 8):
            e(f'v_max3_f32 v{20 + (j & 1)}, v{SB[0]+2*j}, v{SB[0]+2*j+1}, v{20 + (j & 1)}')
        lp2 = e.newlabel('PASS2')
        e.label(lp2)
        e(f"""
        v_max_f32 v20, v20, v21
        v_mov_b32 v21, v20
        v_permlane32_swap_b32 v20, v21
        v_max_f32 v20, v20, v21
        v_cvt_pk_bf16_f32 v21, v20, v20
        v_lshlrev_b32 v21, 16, v21
        v_sub_f32 v21, v21, v20
        v_cvt_pk_bf16_f32 v16, -v20, v21
        v_cmp_eq_u32 vcc, 0, {vHF}
        v_cndmask_b32 v16, 0, v16, vcc
        {MFMA} {blk(SB[0])}, v[8:11], v[16:19], {blk(SB[0])}
        {MFMA} {blk(NM)}, v[8:11], v[16:19], 0
        """)
        mread(L_MASKF)
        tails = {i: e.newlabel(f'TAIL{i}') for i in range(1, 9)}
        lend2 = e.newlabel('P2END')
        exit_states = {}
        for n, i in enumerate(range(8, -1, -1)):
            cur = SB[n % 2]; nx = SB[(n + 1) % 2]; V = VB[n % 2]
            A = list(acts[n])
            if i > 0:
                c = blk(MK) if i - 1 == 0 else blk(NM)
                e(f'{MFMA} {blk(nx)}, {q4(KB[(n + 1) % 2])}, {Q}, {c}')
                if i > 1: kread(i - 2, KB[n % 2])
                vread(i - 1, VB[(n + 1) % 2])
            if n == 0: e(f'{MFMA} {blk(MK)}, v[8:11], v[16:19], {blk(MK)}')
            for kb in range(2):
                for j in range(8):
                    e(f'v_exp_f32 v{cur+8*kb+j}, v{cur+8*kb+j}')
                    if j == 3 and A: do(A.pop(0))
                for j in range(4): e(f'v_cvt_pk_bf16_f32 v{P+4*kb+j}, v{cur+8*kb+2*j}, v{cur+8*kb+2*j+1}')
                if kb == 0 and A: do(A.pop(0))
                c = '0' if (n == 0 and kb == 0) else blk(O)
                e(f'{MFMA} {blk(O)}, {q4(V+4*kb)}, {q4(P+4*kb)}, {c}')
            for a in A: do(a)
            self.stamp(f't{n}')
            if i > 0:
                e(f's_cmp_eq_u32 {sIMIN}, {i}\ns_cbranch_scc1 {tails[i]}')
                if i == 8: exit_st = self.snap()
        e(f's_branch {lend2}')
        st = self.snap()
        self.restore(exit_st)
        for i in range(8, 0, -1):
            e.label(tails[i])
            e.settle()
            for a in acts[8 - i + 1]: do(a)
        self.restore(st)
        e.label(lend2)
        e.wait_lg0(force=True)
        e.nop(12)
        lok = e.newlabel('SMOK'); lp1 = e.newlabel('P1LP')
        e(f"""
        v_mov_b32 v21, {f32(2.0**100)}
        v_cmp_nle_f32 vcc, v{O+8}, v21
        s_cmp_eq_u64 vcc, 0
        s_cbranch_scc1 {lok}
        s_cmp_lg_u32 {sREDO}, 0
        s_cbranch_scc1 {lok}
        s_mov_b32 {sREDO}, 1
        """)
        st = self.snap()
        e.raw('s_waitcnt vmcnt(0) lgkmcnt(0)'); e.vm = []; e.lg = []
        e(f'v_mov_b32 v20, {NEGBIG}\nv_mov_b32 v21, {NEGBIG}')
        ld = e.newlabel('RDONE')
        for i in range(0, 9):
            lsk = e.newlabel('RSK')
            if i < 8: e(f's_cmp_gt_u32 {sIMIN}, {i}\ns_cbranch_scc1 {lsk}')
            kread(i, KB[0])
            if i in (0, 8): mread(L_MASKF if i == 0 else L_MASKD)
            c = blk(MK) if i in (0, 8) else '0'
            e(f'{MFMA} {blk(SB[0])}, {q4(KB[0])}, {Q}, {c}')
            for j in range(8):
                e(f'v_max3_f32 v{20 + (j & 1)}, v{SB[0]+2*j}, v{SB[0]+2*j+1}, v{20 + (j & 1)}')
            e.settle()
            e.label(lsk)
        kread(7, KB[1]); vread(8, VB[0])
        e.raw('s_waitcnt lgkmcnt(0)'); e.lg = []
        e.settle()
        e(f's_branch {lp2}')
        self.restore(st)
        e.label(lok)
        e(f'v_rcp_f32 v20, v{O+8}')
        for j in range(8): e(f'v_mul_f32 v{O+j}, v20, v{O+j}')
        for j in range(4): e(f'v_cvt_pk_bf16_f32 v{O+j}, v{O+2*j}, v{O+2*j+1}')
        e(f"""
        s_mul_i32 {sT2}, {sTA}, {AH_T}
        s_lshl_b32 {sT3}, {sHEAD}, 10
        s_add_u32 {sT2}, {sT2}, {sT3}
        s_add_u32 {sT2}, {sT2}, {112 * 1024}
        buffer_store_dwordx4 {q4(O)}, {vL16}, {srd(S_WS)}, {sT2} offen sc1 #o
        """)
        self.stamp(8)

    def att_acts(self, W, H, act_chk):
        self.nh_att = 10
        return [
            [W[9], W[10], W[11]],
            [act_chk('v30', 'v28', 0xff, 0, 'HB'), H[0], H[1], W[12]],
            [H[2], H[3], W[13]],
            [H[4], H[5], W[14]],
            [H[6], H[7], W[15]],
            [self.pl_ld('v13', 'v30'), W[16], W[17], W[18]],
            [W[19], W[20], W[21]],
            [act_chk('v30', 'v13', 0xffffffff, 0, 'HC'), H[8], H[9]],
            [],
        ]

    def flag_set2(self, tag, base_s, off=0):
        return lines(f"""
        v_lshl_add_u32 v24, v0, 26, {base_s}
        v_mov_b32 v25, 1
        WAITVM {tag}
        buffer_store_dword v25, v24, {srd(S_WS)}, 0 offen offset:{off} sc1
        """)

    def g2(self):
        e = self.e
        ACC = [80, 96]
        def mm(jb, b):
            hb = self.hq(jb)
            assert any(f'buffer_load_dwordx4 {q4(hb)}, {vL16}, {srd(S_WS)}, {sT0} offen sc1' in l for l in e.lines), jb
            return [f'{MFMA} {blk(ACC[nt])}, {q4(b+4*nt)}, {q4(hb)}, {"0" if jb == 0 else blk(ACC[nt])}' for nt in range(2)]
        vq = [self.hload(jb) for jb in range(self.nh_att, 18)]
        e(f"""
        v_lshrrev_b32 v35, 3, v0
        v_and_b32 v36, 7, v0
        s_lshl_b32 {sT3}, {sR2}, 6
        s_lshl_b32 {sT4}, {sW}, 3
        s_add_u32 {sT3}, {sT3}, {sT4}
        v_add_u32 v37, {sT3}, v35
        s_lshl_b32 {sT4}, {sC64}, 7
        v_lshl_add_u32 v38, v36, 4, {sT4}
        v_lshl_add_u32 v8, v37, 10, v38
        """)
        for jb in range(7):
            for l in mm(jb, 200 + 8 * jb):
                e.I(l)
                if vq: self.run(vq.pop(0))
            if jb == 3: self.run(self.flag_set2('o', sFLO, F_O))
        e.wait_lg0(force=True)
        e('s_barrier')
        self.stamp(9)
        WB = [48, 56, 64, 72]
        self.run(self.wrd1(7, WB[7 % 4]) + self.wrd1(8, WB[8 % 4]))
        for i in range(5):
            vq += [self.hload(18 + i), self.w2_dma(22 + i)]
        for jb in range(23, 28): vq.append(self.hload(jb))
        def ochk():
            e('s_mov_b32 s68, 0xff\ns_mov_b32 s69, 0')
            self.retry(self.pl_chk('v30', sMSK), self.pl_ld('v29', 'v30'), 'OC')
        bar = {11: (None, range(27, 32)), 15: (None, range(32, 36)), 20: ('w26', ()), 25: ('w31', ()), 30: ('w35', ())}
        OPL, OPC = int(OPT.get('opl', 17)), int(OPT.get('opc', 21))
        for jb in range(7, 36):
            if jb in bar:
                tag, rel = bar[jb]
                while tag and vq and any(f'#{tag}' in l for x in vq for l in x): self.run(vq.pop(0))
                if tag: e.wait_vm_tag(tag)
                e.wait_lg0()
                e('s_barrier')
                self.stamp(f'g{jb}')
                for r in rel: vq.append(self.w2_dma(r))
            if jb == OPL: vq.insert(0, self.pl_ld('v29', 'v30'))
            if jb == OPC:
                ochk()
                vq = [self.hload(j) for j in range(28, 36)] + vq
            if jb == 26:
                vq.append([f'buffer_load_dwordx4 v[40:43], v8, {srd(S_X)}, 0 offen', f'buffer_load_dwordx4 v[44:47], v38, {srd(S_B2)}, 0 offen'])
            if jb + 2 < 36: self.run(self.wrd1(jb + 2, WB[(jb + 2) % 4]))
            need = [f'buffer_load_dwordx4 {q4(self.hq(j))},' for j in range(jb, min(36, jb + 4))]
            while vq and any(nd in l for x in vq for l in x for nd in need): self.run(vq.pop(0))
            for l in mm(jb, WB[jb % 4]):
                e.I(l)
                if vq: self.run(vq.pop(0))
        assert not vq, vq
        self.stamp(11)
        PS = 1056
        RED0 = 16384
        e(f"""
        s_mul_i32 {sT4}, {sKQ}, {16 * PS}
        s_add_u32 {sT4}, {sT4}, {sFLIP}
        s_add_u32 {sT4}, {sT4}, {RED0}
        s_cmp_eq_u32 {sKQ}, 2
        s_cselect_b32 {sT4}, 0x20000, {sT4}
        s_xor_b32 {sT5}, {sFLIP}, 0x10000
        s_cmp_eq_u32 {sKQ}, 3
        s_cselect_b32 {sT4}, {sT5}, {sT4}
        s_mul_i32 {sT3}, {sNH}, {8 * PS}
        s_add_u32 {sT4}, {sT4}, {sT3}
        v_add_u32 v9, {sT4}, {vL16}
        """)
        for nt in range(2):
            for q in range(4):
                e(f'ds_write_b128 v9, v[{ACC[nt]+4*q}:{ACC[nt]+4*q+3}] offset:{(nt*4+q)*PS}')
        e(f"""
        s_lshl_b32 {sT4}, {sKQ}, 7
        s_add_u32 {sT4}, {sT4}, {sT3}
        v_mul_u32_u24 v9, {PS}, v36
        v_lshl_add_u32 v9, v35, 4, v9
        v_add_u32 v9, {sT4}, v9
        v_add_u32 v10, 0x20000, v9
        v_add_u32 v11, {sT5}, v9
        v_add_u32 v9, {sFLIP}, v9
        """)
        for j in range(4):
            e(f"""
            v_lshlrev_b32 v{112+2*j}, 16, v{40+j}
            v_and_b32 v{113+2*j}, 0xffff0000, v{40+j}
            v_lshlrev_b32 v{120+2*j}, 16, v{44+j}
            v_and_b32 v{121+2*j}, 0xffff0000, v{44+j}
            """)
        for j in range(8): e(f'v_add_f32 v{112+j}, v{112+j}, v{120+j}')
        e.wait_lg0(); e('s_barrier')
        for kq in range(4):
            for hf in range(2):
                b = 48 + 8 * kq + 4 * hf
                if kq < 2: e(f'ds_read_b128 v[{b}:{b+3}], v9 offset:{RED0 + kq * 16 * PS + hf * 512}')
                else: e(f'ds_read_b128 v[{b}:{b+3}], v{8 + kq} offset:{hf * 512}')
        for j in range(8):
            e(f"""
            v_add_f32 v{48+j}, v{48+j}, v{56+j}
            v_add_f32 v{64+j}, v{64+j}, v{72+j}
            v_add_f32 v{48+j}, v{48+j}, v{64+j}
            v_add_f32 v{48+j}, v{48+j}, v{112+j}
            """)
        for j in range(4): e(f'v_cvt_pk_bf16_f32 v{48+j}, v{48+2*j}, v{48+2*j+1}')
        e(f'buffer_store_dwordx4 v[48:51], v8, {srd(S_OUT)}, 0 offen')
        self.stamp(12)

    def prof_out(self):
        e = self.e
        if OPT.get('dbgt'):
            e(f"""
            s_not_b32 s6, s6
            v_writelane_b32 v31, s6, 14
            v_writelane_b32 v31, s64, 15
            v_lshlrev_b32 v2, 2, v0
            v_lshrrev_b32 v3, 4, v0
            v_lshl_add_u32 v2, v3, 20, v2
            buffer_atomic_umax v31, v2, {srd(S_DBG)}, 0 offen sc1
            """)
            return
        e(f"""
        s_lshl_b32 {sT0}, s2, 3
        s_add_u32 {sT0}, {sT0}, {sW}
        s_lshl_b32 {sT0}, {sT0}, 8
        s_add_u32 {sT0}, {sT0}, {WS_PROF}
        v_lshlrev_b32 v2, 2, v0
        buffer_store_dword v31, v2, {srd(S_WS)}, {sT0} offen
        """)

    def build(self):
        e = self.e
        if self.prof:
            e.raw('s_memrealtime s[6:7]')
            e.raw('s_memtime s[4:5]')
            e.raw('s_waitcnt lgkmcnt(0)')
            e.raw('s_mov_b32 s7, s4')
            e.raw('v_mov_b32 v31, 0')
        self.prologue()
        e(f"""
        s_cmp_eq_u32 {sTYPE}, 1
        s_cbranch_scc1 L_type2
        """)
        st = self.snap()
        self.p1(1)
        e('s_branch L_att')
        self.restore(st)
        e.label('L_type2')
        self.p1(2)
        e.label('L_att')
        if self.stop_after != 'p1':
            self.att()
            if self.stop_after != 'att':
                self.g2()
        if self.prof:
            e.raw('v_writelane_b32 v31, s6, 63')
            e.raw('v_writelane_b32 v31, s7, 60')
            e.raw('s_memtime s[4:5]')
            e.raw('s_memrealtime s[64:65]')
            e.raw('s_waitcnt lgkmcnt(0)')
            e.raw('s_sub_u32 s4, s4, s7')
            e.raw('v_writelane_b32 v31, s4, 62')
            e.raw('v_writelane_b32 v31, s64, 61')
            self.prof_out()
        e.label('L_end')
        e.raw('s_endpgm')
        hdr = open('cdna_kernels/' + NAME + '.s.ref').read().split('\n')
        cm = [l for l in hdr if l.startswith(';') and '@launch' not in l]
        out = '\n'.join(cm) + f'\n; @launch grid=(256,1,1) block=(512,1,1) lds={LDS_BYTES}\n'
        out += f""".amdgcn_target "amdgcn-amd-amdhsa--gfx950"
.text
.globl {NAME}_kernel
.p2align 8
.type {NAME}_kernel,@function
{NAME}_kernel:
"""
        out += e.text()
        out += f""".section .rodata,"a"
.p2align 6
.amdhsa_kernel {NAME}_kernel
  .amdhsa_next_free_vgpr 256
  .amdhsa_next_free_sgpr 102
  .amdhsa_accum_offset 256
  .amdhsa_group_segment_fixed_size 0
  .amdhsa_kernarg_size 88
  .amdhsa_user_sgpr_count 2
  .amdhsa_user_sgpr_kernarg_segment_ptr 1
  .amdhsa_system_sgpr_workgroup_id_x 1
.end_amdhsa_kernel
"""
        return out

if __name__ == '__main__':
    import argparse
    ap = argparse.ArgumentParser()
    ap.add_argument('-o', default='k.s')
    ap.add_argument('--stop', default=None)
    ap.add_argument('--prof', default=None)
    ap.add_argument('--cyc', action='store_true')
    ap.add_argument('--opt', default='')
    a = ap.parse_args()
    for kv in a.opt.split(','):
        if kv: OPT[kv.split('=')[0]] = kv.split('=')[1]
    g = G(stop_after=a.stop, prof=a.prof.split(',') if a.prof else None)
    g.cyc = a.cyc
    txt = g.build()
    open(a.o, 'w').write(txt)
    print('instrs', g.e.ninstr, 'nops', g.e.nnops)
```

```python
import sys, math, struct, copy
from em import Em, lines, interleave

NAME = "parallel_sum__sliding_block__dense_activation_gelu__prompt"
OPT = {}
WS_AH = 0
AH_T = 144 * 1024
WS_K = 0x900000
WS_V = 0xB00000
WS_Q = 0xD00000
WS_Z = 0xF00000
FL_T = 1792
F_KV, F_Q, F_HB, F_HC, F_O = 0, 256, 512, 768, 1280
Z_ROW = 7168
Z_CSG = 8192
WS_PROF = 0x1000000
WS_SIZE = 0x1100000
SH = 4096
SLOT = 32768
L_KST = 131072
L_VST = 147456
L_CSP = 147456
L_RV = 149504
LDS_BYTES = 163840

def f32(x): return struct.unpack('<I', struct.pack('<f', x))[0]
LOG2E = 1.4426950408889634
GA = -2.0 * math.sqrt(2.0 / math.pi) * LOG2E
GB = GA * 0.044715
NEGBIG = f32(-1e30)
ONES = 0x3f803f80

S_X, S_QKV, S_W1, S_W2, S_WO, S_WS, S_OUT, S_DBG, S_B1, S_B2 = [8 + 4 * i for i in range(10)]
S_TMP = 80
def srd(b): return f's[{b}:{b+3}]'
_names = """sW sNH sTT sRB sG sT sTYPE sWB4K sCOLA sCOLB sCOLC sCOLD sT0 sT1 sKX sKW""".split()
for _i, _n in enumerate(_names): globals()[_n] = f's{48+_i}'
sT2, sT3, sT4, sT5 = 's86', 's87', 's88', 's89'
sEX = 's[90:91]'; sROW = 's90'
sFLB = 's92'; sGB = 's93'; sCNT = 's94'; sR2 = 's95'; sC64 = 's96'; sXCH = 's97'; sQTR = 's98'; sHEAD = 's99'; sKW2 = 's100'; sUID = 's101'
sPIT = 's3'
sTA = 's64'; sRA = 's65'; sKV = 's66'; sQO = 's67'; sMSK = 's[68:69]'; sT2G = 's70'; sAH2 = 's71'; sREDO = 's72'
sRC = 's73'; sOST = 's74'; sIMIN = 's75'; sKQ = 's76'; sFLO = 's77'; sFLIP = 's78'; sWLO = 's79'
sSTA = 's80'; sSTB = 's81'; sSTC = 's82'; sSTD = 's83'; sWHI = 's84'; sROWG = 's85'
vW2 = 'v1'; vONE = 'v14'; vL16 = 'v15'; TF = 16; NF = 20; vR = 'v25'; vTOK = 'v26'; vHF = 'v27'
vBC = 'v28'; vBX = 'v29'; vCSA = 'v30'
accC, accA, accB = 80, 96, 112
def blk(b): return f'v[{b}:{b+15}]'
def q4(b): return f'v[{b}:{b+3}]'
MFMA = 'v_mfma_f32_32x32x16_bf16'
PQ, PH = 3072, 3584

class G:
    def __init__(self, stop_after=None, prof=None, cyc=False):
        self.e = Em()
        self.stop_after = stop_after
        self.prof = prof
        self.cyc = cyc
        self.auto_on = False; self.auto_n = int(OPT.get('auton', 40)); self.auto_idx = 1; self.auto_last = 0

    def stamp(self, name):
        if not self.prof: return
        name = str(name)
        if name not in self.prof: return
        idx = self.prof.index(name)
        e = self.e
        e.raw('s_memtime s[4:5]' if self.cyc else 's_memrealtime s[4:5]')
        e.raw('s_waitcnt lgkmcnt(0)'); e.lg = []
        e.raw(f'v_writelane_b32 v31, s4, {idx}'); e.t += 3
    def snap(self):
        return copy.deepcopy({k: v for k, v in self.e.__dict__.items() if k != 'lines'})
    def restore(self, s):
        uid = self.e.uid; ni = self.e.ninstr; nn = self.e.nnops
        self.e.__dict__.update(copy.deepcopy(s)); self.e.uid = uid; self.e.ninstr = ni; self.e.nnops = nn
    def run(self, ls):
        for l in ls:
            if callable(l): l(); continue
            self.e.I(l)
            if self.auto_on and self.e.ninstr - self.auto_last >= self.auto_n and not l.startswith(('s_add_u32 m0', 's_cmp', 'v_cmp', 's_mov_b64 exec', 'ds_read', 's_and_b64')) and self.auto_idx < 58:
                self.auto_last = self.e.ninstr
                if f'x{self.auto_idx}' not in self.prof: self.prof.append(f'x{self.auto_idx}')
                self.e.comment(f'AUTO {self.auto_idx}')
                self.stamp(f'x{self.auto_idx}')
                self.auto_idx += 1
    def auto(self, name, on):
        for ph in name, {'s1': 'p1', 's2': 'p1'}.get(name, name):
            if OPT.get('drop_' + ph): self.e.drop = OPT['drop_' + ph].replace('+', '|') if on else None
        if OPT.get('auto') == name:
            self.auto_on = on; self.auto_last = self.e.ninstr
            if on: self.auto_idx = 1
    def mk(self, b, lo, size, shift=0):
        if shift:
            self.e(f"""
            s_sub_u32 s{b}, s{lo}, {shift}
            s_subb_u32 s{b+1}, s{lo+1}, 0
            s_and_b32 s{b+1}, s{b+1}, 0xffff
            s_mov_b32 s{b+2}, {size + shift}
            s_mov_b32 s{b+3}, 0x20000
            """)
        else:
            self.e(f"""
            s_mov_b32 s{b}, s{lo}
            s_and_b32 s{b+1}, s{lo+1}, 0xffff
            s_mov_b32 s{b+2}, {size}
            s_mov_b32 s{b+3}, 0x20000
            """)
    def retry(self, check_lines, reload_lines, name):
        e = self.e
        lok = e.newlabel(name + 'OK'); lp = e.newlabel(name + 'LP')
        if OPT.get('nochk') and name != 'ARM': return
        ao = self.auto_on; self.auto_on = False
        self.run(check_lines)
        e(f's_cbranch_scc1 {lok}\ns_mov_b32 {sCNT}, 0')
        e.label(lp)
        st = self.snap()
        e.settle()
        e('s_sleep 2')
        self.run(reload_lines)
        e.raw('s_waitcnt vmcnt(0)'); e.vm = []
        e(f's_add_u32 {sCNT}, {sCNT}, 1\ns_cmp_gt_u32 {sCNT}, 0x40000\ns_cbranch_scc1 {lok}')
        self.run(check_lines)
        e(f's_cbranch_scc0 {lp}')
        e.settle()
        self.restore(st)
        e.label(lok)
        self.auto_on = ao
    def barrier(self, tag=None):
        if tag: self.e.wait_vm_tag(tag)
        self.e.wait_lg0(); self.e('s_barrier')

    def prologue(self):
        e = self.e
        e(f"""
        s_cmp_ge_u32 s2, 256
        s_cbranch_scc1 L_end
        s_load_dwordx16 s[64:79], s[0:1], 0
        s_load_dwordx4 s[80:83], s[0:1], 64
        s_load_dwordx2 s[84:85], s[0:1], 80
        v_lshrrev_b32 v1, 6, v0
        v_and_b32 v0, 63, v0
        v_readfirstlane_b32 {sW}, v1
        s_and_b32 {sT0}, s2, 7
        s_lshr_b32 {sT1}, s2, 3
        s_and_b32 {sRB}, {sT0}, 1
        s_and_b32 {sT2}, {sT1}, 7
        s_lshl3_add_u32 {sRB}, {sRB}, {sT2}
        s_lshr_b32 {sTYPE}, {sT1}, 4
        s_and_b32 {sG}, {sT0}, 6
        s_bfe_u32 {sT4}, {sT1}, 0x10003
        s_add_u32 {sG}, {sG}, {sT4}
        s_lshr_b32 {sNH}, {sW}, 2
        s_lshl1_add_u32 {sTT}, {sNH}, {sW}
        s_and_b32 {sTT}, {sTT}, 3
        s_lshl2_add_u32 {sT}, {sRB}, {sTT}
        s_lshl_b32 {sWB4K}, {sW}, 12
        s_and_b32 {sT2}, {sT0}, 1
        s_lshl_b32 {sT2}, {sT2}, 5
        s_add_u32 {sT2}, {sT2}, {sT1}
        s_and_b32 {sQTR}, {sT2}, 3
        s_lshr_b32 {sT2}, {sT2}, 2
        s_lshr_b32 {sT3}, {sT0}, 1
        s_lshr_b32 {sUID}, {sT2}, 1
        s_and_b32 {sT4}, {sT2}, 1
        s_lshl3_add_u32 {sUID}, {sUID}, {sT4}
        s_lshl1_add_u32 {sUID}, {sT3}, {sUID}
        s_add_u32 {sT4}, {sT3}, 48
        s_cmp_eq_u32 {sT2}, 12
        s_cselect_b32 {sUID}, {sT4}, {sUID}
        s_cmp_gt_u32 {sT2}, 12
        s_cselect_b32 {sUID}, 52, {sUID}
        s_and_b32 {sROW}, {sT0}, 1
        s_lshl2_add_u32 {sROW}, {sROW}, {sT3}
        s_lshl_b32 {sROW}, {sROW}, 5
        s_add_u32 {sROW}, {sROW}, {sT1}
        s_lshl3_add_u32 {sROW}, {sROW}, {sW}
        s_movk_i32 {sPIT}, {PQ}
        s_cmp_ge_u32 {sUID}, 24
        s_cselect_b32 {sPIT}, {PH}, {sPIT}
        s_and_b32 {sT4}, {sT1}, 3
        s_lshl2_add_u32 {sR2}, {sT0}, {sT4}
        s_lshr_b32 {sC64}, {sT1}, 2
        s_and_b32 {sHEAD}, s2, 31
        """)
        e(f"""
        v_lshrrev_b32 v32, 3, v0
        v_and_b32 v33, 7, v0
        v_lshlrev_b32 {vL16}, 4, v0
        v_mov_b32 {vONE}, {ONES}
        s_lshl_b32 {sT5}, {sW}, 4
        s_lshl_b32 {sT4}, {sRB}, 7
        s_add_u32 {sT4}, {sT4}, {sT5}
        v_add_u32 v34, {sT4}, v32
        v_lshrrev_b32 v35, 1, v32
        v_xor_b32 v35, v35, v33
        v_lshlrev_b32 v35, 4, v35
        v_lshl_add_u32 v10, v34, 10, v35
        v_xor_b32 v11, 64, v10
        v_add_u32 v11, {8192 - 1024}, v11
        v_and_b32 v35, 2, v32
        v_lshlrev_b32 v35, 1, v35
        v_xor_b32 v35, v35, v33
        v_lshlrev_b32 v35, 4, v35
        v_add_u32 v34, {sT5}, v32
        v_mad_u32_u24 v20, v34, {sPIT}, v35
        s_lshl_b32 {sT5}, {sW}, 3
        v_add_u32 v36, {sT5}, v32
        v_mul_u32_u24 v37, {PQ}, v36
        v_add_u32 v37, v37, v35
        v_mul_u32_u24 v38, {PH}, v36
        v_add_u32 v38, v38, v35
        v_lshl_add_u32 {vW2}, v36, 10, v35
        s_lshl_b32 {sT4}, {sC64}, 7
        s_add_u32 {sT4}, {sT4}, {SH}
        v_add_u32 {vW2}, {sT4}, {vW2}
        """)
        e.wait_lg0()
        self.mk(S_X, 64, 2048 * 1024)
        self.mk(S_QKV, 66, 512 * PQ, SH)
        self.mk(S_W1, 72, 512 * PH, SH)
        self.mk(S_WS, 84, WS_SIZE)
        self.mk(S_OUT, 80, 2048 * 1024)
        self.mk(S_DBG, 82, 256)
        self.stamp('ka')
        lab = e.newlabel('NORST')
        e(f"""
        s_or_b32 {sT0}, {sG}, {sTYPE}
        s_cmp_lg_u32 {sT0}, 0
        s_cbranch_scc1 {lab}
        s_lshl3_add_u32 {sT0}, {sRB}, {sW}
        s_lshl_b32 {sT0}, {sT0}, 11
        s_add_u32 {sT0}, {sT0}, {WS_Z}
        v_mov_b32 v40, 0
        v_mov_b32 v41, 0
        v_mov_b32 v42, 0
        v_mov_b32 v43, 0
        buffer_store_dwordx4 v[40:43], {vL16}, {srd(S_WS)}, {sT0} offen sc1 #zero
        buffer_store_dwordx4 v[40:43], {vL16}, {srd(S_WS)}, {sT0} offen offset:1024 sc1 #zero
        """)
        e.settle()
        e.label(lab)

    def stats_loads(self):
        self.e(f"""
        s_lshl_b32 {sT0}, {sROW}, 10
        buffer_load_dwordx4 v[240:243], {vL16}, {srd(S_X)}, {sT0} offen
        s_cmp_ge_u32 {sUID}, 24
        s_cselect_b32 s{S_TMP}, s{S_W1}, s{S_QKV}
        s_cselect_b32 s{S_TMP+1}, s{S_W1+1}, s{S_QKV+1}
        s_cselect_b32 s{S_TMP+2}, s{S_W1+2}, s{S_QKV+2}
        s_mov_b32 s{S_TMP+3}, 0x20000
        s_cselect_b32 {sT1}, 24, 0
        s_sub_u32 {sT1}, {sUID}, {sT1}
        s_lshl_b32 {sT1}, {sT1}, 7
        s_lshl_b32 {sT0}, {sQTR}, 7
        s_mul_i32 {sT0}, {sT0}, {sPIT}
        s_add_u32 {sT0}, {sT0}, {sT1}
        s_add_u32 {sT0}, {sT0}, {SH}
        s_lshl3_add_u32 {sT1}, {sPIT}, {sT0}
        s_sub_u32 {sT1}, {sT1}, 1024
        s_lshr_b32 {sT2}, {sWB4K}, 1
        s_add_u32 m0, {sT2}, {L_KST}
        buffer_load_dwordx4 v20, {srd(S_TMP)}, {sT0} offen lds #cs
        buffer_load_dwordx4 v20, {srd(S_TMP)}, {sT1} offen offset:1024 lds #cs
        """)

    def code_prefetch(self):
        e = self.e
        lab = e.newlabel('NOIPF')
        e(f"""
        s_cmp_lg_u32 {sW}, 2
        s_cbranch_scc1 {lab}
        s_getpc_b64 s[4:5]
        """)
        l2 = e.newlabel('PCREF')
        e.label(l2)
        e(f"""
        s_sub_u32 s4, s4, {l2}-{NAME}_kernel
        s_subb_u32 s5, s5, 0
        s_bfe_u32 {sT0}, s2, 0x20003
        s_lshl_b32 {sT0}, {sT0}, 13
        v_lshlrev_b32 v44, 7, v0
        v_add_u32 v44, {sT0}, v44
        v_min_u32 v44, L_end-{NAME}_kernel, v44
        """)
        saved = list(e.vm)
        e(f'global_load_dword v45, v44, s[4:5]')
        e.vm = saved
        e.label(lab)

    def csg_off(self, dst, scol, isq):
        return f"""
        s_lshr_b32 {sT2}, {scol}, 7
        s_add_u32 {sT2}, {sT2}, {0 if isq else 24}
        s_lshr_b32 {sT3}, {sT2}, 2
        s_lshl_b32 {sT3}, {sT3}, 14
        s_and_b32 {sT2}, {sT2}, 3
        s_lshl_b32 {sT2}, {sT2}, 11
        s_add_u32 {sT2}, {sT2}, {sT3}
        s_add_u32 {dst}, {sT2}, {WS_Z + Z_CSG}
        """

    def setup(self, typ):
        e = self.e
        self.mk(S_WO, 68, 512 * 1024, SH)
        self.mk(S_B1, 74, 1792 * 2)
        self.mk(S_W2, 76, 1792 * 1024, SH)
        self.mk(S_B2, 78, 1024)
        e(f"""
        v_and_b32 {vTOK}, 31, v0
        v_lshrrev_b32 {vHF}, 5, v0
        v_bfe_u32 v34, {vTOK}, 1, 3
        v_xor_b32 v34, v34, {vHF}
        v_lshlrev_b32 v34, 4, v34
        v_and_b32 v35, 15, v0
        v_lshl_add_u32 v34, v35, 7, v34
        v_bfe_u32 v35, v0, 4, 1
        v_lshl_add_u32 v34, v35, 12, v34
        s_lshl_b32 {sT4}, {sTT}, 13
        s_lshl_b32 {sT5}, {sNH}, 6
        s_or_b32 {sT4}, {sT4}, {sT5}
        v_xor_b32 v34, {sT4}, v34
        v_bfe_u32 v36, v0, 2, 2
        v_bfe_u32 v33, v0, 1, 1
        v_lshl_add_u32 v32, v35, 1, v33
        v_and_b32 v33, 2, v36
        v_lshlrev_b32 v33, 1, v33
        v_xor_b32 v32, v32, v33
        v_lshlrev_b32 v32, 4, v32
        v_and_b32 v33, 1, v0
        v_lshl_add_u32 v32, v33, 3, v32
        v_lshl_add_u32 v32, v36, 7, v32
        v_lshl_add_u32 v250, {vHF}, 10, v32
        s_lshr_b32 {sT4}, {sWB4K}, 1
        s_add_u32 {sT4}, {sT4}, {L_KST}
        v_add_u32 v250, {sT4}, v250
        v_xor_b32 v251, 64, v250
        v_lshl_add_u32 v35, {vHF}, 12, v32
        s_lshl_b32 {sT4}, {sNH}, 14
        s_or_b32 {sT4}, {sT4}, {sT5}
        v_xor_b32 v35, {sT4}, v35
        """)
        for s in range(4):
            e(f"""
            v_xor_b32 v{2+s}, {s << 5}, v34
            v_xor_b32 v{6+s}, {s << 13}, v35
            v_add_u32 v{80+s}, 0x10000, v{2+s}
            v_add_u32 v{84+s}, 0x10000, v{6+s}
            """)
        e(f"""
        s_mov_b32 {sGB}, {f32(GB)}
        v_mov_b32 v{TF+2}, 0
        v_mov_b32 v{TF+3}, 0
        s_lshl_b32 {sT4}, {sNH}, 10
        v_lshl_add_u32 {vCSA}, {vTOK}, 5, {sT4}
        s_lshl_b32 {sFLB}, {sRB}, 14
        s_mul_i32 {sT4}, {sTT}, {FL_T}
        s_add_u32 {sFLB}, {sFLB}, {sT4}
        s_lshl1_add_u32 {sT5}, {sG}, {sNH}
        s_lshl4_add_u32 {sFLB}, {sT5}, {sFLB}
        s_add_u32 {sFLB}, {sFLB}, {WS_Z}
        s_lshr_b32 {sT1}, {sROW}, 7
        s_lshl_b32 {sT1}, {sT1}, 14
        s_and_b32 {sT0}, {sROW}, 127
        s_lshl3_add_u32 {sT0}, {sT0}, {sT1}
        s_add_u32 {sT0}, {sT0}, {WS_Z + Z_ROW}
        v_lshl_add_u32 v252, v0, 26, {sT0}
        s_lshl_b32 {sT0}, {sW}, 2
        s_add_u32 {sT0}, {sT0}, {L_CSP}
        v_lshl_add_u32 v253, v0, 5, {sT0}
        v_lshlrev_b32 v254, 5, v0
        v_add_u32 v254, {L_CSP}, v254
        v_and_b32 v248, 15, v0
        v_lshlrev_b32 v248, 2, v248
        s_lshr_b32 {sT2}, {sUID}, 2
        s_lshl_b32 {sT2}, {sT2}, 14
        s_and_b32 {sT3}, {sUID}, 3
        s_lshl_b32 {sT3}, {sT3}, 11
        s_add_u32 {sT2}, {sT2}, {sT3}
        s_lshl3_add_u32 {sT2}, {sQTR}, {sT2}
        s_add_u32 {sT2}, {sT2}, {WS_Z + Z_CSG}
        s_cmp_ge_u32 {sUID}, 52
        s_cselect_b32 {sT3}, 1, {sW}
        s_lshl_b32 {sT3}, {sT3}, 26
        s_add_u32 {sT2}, {sT2}, {sT3}
        v_lshl_add_u32 v255, v0, 5, {sT2}
        """)
        e(f"""
        s_lshl_b32 {sT4}, {sNH}, 6
        v_lshl_add_u32 v34, {vTOK}, 1, {sT4}
        buffer_load_ushort {vBC}, v34, {srd(S_B1)}, {sCOLC} offen
        s_xor_b32 {sXCH}, {sNH}, {sG}
        s_and_b32 {sXCH}, {sXCH}, 1
        s_lshl_b32 {sXCH}, {sXCH}, 6
        """)
        if typ == 1:
            e(f'v_xor_b32 v34, {sXCH}, v34\nbuffer_load_ushort {vBX}, v34, {srd(S_B1)}, {sCOLD} offen')
        else:
            e(f'buffer_load_ushort {vBX}, v34, {srd(S_B1)}, {sCOLB} offen')
        e(f"""
        s_lshl1_add_u32 {sT2}, {sG}, {sNH}
        s_lshl_b32 {sT2}, {sT2}, 17
        s_lshl_b32 {sT3}, {sT}, 10
        s_add_u32 {sT2}, {sT2}, {sT3}
        s_add_u32 {sSTA}, {sT2}, {WS_K if typ == 1 else WS_Q}
        s_mul_i32 {sT4}, {sT}, {AH_T}
        s_lshl_b32 {sT3}, {sNH}, 11
        s_add_u32 {sT3}, {sT3}, {sT4}
        s_lshl_b32 {sT5}, {sCOLC}, 5
        s_add_u32 {sSTC}, {sT5}, {sT3}
        """)
        if typ == 1:
            e(f"""
            s_add_u32 {sSTB}, {sT2}, {WS_V}
            s_and_b32 {sT3}, {sG}, 1
            s_lshl1_add_u32 {sT3}, {sT3}, {sNH}
            s_lshl_b32 {sT3}, {sT3}, 10
            s_add_u32 {sT3}, {sT3}, {sT4}
            s_lshl_b32 {sT5}, {sCOLD}, 5
            s_add_u32 {sSTD}, {sT5}, {sT3}
            """)
        else:
            e(f"""
            s_lshl_b32 {sT5}, {sCOLB}, 5
            s_add_u32 {sSTB}, {sT5}, {sT3}
            """)
        e(f"""
        s_lshl_b32 {sROWG}, {sRB}, 14
        s_lshl_b32 {sT3}, {sTT}, 8
        s_add_u32 {sROWG}, {sROWG}, {sT3}
        s_add_u32 {sROWG}, {sROWG}, {WS_Z + Z_ROW}
        """)
        e(f"""
        s_add_u32 {sT4}, {sCOLC}, {SH}
        v_add_u32 v22, {sT4}, v38
        """)
        if typ == 1:
            e(f's_add_u32 {sT4}, {sCOLD}, {SH}\nv_add_u32 v23, {sT4}, v38')
        e(self.csg_off(sCOLA, sCOLA, True)); e(self.csg_off(sCOLB, sCOLB, typ == 1)); e(self.csg_off(sCOLC, sCOLC, False))
        if typ == 1: e(self.csg_off(sCOLD, sCOLD, False))
        e(f"""
        s_lshr_b32 {sRA}, s2, 5
        s_lshl_b32 {sTA}, {sRA}, 3
        s_sub_u32 {sKV}, {sTA}, 8
        s_add_u32 {sTA}, {sTA}, {sW}
        s_sub_u32 {sIMIN}, 8, {sTA}
        s_cmp_gt_u32 {sTA}, 8
        s_cselect_b32 {sIMIN}, 0, {sIMIN}
        s_lshl1_add_u32 {sKV}, {sW}, {sKV}
        s_lshl_b32 {sKV}, {sKV}, 10
        s_lshl_b32 {sT1}, {sHEAD}, 16
        s_add_u32 {sKV}, {sKV}, {sT1}
        s_add_u32 {sKV}, {sKV}, {WS_K}
        s_lshl_b32 {sQO}, {sTA}, 10
        s_add_u32 {sQO}, {sQO}, {sT1}
        s_add_u32 {sQO}, {sQO}, {WS_Q}
        s_lshl1_add_u32 {sT2G}, {sR2}, {sNH}
        s_and_b32 {sKQ}, {sW}, 3
        s_mul_i32 {sAH2}, {sT2G}, {AH_T}
        s_lshl_b32 {sT1}, {sKQ}, 12
        s_add_u32 {sAH2}, {sAH2}, {sT1}
        s_mov_b32 {sREDO}, {1 if OPT.get('nofb') else 0}
        s_lshr_b32 {sFLO}, {sTA}, 2
        s_lshl_b32 {sFLO}, {sFLO}, 14
        s_and_b32 {sT1}, {sTA}, 3
        s_mul_i32 {sT1}, {sT1}, {FL_T}
        s_add_u32 {sFLO}, {sFLO}, {sT1}
        s_lshl4_add_u32 {sFLO}, {sHEAD}, {sFLO}
        s_add_u32 {sFLO}, {sFLO}, {WS_Z + F_O}
        s_mul_i32 {sOST}, {sTA}, {AH_T}
        s_lshl_b32 {sT1}, {sHEAD}, 10
        s_add_u32 {sOST}, {sOST}, {sT1}
        s_add_u32 {sOST}, {sOST}, {112 * 1024}
        s_mov_b32 {sFLIP}, {0 if typ == 1 else 0x10000}
        s_add_u32 {sWLO}, {sWB4K}, {0 if typ == 1 else 0x10000}
        s_add_u32 {sWHI}, {sWB4K}, {0x10000 if typ == 1 else 0}
        s_and_b32 {sT1}, {sR2}, 3
        s_lshl1_add_u32 {sRC}, {sT1}, {sC64}
        s_mul_i32 {sT1}, {sRC}, 52
        s_lshr_b32 {sT1}, {sT1}, 8
        s_mul_i32 {sT1}, {sT1}, 5
        s_sub_u32 {sT1}, {sRC}, {sT1}
        s_and_b32 {sRC}, {sRC}, 1
        s_lshl3_add_u32 {sRC}, {sRC}, {sT1}
        """)

    def fill_stats(self):
        o = lines(f"""
        WAITVM cs
        ds_read_b64_tr_b16 v[232:233], v250
        ds_read_b64_tr_b16 v[234:235], v250 offset:512
        ds_read_b64_tr_b16 v[236:237], v251
        ds_read_b64_tr_b16 v[238:239], v251 offset:512
        v_dot2_f32_bf16 v244, v240, {vONE}, 0
        v_dot2_f32_bf16 v245, v240, v240, 0
        """)
        for j in range(1, 4):
            o += [f'v_dot2_f32_bf16 v244, v{240+j}, {vONE}, v244', f'v_dot2_f32_bf16 v245, v{240+j}, v{240+j}, v245']
        o += [f'v_dot2_f32_bf16 v228, v232, {vONE}, 0', f'v_dot2_f32_bf16 v229, v236, {vONE}, 0']
        for j in range(1, 4):
            o += [f'v_dot2_f32_bf16 v228, v{232+j}, {vONE}, v228', f'v_dot2_f32_bf16 v229, v{236+j}, {vONE}, v229']
        for dpp in ('quad_perm:[1,0,3,2]', 'quad_perm:[2,3,0,1]', 'row_half_mirror', 'row_mirror'):
            o += [f'v_add_f32_dpp v244, v244, v244 {dpp} row_mask:0xf bank_mask:0xf',
                  f'v_add_f32_dpp v245, v245, v245 {dpp} row_mask:0xf bank_mask:0xf']
            if dpp.startswith('quad_perm:[1'):
                o += ['v_permlane32_swap_b32 v228, v229', 'v_add_f32 v228, v228, v229', 'ds_write_b32 v253, v228']
        for sw in ('v_permlane16_swap_b32', 'v_permlane32_swap_b32'):
            o += lines(f"""
            v_mov_b32 v246, v244
            v_mov_b32 v247, v245
            {sw} v244, v246
            {sw} v245, v247
            v_add_f32 v244, v244, v246
            v_add_f32 v245, v245, v247
            """)
        o += lines(f"""
        v_mul_f32 v244, {f32(1/512)}, v244
        v_mul_f32 v245, {f32(1/512)}, v245
        v_fma_f32 v245, -v244, v244, v245
        v_max_f32 v245, 0, v245
        v_cvt_pk_bf16_f32 v246, v245, v245
        v_lshlrev_b32 v246, 16, v246
        v_add_f32 v246, {f32(1e-5)}, v246
        v_cvt_pk_bf16_f32 v246, v246, v246
        v_lshlrev_b32 v246, 16, v246
        v_sqrt_f32 v246, v246
        v_cvt_pk_bf16_f32 v240, -v244, v246
        v_mov_b32 v241, 1
        """)
        return o

    def fill_cs2(self):
        return lines(f"""
        ds_read_b128 v[232:235], v254
        ds_read_b128 v[236:239], v254 offset:16
        v_add_f32 v232, v232, v233
        v_add_f32 v234, v234, v235
        v_add_f32 v236, v236, v237
        v_add_f32 v238, v238, v239
        v_add_f32 v232, v232, v234
        v_add_f32 v236, v236, v238
        v_add_f32 v244, v232, v236
        v_mov_b32 v245, 1
        """)

    def dma1(self, c, typ):
        slot = (c % 4) * SLOT
        g0 = [f's_add_u32 m0, {sWB4K}, {slot}', f's_movk_i32 {sKX}, {128 * c}',
              f'buffer_load_dwordx4 v10, {srd(S_X)}, {sKX} offen lds #c{c}']
        g1 = [f'buffer_load_dwordx4 v11, {srd(S_X)}, {sKX} offen offset:1024 lds #c{c}']
        g2 = [f's_mov_b32 {sKW}, {64 * PQ * c}', f'buffer_load_dwordx4 v12, {srd(S_QKV)}, {sKW} offen offset:2048 lds #c{c}']
        if typ == 1:
            g3 = [f'buffer_load_dwordx4 v13, {srd(S_QKV)}, {sKW} offen offset:3072 lds #c{c}']
        else:
            g3 = [f's_mov_b32 {sKW}, {64 * PH * c}', f'buffer_load_dwordx4 v13, {srd(S_W1)}, {sKW} offen offset:3072 lds #c{c}']
        return [g0, g1, g2, g3]
    def dma2(self, c, half, vo):
        slot = (c % 4) * SLOT
        out = []
        for i in range(4):
            cc = 4 * half + i
            g = [f's_add_u32 m0, {sWB4K}, {slot}'] if i == 0 else []
            g += [f's_mov_b32 {sKW}, {64 * PH * cc - 1024 * i + (SH if False else 0)}' if 64 * PH * cc - 1024 * i >= 0 else None,
                  f'buffer_load_dwordx4 {vo}, {srd(S_W1)}, {sKW} offen offset:{1024*i} lds #c{c}']
            out.append(g)
        return out

    def grp_idx(self, gi):
        if gi < 2 or gi >= 7:
            b = 2 if gi < 2 else 7
            k = gi if gi < 2 else gi - 7
            return [f's_bfe_u32 {sT0}, {sRC}, 0x10003', f's_xor_b32 {sT0}, {sT0}, {k}', f's_add_u32 {sT0}, {sT0}, {b}']
        return [f's_and_b32 {sT0}, {sRC}, 7', f's_add_u32 {sT0}, {sT0}, {gi - 2}', f's_lshl_b32 {sT0}, {sT0}, 2',
                f's_lshr_b64 s[{sT0[1:]}:{sT1[1:]}], s[40:41], {sT0}', f's_and_b32 {sT0}, {sT0}, 15']
    def wpos(self, gi):
        return [0, 1, 2, 3, 0, 1, 4, 2, 3][gi]
    def w2_dma(self, gi):
        pos = self.wpos(gi)
        base = [sWLO, sWLO, sWHI, sWHI, sWB4K][pos]
        off = [0, SLOT, 0, SLOT, 0x20000][pos]
        sr = S_W2 if gi < 7 else S_WO
        out = []
        for i in range(4):
            if i == 0:
                g = self.grp_idx(gi)
                if gi >= 7: g = g[:-1]
                g += [f's_add_u32 m0, {base}, {off}', f's_lshl_b32 {sKW2}, {sT0}, 18']
            else:
                g = [f's_add_u32 {sKW2}, {sKW2}, {65536 - 1024}']
            g.append(f'buffer_load_dwordx4 {vW2}, {srd(sr)}, {sKW2} offen offset:{1024*i} lds #w{gi}')
            out.append(g)
        return out
    def hq(self, gi, j):
        tab = {0: [148, 152, 156, 160], 1: [164, 168, 172, 176], 2: [180, 184, 188, 112], 3: [116, 120, 124, 128], 4: [132, 136, 140, 144],
               5: [192, 196, 200, 204], 6: [208, 212, 216, 220], 7: [224, 228, 232, 236], 8: [240, 244, 248, 252]}
        return tab[gi][j]
    def hload(self, gi):
        out = []
        for j in range(4):
            g = []
            if j == 0: g = self.grp_idx(gi) + [f's_lshl_b32 {sKX}, {sT0}, 14', f's_add_u32 {sKX}, {sKX}, {sAH2}']
            g.append(f'buffer_load_dwordx4 {q4(self.hq(gi, j))}, {vL16}, {srd(S_WS)}, {sKX} offen offset:{1024*j} sc1 #h{gi}_{j}')
            out.append(g)
        return out
    def wrd(self, gi, j, b):
        pos = self.wpos(gi)
        a0, a1 = self.WA2[[0, 0, 2, 2, 4][pos]], self.WA2[[1, 1, 3, 3, 5][pos]]
        off = [0, SLOT, 0, SLOT, 0][pos] + 8192 * j
        return [f'ds_read_b64_tr_b16 v[{b}:{b+1}], {a0} offset:{off}',
                f'ds_read_b64_tr_b16 v[{b+2}:{b+3}], {a0} offset:{off + 4096}',
                f'ds_read_b64_tr_b16 v[{b+4}:{b+5}], {a1} offset:{off}',
                f'ds_read_b64_tr_b16 v[{b+6}:{b+7}], {a1} offset:{off + 4096}']

    def cs_load(self, soff, dst):
        return [f'buffer_load_dwordx4 v[{dst}:{dst+3}], {vCSA}, {srd(S_WS)}, {soff} offen sc1',
                f'buffer_load_dwordx4 v[{dst+4}:{dst+7}], {vCSA}, {srd(S_WS)}, {soff} offen offset:16 sc1']
    def nf_build(self, cs, bias):
        return lines(f"""
        v_cvt_pk_bf16_f32 v46, v{cs}, v{cs}
        v_lshlrev_b32 v46, 16, v46
        v_sub_f32 v46, v{cs}, v46
        v_cvt_pk_bf16_f32 v{NF}, v{cs}, v46
        v_and_b32 v47, 0xffff0000, v{NF}
        v_sub_f32 v46, v46, v47
        v_cvt_pk_bf16_f32 v{NF+1}, v46, {bias}
        """)
    def epi_qk(self, acc, rreg, tag):
        o = []
        for h in range(2):
            a = acc + 8 * h
            for i in range(8): o.append(f'v_mul_f32 v{a+i}, {rreg}, v{a+i}')
            for i in range(4): o.append(f'v_cvt_pk_bf16_f32 v{a+i}, v{a+2*i}, v{a+2*i+1}')
            if h: o.append(f's_add_u32 {sSTA}, {sSTA}, 65536')
            o.append(f'buffer_store_dwordx4 {q4(a)}, {vL16}, {srd(S_WS)}, {sSTA} offen sc1 #{tag}')
        return o
    def epi_v_pre(self, tmp):
        o = lines(f"""
        s_lshr_b32 {sT2}, {sWB4K}, 5
        s_add_u32 {sT2}, {sT2}, {L_RV}
        v_lshl_add_u32 v12, {vTOK}, 2, {sT2}
        v_lshl_add_u32 v13, {vHF}, 4, {sT2}
        ds_write_b32 v12, {vR}
        """)
        for q in range(4): o.append(f'ds_read_b128 v[{tmp+4*q}:{tmp+4*q+3}], v13 offset:{32*q}')
        o += lines(f"""
        v_bfe_u32 v12, v0, 4, 1
        v_and_b32 v13, 15, v0
        v_lshl_add_u32 v13, {vHF}, 4, v13
        v_lshlrev_b32 v13, 4, v13
        v_lshl_add_u32 v12, v12, 16, v13
        """)
        return o
    def epi_v(self, acc, tmp, tag):
        o = []
        for h in range(2):
            a = acc + 8 * h
            for i in range(8): o.append(f'v_mul_f32 v{a+i}, v{tmp+8*h+i}, v{a+i}')
            for i in range(4): o.append(f'v_cvt_pk_bf16_f32 v{a+i}, v{a+2*i}, v{a+2*i+1}')
            o.append(f'buffer_store_dwordx4 {q4(a)}, v12, {srd(S_WS)}, {sSTB} offen offset:{512*h} sc1 #{tag}')
        return o
    def epi_h(self, acc, tmp, soff, tag, halves=2):
        o = []
        for half in range(halves):
            a = acc + 8 * half
            for i in range(8): o.append(f'v_mul_f32 v{tmp+i}, v{a+i}, v{a+i}')
            for i in range(8): o.append(f'v_fma_f32 v{tmp+i}, v{tmp+i}, v10, v24')
            for i in range(8): o.append(f'v_mul_f32 v{tmp+i}, v{tmp+i}, v{a+i}')
            for i in range(8): o.append(f'v_exp_f32 v{tmp+i}, v{tmp+i}')
            for i in range(8): o.append(f'v_fma_f32 v{tmp+i}, v{tmp+i}, v2, v2')
            for i in range(8): o.append(f'v_rcp_f32 v{tmp+i}, v{tmp+i}')
            for i in range(8): o.append(f'v_mul_f32 v{a+i}, v{a+i}, v{tmp+i}')
            for i in range(4): o.append(f'v_cvt_pk_bf16_f32 v{a+i}, v{a+2*i}, v{a+2*i+1}')
            o.append(f'buffer_store_dwordx4 {q4(a)}, {vL16}, {srd(S_WS)}, {soff} offen offset:{1024*half} sc1 #{tag}')
        return o
    def flag_set(self, tag, base_s, off):
        return [f'WAITVM {tag}', f'buffer_store_dword {self.vF1}, {self.vFL}, {srd(S_WS)}, {base_s} offen offset:{off} sc1']
    def u_rd(self, c0, m, nb):
        c = c0 + (m >> 4); k = m & 15
        base = ((c % 4) * SLOT & 0xffff) + 1024 * (k >> 2); s = k & 3
        b = 48 + 4 * (nb % 4)
        return [f'ds_read_b64_tr_b16 v[{b}:{b+1}], v{6+s} offset:{base}',
                f'ds_read_b64_tr_b16 v[{b+2}:{b+3}], v{6+s} offset:{base + 512}']
    def u_mfma(self, acc, m, nb):
        b = 48 + 4 * (nb % 4); x = 128 + 4 * m
        return f'{MFMA} {blk(acc)}, {q4(b)}, {q4(x)}, {blk(acc)}'
    def fl_addr(self, vT, vtmp):
        return lines(f"""
        v_ashrrev_i32 {vtmp}, 2, {vT}
        v_lshlrev_b32 {vtmp}, 14, {vtmp}
        v_and_b32 {vT}, 3, {vT}
        v_mul_u32_u24 {vT}, {FL_T}, {vT}
        v_add_u32 {vT}, {vT}, {vtmp}
        """)
    def kv_poll_setup(self, va, vt):
        return lines(f"""
        s_lshl_b32 {sT4}, {sRA}, 3
        s_lshl1_add_u32 {sT4}, {sW}, {sT4}
        s_sub_u32 {sT4}, {sT4}, 8
        v_add_u32 {va}, {sT4}, v0
        v_mov_b32 {vt}, {sTA}
        v_cmp_gt_u32 vcc, 2, v0
        v_cndmask_b32 {va}, {vt}, {va}, vcc
        """) + self.fl_addr(va, vt) + lines(f"""
        v_mov_b32 {vt}, {F_Q}
        v_cndmask_b32 {vt}, {vt}, 0, vcc
        s_lshr_b32 {sT5}, {sHEAD}, 1
        s_lshl_b32 {sT5}, {sT5}, 4
        s_add_u32 {sT5}, {sT5}, {WS_Z}
        v_add3_u32 {va}, {va}, {vt}, {sT5}
        v_lshrrev_b32 {vt}, 2, v0
        v_lshl_add_u32 {va}, {vt}, 26, {va}
        s_cmp_lt_i32 {sT4}, 0
        s_cselect_b32 s68, 4, 7
        s_mov_b32 s69, 0
        """)
    def kv_loads(self):
        return lines(f"""
        s_add_u32 {sT5}, {sKV}, {WS_V - WS_K}
        buffer_load_dwordx4 v[112:115], {vL16}, {srd(S_WS)}, {sKV} offen sc1
        buffer_load_dwordx4 v[116:119], {vL16}, {srd(S_WS)}, {sKV} offen offset:1024 sc1
        buffer_load_dwordx4 v[32:35], {vL16}, {srd(S_WS)}, {sQO} offen sc1
        buffer_load_dwordx4 v[120:123], {vL16}, {srd(S_WS)}, {sT5} offen sc1
        buffer_load_dwordx4 v[124:127], {vL16}, {srd(S_WS)}, {sT5} offen offset:1024 sc1
        """)
    def pl_ld(self, vaddr, vdst, off=0):
        return [f'buffer_load_dword {vdst}, {vaddr}, {srd(S_WS)}, 0 offen offset:{off} sc1']
    def pl_chk(self, vdst, mask):
        return [f'v_cmp_ne_u32 vcc, 1, {vdst}', f's_andn2_b64 vcc, {mask}, vcc', f's_cmp_eq_u64 vcc, {mask}']

    def p1(self, typ):
        e = self.e
        if typ == 1:
            e(f"""
            s_lshl_b32 {sCOLC}, {sG}, 7
            s_add_u32 {sCOLA}, {sCOLC}, 1024
            s_add_u32 {sCOLB}, {sCOLC}, 2048
            s_lshr_b32 {sCOLD}, {sG}, 1
            s_add_u32 {sCOLD}, {sCOLD}, 24
            s_lshl_b32 {sCOLD}, {sCOLD}, 7
            s_add_u32 {sT4}, {sCOLA}, {SH - 2048}
            v_add_u32 v12, {sT4}, v37
            v_mov_b32 v13, v12
            """)
        else:
            e(f"""
            s_lshl_b32 {sCOLA}, {sG}, 7
            s_add_u32 {sCOLB}, {sCOLA}, 1024
            s_add_u32 {sCOLC}, {sCOLA}, 2048
            s_add_u32 {sT4}, {sCOLA}, {SH - 2048}
            v_add_u32 v12, {sT4}, v37
            v_add_u32 v13, {sT4}, v38
            """)
        def arm():
            lab = e.newlabel('NOARM')
            e(f"""
            s_or_b32 {sT0}, {sG}, {sW}
            s_cmp_lg_u32 {sT0}, 0
            s_cbranch_scc1 {lab}
            s_lshl_b32 {sT0}, {sRB}, 2
            v_lshl_add_u32 v32, v0, 26, {sT0}
            v_mov_b32 v33, 1
            """)
            saved = list(e.vm)
            e(f'buffer_store_dword v33, v32, {srd(S_DBG)}, 0 offen offset:64 sc1')
            e.vm = saved
            e.label(lab)
        def chunk_dmas(c):
            if c < 8: return self.dma1(c, typ)
            if c < 10: return self.dma2(c, c - 8, 'v22')
            if typ == 1 and c < 12: return self.dma2(c, c - 10, 'v23')
            return []
        self.stats_loads()
        for grp in chunk_dmas(0): self.run(grp)
        self.stamp('i0')
        if int(OPT.get('ipf', 1)): self.code_prefetch()
        self.setup(typ)
        e.wait_vm_tag('zero')
        e('s_barrier')
        if typ == 1: arm()
        c1 = chunk_dmas(1)
        fs = self.fill_stats()
        k = len(fs) // 4
        self.run(c1[0] + c1[1])
        self.run(fs[:2 * k] + c1[2] + fs[2 * k:3 * k] + c1[3] + fs[3 * k:])
        self.stamp('st')
        dq = chunk_dmas(2) + chunk_dmas(3)
        def rd1(n):
            c, s = n >> 2, n & 3
            slot = (c % 4) * SLOT
            hi = slot >> 16; base = slot & 0xffff
            xa = (80 if hi else 2) + s; wa = (84 if hi else 6) + s
            x = 128 + 4 * n; b = 48 + 8 * (n % 4)
            return [f'ds_read_b128 {q4(x)}, v{xa} offset:{base}',
                  f'ds_read_b64_tr_b16 v[{b}:{b+1}], v{wa} offset:{base + 2048}',
                  f'ds_read_b64_tr_b16 v[{b+2}:{b+3}], v{wa} offset:{base + 2048 + 512}',
                  f'ds_read_b64_tr_b16 v[{b+4}:{b+5}], v{wa} offset:{base + 3072}',
                  f'ds_read_b64_tr_b16 v[{b+6}:{b+7}], v{wa} offset:{base + 3072 + 512}']
        if OPT.get('prio'):
            lab = e.newlabel('NOPRIO')
            e(f's_cmp_eq_u32 {sNH}, {1 - int(OPT["prio"]) % 2}\ns_cbranch_scc1 {lab}\ns_setprio 1')
            e.label(lab)
        self.barrier('c0')
        self.stamp(1)
        self.auto('s1', True)
        self.run(rd1(0) + rd1(1))
        armed_chk = [f'v_cmp_ne_u32 vcc, 1, v249', 's_cmp_eq_u64 vcc, 0']
        armed_ld = [f'buffer_load_dword v249, v248, {srd(S_DBG)}, 0 offen offset:64 sc1']
        fills = {}
        fills[1] = self.fill_cs2()
        fills[5] = armed_ld
        fills[9] = [lambda: self.retry(armed_chk, armed_ld, 'ARM'),
                    f'buffer_store_dwordx2 v[240:241], v252, {srd(S_WS)}, 0 offen sc1',
                    f'buffer_store_dwordx2 v[244:245], v255, {srd(S_WS)}, 0 offen sc1']
        def warm():
            lab = e.newlabel('NOWARM')
            e(f"""
            s_cmp_gt_u32 {sW}, 1
            s_cbranch_scc1 {lab}
            s_lshl_b32 {sT2}, {sW}, 8
            s_add_u32 {sT2}, {sT2}, s2
            s_lshl_b32 {sT2}, {sT2}, 13
            s_add_u32 {sT2}, {sT2}, {SH}
            s_sub_u32 {sT3}, {sT2}, {1792 * 1024}
            s_cmp_lt_u32 {sT2}, {1792 * 1024 + SH}
            s_cselect_b32 {sT3}, 0x40000000, {sT3}
            v_lshlrev_b32 v246, 7, v0
            """)
            saved = list(e.vm)
            e(f"""
            buffer_load_dword v247, v246, {srd(S_W2)}, {sT2} offen
            buffer_load_dword v247, v246, {srd(S_WO)}, {sT3} offen
            """)
            e.vm = saved
            e.label(lab)
        WN = int(OPT.get('warm', 13))
        if WN >= 0: fills[WN] = fills.get(WN, []) + [warm]
        rowg = [f'v_lshlrev_b32 v20, 3, {vTOK}', f'buffer_load_dwordx2 v[{TF}:{TF+1}], v20, {srd(S_WS)}, {sROWG} offen sc1']
        ldA = self.cs_load(sCOLA, 32); ldB = self.cs_load(sCOLB, 40); ldC = self.cs_load(sCOLC, 88)
        GL = int(OPT.get('gl', 21))
        fills[GL] = rowg + ldA
        fills[GL + 1] = ldB
        fills[GL + 2] = ldC
        chk = lines(f"""
        v_and_b32 v20, v{TF+1}, v33
        v_and_b32 v21, v35, v37
        v_and_b32 v20, v20, v39
        v_and_b32 v21, v21, v41
        v_and_b32 v20, v20, v43
        v_and_b32 v21, v21, v45
        v_and_b32 v20, v20, v47
        v_and_b32 v21, v21, v89
        v_and_b32 v20, v20, v91
        v_and_b32 v21, v21, v93
        v_and_b32 v20, v20, v95
        v_and_b32 v20, v20, v21
        v_cmp_ne_u32 vcc, 1, v20
        s_cmp_eq_u64 vcc, 0
        """)
        pre = lines(f"""
        v_add_f32 v32, v32, v34
        v_add_f32 v36, v36, v38
        v_add_f32 v40, v40, v42
        v_add_f32 v44, v44, v46
        v_add_f32 v88, v88, v90
        v_add_f32 v92, v92, v94
        v_add_f32 v32, v32, v36
        v_add_f32 v33, v40, v44
        v_add_f32 v34, v88, v92
        v_and_b32 v2, 0xffff0000, v{TF}
        v_rcp_f32 {vR}, v2
        v_cmp_eq_u32 vcc, 0, {vHF}
        v_cndmask_b32 v{TF+1}, 0, v{TF}, vcc
        v_and_b32 v{TF}, 0xffff, v{TF+1}
        v_lshl_or_b32 v{TF}, v{TF}, 16, v{TF}
        v_mov_b32 v11, v23
        v_mov_b32 v{NF+2}, 0
        v_mov_b32 v{NF+3}, 0
        v_lshlrev_b32 {vBC}, 16, {vBC}
        v_lshlrev_b32 {vBX}, 16, {vBX}
        """)
        pre2 = lines(f"""
        v_mul_f32 v10, {vR}, {vR}
        v_mul_f32 v24, {f32(GA)}, {vR}
        v_mul_f32 v10, {sGB}, v10
        v_mul_f32 v10, v10, {vR}
        v_lshlrev_b32 v3, 26, v0
        v_mov_b32 v4, 1
        """)
        self.vFL, self.vF1 = 'v3', 'v4'
        fills[27] = [lambda: self.retry(chk, rowg + ldA + ldB + ldC, 'GR')] + pre
        fills[28] = self.nf_build(32, '0') + [f'{MFMA} {blk(accA)}, {q4(NF)}, {q4(TF)}, {blk(accA)}']
        if typ == 1:
            fills[29] = pre2 + self.nf_build(33, '0') + [f'{MFMA} {blk(accB)}, {q4(TF)}, {q4(NF)}, {blk(accB)}']
        else:
            fills[29] = pre2 + self.nf_build(33, vBX) + [f'{MFMA} {blk(accB)}, {q4(NF)}, {q4(TF)}, {blk(accB)}']
        fills[30] = self.nf_build(34, vBC) + [f'{MFMA} {blk(accC)}, {q4(NF)}, {q4(TF)}, 0']
        if typ == 1: fills[31] = self.epi_v_pre(32)
        else: fills[31] = [f'v_mul_f32 v32, {f32(0.25 * LOG2E)}, {vR}']
        for n in range(32):
            c, s = n >> 2, n & 3
            if s == 2:
                self.barrier(f'c{c+1}')
                self.stamp(f'b{c+1}')
                new = chunk_dmas(c + 4)
                if n >= 26: new = [[l.replace('v23,', 'v11,') if n > 27 else l for l in g] for g in new]
                dq += new
            if n + 2 < 32: self.run(rd1(n + 2))
            elif n == 30: self.run(self.u_rd(8, 0, 0) + self.u_rd(8, 1, 1))
            else: self.run(self.u_rd(8, 2, 2))
            x = 128 + 4 * n; b = 48 + 8 * (n % 4)
            ca = '0' if n == 0 else blk(accA)
            cb = '0' if n == 0 else blk(accB)
            def pop():
                g = dq.pop(0)
                if n > 27: g = [l.replace('v23,', 'v11,') for l in g]
                self.run(g)
            self.run([f'{MFMA} {blk(accA)}, {q4(b)}, {q4(x)}, {ca}'])
            if len(dq) > 4: pop()
            if typ == 1: self.run([f'{MFMA} {blk(accB)}, {q4(x)}, {q4(b+4)}, {cb}'])
            else: self.run([f'{MFMA} {blk(accB)}, {q4(b+4)}, {q4(x)}, {cb}'])
            if dq: pop()
            self.run(fills.get(n, []))
        self.auto('s1', False)
        self.stamp(2)
        self.auto('s2', True)
        def ustream(c0, acc, ms, allms):
            o = []
            for m in ms:
                k = allms.index(m)
                if k + 3 < len(allms): o += self.u_rd(c0, allms[k + 3], k + 3)
                o.append(self.u_mfma(acc, m, k))
                if dq: o += dq.pop(0)
            return o
        def is_main(acc):
            return lambda s: isinstance(s, str) and s.startswith('v_mfma') and any(f'{blk(acc)}, v[{d}' in s for d in '456')
        allC = list(range(32))
        WG0, WG1 = self.w2_dma(0), self.w2_dma(1)
        epi3 = self.epi_h(accC, 64, sSTC, 'h')
        n3 = len(epi3)
        pollset = self.kv_poll_setup('v42', 'v43')
        if typ == 2:
            hh = self.epi_h(accB, 64, sSTB, 'hb')
            epi = self.epi_qk(accA, 'v32', 'kv') + hh[:len(hh) // 3]
            epi2 = hh[len(hh) // 3:len(hh) // 2] + self.flag_set('kv', sFLB, F_Q) + hh[len(hh) // 2:] + pollset
            self.run(ustream(8, accC, allC[0:1], allC))
            self.run(interleave(ustream(8, accC, allC[1:13], allC), epi, is_main(accC)))
            self.stamp(3)
            self.barrier('c9')
            dq += [[]] * 6
            for w in WG0 + WG1: dq.append(w)
            self.run(interleave(ustream(8, accC, allC[13:32], allC), epi2, is_main(accC)))
            self.stamp(4)
            self.run(epi3[:n3 // 3] + self.flag_set('hb', sFLB, F_HB) + epi3[n3 // 3:n3 * 3 // 4] + self.pl_ld('v42', 'v43') + epi3[n3 * 3 // 4:])
        else:
            epi = self.epi_qk(accA, vR, 'kv') + self.epi_v(accB, 32, 'kv')
            ldD = self.cs_load(sCOLD, 32)
            self.run(ustream(8, accC, allC[0:1], allC))
            self.run(interleave(ustream(8, accC, allC[1:8], allC), epi, is_main(accC)))
            self.run([f's_lshl_b32 {sT4}, {sXCH}, 4', f'v_xor_b32 {vCSA}, {sT4}, {vCSA}'] + ldD)
            self.run(interleave(ustream(8, accC, allC[8:13], allC), pollset, is_main(accC)))
            self.stamp(3)
            self.barrier('c9')
            chkD = lines(f"""
            v_and_b32 v20, v33, v35
            v_and_b32 v20, v20, v37
            v_and_b32 v20, v20, v39
            v_cmp_ne_u32 vcc, 1, v20
            s_cmp_eq_u64 vcc, 0
            """)
            self.run(ustream(8, accC, allC[13:19], allC) + self.flag_set('kv', sFLB, F_KV))
            for w in WG0: dq += [w, []]
            self.retry(chkD, ldD, 'GD')
            nfd = ['v_add_f32 v32, v32, v34', 'v_add_f32 v36, v36, v38', 'v_add_f32 v32, v32, v36'] + self.nf_build(32, vBX) + lines(f"""
            s_sub_u32 {sT4}, {sNH}, 1
            v_and_b32 v{NF}, {sT4}, v{NF}
            v_and_b32 v{NF+1}, {sT4}, v{NF+1}
            {MFMA} {blk(accA)}, {q4(NF)}, {q4(TF)}, 0
            s_lshl1_add_u32 {sT4}, {sTT}, {sNH}
            s_lshl_b32 {sT4}, {sT4}, 12
            s_add_u32 {sT4}, {sT4}, {L_KST}
            v_add_u32 v40, {sT4}, {vL16}
            s_lshl_b32 {sT5}, {sNH}, 11
            s_sub_u32 {sT4}, {sT4}, {sT5}
            v_add_u32 v41, {sT4}, {vL16}
            s_or_b32 {sXCH}, {sXCH}, 0x10000
            """)
            self.run(interleave(ustream(8, accC, allC[19:29], allC), nfd, is_main(accC)))
            self.barrier('c11')
            self.stamp(4)
            allD = [m for m in range(32) if (m & 3) < 2]
            self.run([f'v_xor_b32 v6, {sXCH}, v6', f'v_xor_b32 v7, {sXCH}, v7'])
            self.run(self.u_rd(10, allD[0], 0) + [self.u_mfma(accC, 29, 1)] + self.u_rd(10, allD[1], 1) + [self.u_mfma(accC, 30, 2)]
                     + self.u_rd(10, allD[2], 2) + [self.u_mfma(accC, 31, 3)])
            for w in WG1: dq += [w, []]
            self.run(interleave(ustream(10, accA, allD, allD), epi3[:n3 // 2], is_main(accA)))
            xw = [f'ds_write_b128 v40, {q4(accA + 4*q)} offset:{1024*q}' for q in range(4)]
            self.run(epi3[n3 // 2:n3 * 5 // 8] + xw + self.pl_ld('v42', 'v43') + epi3[n3 * 5 // 8:n3 * 7 // 8])
            self.barrier()
            self.run(lines(f"""
            ds_read_b128 {q4(accA)}, v41
            ds_read_b128 {q4(accA+4)}, v41 offset:1024
            ds_read_b128 {q4(accA+8)}, v41 offset:4096
            ds_read_b128 {q4(accA+12)}, v41 offset:5120
            """) + epi3[n3 * 7 // 8:])
            self.run([f'v_add_f32 v{accA+i}, v{accA+i}, v{accA+8+i}' for i in range(8)])
            self.run(self.epi_h(accA, 64, sSTD, 'h', halves=1))
        idx = max(i for i, o in enumerate(e.vm) if o['dst'])
        after = e.vm[idx + 1:]
        assert all(o['tag'] == 'h' for o in after) and len(after) in (1, 2), e.vm[idx:]
        self.tail_n = len(after)
        e.vm = [e.vm[idx], after[-1]]
        assert not any(dq), dq
        e.wait_lg0(force=True)
        e.settle()
        e(f's_add_u32 {sFLB}, {sFLB}, {F_HC + (256 if typ == 2 else 0)}')
        self.auto('s2', False)
        self.stamp(5)

    def att(self):
        e = self.e
        KB = [36, 40]; VB = [44, 52]; P = 60; SB = [68, 84]; NM = 100; MK = 116; O = 132
        Q = 'v[32:35]'
        self.auto('att', True)
        self.retry(self.pl_chk('v43', sMSK), self.pl_ld('v42', 'v43'), 'KV')
        self.run(self.kv_loads())
        self.stamp('kv')
        self.WA2 = ['v6', 'v7', 'v12', 'v13', 'v22', 'v23']
        self.vFL, self.vF1 = 'v24', 'v25'
        self.run(lines(f"""
        v_mov_b32 v24, v3
        v_mov_b32 v25, 1
        v_bfe_u32 v39, v0, 2, 2
        v_lshl_add_u32 v38, {vHF}, 2, v39
        v_lshlrev_b32 v38, 7, v38
        v_bfe_u32 v36, v0, 4, 1
        v_bfe_u32 v37, v0, 1, 1
        v_lshl_add_u32 v36, v36, 1, v37
        v_and_b32 v37, 2, v39
        v_lshlrev_b32 v37, 1, v37
        v_xor_b32 v36, v36, v37
        v_lshl_add_u32 v38, v36, 4, v38
        v_and_b32 v37, 1, v0
        v_lshl_add_u32 v38, v37, 3, v38
        s_lshl_b32 {sT3}, {sKQ}, 10
        v_add_u32 v6, {sT3}, v38
        v_add_u32 v22, 0x20000, v6
        v_add_u32 v6, {sFLIP}, v6
        v_xor_b32 v7, 64, v6
        v_xor_b32 v12, 0x10000, v6
        v_xor_b32 v13, 0x10000, v7
        v_xor_b32 v23, 64, v22
        s_mov_b32 s40, 0x41065410
        s_mov_b32 s41, 5
        """))
        e('s_barrier')
        self.stamp(6)
        W = {gi: self.w2_dma(gi) for gi in range(2, 6)}
        H = {gi: self.hload(gi) for gi in range(9)}
        k = 0
        for gi in range(2):
            for j in range(4):
                self.run(self.wrd(gi, j, 192 + 8 * k)); k += 1
                if j & 1: self.run(W[2].pop(0))
        self.run(lines(f"""
        v_lshlrev_b32 v20, 2, {vHF}
        v_sub_u32 v20, {vTOK}, v20
        v_mov_b32 v21, {NEGBIG}
        s_lshr_b32 {sT2}, {sWB4K}, 2
        s_add_u32 {sT2}, {sT2}, {L_KST}
        v_add_u32 v2, {sT2}, {vL16}
        s_lshr_b32 {sT3}, {sWB4K}, 2
        v_add_u32 v41, {sT3}, v2
        v_and_b32 v3, 15, v0
        v_lshl_add_u32 v3, {vHF}, 4, v3
        v_lshlrev_b32 v3, 4, v3
        v_add_u32 v3, {sT2}, v3
        v_mov_b32 v17, 0
        """))
        pairs = ['vcc', 's[86:87]', 's[88:89]']
        ml = []
        for r in range(16):
            c = 8 * (r >> 2) + (r & 3)
            ml.append(f'v_cmp_le_i32 {pairs[r % 3]}, {c}, v20')
            if r >= 2: ml.append(f'v_cndmask_b32 v{SB[0]+r-2}, v21, 0, {pairs[(r - 2) % 3]}')
        for r in (14, 15): ml.append(f'v_cndmask_b32 v{SB[0]+r}, v21, 0, {pairs[r % 3]}')
        self.run(ml)
        self.run([f'v_mov_b32 v{r}, {vONE}' for r in list(range(8, 12)) + list(range(44, 60))])
        self.run([f'v_mov_b32 v28, {sT2G}'] + self.fl_addr('v28', 'v29') + lines(f"""
        v_lshl_add_u32 v28, {vHF}, 26, v28
        v_lshl_add_u32 v28, {vTOK}, 4, v28
        v_add_u32 v28, {WS_Z}, v28
        s_mov_b32 s90, 0xffff
        s_mov_b32 s91, 0xffff
        """))
        self.run(self.flag_set('h', sFLB, 0))
        self.run(lines(f"""
        ds_write_b128 v41, v[112:115]
        ds_write_b128 v41, v[116:119] offset:1024
        ds_write_b128 v41, v[120:123] offset:16384
        ds_write_b128 v41, v[124:127] offset:17408
        """) + self.pl_ld('v28', 'v30', F_HB))
        self.run([f'v_sub_f32 v{MK+r}, v21, v{SB[0]+r}' for r in range(16)])
        self.barrier()
        self.stamp(7)
        def kread(i, b): self.run([f'ds_read_b128 {q4(b)}, v2 offset:{1024*i}'])
        def vread(i, b):
            e(f"""
            s_mov_b64 exec, {sEX}
            ds_read_b128 {q4(b)}, v3 offset:{16384 + 1024*i}
            ds_read_b128 {q4(b+4)}, v3 offset:{16384 + 1024*i+512}
            s_mov_b64 exec, -1
            """)
        def act_chk(off, lo, nm):
            def f():
                e(f's_mov_b32 s68, {lo}')
                self.retry(self.pl_chk('v30', sMSK), self.pl_ld('v28', 'v30', off), nm)
            return [f]
        av = OPT.get('acts', 'a')
        if av == 'a':
            acts = [
                [W[3][0], W[3][1], W[3][2]],
                [act_chk(F_HB, 0xffff, 'HB'), H[0][0], H[0][1], W[3][3]],
                [H[0][2], H[0][3], W[4][0]],
                [H[1][0], H[1][1], W[4][1]],
                [H[1][2], H[1][3], W[4][2]],
                [self.pl_ld('v28', 'v30', F_HC), W[4][3], W[5][0]],
                [W[5][1], W[5][2], W[5][3]],
                [act_chk(F_HC, 0xffffffff, 'HC'), H[2][0], H[2][1], H[2][2]],
                [],
            ]
            self.Hrest = [H[2][3]] + H[3] + H[4]
        elif av == 'b':
            acts = [
                [W[3][0], W[3][1], W[3][2], W[3][3]],
                [act_chk(F_HB, 0xffff, 'HB'), H[0][0] + H[0][1] + H[0][2] + H[0][3] + H[1][0] + H[1][1] + H[1][2] + H[1][3]],
                [],
                [W[4][0], W[4][1]],
                [W[4][2], W[4][3]],
                [W[5][0], W[5][1]],
                [W[5][2], W[5][3]],
                [self.pl_ld('v28', 'v30', F_HC)],
                [],
            ]
            self.Hrest = [act_chk(F_HC, 0xffffffff, 'HC')] + H[2] + H[3] + H[4]
        elif av == 'c':
            acts = [
                [W[3][0], W[3][1]],
                [W[3][2], W[3][3]],
                [W[4][0], W[4][1]],
                [W[4][2], W[4][3]],
                [W[5][0], W[5][1], W[5][2], W[5][3]],
                [act_chk(F_HB, 0xffff, 'HB'), H[0][0] + H[0][1], H[0][2] + H[0][3], self.pl_ld('v28', 'v30', F_HC)],
                [H[1][0] + H[1][1], H[1][2] + H[1][3]],
                [act_chk(F_HC, 0xffffffff, 'HC'), H[2][0], H[2][1], H[2][2]],
                [],
            ]
            self.Hrest = [H[2][3]] + H[3] + H[4]
        self.H = H
        kread(8, KB[0]); kread(7, KB[1])
        e(f'{MFMA} {blk(SB[0])}, {q4(KB[0])}, {Q}, {blk(SB[0])}')
        vread(8, VB[0])
        e(f'v_max3_f32 v20, v{SB[0]}, v{SB[0]+1}, v{SB[0]+2}')
        e(f'v_max3_f32 v21, v{SB[0]+3}, v{SB[0]+4}, v{SB[0]+5}')
        for j in range(3, 8):
            e(f'v_max3_f32 v{20 + (j & 1)}, v{SB[0]+2*j}, v{SB[0]+2*j+1}, v{20 + (j & 1)}')
        lp2 = e.newlabel('PASS2')
        e.label(lp2)
        e(f"""
        v_max_f32 v20, v20, v21
        v_mov_b32 v21, v20
        v_permlane32_swap_b32 v20, v21
        v_max_f32 v20, v20, v21
        v_cvt_pk_bf16_f32 v21, v20, v20
        v_lshlrev_b32 v21, 16, v21
        v_sub_f32 v21, v21, v20
        v_cvt_pk_bf16_f32 v16, -v20, v21
        v_cmp_eq_u32 vcc, 0, {vHF}
        v_cndmask_b32 v16, 0, v16, vcc
        {MFMA} {blk(SB[0])}, v[8:11], v[16:19], {blk(SB[0])}
        {MFMA} {blk(NM)}, v[8:11], v[16:19], 0
        """)
        tails = {i: e.newlabel(f'TAIL{i}') for i in range(1, 9)}
        lend2 = e.newlabel('P2END')
        for n, i in enumerate(range(8, -1, -1)):
            cur = SB[n % 2]; nx = SB[(n + 1) % 2]; V = VB[n % 2]
            A = list(acts[n])
            if i > 0:
                if i - 1 == 0:
                    e(f'{MFMA} {blk(nx)}, v[8:11], v[16:19], {blk(MK)}')
                    e(f'{MFMA} {blk(nx)}, {q4(KB[(n + 1) % 2])}, {Q}, {blk(nx)}')
                else:
                    e(f'{MFMA} {blk(nx)}, {q4(KB[(n + 1) % 2])}, {Q}, {blk(NM)}')
                if i > 1: kread(i - 2, KB[n % 2])
                vread(i - 1, VB[(n + 1) % 2])
            for kb in range(2):
                for j in range(8):
                    e(f'v_exp_f32 v{cur+8*kb+j}, v{cur+8*kb+j}')
                    if j == 3 and A: self.run(A.pop(0))
                for j in range(4): e(f'v_cvt_pk_bf16_f32 v{P+4*kb+j}, v{cur+8*kb+2*j}, v{cur+8*kb+2*j+1}')
                if kb == 0 and A: self.run(A.pop(0))
                c = '0' if (n == 0 and kb == 0) else blk(O)
                e(f'{MFMA} {blk(O)}, {q4(V+4*kb)}, {q4(P+4*kb)}, {c}')
            for a in A: self.run(a)
            self.stamp(f't{n}')
            if i > 0:
                e(f's_cmp_eq_u32 {sIMIN}, {i}\ns_cbranch_scc1 {tails[i]}')
                if i == 8: exit_st = self.snap()
        e(f's_branch {lend2}')
        self.auto('att', False)
        st = self.snap()
        self.restore(exit_st)
        for i in range(8, 0, -1):
            e.label(tails[i])
            e.settle()
            for a in acts[8 - i + 1]: self.run(a)
        self.restore(st)
        e.label(lend2)
        e.wait_lg0(force=True)
        e.nop(12)
        lok = e.newlabel('SMOK')
        e(f"""
        v_mov_b32 v21, {f32(2.0**100)}
        v_cmp_nle_f32 vcc, v{O+8}, v21
        s_cmp_eq_u64 vcc, 0
        s_cbranch_scc1 {lok}
        s_cmp_lg_u32 {sREDO}, 0
        s_cbranch_scc1 {lok}
        s_mov_b32 {sREDO}, 1
        """)
        st = self.snap()
        e.raw('s_waitcnt vmcnt(0) lgkmcnt(0)'); e.vm = []; e.lg = []
        e(f'v_mov_b32 v20, {NEGBIG}\nv_mov_b32 v21, {NEGBIG}\nv_mov_b32 v30, {NEGBIG}')
        for i in range(0, 9):
            lsk = e.newlabel('RSK')
            if i < 8: e(f's_cmp_gt_u32 {sIMIN}, {i}\ns_cbranch_scc1 {lsk}')
            kread(i, KB[0])
            if i == 8:
                for r in range(16): e(f'v_sub_f32 v{SB[0]+r}, v30, v{MK+r}')
            c = blk(MK) if i == 0 else (blk(SB[0]) if i == 8 else '0')
            e(f'{MFMA} {blk(SB[0])}, {q4(KB[0])}, {Q}, {c}')
            for j in range(8):
                e(f'v_max3_f32 v{20 + (j & 1)}, v{SB[0]+2*j}, v{SB[0]+2*j+1}, v{20 + (j & 1)}')
            e.settle()
            e.label(lsk)
        kread(7, KB[1]); vread(8, VB[0])
        e('v_mov_b32 v30, 1')
        e.raw('s_waitcnt lgkmcnt(0)'); e.lg = []
        e.settle()
        e(f's_branch {lp2}')
        self.restore(st)
        e.label(lok)
        e(f'v_rcp_f32 v20, v{O+8}')
        for j in range(8): e(f'v_mul_f32 v{O+j}, v20, v{O+j}')
        for j in range(4): e(f'v_cvt_pk_bf16_f32 v{P+j}, v{O+2*j}, v{O+2*j+1}')
        e(f'buffer_store_dwordx4 {q4(P)}, {vL16}, {srd(S_WS)}, {sOST} offen sc1 #o')
        self.stamp(8)

    def g2(self):
        e = self.e
        ACC = [80, 96]
        H = self.H
        self.auto('g2', True)
        first = [True]
        def mm(gi, j, b):
            hb = self.hq(gi, j)
            assert OPT.get('drop_g2') or OPT.get('drop_att') or any(f'buffer_load_dwordx4 {q4(hb)}, {vL16}, {srd(S_WS)}, {sKX} offen' in l for l in e.lines), (gi, j)
            c = ['0' if first[0] else blk(ACC[nt]) for nt in range(2)]; first[0] = False
            return [f'{MFMA} {blk(ACC[nt])}, {q4(b+4*nt)}, {q4(hb)}, {c[nt]}' for nt in range(2)]
        vq = list(self.Hrest)
        k = 0
        for gi in range(2):
            for j in range(4):
                for l in mm(gi, j, 192 + 8 * k):
                    self.run([l])
                    if vq: self.run(vq.pop(0))
                k += 1
                if k == 4: self.run(self.flag_set('o', sFLO, 0))
        self.run(lines(f"""
        v_lshrrev_b32 v35, 3, v0
        v_and_b32 v36, 7, v0
        s_lshl3_add_u32 {sT3}, {sR2}, {sW}
        s_lshl_b32 {sT3}, {sT3}, 3
        v_add_u32 v37, {sT3}, v35
        s_lshl_b32 {sT4}, {sC64}, 7
        v_lshl_add_u32 v38, v36, 4, {sT4}
        v_lshl_add_u32 v8, v37, 10, v38
        """))
        e.wait_lg0(force=True)
        e('s_barrier')
        self.stamp(9)
        WB = [48, 56, 64, 72]
        steps = [(gi, j) for gi in range(2, 9) for j in range(4)]
        self.run(self.wrd(2, 0, WB[0]) + self.wrd(2, 1, WB[1]))
        W6 = self.w2_dma(6)
        vq += [W6[0], W6[1], W6[2], W6[3]] + H[5] + H[6]
        def ochk():
            self.retry(self.pl_chk('v30', sMSK), self.pl_ld('v28', 'v30', F_O), 'OC')
        OPL, OPC = int(OPT.get('opl', 9)), int(OPT.get('opc', 13))
        bar = {3: (None, 7), 7: (None, 8), 14: ('w6', None), 18: ('w8', None)}
        for k, (gi, j) in enumerate(steps):
            if k in bar:
                tag, rel = bar[k]
                while tag and vq and any(isinstance(l, str) and f'#{tag}' in l for x in vq for l in x): self.run(vq.pop(0))
                self.barrier(tag)
                self.stamp(f'g{k}')
                if rel: vq += self.w2_dma(rel)
            if k == OPL: self.run(self.pl_ld('v28', 'v30', F_O))
            if k == OPC:
                while vq: self.run(vq.pop(0))
                ochk()
                vq = H[7] + H[8]
            if k == 19:
                vq.append([f'buffer_load_dwordx4 v[40:43], v8, {srd(S_X)}, 0 offen', f'buffer_load_dwordx4 v[44:47], v38, {srd(S_B2)}, 0 offen'])
            if k + 2 < len(steps): self.run(self.wrd(*steps[k + 2], WB[(k + 2) % 4]))
            need = [f'#h{a}_{b}' for (a, b) in steps[k:k + 3]]
            while vq and any(isinstance(l, str) and nd in l for x in vq for l in x for nd in need): self.run(vq.pop(0))
            for l in mm(gi, j, WB[k % 4]):
                self.run([l])
                if vq: self.run(vq.pop(0))
        assert not vq, vq
        self.stamp(11)
        PS = 1056
        self.run(lines(f"""
        s_lshl1_add_u32 {sT4}, {sKQ}, {sNH}
        s_mul_i32 {sT4}, {sT4}, {8 * 1024}
        s_add_u32 {sT4}, {sT4}, {sFLIP}
        v_add_u32 v9, {sT4}, {vL16}
        """))
        for nt in range(2):
            for q in range(4):
                pl = nt * 4 + q
                self.run([f'v_xor_b32 v10, {pl << 5}, v9', f'ds_write_b128 v10, v[{ACC[nt]+4*q}:{ACC[nt]+4*q+3}] offset:{pl * 1024}'])
        self.run(lines(f"""
        s_lshl_b32 {sT4}, {sKQ}, 7
        s_lshl_b32 {sT3}, {sNH}, 13
        s_add_u32 {sT4}, {sT4}, {sT3}
        s_add_u32 {sT4}, {sT4}, {sFLIP}
        v_lshl_add_u32 v9, v35, 4, {sT4}
        v_lshlrev_b32 v10, 5, v36
        v_xor_b32 v9, v9, v10
        v_lshl_add_u32 v9, v36, 10, v9
        """))
        for j in range(4):
            self.run(lines(f"""
            v_lshlrev_b32 v{112+2*j}, 16, v{40+j}
            v_and_b32 v{113+2*j}, 0xffff0000, v{40+j}
            v_lshlrev_b32 v{120+2*j}, 16, v{44+j}
            v_and_b32 v{121+2*j}, 0xffff0000, v{44+j}
            """))
        self.run([f'v_add_f32 v{112+j}, v{112+j}, v{120+j}' for j in range(8)])
        self.barrier()
        for kq in range(4):
            for hf in range(2):
                b = 48 + 8 * kq + 4 * hf
                self.run([f'ds_read_b128 v[{b}:{b+3}], v9 offset:{kq * 16384 + hf * 512}'])
        for j in range(8): self.run([f'v_add_f32 v{112+j}, v{112+j}, v{48+j}'])
        for j in range(8): self.run([f'v_add_f32 v{56+j}, v{56+j}, v{64+j}'])
        for j in range(8): self.run([f'v_add_f32 v{112+j}, v{112+j}, v{72+j}'])
        for j in range(8): self.run([f'v_add_f32 v{112+j}, v{112+j}, v{56+j}'])
        for j in range(4): self.run([f'v_cvt_pk_bf16_f32 v{48+j}, v{112+2*j}, v{112+2*j+1}'])
        e(f'buffer_store_dwordx4 v[48:51], v8, {srd(S_OUT)}, 0 offen')
        self.auto('g2', False)
        self.stamp(12)

    def prof_out(self):
        e = self.e
        e(f"""
        s_lshl3_add_u32 {sT0}, s2, {sW}
        s_lshl_b32 {sT0}, {sT0}, 8
        s_add_u32 {sT0}, {sT0}, {WS_PROF}
        v_lshlrev_b32 v2, 2, v0
        buffer_store_dword v31, v2, {srd(S_WS)}, {sT0} offen
        """)

    def build(self):
        e = self.e
        if self.prof:
            e.raw('s_memrealtime s[6:7]')
            e.raw('s_memtime s[4:5]')
            e.raw('s_waitcnt lgkmcnt(0)')
            e.raw('s_mov_b32 s7, s4')
            e.raw('v_mov_b32 v31, 0')
        self.prologue()
        e(f"""
        s_cmp_eq_u32 {sTYPE}, 1
        s_cbranch_scc1 L_type2
        """)
        st = self.snap()
        self.p1(1)
        e('s_branch L_att')
        self.restore(st)
        e.label('L_type2')
        self.p1(2)
        e.label('L_att')
        if self.stop_after != 'p1':
            self.att()
            if self.stop_after != 'att':
                self.g2()
        if self.prof:
            e.raw('v_writelane_b32 v31, s6, 63')
            e.raw('v_writelane_b32 v31, s7, 60')
            e.raw('s_memtime s[4:5]')
            e.raw('s_memrealtime s[64:65]')
            e.raw('s_waitcnt lgkmcnt(0)')
            e.raw('s_sub_u32 s4, s4, s7')
            e.raw('v_writelane_b32 v31, s4, 62')
            e.raw('v_writelane_b32 v31, s64, 61')
            self.prof_out()
        e.label('L_end')
        e.raw('s_endpgm')
        hdr = open('cdna_kernels/' + NAME + '.s.ref').read().split('\n')
        cm = [l for l in hdr if l.startswith(';') and '@launch' not in l]
        out = '\n'.join(cm) + f'\n; @launch grid=(256,1,1) block=(512,1,1) lds={LDS_BYTES}\n'
        out += f""".amdgcn_target "amdgcn-amd-amdhsa--gfx950"
.text
.globl {NAME}_kernel
.p2align 8
.type {NAME}_kernel,@function
{NAME}_kernel:
"""
        out += e.text()
        out += f""".section .rodata,"a"
.p2align 6
.amdhsa_kernel {NAME}_kernel
  .amdhsa_next_free_vgpr 256
  .amdhsa_next_free_sgpr 102
  .amdhsa_accum_offset 256
  .amdhsa_group_segment_fixed_size 0
  .amdhsa_kernarg_size 88
  .amdhsa_user_sgpr_count 2
  .amdhsa_user_sgpr_kernarg_segment_ptr 1
  .amdhsa_system_sgpr_workgroup_id_x 1
.end_amdhsa_kernel
"""
        return out

if __name__ == '__main__':
    import argparse
    ap = argparse.ArgumentParser()
    ap.add_argument('-o', default='k.s')
    ap.add_argument('--stop', default=None)
    ap.add_argument('--prof', default=None)
    ap.add_argument('--cyc', action='store_true')
    ap.add_argument('--opt', default='')
    a = ap.parse_args()
    for kv in a.opt.split(','):
        if kv: OPT[kv.split('=')[0]] = kv.split('=')[1]
    g = G(stop_after=a.stop, prof=a.prof.split(',') if a.prof else None, cyc=a.cyc)
    txt = g.build()
    open(a.o, 'w').write(txt)
    if g.prof: open(a.o + '.names', 'w').write(','.join(g.prof))
    print('instrs', g.e.ninstr, 'nops', g.e.nnops)
```

```python
import sys, math, struct, copy
from em import Em, lines, interleave

NAME = "parallel_sum__sliding_block__dense_activation_gelu__prompt"
OPT = {}
WS_AH = 0
AH_T = 144 * 1024
WS_K = 0x900000
WS_V = 0xB00000
WS_Q = 0xD00000
WS_Z = 0xF00000
FL_T = 1792
F_KV, F_Q, F_HB, F_HC, F_O = 0, 256, 512, 768, 1280
Z_ROW = 7168
Z_CSG = 8192
WS_PROF = 0x1000000
WS_SIZE = 0x1100000
SH = 4096
SLOT = 32768
L_KST = 131072
L_VST = 147456
L_CSP = 147456
L_RV = 149504
L_GR = 131072
L_OK = 163824
LDS_BYTES = 163840

def f32(x): return struct.unpack('<I', struct.pack('<f', x))[0]
LOG2E = 1.4426950408889634
GA = -2.0 * math.sqrt(2.0 / math.pi) * LOG2E
GB = GA * 0.044715
NEGBIG = f32(-1e30)
ONES = 0x3f803f80

S_X, S_QKV, S_W1, S_W2, S_WO, S_WS, S_OUT, S_DBG, S_B1, S_B2 = [8 + 4 * i for i in range(10)]
S_TMP = 80
def srd(b): return f's[{b}:{b+3}]'
_names = """sW sNH sTT sRB sG sT sTYPE sWB4K sCOLA sCOLB sCOLC sCOLD sT0 sT1 sKX sKW""".split()
for _i, _n in enumerate(_names): globals()[_n] = f's{48+_i}'
sT2, sT3, sT4, sT5 = 's86', 's87', 's88', 's89'
sEX = 's[90:91]'; sROW = 's90'
sFLB = 's92'; sGB = 's93'; sCNT = 's94'; sR2 = 's95'; sC64 = 's96'; sXCH = 's97'; sQTR = 's98'; sHEAD = 's99'; sKW2 = 's100'; sUID = 's101'
sPIT = 's3'; sROT = 's3'; sGSRC = 's98'
sTA = 's64'; sRA = 's65'; sKV = 's66'; sQO = 's67'; sMSK = 's[68:69]'; sT2G = 's70'; sAH2 = 's71'; sREDO = 's72'
sRC = 's73'; sOST = 's74'; sIMIN = 's75'; sKQ = 's76'; sFLO = 's77'; sFLIP = 's78'; sWLO = 's79'
sSTA = 's80'; sSTB = 's81'; sSTC = 's82'; sSTD = 's83'; sWHI = 's84'; sROWG = 's85'
vW2 = 'v1'; vONE = 'v14'; vL16 = 'v15'; TF = 16; NF = 20; vR = 'v25'; vTOK = 'v26'; vHF = 'v27'
vBC = 'v28'; vBX = 'v29'; vCSA = 'v30'
accC, accA, accB = 80, 96, 112
def blk(b): return f'v[{b}:{b+15}]'
def q4(b): return f'v[{b}:{b+3}]'
MFMA = 'v_mfma_f32_32x32x16_bf16'
PQ, PH = 3072, 3584

class G:
    def __init__(self, stop_after=None, prof=None, cyc=False):
        self.e = Em()
        self.stop_after = stop_after
        self.prof = prof
        self.cyc = cyc
        self.auto_on = False; self.auto_n = int(OPT.get('auton', 40)); self.auto_idx = 1; self.auto_last = 0

    def stamp(self, name):
        if not self.prof: return
        name = str(name)
        if name not in self.prof: return
        idx = self.prof.index(name)
        e = self.e
        e.raw('s_memtime s[4:5]' if self.cyc else 's_memrealtime s[4:5]')
        e.raw('s_waitcnt lgkmcnt(0)'); e.lg = []
        e.raw(f'v_writelane_b32 v31, s4, {idx}'); e.t += 3
    def snap(self):
        return copy.deepcopy({k: v for k, v in self.e.__dict__.items() if k != 'lines'})
    def restore(self, s):
        uid = self.e.uid; ni = self.e.ninstr; nn = self.e.nnops
        self.e.__dict__.update(copy.deepcopy(s)); self.e.uid = uid; self.e.ninstr = ni; self.e.nnops = nn
    def run(self, ls):
        for l in ls:
            if callable(l): l(); continue
            self.e.I(l)
            if self.auto_on and self.e.ninstr - self.auto_last >= self.auto_n and not l.startswith(('s_add_u32 m0', 's_cmp', 'v_cmp', 's_mov_b64 exec', 'ds_read', 's_and_b64')) and self.auto_idx < 58:
                self.auto_last = self.e.ninstr
                if f'x{self.auto_idx}' not in self.prof: self.prof.append(f'x{self.auto_idx}')
                self.e.comment(f'AUTO {self.auto_idx}')
                self.stamp(f'x{self.auto_idx}')
                self.auto_idx += 1
    def auto(self, name, on):
        for ph in name, {'s1': 'p1', 's2': 'p1'}.get(name, name):
            if OPT.get('drop_' + ph): self.e.drop = OPT['drop_' + ph].replace('+', '|') if on else None
        if OPT.get('auto') == name:
            self.auto_on = on; self.auto_last = self.e.ninstr
            if on: self.auto_idx = 1
    def mk(self, b, lo, size, shift=0):
        if shift:
            self.e(f"""
            s_sub_u32 s{b}, s{lo}, {shift}
            s_subb_u32 s{b+1}, s{lo+1}, 0
            s_and_b32 s{b+1}, s{b+1}, 0xffff
            s_mov_b32 s{b+2}, {size + shift}
            s_mov_b32 s{b+3}, 0x20000
            """)
        else:
            self.e(f"""
            s_mov_b32 s{b}, s{lo}
            s_and_b32 s{b+1}, s{lo+1}, 0xffff
            s_mov_b32 s{b+2}, {size}
            s_mov_b32 s{b+3}, 0x20000
            """)
    def retry(self, check_lines, reload_lines, name):
        e = self.e
        lok = e.newlabel(name + 'OK'); lp = e.newlabel(name + 'LP')
        if OPT.get('nochk') and name != 'ARM': return
        ao = self.auto_on; self.auto_on = False
        self.run(check_lines)
        e(f's_cbranch_scc1 {lok}\ns_mov_b32 {sCNT}, 0')
        e.label(lp)
        st = self.snap()
        e.settle()
        e('s_sleep 2')
        self.run(reload_lines)
        e.raw('s_waitcnt vmcnt(0)'); e.vm = []
        e(f's_add_u32 {sCNT}, {sCNT}, 1\ns_cmp_gt_u32 {sCNT}, 0x40000\ns_cbranch_scc1 {lok}')
        self.run(check_lines)
        e(f's_cbranch_scc0 {lp}')
        e.settle()
        self.restore(st)
        e.label(lok)
        self.auto_on = ao
    def wave0(self, fn):
        e = self.e
        lab = e.newlabel('W0')
        e.settle()
        e(f's_cmp_lg_u32 {sW}, 0\ns_cbranch_scc1 {lab}')
        st = self.snap()
        fn()
        e.settle()
        self.restore(st)
        e.label(lab)
    def barrier(self, tag=None):
        if tag: self.e.wait_vm_tag(tag)
        self.e.wait_lg0(); self.e('s_barrier')

    def prologue(self):
        e = self.e
        e(f"""
        s_cmp_ge_u32 s2, 256
        s_cbranch_scc1 L_end
        s_load_dwordx16 s[64:79], s[0:1], 0
        s_load_dwordx4 s[80:83], s[0:1], 64
        s_load_dwordx2 s[84:85], s[0:1], 80
        v_lshrrev_b32 v1, 6, v0
        v_and_b32 v0, 63, v0
        v_readfirstlane_b32 {sW}, v1
        s_and_b32 {sT0}, s2, 7
        s_lshr_b32 {sT1}, s2, 3
        s_and_b32 {sRB}, {sT0}, 1
        s_and_b32 {sT2}, {sT1}, 7
        s_lshl3_add_u32 {sRB}, {sRB}, {sT2}
        s_lshr_b32 {sTYPE}, {sT1}, 4
        s_and_b32 {sG}, {sT0}, 6
        s_bfe_u32 {sT4}, {sT1}, 0x10003
        s_add_u32 {sG}, {sG}, {sT4}
        s_lshr_b32 {sNH}, {sW}, 2
        s_lshl1_add_u32 {sTT}, {sNH}, {sW}
        s_and_b32 {sTT}, {sTT}, 3
        s_lshl2_add_u32 {sT}, {sRB}, {sTT}
        s_lshl_b32 {sWB4K}, {sW}, 12
        s_and_b32 {sT2}, {sT0}, 1
        s_lshl_b32 {sT2}, {sT2}, 5
        s_add_u32 {sT2}, {sT2}, {sT1}
        s_and_b32 {sQTR}, {sT2}, 3
        s_lshr_b32 {sT2}, {sT2}, 2
        s_lshr_b32 {sT3}, {sT0}, 1
        s_lshr_b32 {sUID}, {sT2}, 1
        s_and_b32 {sT4}, {sT2}, 1
        s_lshl3_add_u32 {sUID}, {sUID}, {sT4}
        s_lshl1_add_u32 {sUID}, {sT3}, {sUID}
        s_add_u32 {sT4}, {sT3}, 48
        s_cmp_eq_u32 {sT2}, 12
        s_cselect_b32 {sUID}, {sT4}, {sUID}
        s_cmp_gt_u32 {sT2}, 12
        s_cselect_b32 {sUID}, 52, {sUID}
        s_and_b32 {sROW}, {sT0}, 1
        s_lshl2_add_u32 {sROW}, {sROW}, {sT3}
        s_lshl_b32 {sROW}, {sROW}, 5
        s_add_u32 {sROW}, {sROW}, {sT1}
        s_lshl3_add_u32 {sROW}, {sROW}, {sW}
        s_movk_i32 {sPIT}, {PQ}
        s_cmp_ge_u32 {sUID}, 24
        s_cselect_b32 {sPIT}, {PH}, {sPIT}
        s_and_b32 {sT4}, {sT1}, 3
        s_lshl2_add_u32 {sR2}, {sT0}, {sT4}
        s_lshr_b32 {sC64}, {sT1}, 2
        s_and_b32 {sHEAD}, s2, 31
        """)
        e(f"""
        v_lshrrev_b32 v32, 3, v0
        v_and_b32 v33, 7, v0
        v_lshlrev_b32 {vL16}, 4, v0
        v_mov_b32 {vONE}, {ONES}
        s_lshl_b32 {sT5}, {sW}, 4
        s_lshl_b32 {sT4}, {sRB}, 7
        s_add_u32 {sT4}, {sT4}, {sT5}
        v_add_u32 v34, {sT4}, v32
        v_lshrrev_b32 v35, 1, v32
        v_xor_b32 v35, v35, v33
        v_lshlrev_b32 v35, 4, v35
        v_lshl_add_u32 v10, v34, 10, v35
        v_xor_b32 v11, 64, v10
        v_add_u32 v11, {8192 - 1024}, v11
        v_and_b32 v35, 2, v32
        v_lshlrev_b32 v35, 1, v35
        v_xor_b32 v35, v35, v33
        v_lshlrev_b32 v35, 4, v35
        v_add_u32 v34, {sT5}, v32
        v_mad_u32_u24 v20, v34, {sPIT}, v35
        s_lshl_b32 {sT5}, {sW}, 3
        v_add_u32 v36, {sT5}, v32
        v_mul_u32_u24 v37, {PQ}, v36
        v_add_u32 v37, v37, v35
        v_mul_u32_u24 v38, {PH}, v36
        v_add_u32 v38, v38, v35
        v_lshl_add_u32 {vW2}, v36, 10, v35
        s_lshl_b32 {sT4}, {sC64}, 7
        s_add_u32 {sT4}, {sT4}, {SH}
        v_add_u32 {vW2}, {sT4}, {vW2}
        """)
        e.wait_lg0()
        self.mk(S_X, 64, 2048 * 1024)
        self.mk(S_QKV, 66, 512 * PQ, SH)
        self.mk(S_W1, 72, 512 * PH, SH)
        self.mk(S_WS, 84, WS_SIZE)
        self.mk(S_OUT, 80, 2048 * 1024)
        self.mk(S_DBG, 82, 256)
        self.stamp('ka')
        lab = e.newlabel('NORST')
        e(f"""
        s_or_b32 {sT0}, {sG}, {sTYPE}
        s_cmp_lg_u32 {sT0}, 0
        s_cbranch_scc1 {lab}
        s_lshl3_add_u32 {sT0}, {sRB}, {sW}
        s_lshl_b32 {sT0}, {sT0}, 11
        s_add_u32 {sT0}, {sT0}, {WS_Z}
        v_mov_b32 v40, 0
        v_mov_b32 v41, 0
        v_mov_b32 v42, 0
        v_mov_b32 v43, 0
        buffer_store_dwordx4 v[40:43], {vL16}, {srd(S_WS)}, {sT0} offen sc1 #zero
        buffer_store_dwordx4 v[40:43], {vL16}, {srd(S_WS)}, {sT0} offen offset:1024 sc1 #zero
        """)
        e.settle()
        e.label(lab)

    def stats_loads(self):
        self.e(f"""
        s_lshl_b32 {sT0}, {sROW}, 10
        buffer_load_dwordx4 v[240:243], {vL16}, {srd(S_X)}, {sT0} offen
        s_cmp_ge_u32 {sUID}, 24
        s_cselect_b32 s{S_TMP}, s{S_W1}, s{S_QKV}
        s_cselect_b32 s{S_TMP+1}, s{S_W1+1}, s{S_QKV+1}
        s_cselect_b32 s{S_TMP+2}, s{S_W1+2}, s{S_QKV+2}
        s_mov_b32 s{S_TMP+3}, 0x20000
        s_cselect_b32 {sT1}, 24, 0
        s_sub_u32 {sT1}, {sUID}, {sT1}
        s_lshl_b32 {sT1}, {sT1}, 7
        s_lshl_b32 {sT0}, {sQTR}, 7
        s_mul_i32 {sT0}, {sT0}, {sPIT}
        s_add_u32 {sT0}, {sT0}, {sT1}
        s_add_u32 {sT0}, {sT0}, {SH}
        s_lshl3_add_u32 {sT1}, {sPIT}, {sT0}
        s_sub_u32 {sT1}, {sT1}, 1024
        s_lshr_b32 {sT2}, {sWB4K}, 1
        s_add_u32 m0, {sT2}, {L_KST}
        buffer_load_dwordx4 v20, {srd(S_TMP)}, {sT0} offen lds #cs
        buffer_load_dwordx4 v20, {srd(S_TMP)}, {sT1} offen offset:1024 lds #cs
        """)

    def code_prefetch(self):
        e = self.e
        lab = e.newlabel('NOIPF')
        e(f"""
        s_cmp_lg_u32 {sW}, 2
        s_cbranch_scc1 {lab}
        s_getpc_b64 s[4:5]
        """)
        l2 = e.newlabel('PCREF')
        e.label(l2)
        e(f"""
        s_sub_u32 s4, s4, {l2}-{NAME}_kernel
        s_subb_u32 s5, s5, 0
        s_bfe_u32 {sT0}, s2, 0x20003
        s_lshl_b32 {sT0}, {sT0}, 13
        v_lshlrev_b32 v44, 7, v0
        v_add_u32 v44, {sT0}, v44
        v_min_u32 v44, L_end-{NAME}_kernel, v44
        """)
        saved = list(e.vm)
        e(f'global_load_dword v45, v44, s[4:5]')
        e.vm = saved
        e.label(lab)

    def csg_off(self, dst, scol, isq):
        return f"""
        s_lshr_b32 {sT2}, {scol}, 7
        s_add_u32 {sT2}, {sT2}, {0 if isq else 24}
        s_lshr_b32 {sT3}, {sT2}, 2
        s_lshl_b32 {sT3}, {sT3}, 14
        s_and_b32 {sT2}, {sT2}, 3
        s_lshl_b32 {sT2}, {sT2}, 11
        s_add_u32 {sT2}, {sT2}, {sT3}
        s_add_u32 {dst}, {sT2}, {WS_Z + Z_CSG}
        """

    def setup(self, typ):
        e = self.e
        self.mk(S_WO, 68, 512 * 1024, SH)
        self.mk(S_B1, 74, 1792 * 2)
        self.mk(S_W2, 76, 1792 * 1024, SH)
        self.mk(S_B2, 78, 1024)
        e(f"""
        v_and_b32 {vTOK}, 31, v0
        v_lshrrev_b32 {vHF}, 5, v0
        v_bfe_u32 v34, {vTOK}, 1, 3
        v_xor_b32 v34, v34, {vHF}
        v_lshlrev_b32 v34, 4, v34
        v_and_b32 v35, 15, v0
        v_lshl_add_u32 v34, v35, 7, v34
        v_bfe_u32 v35, v0, 4, 1
        v_lshl_add_u32 v34, v35, 12, v34
        s_lshl_b32 {sT4}, {sTT}, 13
        s_lshl_b32 {sT5}, {sNH}, 6
        s_or_b32 {sT4}, {sT4}, {sT5}
        v_xor_b32 v34, {sT4}, v34
        v_bfe_u32 v36, v0, 2, 2
        v_bfe_u32 v33, v0, 1, 1
        v_lshl_add_u32 v32, v35, 1, v33
        v_and_b32 v33, 2, v36
        v_lshlrev_b32 v33, 1, v33
        v_xor_b32 v32, v32, v33
        v_lshlrev_b32 v32, 4, v32
        v_and_b32 v33, 1, v0
        v_lshl_add_u32 v32, v33, 3, v32
        v_lshl_add_u32 v32, v36, 7, v32
        v_lshl_add_u32 v250, {vHF}, 10, v32
        s_lshr_b32 {sT4}, {sWB4K}, 1
        s_add_u32 {sT4}, {sT4}, {L_KST}
        v_add_u32 v250, {sT4}, v250
        v_xor_b32 v251, 64, v250
        v_lshl_add_u32 v35, {vHF}, 12, v32
        s_lshl_b32 {sT4}, {sNH}, 14
        s_or_b32 {sT4}, {sT4}, {sT5}
        v_xor_b32 v35, {sT4}, v35
        """)
        for s in range(4):
            e(f"""
            v_xor_b32 v{2+s}, {s << 5}, v34
            v_xor_b32 v{6+s}, {s << 13}, v35
            v_add_u32 v{80+s}, 0x10000, v{2+s}
            v_add_u32 v{84+s}, 0x10000, v{6+s}
            """)
        e(f"""
        s_mov_b32 {sGB}, {f32(GB)}
        v_mov_b32 v{TF+2}, 0
        v_mov_b32 v{TF+3}, 0
        s_lshl_b32 {sT4}, {sNH}, 10
        v_lshl_add_u32 {vCSA}, {vTOK}, 5, {sT4}
        s_lshl_b32 {sFLB}, {sRB}, 14
        s_mul_i32 {sT4}, {sTT}, {FL_T}
        s_add_u32 {sFLB}, {sFLB}, {sT4}
        s_lshl1_add_u32 {sT5}, {sG}, {sNH}
        s_lshl4_add_u32 {sFLB}, {sT5}, {sFLB}
        s_add_u32 {sFLB}, {sFLB}, {WS_Z}
        s_lshr_b32 {sT1}, {sROW}, 7
        s_lshl_b32 {sT1}, {sT1}, 14
        s_and_b32 {sT0}, {sROW}, 127
        s_lshl3_add_u32 {sT0}, {sT0}, {sT1}
        s_add_u32 {sT0}, {sT0}, {WS_Z + Z_ROW}
        v_lshl_add_u32 v252, v0, 26, {sT0}
        s_lshl_b32 {sT0}, {sW}, 2
        s_add_u32 {sT0}, {sT0}, {L_CSP}
        v_lshl_add_u32 v253, v0, 5, {sT0}
        v_lshlrev_b32 v254, 5, v0
        v_add_u32 v254, {L_CSP}, v254
        v_and_b32 v248, 15, v0
        v_lshlrev_b32 v248, 2, v248
        s_lshr_b32 {sT2}, {sUID}, 2
        s_lshl_b32 {sT2}, {sT2}, 14
        s_and_b32 {sT3}, {sUID}, 3
        s_lshl_b32 {sT3}, {sT3}, 11
        s_add_u32 {sT2}, {sT2}, {sT3}
        s_lshl3_add_u32 {sT2}, {sQTR}, {sT2}
        s_add_u32 {sT2}, {sT2}, {WS_Z + Z_CSG}
        s_cmp_ge_u32 {sUID}, 52
        s_cselect_b32 {sT3}, 1, {sW}
        s_lshl_b32 {sT3}, {sT3}, 26
        s_add_u32 {sT2}, {sT2}, {sT3}
        v_lshl_add_u32 v255, v0, 5, {sT2}
        """)
        e(f"""
        s_lshl_b32 {sT4}, {sNH}, 6
        v_lshl_add_u32 v34, {vTOK}, 1, {sT4}
        buffer_load_ushort {vBC}, v34, {srd(S_B1)}, {sCOLC} offen
        s_xor_b32 {sXCH}, {sNH}, {sG}
        s_and_b32 {sXCH}, {sXCH}, 1
        s_lshl_b32 {sXCH}, {sXCH}, 6
        """)
        if typ == 1:
            e(f'v_xor_b32 v34, {sXCH}, v34\nbuffer_load_ushort {vBX}, v34, {srd(S_B1)}, {sCOLD} offen')
        else:
            e(f'buffer_load_ushort {vBX}, v34, {srd(S_B1)}, {sCOLB} offen')
        e(f"""
        s_lshl1_add_u32 {sT2}, {sG}, {sNH}
        s_lshl_b32 {sT2}, {sT2}, 17
        s_lshl_b32 {sT3}, {sT}, 10
        s_add_u32 {sT2}, {sT2}, {sT3}
        s_add_u32 {sSTA}, {sT2}, {WS_K if typ == 1 else WS_Q}
        s_mul_i32 {sT4}, {sT}, {AH_T}
        s_lshl_b32 {sT3}, {sNH}, 11
        s_add_u32 {sT3}, {sT3}, {sT4}
        s_lshl_b32 {sT5}, {sCOLC}, 5
        s_add_u32 {sSTC}, {sT5}, {sT3}
        """)
        if typ == 1:
            e(f"""
            s_add_u32 {sSTB}, {sT2}, {WS_V}
            s_and_b32 {sT3}, {sG}, 1
            s_lshl1_add_u32 {sT3}, {sT3}, {sNH}
            s_lshl_b32 {sT3}, {sT3}, 10
            s_add_u32 {sT3}, {sT3}, {sT4}
            s_lshl_b32 {sT5}, {sCOLD}, 5
            s_add_u32 {sSTD}, {sT5}, {sT3}
            """)
        else:
            e(f"""
            s_lshl_b32 {sT5}, {sCOLB}, 5
            s_add_u32 {sSTB}, {sT5}, {sT3}
            """)
        e(f"""
        s_lshl_b32 {sROWG}, {sRB}, 14
        s_lshl_b32 {sT3}, {sTT}, 8
        s_add_u32 {sROWG}, {sROWG}, {sT3}
        s_add_u32 {sROWG}, {sROWG}, {WS_Z + Z_ROW}
        """)
        e(f"""
        s_add_u32 {sT4}, {sCOLC}, {SH - 3072}
        v_add_u32 v22, {sT4}, v38
        """)
        if typ == 1:
            e(f's_add_u32 {sT4}, {sCOLD}, {SH - 3072}\nv_add_u32 v23, {sT4}, v38')
        e(self.csg_off(sCOLA, sCOLA, True)); e(self.csg_off(sCOLB, sCOLB, typ == 1)); e(self.csg_off(sCOLC, sCOLC, False))
        if typ == 1: e(self.csg_off(sCOLD, sCOLD, False))
        e(f"""
        s_lshr_b32 {sT2}, {sW}, 1
        s_mov_b32 {sGSRC}, {sCOLA}
        s_cmp_eq_u32 {sT2}, 1
        s_cselect_b32 {sGSRC}, {sCOLB}, {sGSRC}
        s_cmp_eq_u32 {sT2}, 2
        s_cselect_b32 {sGSRC}, {sCOLC}, {sGSRC}
        s_cmp_eq_u32 {sT2}, 3
        s_cselect_b32 {sGSRC}, {sCOLD if typ == 1 else sCOLC}, {sGSRC}
        s_and_b32 {sT2}, {sW}, 1
        s_lshl_b32 {sT2}, {sT2}, 10
        s_add_u32 {sGSRC}, {sGSRC}, {sT2}
        """)
        e(f"""
        s_lshr_b32 {sRA}, s2, 5
        s_lshl_b32 {sTA}, {sRA}, 3
        s_sub_u32 {sKV}, {sTA}, 8
        s_add_u32 {sTA}, {sTA}, {sW}
        s_sub_u32 {sIMIN}, 8, {sTA}
        s_cmp_gt_u32 {sTA}, 8
        s_cselect_b32 {sIMIN}, 0, {sIMIN}
        s_lshl1_add_u32 {sKV}, {sW}, {sKV}
        s_lshl_b32 {sKV}, {sKV}, 10
        s_lshl_b32 {sT1}, {sHEAD}, 16
        s_add_u32 {sKV}, {sKV}, {sT1}
        s_add_u32 {sKV}, {sKV}, {WS_K}
        s_lshl_b32 {sQO}, {sTA}, 10
        s_add_u32 {sQO}, {sQO}, {sT1}
        s_add_u32 {sQO}, {sQO}, {WS_Q}
        s_lshl1_add_u32 {sT2G}, {sR2}, {sNH}
        s_and_b32 {sKQ}, {sW}, 3
        s_mul_i32 {sAH2}, {sT2G}, {AH_T}
        s_lshl_b32 {sT1}, {sKQ}, 12
        s_add_u32 {sAH2}, {sAH2}, {sT1}
        s_mov_b32 {sREDO}, {1 if OPT.get('nofb') else 0}
        s_lshr_b32 {sFLO}, {sTA}, 2
        s_lshl_b32 {sFLO}, {sFLO}, 14
        s_and_b32 {sT1}, {sTA}, 3
        s_mul_i32 {sT1}, {sT1}, {FL_T}
        s_add_u32 {sFLO}, {sFLO}, {sT1}
        s_lshl4_add_u32 {sFLO}, {sHEAD}, {sFLO}
        s_add_u32 {sFLO}, {sFLO}, {WS_Z + F_O}
        s_mul_i32 {sOST}, {sTA}, {AH_T}
        s_lshl_b32 {sT1}, {sHEAD}, 10
        s_add_u32 {sOST}, {sOST}, {sT1}
        s_add_u32 {sOST}, {sOST}, {112 * 1024}
        s_mov_b32 {sFLIP}, {0 if typ == 1 else 0x10000}
        s_add_u32 {sWLO}, {sWB4K}, {0 if typ == 1 else 0x10000}
        s_add_u32 {sWHI}, {sWB4K}, {0x10000 if typ == 1 else 0}
        ; rotation seed rc = (c64 + 2*(r64&3)) ; class1 uses rc&1 ; class2 uses rc mod 5
        s_and_b32 {sT1}, {sR2}, 3
        s_lshl1_add_u32 {sRC}, {sT1}, {sC64}
        s_mul_i32 {sT1}, {sRC}, 52
        s_lshr_b32 {sT1}, {sT1}, 8
        s_mul_i32 {sT1}, {sT1}, 5
        s_sub_u32 {sT1}, {sRC}, {sT1}
        s_add_u32 {sRC}, {sC64}, {sR2}
        s_and_b32 {sRC}, {sRC}, 1
        s_lshl3_add_u32 {sRC}, {sRC}, {sT1}
        """)

    def fill_stats(self):
        o = lines(f"""
        WAITVM cs
        ds_read_b64_tr_b16 v[232:233], v250
        ds_read_b64_tr_b16 v[234:235], v250 offset:512
        ds_read_b64_tr_b16 v[236:237], v251
        ds_read_b64_tr_b16 v[238:239], v251 offset:512
        v_dot2_f32_bf16 v244, v240, {vONE}, 0
        v_dot2_f32_bf16 v245, v240, v240, 0
        """)
        for j in range(1, 4):
            o += [f'v_dot2_f32_bf16 v244, v{240+j}, {vONE}, v244', f'v_dot2_f32_bf16 v245, v{240+j}, v{240+j}, v245']
        o += [f'v_dot2_f32_bf16 v228, v232, {vONE}, 0', f'v_dot2_f32_bf16 v229, v236, {vONE}, 0']
        for j in range(1, 4):
            o += [f'v_dot2_f32_bf16 v228, v{232+j}, {vONE}, v228', f'v_dot2_f32_bf16 v229, v{236+j}, {vONE}, v229']
        for dpp in ('quad_perm:[1,0,3,2]', 'quad_perm:[2,3,0,1]', 'row_half_mirror', 'row_mirror'):
            o += [f'v_add_f32_dpp v244, v244, v244 {dpp} row_mask:0xf bank_mask:0xf',
                  f'v_add_f32_dpp v245, v245, v245 {dpp} row_mask:0xf bank_mask:0xf']
            if dpp.startswith('quad_perm:[1'):
                o += ['v_permlane32_swap_b32 v228, v229', 'v_add_f32 v228, v228, v229', 'ds_write_b32 v253, v228']
        for sw in ('v_permlane16_swap_b32', 'v_permlane32_swap_b32'):
            o += lines(f"""
            v_mov_b32 v246, v244
            v_mov_b32 v247, v245
            {sw} v244, v246
            {sw} v245, v247
            v_add_f32 v244, v244, v246
            v_add_f32 v245, v245, v247
            """)
        o += lines(f"""
        v_mul_f32 v244, {f32(1/512)}, v244
        v_mul_f32 v245, {f32(1/512)}, v245
        v_fma_f32 v245, -v244, v244, v245
        v_max_f32 v245, 0, v245
        v_cvt_pk_bf16_f32 v246, v245, v245
        v_lshlrev_b32 v246, 16, v246
        v_add_f32 v246, {f32(1e-5)}, v246
        v_cvt_pk_bf16_f32 v246, v246, v246
        v_lshlrev_b32 v246, 16, v246
        v_sqrt_f32 v246, v246
        v_cvt_pk_bf16_f32 v240, -v244, v246
        v_mov_b32 v241, 1
        """)
        return o

    def fill_cs2(self):
        return lines(f"""
        ds_read_b128 v[232:235], v254
        ds_read_b128 v[236:239], v254 offset:16
        v_add_f32 v232, v232, v233
        v_add_f32 v234, v234, v235
        v_add_f32 v236, v236, v237
        v_add_f32 v238, v238, v239
        v_add_f32 v232, v232, v234
        v_add_f32 v236, v236, v238
        v_add_f32 v244, v232, v236
        v_mov_b32 v245, 1
        """)

    def dma1(self, c, typ):
        slot = (c % 4) * SLOT
        if OPT.get('rot', 'wg') == 'none':
            kx = [f's_movk_i32 {sKX}, {128 * c}']; kq = [f's_mov_b32 {sKW}, {64 * PQ * c}']; kh = [f's_mov_b32 {sKW}, {64 * PH * c}']
        else:
            kx = [f's_add_u32 {sKX}, {sROT}, {128 * c}', f's_and_b32 {sKX}, {sKX}, 1023']
            kq = [f's_mul_i32 {sKW}, {sKX}, {PQ // 2}']; kh = [f's_mul_i32 {sKW}, {sKX}, {PH // 2}']
        g0 = [f's_add_u32 m0, {sWB4K}, {slot}'] + kx + [f'buffer_load_dwordx4 v10, {srd(S_X)}, {sKX} offen lds #c{c}']
        g1 = [f'buffer_load_dwordx4 v11, {srd(S_X)}, {sKX} offen offset:1024 lds #c{c}']
        g2 = kq + [f'buffer_load_dwordx4 v12, {srd(S_QKV)}, {sKW} offen offset:2048 lds #c{c}']
        if typ == 1:
            g3 = [f'buffer_load_dwordx4 v13, {srd(S_QKV)}, {sKW} offen offset:3072 lds #c{c}']
        else:
            g3 = kh + [f'buffer_load_dwordx4 v13, {srd(S_W1)}, {sKW} offen offset:3072 lds #c{c}']
        return [g0, g1, g2, g3]
    def dma2(self, c, half, vo):
        slot = (c % 4) * SLOT
        out = []
        for i in range(4):
            cc = 4 * half + i
            g = [f's_add_u32 m0, {sWB4K}, {slot}'] if i == 0 else []
            if OPT.get('rot', 'wg') == 'none':
                g += [f's_mov_b32 {sKW}, {64 * PH * cc + 1024 * (3 - i)}']
            else:
                g += [f's_add_u32 {sKX}, {sROT}, {128 * cc}', f's_and_b32 {sKX}, {sKX}, 1023', f's_mul_i32 {sKW}, {sKX}, {PH // 2}']
                if i < 3: g += [f's_add_u32 {sKW}, {sKW}, {1024 * (3 - i)}']
            g += [f'buffer_load_dwordx4 {vo}, {srd(S_W1)}, {sKW} offen offset:{1024*i} lds #c{c}']
            out.append(g)
        return out

    def grp_idx(self, gi):
        if gi < 2 or gi >= 7:
            b = 2 if gi < 2 else 7
            k = gi if gi < 2 else gi - 7
            return [f's_bfe_u32 {sT0}, {sRC}, 0x10003', f's_xor_b32 {sT0}, {sT0}, {k}', f's_add_u32 {sT0}, {sT0}, {b}']
        return [f's_and_b32 {sT0}, {sRC}, 7', f's_add_u32 {sT0}, {sT0}, {gi - 2}', f's_lshl_b32 {sT0}, {sT0}, 2',
                f's_lshr_b64 s[{sT0[1:]}:{sT1[1:]}], s[40:41], {sT0}', f's_and_b32 {sT0}, {sT0}, 15']
    def wpos(self, gi):
        return [0, 1, 2, 3, 0, 1, 4, 2, 3][gi]
    def w2_dma(self, gi, dyn=None):
        out = []
        if dyn is None:
            pos = self.wpos(gi)
            base = [sWLO, sWLO, sWHI, sWHI, sWB4K][pos]
            off = [0, SLOT, 0, SLOT, 0x20000][pos]
            g = self.grp_idx(gi)
            if gi >= 7: g = g[:-1]
            g += [f's_add_u32 m0, {base}, {off}', f's_lshl_b32 {sKW2}, {sT0}, 18']
        else:
            b, n, t = dyn
            g = [f's_add_u32 {sT2}, {sR2}, {t}', f's_and_b32 {sT2}, {sT2}, {n - 1}']
            if b == 0:
                g += [f's_bfe_u32 {sT0}, {sRC}, 0x10003', f's_xor_b32 {sT0}, {sT0}, {sT2}', f's_add_u32 {sT0}, {sT0}, 2',
                      f's_lshl_b32 {sT2}, {sT2}, 15', f's_add_u32 m0, {sWLO}, {sT2}']
            else:
                g += [f's_and_b32 {sT0}, {sRC}, 7', f's_add_u32 {sT0}, {sT0}, {sT2}', f's_lshl_b32 {sT0}, {sT0}, 2',
                      f's_lshr_b64 s[{sT0[1:]}:{sT1[1:]}], s[40:41], {sT0}', f's_and_b32 {sT0}, {sT0}, 15',
                      f's_lshl_b32 {sT2}, {sT2}, 15', f's_xor_b32 m0, {sWHI}, {sT2}']
            g += [f's_lshl_b32 {sKW2}, {sT0}, 18']
        sr = S_W2 if gi < 7 else S_WO
        for i in range(4):
            if i: g = [f's_add_u32 {sKW2}, {sKW2}, {65536 - 1024}']
            g.append(f'buffer_load_dwordx4 {vW2}, {srd(sr)}, {sKW2} offen offset:{1024*i} lds #w{gi}')
            out.append(g)
        return out
    def hq(self, gi, j):
        tab = {0: [148, 152, 156, 160], 1: [164, 168, 172, 176], 2: [180, 184, 188, 112], 3: [116, 120, 124, 128], 4: [132, 136, 140, 144],
               5: [192, 196, 200, 204], 6: [208, 212, 216, 220], 7: [224, 228, 232, 236], 8: [240, 244, 248, 252]}
        return tab[gi][j]
    def hload(self, gi):
        out = []
        for j in range(4):
            g = []
            if j == 0: g = self.grp_idx(gi) + [f's_lshl_b32 {sKX}, {sT0}, 14', f's_add_u32 {sKX}, {sKX}, {sAH2}']
            g.append(f'buffer_load_dwordx4 {q4(self.hq(gi, j))}, {vL16}, {srd(S_WS)}, {sKX} offen offset:{1024*j} sc1 #h{gi}_{j}')
            out.append(g)
        return out
    def wrd(self, gi, j, b):
        pos = self.wpos(gi)
        a0, a1 = self.WA2[[0, 0, 2, 2, 4][pos]], self.WA2[[1, 1, 3, 3, 5][pos]]
        off = [0, SLOT, 0, SLOT, 0][pos] + 8192 * j
        return [f'ds_read_b64_tr_b16 v[{b}:{b+1}], {a0} offset:{off}',
                f'ds_read_b64_tr_b16 v[{b+2}:{b+3}], {a0} offset:{off + 4096}',
                f'ds_read_b64_tr_b16 v[{b+4}:{b+5}], {a1} offset:{off}',
                f'ds_read_b64_tr_b16 v[{b+6}:{b+7}], {a1} offset:{off + 4096}']

    def cs_load(self, soff, dst):
        return [f'buffer_load_dwordx4 v[{dst}:{dst+3}], {vCSA}, {srd(S_WS)}, {soff} offen sc1',
                f'buffer_load_dwordx4 v[{dst+4}:{dst+7}], {vCSA}, {srd(S_WS)}, {soff} offen offset:16 sc1']
    def nf_build(self, cs, bias):
        return lines(f"""
        v_cvt_pk_bf16_f32 v46, v{cs}, v{cs}
        v_lshlrev_b32 v46, 16, v46
        v_sub_f32 v46, v{cs}, v46
        v_cvt_pk_bf16_f32 v{NF}, v{cs}, v46
        v_and_b32 v47, 0xffff0000, v{NF}
        v_sub_f32 v46, v46, v47
        v_cvt_pk_bf16_f32 v{NF+1}, v46, {bias}
        """)
    def epi_qk(self, acc, rreg, tag):
        o = []
        for h in range(2):
            a = acc + 8 * h
            for i in range(8): o.append(f'v_mul_f32 v{a+i}, {rreg}, v{a+i}')
            for i in range(4): o.append(f'v_cvt_pk_bf16_f32 v{a+i}, v{a+2*i}, v{a+2*i+1}')
            if h: o.append(f's_add_u32 {sSTA}, {sSTA}, 65536')
            o.append(f'buffer_store_dwordx4 {q4(a)}, {vL16}, {srd(S_WS)}, {sSTA} offen sc1 #{tag}')
        return o
    def epi_v_pre(self, tmp):
        o = lines(f"""
        s_lshr_b32 {sT2}, {sWB4K}, 5
        s_add_u32 {sT2}, {sT2}, {L_RV}
        v_lshl_add_u32 v12, {vTOK}, 2, {sT2}
        v_lshl_add_u32 v13, {vHF}, 4, {sT2}
        ds_write_b32 v12, {vR}
        """)
        for q in range(4): o.append(f'ds_read_b128 v[{tmp+4*q}:{tmp+4*q+3}], v13 offset:{32*q}')
        o += lines(f"""
        v_bfe_u32 v12, v0, 4, 1
        v_and_b32 v13, 15, v0
        v_lshl_add_u32 v13, {vHF}, 4, v13
        v_lshlrev_b32 v13, 4, v13
        v_lshl_add_u32 v12, v12, 16, v13
        """)
        return o
    def epi_v(self, acc, tmp, tag):
        o = []
        for h in range(2):
            a = acc + 8 * h
            for i in range(8): o.append(f'v_mul_f32 v{a+i}, v{tmp+8*h+i}, v{a+i}')
            for i in range(4): o.append(f'v_cvt_pk_bf16_f32 v{a+i}, v{a+2*i}, v{a+2*i+1}')
            o.append(f'buffer_store_dwordx4 {q4(a)}, v12, {srd(S_WS)}, {sSTB} offen offset:{512*h} sc1 #{tag}')
        return o
    def epi_h(self, acc, tmp, soff, tag, halves=2):
        o = []
        for half in range(halves):
            a = acc + 8 * half
            for i in range(8): o.append(f'v_mul_f32 v{tmp+i}, v{a+i}, v{a+i}')
            for i in range(8): o.append(f'v_fma_f32 v{tmp+i}, v{tmp+i}, v10, v24')
            for i in range(8): o.append(f'v_mul_f32 v{tmp+i}, v{tmp+i}, v{a+i}')
            for i in range(8): o.append(f'v_exp_f32 v{tmp+i}, v{tmp+i}')
            for i in range(8): o.append(f'v_fma_f32 v{tmp+i}, v{tmp+i}, v2, v2')
            for i in range(8): o.append(f'v_rcp_f32 v{tmp+i}, v{tmp+i}')
            for i in range(8): o.append(f'v_mul_f32 v{a+i}, v{a+i}, v{tmp+i}')
            for i in range(4): o.append(f'v_cvt_pk_bf16_f32 v{a+i}, v{a+2*i}, v{a+2*i+1}')
            o.append(f'buffer_store_dwordx4 {q4(a)}, {vL16}, {srd(S_WS)}, {soff} offen offset:{1024*half} sc1 #{tag}')
        return o
    def flag_set(self, tag, base_s, off):
        return [f'WAITVM {tag}', f'buffer_store_dword {self.vF1}, {self.vFL}, {srd(S_WS)}, {base_s} offen offset:{off} sc1']
    def u_rd(self, c0, m, nb):
        c = c0 + (m >> 4); k = m & 15
        base = ((c % 4) * SLOT & 0xffff) + 1024 * (k >> 2); s = k & 3
        b = 48 + 4 * (nb % 4)
        return [f'ds_read_b64_tr_b16 v[{b}:{b+1}], v{6+s} offset:{base}',
                f'ds_read_b64_tr_b16 v[{b+2}:{b+3}], v{6+s} offset:{base + 512}']
    def u_mfma(self, acc, m, nb):
        b = 48 + 4 * (nb % 4); x = 128 + 4 * m
        return f'{MFMA} {blk(acc)}, {q4(b)}, {q4(x)}, {blk(acc)}'
    def fl_addr(self, vT, vtmp):
        return lines(f"""
        v_ashrrev_i32 {vtmp}, 2, {vT}
        v_lshlrev_b32 {vtmp}, 14, {vtmp}
        v_and_b32 {vT}, 3, {vT}
        v_mul_u32_u24 {vT}, {FL_T}, {vT}
        v_add_u32 {vT}, {vT}, {vtmp}
        """)
    def kv_poll_setup(self, va, vt):
        return lines(f"""
        s_lshl_b32 {sT4}, {sRA}, 3
        s_sub_u32 {sT4}, {sT4}, 8
        v_add_u32 {va}, {sT4}, v0
        v_subrev_u32 {vt}, 8, {va}
        v_cmp_gt_u32 vcc, 16, v0
        v_cndmask_b32 {va}, {vt}, {va}, vcc
        """) + self.fl_addr(va, vt) + lines(f"""
        v_mov_b32 {vt}, {F_Q}
        v_cndmask_b32 {vt}, {vt}, 0, vcc
        s_lshr_b32 {sT5}, {sHEAD}, 1
        s_lshl_b32 {sT5}, {sT5}, 4
        s_add_u32 {sT5}, {sT5}, {WS_Z}
        s_lshl_b32 {sT4}, {sW}, 26
        s_add_u32 {sT5}, {sT5}, {sT4}
        v_add3_u32 {va}, {va}, {vt}, {sT5}
        v_cmp_le_u32 vcc, 24, v0
        v_mov_b32 {vt}, 0x40000000
        v_cndmask_b32 {va}, {va}, {vt}, vcc
        s_mov_b32 s68, 0xffffff
        s_cmp_eq_u32 {sRA}, 0
        s_cselect_b32 s68, 0xffff00, s68
        s_mov_b32 s69, 0
        """)
    def kv_loads(self):
        return lines(f"""
        s_add_u32 {sT5}, {sKV}, {WS_V - WS_K}
        buffer_load_dwordx4 v[112:115], {vL16}, {srd(S_WS)}, {sKV} offen sc1
        buffer_load_dwordx4 v[116:119], {vL16}, {srd(S_WS)}, {sKV} offen offset:1024 sc1
        buffer_load_dwordx4 v[32:35], {vL16}, {srd(S_WS)}, {sQO} offen sc1
        buffer_load_dwordx4 v[120:123], {vL16}, {srd(S_WS)}, {sT5} offen sc1
        buffer_load_dwordx4 v[124:127], {vL16}, {srd(S_WS)}, {sT5} offen offset:1024 sc1
        """)
    def pl_ld(self, vaddr, vdst, off=0):
        return [f'buffer_load_dword {vdst}, {vaddr}, {srd(S_WS)}, 0 offen offset:{off} sc1 #kvp']
    def pl_chk(self, vdst, mask):
        if mask == '-1': return [f'v_cmp_ne_u32 vcc, 1, {vdst}', 's_cmp_eq_u64 vcc, 0']
        return [f'v_cmp_ne_u32 vcc, 1, {vdst}', f's_andn2_b64 vcc, {mask}, vcc', f's_cmp_eq_u64 vcc, {mask}']

    def p1(self, typ):
        e = self.e
        if typ == 1:
            e(f"""
            s_lshl_b32 {sCOLC}, {sG}, 7
            s_add_u32 {sCOLA}, {sCOLC}, 1024
            s_add_u32 {sCOLB}, {sCOLC}, 2048
            s_lshr_b32 {sCOLD}, {sG}, 1
            s_add_u32 {sCOLD}, {sCOLD}, 24
            s_lshl_b32 {sCOLD}, {sCOLD}, 7
            s_add_u32 {sT4}, {sCOLA}, {SH - 2048}
            v_add_u32 v12, {sT4}, v37
            v_mov_b32 v13, v12
            """)
        else:
            e(f"""
            s_lshl_b32 {sCOLA}, {sG}, 7
            s_add_u32 {sCOLB}, {sCOLA}, 1024
            s_add_u32 {sCOLC}, {sCOLA}, 2048
            s_add_u32 {sT4}, {sCOLA}, {SH - 2048}
            v_add_u32 v12, {sT4}, v37
            v_add_u32 v13, {sT4}, v38
            """)
        def arm():
            lab = e.newlabel('NOARM')
            e(f"""
            s_or_b32 {sT0}, {sG}, {sW}
            s_cmp_lg_u32 {sT0}, 0
            s_cbranch_scc1 {lab}
            s_lshl_b32 {sT0}, {sRB}, 2
            v_lshl_add_u32 v32, v0, 26, {sT0}
            v_mov_b32 v33, 1
            """)
            saved = list(e.vm)
            e(f'buffer_store_dword v33, v32, {srd(S_DBG)}, 0 offen offset:64 sc1')
            e.vm = saved
            e.label(lab)
        def chunk_dmas(c):
            if c < 8: return self.dma1(c, typ)
            if c < 10: return self.dma2(c, c - 8, 'v22')
            if typ == 1 and c < 12: return self.dma2(c, c - 10, 'v23')
            return []
        self.stats_loads()
        e(f"""
        s_lshr_b32 {sT0}, s2, 3
        s_lshr_b32 {sT1}, s2, 6
        s_lshl1_add_u32 {sT0}, {sT1}, {sT0}
        s_and_b32 {sT0}, {sT0}, 7
        s_lshl_b32 {sROT}, {sT0}, 7
        """)
        for grp in chunk_dmas(0): self.run(grp)
        self.stamp('i0')
        if int(OPT.get('ipf', 1)): self.code_prefetch()
        self.setup(typ)
        if OPT.get('tlb'):
            lab = e.newlabel('NOTLB')
            e(f"""
            s_cmp_lg_u32 {sW}, 3
            s_cbranch_scc1 {lab}
            v_lshlrev_b32 v44, 18, v0
            v_lshlrev_b32 v46, 15, v0
            v_add_u32 v47, {SH}, v46
            """)
            saved = list(e.vm)
            e(f"""
            buffer_load_dword v40, v44, {srd(S_WS)}, 0 offen
            buffer_load_dword v41, v46, {srd(S_OUT)}, 0 offen
            buffer_load_dword v42, v47, {srd(S_W2)}, 0 offen
            buffer_load_dword v43, v47, {srd(S_WO)}, 0 offen
            buffer_load_dword v45, v46, {srd(S_B2)}, 0 offen
            """)
            e.vm = saved
            e.label(lab)
        e.wait_vm_tag('zero')
        e('s_barrier')
        if typ == 1: arm()
        c1 = chunk_dmas(1)
        fs = self.fill_stats()
        k = len(fs) // 4
        self.run(c1[0] + c1[1])
        self.run(fs[:2 * k] + c1[2] + fs[2 * k:3 * k] + c1[3] + fs[3 * k:])
        self.stamp('st')
        dq = chunk_dmas(2) + chunk_dmas(3)
        def rd1(n):
            c, s = n >> 2, n & 3
            slot = (c % 4) * SLOT
            hi = slot >> 16; base = slot & 0xffff
            xa = (80 if hi else 2) + s; wa = (84 if hi else 6) + s
            x = 128 + 4 * n; b = 48 + 8 * (n % 4)
            return [f'ds_read_b128 {q4(x)}, v{xa} offset:{base}',
                  f'ds_read_b64_tr_b16 v[{b}:{b+1}], v{wa} offset:{base + 2048}',
                  f'ds_read_b64_tr_b16 v[{b+2}:{b+3}], v{wa} offset:{base + 2048 + 512}',
                  f'ds_read_b64_tr_b16 v[{b+4}:{b+5}], v{wa} offset:{base + 3072}',
                  f'ds_read_b64_tr_b16 v[{b+6}:{b+7}], v{wa} offset:{base + 3072 + 512}']
        if OPT.get('prio'):
            lab = e.newlabel('NOPRIO')
            e(f's_cmp_eq_u32 {sNH}, {1 - int(OPT["prio"]) % 2}\ns_cbranch_scc1 {lab}\ns_setprio 1')
            e.label(lab)
        self.barrier('c0')
        self.stamp(1)
        self.auto('s1', True)
        self.run(rd1(0) + rd1(1))
        armed_chk = [f'v_cmp_ne_u32 vcc, 1, v249', 's_cmp_eq_u64 vcc, 0']
        armed_ld = [f'buffer_load_dword v249, v248, {srd(S_DBG)}, 0 offen offset:64 sc1']
        fills = {}
        fills[1] = self.fill_cs2()
        fills[5] = armed_ld
        fills[9] = [lambda: self.retry(armed_chk, armed_ld, 'ARM'),
                    f'buffer_store_dwordx2 v[240:241], v252, {srd(S_WS)}, 0 offen sc1',
                    f'buffer_store_dwordx2 v[244:245], v255, {srd(S_WS)}, 0 offen sc1']
        def warm():
            lab = e.newlabel('NOWARM')
            e(f"""
            s_cmp_gt_u32 {sW}, 1
            s_cbranch_scc1 {lab}
            s_lshl_b32 {sT2}, {sW}, 8
            s_add_u32 {sT2}, {sT2}, s2
            s_lshl_b32 {sT2}, {sT2}, 13
            s_add_u32 {sT2}, {sT2}, {SH}
            s_sub_u32 {sT3}, {sT2}, {1792 * 1024}
            s_cmp_lt_u32 {sT2}, {1792 * 1024 + SH}
            s_cselect_b32 {sT3}, 0x40000000, {sT3}
            v_lshlrev_b32 v246, 7, v0
            """)
            saved = list(e.vm)
            e(f"""
            buffer_load_dword v247, v246, {srd(S_W2)}, {sT2} offen
            buffer_load_dword v243, v246, {srd(S_WO)}, {sT3} offen
            """)
            e.vm = saved
            e.label(lab)
        WN = int(OPT.get('warm', 13))
        if WN >= 0: fills[WN] = fills.get(WN, []) + [warm]
        rowg = [f'v_lshlrev_b32 v20, 3, {vTOK}', f'buffer_load_dwordx2 v[{TF}:{TF+1}], v20, {srd(S_WS)}, {sROWG} offen sc1']
        ldA = self.cs_load(sCOLA, 32); ldB = self.cs_load(sCOLB, 40); ldC = self.cs_load(sCOLC, 88)
        GL = int(OPT.get('gl', 21))
        def gdma():
            lab = e.newlabel('NOROWG')
            e(f"""
            s_lshr_b32 {sT2}, {sWB4K}, 2
            s_add_u32 m0, {sT2}, {L_GR}
            buffer_load_dwordx4 {vL16}, {srd(S_WS)}, {sGSRC} offen sc1 lds #gr
            s_cmp_lg_u32 {sW}, 0
            s_cbranch_scc1 {lab}
            s_lshl_b32 {sT2}, {sRB}, 14
            s_add_u32 {sT2}, {sT2}, {WS_Z + Z_ROW}
            s_mov_b32 m0, {L_GR + 8192}
            """)
            saved = list(e.vm)
            e(f'buffer_load_dwordx4 {vL16}, {srd(S_WS)}, {sT2} offen sc1 lds')
            e.raw('s_waitcnt vmcnt(63)')
            e.vm = saved
            e.label(lab)
        self.gdma = gdma
        grd = lines(f"""
        s_lshl_b32 {sT2}, {sTT}, 8
        s_add_u32 {sT2}, {sT2}, {L_GR + 8192}
        v_lshl_add_u32 v20, {vTOK}, 3, {sT2}
        v_add_u32 v21, {L_GR}, {vCSA}
        ds_read_b64 v[{TF}:{TF+1}], v20
        ds_read_b128 v[32:35], v21
        ds_read_b128 v[36:39], v21 offset:16
        ds_read_b128 v[40:43], v21 offset:2048
        ds_read_b128 v[44:47], v21 offset:2064
        ds_read_b128 v[88:91], v21 offset:4096
        ds_read_b128 v[92:95], v21 offset:4112
        """)
        fills[26] = grd
        chk = lines(f"""
        v_and_b32 v20, v{TF+1}, v33
        v_and_b32 v21, v35, v37
        v_and_b32 v20, v20, v39
        v_and_b32 v21, v21, v41
        v_and_b32 v20, v20, v43
        v_and_b32 v21, v21, v45
        v_and_b32 v20, v20, v47
        v_and_b32 v21, v21, v89
        v_and_b32 v20, v20, v91
        v_and_b32 v21, v21, v93
        v_and_b32 v20, v20, v95
        v_and_b32 v20, v20, v21
        v_cmp_ne_u32 vcc, 1, v20
        s_cmp_eq_u64 vcc, 0
        """)
        pre = lines(f"""
        v_add_f32 v32, v32, v34
        v_add_f32 v36, v36, v38
        v_add_f32 v40, v40, v42
        v_add_f32 v44, v44, v46
        v_add_f32 v88, v88, v90
        v_add_f32 v92, v92, v94
        v_add_f32 v32, v32, v36
        v_add_f32 v33, v40, v44
        v_add_f32 v34, v88, v92
        v_and_b32 v2, 0xffff0000, v{TF}
        v_rcp_f32 {vR}, v2
        v_cmp_eq_u32 vcc, 0, {vHF}
        v_cndmask_b32 v{TF+1}, 0, v{TF}, vcc
        v_and_b32 v{TF}, 0xffff, v{TF+1}
        v_lshl_or_b32 v{TF}, v{TF}, 16, v{TF}
        v_mov_b32 v11, v23
        v_mov_b32 v{NF+2}, 0
        v_mov_b32 v{NF+3}, 0
        v_lshlrev_b32 {vBC}, 16, {vBC}
        v_lshlrev_b32 {vBX}, 16, {vBX}
        """)
        pre2 = lines(f"""
        v_mul_f32 v10, {vR}, {vR}
        v_mul_f32 v24, {f32(GA)}, {vR}
        v_mul_f32 v10, {sGB}, v10
        v_mul_f32 v10, v10, {vR}
        v_lshlrev_b32 v3, 26, v0
        v_mov_b32 v4, 1
        """)
        self.vFL, self.vF1 = 'v3', 'v4'
        fills[27] = [lambda: self.retry(chk, rowg + ldA + ldB + ldC, 'GR')] + pre
        fills[28] = self.nf_build(32, '0') + [f'{MFMA} {blk(accA)}, {q4(NF)}, {q4(TF)}, {blk(accA)}']
        if typ == 1:
            fills[29] = pre2 + self.nf_build(33, '0') + [f'{MFMA} {blk(accB)}, {q4(TF)}, {q4(NF)}, {blk(accB)}']
        else:
            fills[29] = pre2 + self.nf_build(33, vBX) + [f'{MFMA} {blk(accB)}, {q4(NF)}, {q4(TF)}, {blk(accB)}']
        fills[30] = self.nf_build(34, vBC) + [f'{MFMA} {blk(accC)}, {q4(NF)}, {q4(TF)}, 0']
        if typ == 1: fills[31] = self.epi_v_pre(32)
        else: fills[31] = [f'v_mul_f32 v32, {f32(0.25 * LOG2E)}, {vR}']
        for n in range(32):
            c, s = n >> 2, n & 3
            if s == 2:
                if n == 22:
                    assert not dq
                    gdma()
                if n == 26:
                    idx = max(i for i, o in enumerate(e.vm) if o.get('tag') == 'gr')
                    e._wait(vm=len(e.vm) - 1 - idx)
                self.barrier(f'c{c+1}')
                self.stamp(f'b{c+1}')
                new = chunk_dmas(c + 4)
                if n >= 26: new = [[l.replace('v23,', 'v11,') if n > 27 else l for l in g] for g in new]
                dq += new
            if n + 2 < 32: self.run(rd1(n + 2))
            elif n == 30: self.run(self.u_rd(8, 0, 0) + self.u_rd(8, 1, 1))
            else: self.run(self.u_rd(8, 2, 2))
            x = 128 + 4 * n; b = 48 + 8 * (n % 4)
            ca = '0' if n == 0 else blk(accA)
            cb = '0' if n == 0 else blk(accB)
            def pop():
                g = dq.pop(0)
                if n > 27: g = [l.replace('v23,', 'v11,') for l in g]
                self.run(g)
            self.run([f'{MFMA} {blk(accA)}, {q4(b)}, {q4(x)}, {ca}'])
            if len(dq) > 4: pop()
            if typ == 1: self.run([f'{MFMA} {blk(accB)}, {q4(x)}, {q4(b+4)}, {cb}'])
            else: self.run([f'{MFMA} {blk(accB)}, {q4(b+4)}, {q4(x)}, {cb}'])
            if dq: pop()
            self.run(fills.get(n, []))
        self.auto('s1', False)
        self.stamp(2)
        self.auto('s2', True)
        def ustream(c0, acc, ms, allms):
            o = []
            for m in ms:
                k = allms.index(m)
                if k + 3 < len(allms): o += self.u_rd(c0, allms[k + 3], k + 3)
                o.append(self.u_mfma(acc, m, k))
                if dq: o += dq.pop(0)
            return o
        def is_main(acc):
            return lambda s: isinstance(s, str) and s.startswith('v_mfma') and any(f'{blk(acc)}, v[{d}' in s for d in '456')
        allC = list(range(32))
        WG0, WG1 = self.w2_dma(0), self.w2_dma(1)
        epi3 = self.epi_h(accC, 64, sSTC, 'h')
        n3 = len(epi3)
        pollset = self.kv_poll_setup('v42', 'v43')
        if typ == 2:
            hh = self.epi_h(accB, 64, sSTB, 'hb')
            epi = self.epi_qk(accA, 'v32', 'kv') + hh[:len(hh) // 3]
            epi2 = hh[len(hh) // 3:len(hh) // 2] + self.flag_set('kv', sFLB, F_Q) + hh[len(hh) // 2:] + pollset
            self.run(ustream(8, accC, allC[0:1], allC))
            self.run(interleave(ustream(8, accC, allC[1:13], allC), epi, is_main(accC)))
            self.stamp(3)
            self.barrier('c9')
            dq += [[]] * 6
            for w in WG0 + WG1: dq.append(w)
            self.run(interleave(ustream(8, accC, allC[13:32], allC), epi2, is_main(accC)))
            self.stamp(4)
            self.run(epi3[:n3 // 3] + self.flag_set('hb', sFLB, F_HB) + epi3[n3 // 3:n3 * 3 // 4] + self.pl_ld('v42', 'v43') + epi3[n3 * 3 // 4:])
        else:
            epi = self.epi_qk(accA, vR, 'kv') + self.epi_v(accB, 32, 'kv')
            ldD = self.cs_load(sCOLD, 32)
            self.run(ustream(8, accC, allC[0:1], allC))
            self.run(interleave(ustream(8, accC, allC[1:8], allC), epi, is_main(accC)))
            self.run([f's_lshl_b32 {sT4}, {sXCH}, 4', f'v_xor_b32 {vCSA}, {sT4}, {vCSA}', f'v_add_u32 v21, {L_GR}, {vCSA}',
                      'ds_read_b128 v[32:35], v21 offset:6144', 'ds_read_b128 v[36:39], v21 offset:6160'])
            self.run(interleave(ustream(8, accC, allC[8:13], allC), pollset, is_main(accC)))
            self.stamp(3)
            self.barrier('c9')
            chkD = lines(f"""
            v_and_b32 v20, v33, v35
            v_and_b32 v20, v20, v37
            v_and_b32 v20, v20, v39
            v_cmp_ne_u32 vcc, 1, v20
            s_cmp_eq_u64 vcc, 0
            """)
            self.run(ustream(8, accC, allC[13:19], allC) + self.flag_set('kv', sFLB, F_KV))
            for w in WG0: dq += [w, []]
            self.retry(chkD, ldD, 'GD')
            nfd = ['v_add_f32 v32, v32, v34', 'v_add_f32 v36, v36, v38', 'v_add_f32 v32, v32, v36'] + self.nf_build(32, vBX) + lines(f"""
            s_sub_u32 {sT4}, {sNH}, 1
            v_and_b32 v{NF}, {sT4}, v{NF}
            v_and_b32 v{NF+1}, {sT4}, v{NF+1}
            {MFMA} {blk(accA)}, {q4(NF)}, {q4(TF)}, 0
            s_lshl1_add_u32 {sT4}, {sTT}, {sNH}
            s_lshl_b32 {sT4}, {sT4}, 12
            s_add_u32 {sT4}, {sT4}, {L_KST}
            v_add_u32 v40, {sT4}, {vL16}
            s_lshl_b32 {sT5}, {sNH}, 11
            s_sub_u32 {sT4}, {sT4}, {sT5}
            v_add_u32 v41, {sT4}, {vL16}
            s_or_b32 {sXCH}, {sXCH}, 0x10000
            """)
            self.run(interleave(ustream(8, accC, allC[19:29], allC), nfd, is_main(accC)))
            self.barrier('c11')
            self.stamp(4)
            allD = [m for m in range(32) if (m & 3) < 2]
            self.run([f'v_xor_b32 v6, {sXCH}, v6', f'v_xor_b32 v7, {sXCH}, v7'])
            self.run(self.u_rd(10, allD[0], 0) + [self.u_mfma(accC, 29, 1)] + self.u_rd(10, allD[1], 1) + [self.u_mfma(accC, 30, 2)]
                     + self.u_rd(10, allD[2], 2) + [self.u_mfma(accC, 31, 3)])
            for w in WG1: dq += [w, []]
            self.run(interleave(ustream(10, accA, allD, allD), epi3[:n3 // 2], is_main(accA)))
            xw = [f'ds_write_b128 v40, {q4(accA + 4*q)} offset:{1024*q}' for q in range(4)]
            self.run(epi3[n3 // 2:n3 * 5 // 8] + xw + self.pl_ld('v42', 'v43') + epi3[n3 * 5 // 8:n3 * 7 // 8])
            self.barrier()
            self.run(lines(f"""
            ds_read_b128 {q4(accA)}, v41
            ds_read_b128 {q4(accA+4)}, v41 offset:1024
            ds_read_b128 {q4(accA+8)}, v41 offset:4096
            ds_read_b128 {q4(accA+12)}, v41 offset:5120
            """) + epi3[n3 * 7 // 8:])
            self.run([f'v_add_f32 v{accA+i}, v{accA+i}, v{accA+8+i}' for i in range(8)])
            self.run(self.epi_h(accA, 64, sSTD, 'h', halves=1))
        idx = max(i for i, o in enumerate(e.vm) if o['dst'])
        after = e.vm[idx + 1:]
        assert all(o['tag'] == 'h' for o in after) and len(after) in (1, 2), e.vm[idx:]
        self.tail_n = len(after)
        e.vm = [e.vm[idx], after[-1]]
        assert not any(dq), dq
        e.wait_lg0(force=True)
        e.settle()
        e(f's_add_u32 {sFLB}, {sFLB}, {F_HC + (256 if typ == 2 else 0)}')
        self.auto('s2', False)
        self.stamp(5)

    def att(self):
        e = self.e
        KB = [36, 40]; VB = [44, 52]; P = 60; SB = [68, 84]; NM = 100; MK = 116; O = 132
        Q = 'v[32:35]'
        self.auto('att', True)
        self.WA2 = ['v6', 'v7', 'v12', 'v13', 'v22', 'v23']
        self.vFL, self.vF1 = 'v24', 'v25'
        self.run(lines(f"""
        v_mov_b32 v24, v3
        v_mov_b32 v25, 1
        v_bfe_u32 v39, v0, 2, 2
        v_lshl_add_u32 v38, {vHF}, 2, v39
        v_lshlrev_b32 v38, 7, v38
        v_bfe_u32 v36, v0, 4, 1
        v_bfe_u32 v37, v0, 1, 1
        v_lshl_add_u32 v36, v36, 1, v37
        v_and_b32 v37, 2, v39
        v_lshlrev_b32 v37, 1, v37
        v_xor_b32 v36, v36, v37
        v_lshl_add_u32 v38, v36, 4, v38
        v_and_b32 v37, 1, v0
        v_lshl_add_u32 v38, v37, 3, v38
        s_lshl_b32 {sT3}, {sKQ}, 10
        v_add_u32 v6, {sT3}, v38
        v_add_u32 v22, 0x20000, v6
        v_add_u32 v6, {sFLIP}, v6
        v_xor_b32 v7, 64, v6
        v_xor_b32 v12, 0x10000, v6
        v_xor_b32 v13, 0x10000, v7
        v_xor_b32 v23, 64, v22
        s_mov_b32 s40, 0x41065410
        s_mov_b32 s41, 5
        """))
        e.wait_vm_tag('kvp')
        self.wave0(lambda: self.retry(self.pl_chk('v43', sMSK), self.pl_ld('v42', 'v43'), 'KV'))
        e('s_barrier')
        self.run(self.kv_loads())
        self.stamp(6)
        W = {gi: self.w2_dma(gi) for gi in range(2, 6)}
        H = {gi: self.hload(gi) for gi in range(9)}
        k = 0
        for gi in range(2):
            for j in range(4):
                self.run(self.wrd(gi, j, 192 + 8 * k)); k += 1
                if j & 1: self.run(W[2].pop(0))
        self.run(lines(f"""
        v_lshlrev_b32 v20, 2, {vHF}
        v_sub_u32 v20, {vTOK}, v20
        v_mov_b32 v21, {NEGBIG}
        s_lshr_b32 {sT2}, {sWB4K}, 2
        s_add_u32 {sT2}, {sT2}, {L_KST}
        v_add_u32 v2, {sT2}, {vL16}
        s_lshr_b32 {sT3}, {sWB4K}, 2
        v_add_u32 v41, {sT3}, v2
        v_and_b32 v3, 15, v0
        v_lshl_add_u32 v3, {vHF}, 4, v3
        v_lshlrev_b32 v3, 4, v3
        v_add_u32 v3, {sT2}, v3
        v_mov_b32 v17, 0
        """))
        pairs = ['vcc', 's[86:87]', 's[88:89]']
        ml = []
        for r in range(16):
            c = 8 * (r >> 2) + (r & 3)
            ml.append(f'v_cmp_le_i32 {pairs[r % 3]}, {c}, v20')
            if r >= 2: ml.append(f'v_cndmask_b32 v{SB[0]+r-2}, v21, 0, {pairs[(r - 2) % 3]}')
        for r in (14, 15): ml.append(f'v_cndmask_b32 v{SB[0]+r}, v21, 0, {pairs[r % 3]}')
        self.run(ml)
        self.run([f'v_mov_b32 v{r}, {vONE}' for r in list(range(8, 12)) + list(range(44, 60))])
        self.run([f's_lshl_b32 {sT2}, {sR2}, 1', f'v_add_u32 v28, {sT2}, {vHF}'] + self.fl_addr('v28', 'v29') + lines(f"""
        s_lshl_b32 {sT2}, {sW}, 26
        s_add_u32 {sT2}, {sT2}, {WS_Z}
        v_lshl_add_u32 v28, {vTOK}, 4, v28
        v_add_u32 v28, {sT2}, v28
        s_mov_b32 s90, 0xffff
        s_mov_b32 s91, 0xffff
        v_mov_b32 v29, {L_KST}
        """) + self.pl_ld('v28', 'v30', F_HB))
        self.run(self.flag_set('h', sFLB, 0))
        self.run(lines(f"""
        ds_write_b128 v41, v[112:115]
        ds_write_b128 v41, v[116:119] offset:1024
        ds_write_b128 v41, v[120:123] offset:16384
        ds_write_b128 v41, v[124:127] offset:17408
        """))
        self.run([f'v_sub_f32 v{MK+r}, v21, v{SB[0]+r}' for r in range(16)])
        def hb():
            e(f'ds_write_b32 v29, v17')
            self.retry(self.pl_chk('v30', sEX), self.pl_ld('v28', 'v30', F_HB), 'HB')
            e.wait_lg0()
        self.wave0(hb)
        self.barrier()
        self.stamp(7)
        def kread(i, b): self.run([f'ds_read_b128 {q4(b)}, v2 offset:{1024*i}'])
        def vread(i, b):
            e(f"""
            s_mov_b64 exec, {sEX}
            ds_read_b128 {q4(b)}, v3 offset:{16384 + 1024*i}
            ds_read_b128 {q4(b+4)}, v3 offset:{16384 + 1024*i+512}
            s_mov_b64 exec, -1
            """)
        def hc0():
            def f():
                self.retry(self.pl_chk('v30', '-1'), self.pl_ld('v28', 'v30', F_HC), 'HC')
                e(f'ds_write_b32 v29, v25')
            self.wave0(f)
        def hcw():
            lp = e.newlabel('HCW'); lo = e.newlabel('HCD')
            e.settle()
            e(f's_mov_b32 {sCNT}, 0')
            e.label(lp)
            e.raw(f'ds_read_b32 v21, v29')
            e.raw(f's_add_u32 {sCNT}, {sCNT}, 1')
            e.raw('s_waitcnt lgkmcnt(0)'); e.lg = []
            e.raw(f'v_readfirstlane_b32 {sT2}, v21')
            e.raw(f's_cmp_gt_u32 {sCNT}, 0x1000000')
            e.raw(f's_cbranch_scc1 {lo}')
            e.raw(f's_cmp_eq_u32 {sT2}, 0')
            e.raw(f's_cbranch_scc1 {lp}')
            e.label(lo)
            e.t += 6
        acts = [
            [H[0][0] + H[0][1], H[0][2] + H[0][3], W[3][0]],
            [W[3][1], W[3][2], W[3][3]],
            [H[1][0] + H[1][1], H[1][2] + H[1][3], W[4][0]],
            [W[4][1], W[4][2], W[4][3]],
            [self.pl_ld('v28', 'v30', F_HC), W[5][0], W[5][1]],
            [W[5][2], W[5][3]],
            [[hc0]],
            [[hcw], H[2][0], H[2][1], H[2][2]],
            [],
        ]
        self.Hrest = [H[2][3]] + H[3] + H[4]
        self.H = H
        kread(8, KB[0]); kread(7, KB[1])
        e(f'{MFMA} {blk(SB[0])}, {q4(KB[0])}, {Q}, {blk(SB[0])}')
        vread(8, VB[0])
        e(f'v_max3_f32 v20, v{SB[0]}, v{SB[0]+1}, v{SB[0]+2}')
        e(f'v_max3_f32 v21, v{SB[0]+3}, v{SB[0]+4}, v{SB[0]+5}')
        for j in range(3, 8):
            e(f'v_max3_f32 v{20 + (j & 1)}, v{SB[0]+2*j}, v{SB[0]+2*j+1}, v{20 + (j & 1)}')
        lp2 = e.newlabel('PASS2')
        e.label(lp2)
        e(f"""
        v_max_f32 v20, v20, v21
        v_mov_b32 v21, v20
        v_permlane32_swap_b32 v20, v21
        v_max_f32 v20, v20, v21
        v_cvt_pk_bf16_f32 v21, v20, v20
        v_lshlrev_b32 v21, 16, v21
        v_sub_f32 v21, v21, v20
        v_cvt_pk_bf16_f32 v16, -v20, v21
        v_cmp_eq_u32 vcc, 0, {vHF}
        v_cndmask_b32 v16, 0, v16, vcc
        {MFMA} {blk(SB[0])}, v[8:11], v[16:19], {blk(SB[0])}
        {MFMA} {blk(NM)}, v[8:11], v[16:19], 0
        """)
        tails = {i: e.newlabel(f'TAIL{i}') for i in range(1, 9)}
        lend2 = e.newlabel('P2END')
        for n, i in enumerate(range(8, -1, -1)):
            cur = SB[n % 2]; nx = SB[(n + 1) % 2]; V = VB[n % 2]
            A = list(acts[n])
            if i > 0:
                if i - 1 == 0:
                    e(f'{MFMA} {blk(nx)}, v[8:11], v[16:19], {blk(MK)}')
                    e(f'{MFMA} {blk(nx)}, {q4(KB[(n + 1) % 2])}, {Q}, {blk(nx)}')
                else:
                    e(f'{MFMA} {blk(nx)}, {q4(KB[(n + 1) % 2])}, {Q}, {blk(NM)}')
                if i > 1: kread(i - 2, KB[n % 2])
                vread(i - 1, VB[(n + 1) % 2])
            for kb in range(2):
                for j in range(8):
                    e(f'v_exp_f32 v{cur+8*kb+j}, v{cur+8*kb+j}')
                    if j == 3 and A: self.run(A.pop(0))
                for j in range(4): e(f'v_cvt_pk_bf16_f32 v{P+4*kb+j}, v{cur+8*kb+2*j}, v{cur+8*kb+2*j+1}')
                if kb == 0 and A: self.run(A.pop(0))
                c = '0' if (n == 0 and kb == 0) else blk(O)
                e(f'{MFMA} {blk(O)}, {q4(V+4*kb)}, {q4(P+4*kb)}, {c}')
            for a in A: self.run(a)
            self.stamp(f't{n}')
            if i > 0:
                e(f's_cmp_eq_u32 {sIMIN}, {i}\ns_cbranch_scc1 {tails[i]}')
                if i == 8: exit_st = self.snap()
        e(f's_branch {lend2}')
        self.auto('att', False)
        st = self.snap()
        self.restore(exit_st)
        for i in range(8, 0, -1):
            e.label(tails[i])
            e.settle()
            for a in acts[8 - i + 1]: self.run(a)
        self.restore(st)
        e.label(lend2)
        e.wait_lg0(force=True)
        e.nop(12)
        lok = e.newlabel('SMOK')
        e(f"""
        v_mov_b32 v21, {f32(2.0**100)}
        v_cmp_nle_f32 vcc, v{O+8}, v21
        s_cmp_eq_u64 vcc, 0
        s_cbranch_scc1 {lok}
        s_cmp_lg_u32 {sREDO}, 0
        s_cbranch_scc1 {lok}
        s_mov_b32 {sREDO}, 1
        """)
        st = self.snap()
        e.raw('s_waitcnt vmcnt(0) lgkmcnt(0)'); e.vm = []; e.lg = []
        e(f'v_mov_b32 v20, {NEGBIG}\nv_mov_b32 v21, {NEGBIG}\nv_mov_b32 v30, {NEGBIG}')
        for i in range(0, 9):
            lsk = e.newlabel('RSK')
            if i < 8: e(f's_cmp_gt_u32 {sIMIN}, {i}\ns_cbranch_scc1 {lsk}')
            kread(i, KB[0])
            if i == 8:
                for r in range(16): e(f'v_sub_f32 v{SB[0]+r}, v30, v{MK+r}')
            c = blk(MK) if i == 0 else (blk(SB[0]) if i == 8 else '0')
            e(f'{MFMA} {blk(SB[0])}, {q4(KB[0])}, {Q}, {c}')
            for j in range(8):
                e(f'v_max3_f32 v{20 + (j & 1)}, v{SB[0]+2*j}, v{SB[0]+2*j+1}, v{20 + (j & 1)}')
            e.settle()
            e.label(lsk)
        kread(7, KB[1]); vread(8, VB[0])
        e('v_mov_b32 v30, 1')
        e.raw('s_waitcnt lgkmcnt(0)'); e.lg = []
        e.settle()
        e(f's_branch {lp2}')
        self.restore(st)
        e.label(lok)
        e(f'v_rcp_f32 v20, v{O+8}')
        for j in range(8): e(f'v_mul_f32 v{O+j}, v20, v{O+j}')
        for j in range(4): e(f'v_cvt_pk_bf16_f32 v{P+j}, v{O+2*j}, v{O+2*j+1}')
        e(f'buffer_store_dwordx4 {q4(P)}, {vL16}, {srd(S_WS)}, {sOST} offen sc1 #o')
        self.stamp(8)

    def g2(self):
        e = self.e
        ACC = [80, 96]
        H = self.H
        self.auto('g2', True)
        first = [True]
        def mm(gi, j, b):
            hb = self.hq(gi, j)
            assert OPT.get('drop_g2') or OPT.get('drop_att') or any(f'buffer_load_dwordx4 {q4(hb)}, {vL16}, {srd(S_WS)}, {sKX} offen' in l for l in e.lines), (gi, j)
            c = ['0' if first[0] else blk(ACC[nt]) for nt in range(2)]; first[0] = False
            return [f'{MFMA} {blk(ACC[nt])}, {q4(b+4*nt)}, {q4(hb)}, {c[nt]}' for nt in range(2)]
        vq = list(self.Hrest)
        k = 0
        for gi in range(2):
            for j in range(4):
                for l in mm(gi, j, 192 + 8 * k):
                    self.run([l])
                    if vq: self.run(vq.pop(0))
                k += 1
                if k == 4: self.run(self.flag_set('o', sFLO, 0))
        self.run(lines(f"""
        v_lshrrev_b32 v35, 3, v0
        v_and_b32 v36, 7, v0
        s_lshl3_add_u32 {sT3}, {sR2}, {sW}
        s_lshl_b32 {sT3}, {sT3}, 3
        v_add_u32 v37, {sT3}, v35
        s_lshl_b32 {sT4}, {sC64}, 7
        v_lshl_add_u32 v38, v36, 4, {sT4}
        v_lshl_add_u32 v8, v37, 10, v38
        """))
        e.wait_lg0(force=True)
        e('s_barrier')
        self.stamp(9)
        WB = [48, 56, 64, 72]
        steps = [(gi, j) for gi in range(2, 9) for j in range(4)]
        self.run(self.wrd(2, 0, WB[0]) + self.wrd(2, 1, WB[1]))
        W6 = self.w2_dma(6)
        vq += [W6[0], W6[1], W6[2], W6[3]] + H[5] + H[6]
        OPL = int(OPT.get('opl', 10))
        bar = {3: (None, 7), 7: (None, 8), 14: ('w6', None), 18: ('w8', None)}
        for k, (gi, j) in enumerate(steps):
            if k in bar:
                tag, rel = bar[k]
                while tag and vq and any(isinstance(l, str) and f'#{tag}' in l for x in vq for l in x): self.run(vq.pop(0))
                if k == 14:
                    while vq: self.run(vq.pop(0))
                    self.wave0(lambda: self.retry(self.pl_chk('v30', '-1'), self.pl_ld('v28', 'v30', F_O), 'OC'))
                self.barrier(tag)
                self.stamp(f'g{k}')
                if rel: vq += self.w2_dma(rel)
                if k == 14: vq = H[7] + H[8]
            if k == OPL: self.run(self.pl_ld('v28', 'v30', F_O))
            if k == 19:
                vq.append([f'buffer_load_dwordx4 v[40:43], v8, {srd(S_X)}, 0 offen', f'buffer_load_dwordx4 v[44:47], v38, {srd(S_B2)}, 0 offen'])
            if k + 2 < len(steps): self.run(self.wrd(*steps[k + 2], WB[(k + 2) % 4]))
            need = [f'#h{a}_{b}' for (a, b) in steps[k:k + 3]]
            while vq and any(isinstance(l, str) and nd in l for x in vq for l in x for nd in need): self.run(vq.pop(0))
            for l in mm(gi, j, WB[k % 4]):
                self.run([l])
                if vq: self.run(vq.pop(0))
        assert not vq, vq
        self.stamp(11)
        PS = 1056
        self.run(lines(f"""
        s_lshl1_add_u32 {sT4}, {sKQ}, {sNH}
        s_mul_i32 {sT4}, {sT4}, {8 * 1024}
        s_add_u32 {sT4}, {sT4}, {sFLIP}
        v_add_u32 v9, {sT4}, {vL16}
        """))
        for nt in range(2):
            for q in range(4):
                pl = nt * 4 + q
                self.run([f'v_xor_b32 v10, {pl << 5}, v9', f'ds_write_b128 v10, v[{ACC[nt]+4*q}:{ACC[nt]+4*q+3}] offset:{pl * 1024}'])
        self.run(lines(f"""
        s_lshl_b32 {sT4}, {sKQ}, 7
        s_lshl_b32 {sT3}, {sNH}, 13
        s_add_u32 {sT4}, {sT4}, {sT3}
        s_add_u32 {sT4}, {sT4}, {sFLIP}
        v_lshl_add_u32 v9, v35, 4, {sT4}
        v_lshlrev_b32 v10, 5, v36
        v_xor_b32 v9, v9, v10
        v_lshl_add_u32 v9, v36, 10, v9
        """))
        for j in range(4):
            self.run(lines(f"""
            v_lshlrev_b32 v{112+2*j}, 16, v{40+j}
            v_and_b32 v{113+2*j}, 0xffff0000, v{40+j}
            v_lshlrev_b32 v{120+2*j}, 16, v{44+j}
            v_and_b32 v{121+2*j}, 0xffff0000, v{44+j}
            """))
        self.run([f'v_add_f32 v{112+j}, v{112+j}, v{120+j}' for j in range(8)])
        self.barrier()
        for kq in range(4):
            for hf in range(2):
                b = 48 + 8 * kq + 4 * hf
                self.run([f'ds_read_b128 v[{b}:{b+3}], v9 offset:{kq * 16384 + hf * 512}'])
        for j in range(8): self.run([f'v_add_f32 v{112+j}, v{112+j}, v{48+j}'])
        for j in range(8): self.run([f'v_add_f32 v{56+j}, v{56+j}, v{64+j}'])
        for j in range(8): self.run([f'v_add_f32 v{112+j}, v{112+j}, v{72+j}'])
        for j in range(8): self.run([f'v_add_f32 v{112+j}, v{112+j}, v{56+j}'])
        for j in range(4): self.run([f'v_cvt_pk_bf16_f32 v{48+j}, v{112+2*j}, v{112+2*j+1}'])
        e(f'buffer_store_dwordx4 v[48:51], v8, {srd(S_OUT)}, 0 offen')
        self.auto('g2', False)
        self.stamp(12)

    def prof_out(self):
        e = self.e
        e(f"""
        s_lshl3_add_u32 {sT0}, s2, {sW}
        s_lshl_b32 {sT0}, {sT0}, 8
        s_add_u32 {sT0}, {sT0}, {WS_PROF}
        v_lshlrev_b32 v2, 2, v0
        buffer_store_dword v31, v2, {srd(S_WS)}, {sT0} offen
        """)

    def build(self):
        e = self.e
        if self.prof:
            e.raw('s_memrealtime s[6:7]')
            e.raw('s_memtime s[4:5]')
            e.raw('s_waitcnt lgkmcnt(0)')
            e.raw('s_mov_b32 s7, s4')
            e.raw('v_mov_b32 v31, 0')
        self.prologue()
        e(f"""
        s_cmp_eq_u32 {sTYPE}, 1
        s_cbranch_scc1 L_type2
        """)
        st = self.snap()
        self.p1(1)
        e('s_branch L_att')
        self.restore(st)
        e.label('L_type2')
        self.p1(2)
        e.label('L_att')
        if self.stop_after != 'p1':
            self.att()
            if self.stop_after != 'att':
                self.g2()
        if self.prof:
            e.raw('v_writelane_b32 v31, s6, 63')
            e.raw('v_writelane_b32 v31, s7, 60')
            e.raw('s_memtime s[4:5]')
            e.raw('s_memrealtime s[64:65]')
            e.raw('s_waitcnt lgkmcnt(0)')
            e.raw('s_sub_u32 s4, s4, s7')
            e.raw('v_writelane_b32 v31, s4, 62')
            e.raw('v_writelane_b32 v31, s64, 61')
            self.prof_out()
        e.label('L_end')
        e.raw('s_endpgm')
        hdr = open('cdna_kernels/' + NAME + '.s.ref').read().split('\n')
        cm = [l for l in hdr if l.startswith(';') and '@launch' not in l]
        out = '\n'.join(cm) + f'\n; @launch grid=(256,1,1) block=(512,1,1) lds={LDS_BYTES}\n'
        out += f""".amdgcn_target "amdgcn-amd-amdhsa--gfx950"
.text
.globl {NAME}_kernel
.p2align 8
.type {NAME}_kernel,@function
{NAME}_kernel:
"""
        out += e.text()
        out += f""".section .rodata,"a"
.p2align 6
.amdhsa_kernel {NAME}_kernel
  .amdhsa_next_free_vgpr 256
  .amdhsa_next_free_sgpr 102
  .amdhsa_accum_offset 256
  .amdhsa_group_segment_fixed_size 0
  .amdhsa_kernarg_size 88
  .amdhsa_user_sgpr_count 2
  .amdhsa_user_sgpr_kernarg_segment_ptr 1
  .amdhsa_system_sgpr_workgroup_id_x 1
.end_amdhsa_kernel
"""
        return out

if __name__ == '__main__':
    import argparse
    ap = argparse.ArgumentParser()
    ap.add_argument('-o', default='k.s')
    ap.add_argument('--stop', default=None)
    ap.add_argument('--prof', default=None)
    ap.add_argument('--cyc', action='store_true')
    ap.add_argument('--opt', default='')
    a = ap.parse_args()
    for kv in a.opt.split(','):
        if kv: OPT[kv.split('=')[0]] = kv.split('=')[1]
    g = G(stop_after=a.stop, prof=a.prof.split(',') if a.prof else None, cyc=a.cyc)
    txt = g.build()
    open(a.o, 'w').write(txt)
    if g.prof: open(a.o + '.names', 'w').write(','.join(g.prof))
    print('instrs', g.e.ninstr, 'nops', g.e.nnops)
```

```python
import sys, math, struct, copy
from em import Em, lines, interleave

NAME = "parallel_sum__sliding_block__dense_activation_gelu__prompt"
OPT = {}
WS_AH = 0
AH_T = 144 * 1024
WS_K = 0x900000
WS_V = 0xB00000
WS_Q = 0xD00000
WS_Z = 0xF00000
FL_T = 1792
F_KV, F_Q, F_HB, F_HC, F_O = 0, 256, 512, 768, 1280
Z_ROW = 7168
Z_CSG = 8192
WS_PROF = 0x1000000
WS_SIZE = 0x1100000
SH = 4096
SLOT = 32768
L_KST = 131072
L_VST = 147456
L_CSP = 147456
L_RV = 149504
L_GR = 131072
L_OK = 163824
LDS_BYTES = 163840

def f32(x): return struct.unpack('<I', struct.pack('<f', x))[0]
LOG2E = 1.4426950408889634
GA = -2.0 * math.sqrt(2.0 / math.pi) * LOG2E
GB = GA * 0.044715
NEGBIG = f32(-1e30)
ONES = 0x3f803f80

S_X, S_QKV, S_W1, S_W2, S_WO, S_WS, S_OUT, S_DBG, S_B1, S_B2 = [8 + 4 * i for i in range(10)]
S_TMP = 80
def srd(b): return f's[{b}:{b+3}]'
_names = """sW sNH sTT sRB sG sT sTYPE sWB4K sCOLA sCOLB sCOLC sCOLD sT0 sT1 sKX sKW""".split()
for _i, _n in enumerate(_names): globals()[_n] = f's{48+_i}'
sT2, sT3, sT4, sT5 = 's86', 's87', 's88', 's89'
sEX = 's[90:91]'; sROW = 's90'
sFLB = 's92'; sGB = 's93'; sCNT = 's94'; sR2 = 's95'; sC64 = 's96'; sXCH = 's97'; sQTR = 's98'; sHEAD = 's99'; sKW2 = 's100'; sUID = 's101'
sPIT = 's3'; sROT = 's3'; sGSRC = 's98'; sDK = 's78'
sTA = 's64'; sRA = 's65'; sKV = 's66'; sQO = 's67'; sMSK = 's[68:69]'; sT2G = 's70'; sAH2 = 's71'; sREDO = 's72'
sRC = 's73'; sOST = 's74'; sIMIN = 's75'; sKQ = 's76'; sFLO = 's77'; sFLIP = 's78'; sWLO = 's79'
sSTA = 's80'; sSTB = 's81'; sSTC = 's82'; sSTD = 's83'; sWHI = 's84'; sROWG = 's85'
vW2 = 'v1'; vONE = 'v14'; vL16 = 'v15'; TF = 16; NF = 20; vR = 'v25'; vTOK = 'v26'; vHF = 'v27'
vBC = 'v28'; vBX = 'v29'; vCSA = 'v30'
accC, accA, accB = 80, 96, 112
def blk(b): return f'v[{b}:{b+15}]'
def q4(b): return f'v[{b}:{b+3}]'
MFMA = 'v_mfma_f32_32x32x16_bf16'
PQ, PH = 3072, 3584

class G:
    def __init__(self, stop_after=None, prof=None, cyc=False):
        self.e = Em()
        self.stop_after = stop_after
        self.prof = prof
        self.cyc = cyc
        self.auto_on = False; self.auto_n = int(OPT.get('auton', 40)); self.auto_idx = 1; self.auto_last = 0

    def stamp(self, name):
        if not self.prof: return
        name = str(name)
        if name not in self.prof: return
        idx = self.prof.index(name)
        e = self.e
        e.raw('s_memtime s[4:5]' if self.cyc else 's_memrealtime s[4:5]')
        e.raw('s_waitcnt lgkmcnt(0)'); e.lg = []
        e.raw(f'v_writelane_b32 v31, s4, {idx}'); e.t += 3
    def snap(self):
        return copy.deepcopy({k: v for k, v in self.e.__dict__.items() if k != 'lines'})
    def restore(self, s):
        uid = self.e.uid; ni = self.e.ninstr; nn = self.e.nnops
        self.e.__dict__.update(copy.deepcopy(s)); self.e.uid = uid; self.e.ninstr = ni; self.e.nnops = nn
    def run(self, ls):
        for l in ls:
            if callable(l): l(); continue
            self.e.I(l)
            if self.auto_on and self.e.ninstr - self.auto_last >= self.auto_n and not l.startswith(('s_add_u32 m0', 's_cmp', 'v_cmp', 's_mov_b64 exec', 'ds_read', 's_and_b64')) and self.auto_idx < 46:
                self.auto_last = self.e.ninstr
                if f'x{self.auto_idx}' not in self.prof: self.prof.append(f'x{self.auto_idx}')
                self.e.comment(f'AUTO {self.auto_idx}')
                self.stamp(f'x{self.auto_idx}')
                self.auto_idx += 1
    def auto(self, name, on):
        for ph in name, {'s1': 'p1', 's2': 'p1'}.get(name, name):
            if OPT.get('drop_' + ph): self.e.drop = OPT['drop_' + ph].replace('+', '|') if on else None
        if OPT.get('auto') == name:
            self.auto_on = on; self.auto_last = self.e.ninstr
            if on: self.auto_idx = 1
    def mk(self, b, lo, size, shift=0):
        if shift:
            self.e(f"""
            s_sub_u32 s{b}, s{lo}, {shift}
            s_subb_u32 s{b+1}, s{lo+1}, 0
            s_and_b32 s{b+1}, s{b+1}, 0xffff
            s_mov_b32 s{b+2}, {size + shift}
            s_mov_b32 s{b+3}, 0x20000
            """)
        else:
            self.e(f"""
            s_mov_b32 s{b}, s{lo}
            s_and_b32 s{b+1}, s{lo+1}, 0xffff
            s_mov_b32 s{b+2}, {size}
            s_mov_b32 s{b+3}, 0x20000
            """)
    def retry(self, check_lines, reload_lines, name):
        e = self.e
        lok = e.newlabel(name + 'OK'); lp = e.newlabel(name + 'LP')
        if OPT.get('nochk') and name != 'ARM': return
        ao = self.auto_on; self.auto_on = False
        self.run(check_lines)
        e(f's_cbranch_scc1 {lok}\ns_mov_b32 {sCNT}, 0')
        e.label(lp)
        st = self.snap()
        e.settle()
        e('s_sleep 2')
        self.run(reload_lines)
        e.raw('s_waitcnt vmcnt(0)'); e.vm = []
        e(f's_add_u32 {sCNT}, {sCNT}, 1')
        if self.prof:
            sites = ['ARM', 'GR', 'GD', 'KV', 'HB', 'HC', 'OC']
            e.raw(f'v_writelane_b32 v31, {sCNT}, {50 + sites.index(name)}')
        e(f's_cmp_gt_u32 {sCNT}, 0x40000\ns_cbranch_scc1 {lok}')
        self.run(check_lines)
        e(f's_cbranch_scc0 {lp}')
        e.settle()
        self.restore(st)
        e.label(lok)
        self.auto_on = ao
    def wave0(self, fn):
        e = self.e
        lab = e.newlabel('W0')
        e.settle()
        e(f's_cmp_lg_u32 {sW}, 0\ns_cbranch_scc1 {lab}')
        st = self.snap()
        fn()
        e.settle()
        self.restore(st)
        e.label(lab)
    def barrier(self, tag=None):
        if tag: self.e.wait_vm_tag(tag)
        self.e.wait_lg0(); self.e('s_barrier')

    def prologue(self):
        e = self.e
        e(f"""
        s_cmp_ge_u32 s2, 256
        s_cbranch_scc1 L_end
        s_load_dwordx16 s[64:79], s[0:1], 0
        s_load_dwordx4 s[80:83], s[0:1], 64
        s_load_dwordx2 s[84:85], s[0:1], 80
        v_lshrrev_b32 v1, 6, v0
        v_and_b32 v0, 63, v0
        v_readfirstlane_b32 {sW}, v1
        s_and_b32 {sT0}, s2, 7
        s_lshr_b32 {sT1}, s2, 3
        s_and_b32 {sRB}, {sT0}, 1
        s_and_b32 {sT2}, {sT1}, 7
        s_lshl3_add_u32 {sRB}, {sRB}, {sT2}
        s_lshr_b32 {sTYPE}, {sT1}, 4
        s_and_b32 {sG}, {sT0}, 6
        s_bfe_u32 {sT4}, {sT1}, 0x10003
        s_add_u32 {sG}, {sG}, {sT4}
        s_lshr_b32 {sNH}, {sW}, 2
        s_lshl1_add_u32 {sTT}, {sNH}, {sW}
        s_and_b32 {sTT}, {sTT}, 3
        s_lshl2_add_u32 {sT}, {sRB}, {sTT}
        s_lshl_b32 {sWB4K}, {sW}, 12
        s_and_b32 {sT2}, {sT0}, 1
        s_lshl_b32 {sT2}, {sT2}, 5
        s_add_u32 {sT2}, {sT2}, {sT1}
        s_and_b32 {sQTR}, {sT2}, 3
        s_lshr_b32 {sT2}, {sT2}, 2
        s_lshr_b32 {sT3}, {sT0}, 1
        s_lshr_b32 {sUID}, {sT2}, 1
        s_and_b32 {sT4}, {sT2}, 1
        s_lshl3_add_u32 {sUID}, {sUID}, {sT4}
        s_lshl1_add_u32 {sUID}, {sT3}, {sUID}
        s_add_u32 {sT4}, {sT3}, 48
        s_cmp_eq_u32 {sT2}, 12
        s_cselect_b32 {sUID}, {sT4}, {sUID}
        s_cmp_gt_u32 {sT2}, 12
        s_cselect_b32 {sUID}, 52, {sUID}
        s_and_b32 {sROW}, {sT0}, 1
        s_lshl2_add_u32 {sROW}, {sROW}, {sT3}
        s_lshl_b32 {sROW}, {sROW}, 5
        s_add_u32 {sROW}, {sROW}, {sT1}
        s_lshl3_add_u32 {sROW}, {sROW}, {sW}
        s_movk_i32 {sPIT}, {PQ}
        s_cmp_ge_u32 {sUID}, 24
        s_cselect_b32 {sPIT}, {PH}, {sPIT}
        s_and_b32 {sT4}, {sT1}, 3
        s_lshl2_add_u32 {sR2}, {sT0}, {sT4}
        s_lshr_b32 {sC64}, {sT1}, 2
        s_and_b32 {sHEAD}, s2, 31
        """)
        e(f"""
        v_lshrrev_b32 v32, 3, v0
        v_and_b32 v33, 7, v0
        v_lshlrev_b32 {vL16}, 4, v0
        v_mov_b32 {vONE}, {ONES}
        s_lshl_b32 {sT5}, {sW}, 4
        s_lshl_b32 {sT4}, {sRB}, 7
        s_add_u32 {sT4}, {sT4}, {sT5}
        v_add_u32 v34, {sT4}, v32
        v_lshrrev_b32 v35, 1, v32
        v_xor_b32 v35, v35, v33
        v_lshlrev_b32 v35, 4, v35
        v_lshl_add_u32 v10, v34, 10, v35
        v_xor_b32 v11, 64, v10
        v_add_u32 v11, {8192 - 1024}, v11
        v_and_b32 v35, 2, v32
        v_lshlrev_b32 v35, 1, v35
        v_xor_b32 v35, v35, v33
        v_lshlrev_b32 v35, 4, v35
        v_add_u32 v34, {sT5}, v32
        v_mad_u32_u24 v20, v34, {sPIT}, v35
        s_lshl_b32 {sT5}, {sW}, 3
        v_add_u32 v36, {sT5}, v32
        v_mul_u32_u24 v37, {PQ}, v36
        v_add_u32 v37, v37, v35
        v_mul_u32_u24 v38, {PH}, v36
        v_add_u32 v38, v38, v35
        v_lshl_add_u32 {vW2}, v36, 10, v35
        s_lshl_b32 {sT4}, {sC64}, 7
        s_add_u32 {sT4}, {sT4}, {SH}
        v_add_u32 {vW2}, {sT4}, {vW2}
        """)
        e.wait_lg0()
        self.mk(S_X, 64, 2048 * 1024)
        self.mk(S_QKV, 66, 512 * PQ, SH)
        self.mk(S_W1, 72, 512 * PH, SH)
        self.mk(S_WS, 84, WS_SIZE)
        self.mk(S_OUT, 80, 2048 * 1024)
        self.mk(S_DBG, 82, 256)
        self.stamp('ka')
        lab = e.newlabel('NORST')
        e(f"""
        s_or_b32 {sT0}, {sG}, {sTYPE}
        s_cmp_lg_u32 {sT0}, 0
        s_cbranch_scc1 {lab}
        s_lshl3_add_u32 {sT0}, {sRB}, {sW}
        s_lshl_b32 {sT0}, {sT0}, 11
        s_add_u32 {sT0}, {sT0}, {WS_Z}
        v_mov_b32 v40, 0
        v_mov_b32 v41, 0
        v_mov_b32 v42, 0
        v_mov_b32 v43, 0
        buffer_store_dwordx4 v[40:43], {vL16}, {srd(S_WS)}, {sT0} offen sc1 #zero
        buffer_store_dwordx4 v[40:43], {vL16}, {srd(S_WS)}, {sT0} offen offset:1024 sc1 #zero
        """)
        e.settle()
        e.label(lab)

    def stats_loads(self):
        self.e(f"""
        s_lshl_b32 {sT0}, {sROW}, 10
        buffer_load_dwordx4 v[240:243], {vL16}, {srd(S_X)}, {sT0} offen
        s_cmp_ge_u32 {sUID}, 24
        s_cselect_b32 s{S_TMP}, s{S_W1}, s{S_QKV}
        s_cselect_b32 s{S_TMP+1}, s{S_W1+1}, s{S_QKV+1}
        s_cselect_b32 s{S_TMP+2}, s{S_W1+2}, s{S_QKV+2}
        s_mov_b32 s{S_TMP+3}, 0x20000
        s_cselect_b32 {sT1}, 24, 0
        s_sub_u32 {sT1}, {sUID}, {sT1}
        s_lshl_b32 {sT1}, {sT1}, 7
        s_lshl_b32 {sT0}, {sQTR}, 7
        s_mul_i32 {sT0}, {sT0}, {sPIT}
        s_add_u32 {sT0}, {sT0}, {sT1}
        s_add_u32 {sT0}, {sT0}, {SH}
        s_lshl3_add_u32 {sT1}, {sPIT}, {sT0}
        s_sub_u32 {sT1}, {sT1}, 1024
        s_lshr_b32 {sT2}, {sWB4K}, 1
        s_add_u32 m0, {sT2}, {L_KST}
        buffer_load_dwordx4 v20, {srd(S_TMP)}, {sT0} offen lds #cs
        buffer_load_dwordx4 v20, {srd(S_TMP)}, {sT1} offen offset:1024 lds #cs
        """)

    def code_prefetch(self):
        e = self.e
        lab = e.newlabel('NOIPF')
        e(f"""
        s_cmp_lg_u32 {sW}, 2
        s_cbranch_scc1 {lab}
        s_getpc_b64 s[4:5]
        """)
        l2 = e.newlabel('PCREF')
        e.label(l2)
        e(f"""
        s_sub_u32 s4, s4, {l2}-{NAME}_kernel
        s_subb_u32 s5, s5, 0
        s_bfe_u32 {sT0}, s2, 0x20003
        s_lshl_b32 {sT0}, {sT0}, 13
        v_lshlrev_b32 v44, 7, v0
        v_add_u32 v44, {sT0}, v44
        v_min_u32 v44, L_end-{NAME}_kernel, v44
        """)
        saved = list(e.vm)
        e(f'global_load_dword v45, v44, s[4:5]')
        e.vm = saved
        e.label(lab)

    def csg_off(self, dst, scol, isq):
        return f"""
        s_lshr_b32 {sT2}, {scol}, 7
        s_add_u32 {sT2}, {sT2}, {0 if isq else 24}
        s_lshr_b32 {sT3}, {sT2}, 2
        s_lshl_b32 {sT3}, {sT3}, 14
        s_and_b32 {sT2}, {sT2}, 3
        s_lshl_b32 {sT2}, {sT2}, 11
        s_add_u32 {sT2}, {sT2}, {sT3}
        s_add_u32 {dst}, {sT2}, {WS_Z + Z_CSG}
        """

    def setup(self, typ):
        e = self.e
        self.mk(S_WO, 68, 512 * 1024, SH)
        self.mk(S_B1, 74, 1792 * 2)
        self.mk(S_W2, 76, 1792 * 1024, SH)
        self.mk(S_B2, 78, 1024)
        e(f"""
        v_and_b32 {vTOK}, 31, v0
        v_lshrrev_b32 {vHF}, 5, v0
        v_bfe_u32 v34, {vTOK}, 1, 3
        v_xor_b32 v34, v34, {vHF}
        v_lshlrev_b32 v34, 4, v34
        v_and_b32 v35, 15, v0
        v_lshl_add_u32 v34, v35, 7, v34
        v_bfe_u32 v35, v0, 4, 1
        v_lshl_add_u32 v34, v35, 12, v34
        s_lshl_b32 {sT4}, {sTT}, 13
        s_lshl_b32 {sT5}, {sNH}, 6
        s_or_b32 {sT4}, {sT4}, {sT5}
        v_xor_b32 v34, {sT4}, v34
        v_bfe_u32 v36, v0, 2, 2
        v_bfe_u32 v33, v0, 1, 1
        v_lshl_add_u32 v32, v35, 1, v33
        v_and_b32 v33, 2, v36
        v_lshlrev_b32 v33, 1, v33
        v_xor_b32 v32, v32, v33
        v_lshlrev_b32 v32, 4, v32
        v_and_b32 v33, 1, v0
        v_lshl_add_u32 v32, v33, 3, v32
        v_lshl_add_u32 v32, v36, 7, v32
        v_lshl_add_u32 v250, {vHF}, 10, v32
        s_lshr_b32 {sT4}, {sWB4K}, 1
        s_add_u32 {sT4}, {sT4}, {L_KST}
        v_add_u32 v250, {sT4}, v250
        v_xor_b32 v251, 64, v250
        v_lshl_add_u32 v35, {vHF}, 12, v32
        s_lshl_b32 {sT4}, {sNH}, 14
        s_or_b32 {sT4}, {sT4}, {sT5}
        v_xor_b32 v35, {sT4}, v35
        """)
        for s in range(4):
            e(f"""
            v_xor_b32 v{2+s}, {s << 5}, v34
            v_xor_b32 v{6+s}, {s << 13}, v35
            v_add_u32 v{80+s}, 0x10000, v{2+s}
            v_add_u32 v{84+s}, 0x10000, v{6+s}
            """)
        e(f"""
        s_mov_b32 {sGB}, {f32(GB)}
        v_mov_b32 v{TF+2}, 0
        v_mov_b32 v{TF+3}, 0
        s_lshl_b32 {sT4}, {sNH}, 10
        v_lshl_add_u32 {vCSA}, {vTOK}, 5, {sT4}
        s_lshl_b32 {sFLB}, {sRB}, 14
        s_mul_i32 {sT4}, {sTT}, {FL_T}
        s_add_u32 {sFLB}, {sFLB}, {sT4}
        s_lshl1_add_u32 {sT5}, {sG}, {sNH}
        s_lshl4_add_u32 {sFLB}, {sT5}, {sFLB}
        s_add_u32 {sFLB}, {sFLB}, {WS_Z}
        s_lshr_b32 {sT1}, {sROW}, 7
        s_lshl_b32 {sT1}, {sT1}, 14
        s_and_b32 {sT0}, {sROW}, 127
        s_lshl3_add_u32 {sT0}, {sT0}, {sT1}
        s_add_u32 {sT0}, {sT0}, {WS_Z + Z_ROW}
        v_lshl_add_u32 v252, v0, 26, {sT0}
        s_lshl_b32 {sT0}, {sW}, 2
        s_add_u32 {sT0}, {sT0}, {L_CSP}
        v_lshl_add_u32 v253, v0, 5, {sT0}
        v_lshlrev_b32 v254, 5, v0
        v_add_u32 v254, {L_CSP}, v254
        v_and_b32 v248, 15, v0
        v_lshlrev_b32 v248, 2, v248
        s_lshr_b32 {sT2}, {sUID}, 2
        s_lshl_b32 {sT2}, {sT2}, 14
        s_and_b32 {sT3}, {sUID}, 3
        s_lshl_b32 {sT3}, {sT3}, 11
        s_add_u32 {sT2}, {sT2}, {sT3}
        s_lshl3_add_u32 {sT2}, {sQTR}, {sT2}
        s_add_u32 {sT2}, {sT2}, {WS_Z + Z_CSG}
        s_cmp_ge_u32 {sUID}, 52
        s_cselect_b32 {sT3}, 1, {sW}
        s_lshl_b32 {sT3}, {sT3}, 26
        s_add_u32 {sT2}, {sT2}, {sT3}
        v_lshl_add_u32 v255, v0, 5, {sT2}
        """)
        e(f"""
        s_lshl_b32 {sT4}, {sNH}, 6
        v_lshl_add_u32 v34, {vTOK}, 1, {sT4}
        buffer_load_ushort {vBC}, v34, {srd(S_B1)}, {sCOLC} offen
        s_xor_b32 {sXCH}, {sNH}, {sG}
        s_and_b32 {sXCH}, {sXCH}, 1
        s_lshl_b32 {sXCH}, {sXCH}, 6
        """)
        if typ == 1:
            e(f'v_xor_b32 v34, {sXCH}, v34\nbuffer_load_ushort {vBX}, v34, {srd(S_B1)}, {sCOLD} offen')
        else:
            e(f'buffer_load_ushort {vBX}, v34, {srd(S_B1)}, {sCOLB} offen')
        e(f"""
        s_lshl1_add_u32 {sT2}, {sG}, {sNH}
        s_lshl_b32 {sT2}, {sT2}, 17
        s_lshl_b32 {sT3}, {sT}, 10
        s_add_u32 {sT2}, {sT2}, {sT3}
        s_add_u32 {sSTA}, {sT2}, {WS_K if typ == 1 else WS_Q}
        s_mul_i32 {sT4}, {sT}, {AH_T}
        s_lshl_b32 {sT3}, {sNH}, 11
        s_add_u32 {sT3}, {sT3}, {sT4}
        s_lshl_b32 {sT5}, {sCOLC}, 5
        s_add_u32 {sSTC}, {sT5}, {sT3}
        """)
        if typ == 1:
            e(f"""
            s_add_u32 {sSTB}, {sT2}, {WS_V}
            s_and_b32 {sT3}, {sG}, 1
            s_lshl1_add_u32 {sT3}, {sT3}, {sNH}
            s_lshl_b32 {sT3}, {sT3}, 10
            s_add_u32 {sT3}, {sT3}, {sT4}
            s_lshl_b32 {sT5}, {sCOLD}, 5
            s_add_u32 {sSTD}, {sT5}, {sT3}
            """)
        else:
            e(f"""
            s_lshl_b32 {sT5}, {sCOLB}, 5
            s_add_u32 {sSTB}, {sT5}, {sT3}
            """)
        e(f"""
        s_lshl_b32 {sROWG}, {sRB}, 14
        s_lshl_b32 {sT3}, {sTT}, 8
        s_add_u32 {sROWG}, {sROWG}, {sT3}
        s_add_u32 {sROWG}, {sROWG}, {WS_Z + Z_ROW}
        """)
        e(f"""
        s_add_u32 {sT4}, {sCOLC}, {SH - 3072}
        v_add_u32 v22, {sT4}, v38
        """)
        if typ == 1:
            e(f"""
            v_lshrrev_b32 v32, 2, v0
            v_mul_u32_u24 v23, {PH}, v32
            v_and_b32 v32, 3, v0
            v_lshl_add_u32 v23, v32, 4, v23
            s_and_b32 {sT4}, {sG}, 1
            s_lshl_b32 {sT4}, {sT4}, 6
            s_add_u32 {sT4}, {sT4}, {sCOLD}
            s_add_u32 {sT4}, {sT4}, {SH}
            v_add_u32 v23, {sT4}, v23
            s_lshl_b32 {sDK}, {sW}, 7
            s_add_u32 {sDK}, {sDK}, {sROT if OPT.get('rot', 'none') != 'none' else 0}
            s_and_b32 {sDK}, {sDK}, 1023
            s_mul_i32 {sDK}, {sDK}, {PH // 2}
            """)
        e(self.csg_off(sCOLA, sCOLA, True)); e(self.csg_off(sCOLB, sCOLB, typ == 1)); e(self.csg_off(sCOLC, sCOLC, False))
        if typ == 1: e(self.csg_off(sCOLD, sCOLD, False))
        e(f"""
        s_lshr_b32 {sT2}, {sW}, 1
        s_mov_b32 {sGSRC}, {sCOLA}
        s_cmp_eq_u32 {sT2}, 1
        s_cselect_b32 {sGSRC}, {sCOLB}, {sGSRC}
        s_cmp_eq_u32 {sT2}, 2
        s_cselect_b32 {sGSRC}, {sCOLC}, {sGSRC}
        s_cmp_eq_u32 {sT2}, 3
        s_cselect_b32 {sGSRC}, {sCOLD if typ == 1 else sCOLC}, {sGSRC}
        s_and_b32 {sT2}, {sW}, 1
        s_lshl_b32 {sT2}, {sT2}, 10
        s_add_u32 {sGSRC}, {sGSRC}, {sT2}
        """)
        e(f"""
        s_lshr_b32 {sRA}, s2, 5
        s_lshl_b32 {sTA}, {sRA}, 3
        s_sub_u32 {sKV}, {sTA}, 8
        s_add_u32 {sTA}, {sTA}, {sW}
        s_sub_u32 {sIMIN}, 8, {sTA}
        s_cmp_gt_u32 {sTA}, 8
        s_cselect_b32 {sIMIN}, 0, {sIMIN}
        s_lshl1_add_u32 {sKV}, {sW}, {sKV}
        s_lshl_b32 {sKV}, {sKV}, 10
        s_lshl_b32 {sT1}, {sHEAD}, 16
        s_add_u32 {sKV}, {sKV}, {sT1}
        s_add_u32 {sKV}, {sKV}, {WS_K}
        s_lshl_b32 {sQO}, {sTA}, 10
        s_add_u32 {sQO}, {sQO}, {sT1}
        s_add_u32 {sQO}, {sQO}, {WS_Q}
        s_lshl1_add_u32 {sT2G}, {sR2}, {sNH}
        s_and_b32 {sKQ}, {sW}, 3
        s_mul_i32 {sAH2}, {sT2G}, {AH_T}
        s_lshl_b32 {sT1}, {sKQ}, 12
        s_add_u32 {sAH2}, {sAH2}, {sT1}
        s_mov_b32 {sREDO}, {1 if OPT.get('nofb') else 0}
        s_lshr_b32 {sFLO}, {sTA}, 2
        s_lshl_b32 {sFLO}, {sFLO}, 14
        s_and_b32 {sT1}, {sTA}, 3
        s_mul_i32 {sT1}, {sT1}, {FL_T}
        s_add_u32 {sFLO}, {sFLO}, {sT1}
        s_lshl4_add_u32 {sFLO}, {sHEAD}, {sFLO}
        s_add_u32 {sFLO}, {sFLO}, {WS_Z + F_O}
        s_mul_i32 {sOST}, {sTA}, {AH_T}
        s_lshl_b32 {sT1}, {sHEAD}, 10
        s_add_u32 {sOST}, {sOST}, {sT1}
        s_add_u32 {sOST}, {sOST}, {112 * 1024}
        s_mov_b32 s40, 0x41065410
        s_mov_b32 s41, 5
        ; rotation seed rc = (c64 + 2*(r64&3)) ; class1 uses rc&1 ; class2 uses rc mod 5
        s_and_b32 {sT1}, {sR2}, 3
        s_lshl1_add_u32 {sRC}, {sT1}, {sC64}
        s_mul_i32 {sT1}, {sRC}, 52
        s_lshr_b32 {sT1}, {sT1}, 8
        s_mul_i32 {sT1}, {sT1}, 5
        s_sub_u32 {sT1}, {sRC}, {sT1}
        s_add_u32 {sRC}, {sC64}, {sR2}
        s_and_b32 {sRC}, {sRC}, 1
        s_lshl3_add_u32 {sRC}, {sRC}, {sT1}
        """)

    def fill_stats(self):
        o = lines(f"""
        WAITVM cs
        ds_read_b64_tr_b16 v[232:233], v250
        ds_read_b64_tr_b16 v[234:235], v250 offset:512
        ds_read_b64_tr_b16 v[236:237], v251
        ds_read_b64_tr_b16 v[238:239], v251 offset:512
        v_dot2_f32_bf16 v244, v240, {vONE}, 0
        v_dot2_f32_bf16 v245, v240, v240, 0
        """)
        for j in range(1, 4):
            o += [f'v_dot2_f32_bf16 v244, v{240+j}, {vONE}, v244', f'v_dot2_f32_bf16 v245, v{240+j}, v{240+j}, v245']
        o += [f'v_dot2_f32_bf16 v228, v232, {vONE}, 0', f'v_dot2_f32_bf16 v229, v236, {vONE}, 0']
        for j in range(1, 4):
            o += [f'v_dot2_f32_bf16 v228, v{232+j}, {vONE}, v228', f'v_dot2_f32_bf16 v229, v{236+j}, {vONE}, v229']
        for dpp in ('quad_perm:[1,0,3,2]', 'quad_perm:[2,3,0,1]', 'row_half_mirror', 'row_mirror'):
            o += [f'v_add_f32_dpp v244, v244, v244 {dpp} row_mask:0xf bank_mask:0xf',
                  f'v_add_f32_dpp v245, v245, v245 {dpp} row_mask:0xf bank_mask:0xf']
            if dpp.startswith('quad_perm:[1'):
                o += ['v_permlane32_swap_b32 v228, v229', 'v_add_f32 v228, v228, v229', 'ds_write_b32 v253, v228']
        for sw in ('v_permlane16_swap_b32', 'v_permlane32_swap_b32'):
            o += lines(f"""
            v_mov_b32 v246, v244
            v_mov_b32 v247, v245
            {sw} v244, v246
            {sw} v245, v247
            v_add_f32 v244, v244, v246
            v_add_f32 v245, v245, v247
            """)
        o += lines(f"""
        v_mul_f32 v244, {f32(1/512)}, v244
        v_mul_f32 v245, {f32(1/512)}, v245
        v_fma_f32 v245, -v244, v244, v245
        v_max_f32 v245, 0, v245
        v_cvt_pk_bf16_f32 v246, v245, v245
        v_lshlrev_b32 v246, 16, v246
        v_add_f32 v246, {f32(1e-5)}, v246
        v_cvt_pk_bf16_f32 v246, v246, v246
        v_lshlrev_b32 v246, 16, v246
        v_sqrt_f32 v246, v246
        v_cvt_pk_bf16_f32 v240, -v244, v246
        v_mov_b32 v241, 1
        """)
        return o

    def fill_cs2(self):
        return lines(f"""
        ds_read_b128 v[232:235], v254
        ds_read_b128 v[236:239], v254 offset:16
        v_add_f32 v232, v232, v233
        v_add_f32 v234, v234, v235
        v_add_f32 v236, v236, v237
        v_add_f32 v238, v238, v239
        v_add_f32 v232, v232, v234
        v_add_f32 v236, v236, v238
        v_add_f32 v244, v232, v236
        v_mov_b32 v245, 1
        """)

    def dma1(self, c, typ):
        slot = (c % 4) * SLOT
        if OPT.get('rot', 'none') == 'none':
            kx = [f's_movk_i32 {sKX}, {128 * c}']; kq = [f's_mov_b32 {sKW}, {64 * PQ * c}']; kh = [f's_mov_b32 {sKW}, {64 * PH * c}']
        else:
            kx = [f's_add_u32 {sKX}, {sROT}, {128 * c}', f's_and_b32 {sKX}, {sKX}, 1023']
            kq = [f's_mul_i32 {sKW}, {sKX}, {PQ // 2}']; kh = [f's_mul_i32 {sKW}, {sKX}, {PH // 2}']
        g0 = [f's_add_u32 m0, {sWB4K}, {slot}'] + kx + [f'buffer_load_dwordx4 v10, {srd(S_X)}, {sKX} offen lds #c{c}']
        g1 = [f'buffer_load_dwordx4 v11, {srd(S_X)}, {sKX} offen offset:1024 lds #c{c}']
        g2 = kq + [f'buffer_load_dwordx4 v12, {srd(S_QKV)}, {sKW} offen offset:2048 lds #c{c}']
        if typ == 1:
            g3 = [f'buffer_load_dwordx4 v13, {srd(S_QKV)}, {sKW} offen offset:3072 lds #c{c}']
        else:
            g3 = kh + [f'buffer_load_dwordx4 v13, {srd(S_W1)}, {sKW} offen offset:3072 lds #c{c}']
        return [g0, g1, g2, g3]
    def dma2(self, c, half, vo):
        slot = (c % 4) * SLOT
        out = []
        for i in range(4):
            cc = 4 * half + i
            g = [f's_add_u32 m0, {sWB4K}, {slot}'] if i == 0 else []
            if OPT.get('rot', 'none') == 'none':
                g += [f's_mov_b32 {sKW}, {64 * PH * cc + 1024 * (3 - i)}']
            else:
                g += [f's_add_u32 {sKX}, {sROT}, {128 * cc}', f's_and_b32 {sKX}, {sKX}, 1023', f's_mul_i32 {sKW}, {sKX}, {PH // 2}']
                if i < 3: g += [f's_add_u32 {sKW}, {sKW}, {1024 * (3 - i)}']
            g += [f'buffer_load_dwordx4 {vo}, {srd(S_W1)}, {sKW} offen offset:{1024*i} lds #c{c}']
            out.append(g)
        return out

    def grp_idx(self, gi):
        if gi < 2 or gi >= 7:
            b = 2 if gi < 2 else 7
            k = gi if gi < 2 else gi - 7
            return [f's_bfe_u32 {sT0}, {sRC}, 0x10003', f's_xor_b32 {sT0}, {sT0}, {k}', f's_add_u32 {sT0}, {sT0}, {b}']
        return [f's_and_b32 {sT0}, {sRC}, 7', f's_add_u32 {sT0}, {sT0}, {gi - 2}', f's_lshl_b32 {sT0}, {sT0}, 2',
                f's_lshr_b64 s[{sT0[1:]}:{sT1[1:]}], s[40:41], {sT0}', f's_and_b32 {sT0}, {sT0}, 15']
    def wpos(self, gi):
        return [3, 0, 2, 1, 3, 0, 4, 2, 1][gi]
    def w2_dma(self, gi):
        out = []
        g = self.grp_idx(gi)
        if gi >= 7: g = g[:-1]
        g += [f's_add_u32 m0, {sWB4K}, {self.wpos(gi) * SLOT}', f's_lshl_b32 {sKW2}, {sT0}, 18']
        sr = S_W2 if gi < 7 else S_WO
        for i in range(4):
            if i: g = [f's_add_u32 {sKW2}, {sKW2}, {65536 - 1024}']
            g.append(f'buffer_load_dwordx4 {vW2}, {srd(sr)}, {sKW2} offen offset:{1024*i} lds #w{gi}')
            out.append(g)
        return out
    def hq(self, gi, j):
        tab = {0: [148, 152, 156, 160], 1: [164, 168, 172, 176], 2: [180, 184, 188, 112], 3: [116, 120, 124, 128], 4: [132, 136, 140, 144],
               5: [192, 196, 200, 204], 6: [208, 212, 216, 220], 7: [224, 228, 232, 236], 8: [240, 244, 248, 252]}
        return tab[gi][j]
    def hload(self, gi):
        out = []
        for j in range(4):
            g = []
            if j == 0: g = self.grp_idx(gi) + [f's_lshl_b32 {sKX}, {sT0}, 14', f's_add_u32 {sKX}, {sKX}, {sAH2}']
            g.append(f'buffer_load_dwordx4 {q4(self.hq(gi, j))}, {vL16}, {srd(S_WS)}, {sKX} offen offset:{1024*j} sc1 #h{gi}_{j}')
            out.append(g)
        return out
    def wrd(self, gi, j, b):
        pos = self.wpos(gi)
        a0, a1 = self.WA2[2 * (pos >> 1)], self.WA2[2 * (pos >> 1) + 1]
        off = (pos & 1) * SLOT + 8192 * j
        return [f'ds_read_b64_tr_b16 v[{b}:{b+1}], {a0} offset:{off}',
                f'ds_read_b64_tr_b16 v[{b+2}:{b+3}], {a0} offset:{off + 4096}',
                f'ds_read_b64_tr_b16 v[{b+4}:{b+5}], {a1} offset:{off}',
                f'ds_read_b64_tr_b16 v[{b+6}:{b+7}], {a1} offset:{off + 4096}']

    def cs_load(self, soff, dst):
        return [f'buffer_load_dwordx4 v[{dst}:{dst+3}], {vCSA}, {srd(S_WS)}, {soff} offen sc1',
                f'buffer_load_dwordx4 v[{dst+4}:{dst+7}], {vCSA}, {srd(S_WS)}, {soff} offen offset:16 sc1']
    def nf_build(self, cs, bias):
        return lines(f"""
        v_cvt_pk_bf16_f32 v46, v{cs}, v{cs}
        v_lshlrev_b32 v46, 16, v46
        v_sub_f32 v46, v{cs}, v46
        v_cvt_pk_bf16_f32 v{NF}, v{cs}, v46
        v_and_b32 v47, 0xffff0000, v{NF}
        v_sub_f32 v46, v46, v47
        v_cvt_pk_bf16_f32 v{NF+1}, v46, {bias}
        """)
    def epi_qk(self, acc, rreg, tag):
        o = []
        for h in range(2):
            a = acc + 8 * h
            for i in range(8): o.append(f'v_mul_f32 v{a+i}, {rreg}, v{a+i}')
            for i in range(4): o.append(f'v_cvt_pk_bf16_f32 v{a+i}, v{a+2*i}, v{a+2*i+1}')
            if h: o.append(f's_add_u32 {sSTA}, {sSTA}, 65536')
            o.append(f'buffer_store_dwordx4 {q4(a)}, {vL16}, {srd(S_WS)}, {sSTA} offen sc1 #{tag}')
        return o
    def epi_v_pre(self, tmp):
        o = lines(f"""
        s_lshr_b32 {sT2}, {sWB4K}, 5
        s_add_u32 {sT2}, {sT2}, {L_RV}
        v_lshl_add_u32 v12, {vTOK}, 2, {sT2}
        v_lshl_add_u32 v13, {vHF}, 4, {sT2}
        ds_write_b32 v12, {vR}
        """)
        for q in range(4): o.append(f'ds_read_b128 v[{tmp+4*q}:{tmp+4*q+3}], v13 offset:{32*q}')
        o += lines(f"""
        v_bfe_u32 v12, v0, 4, 1
        v_and_b32 v13, 15, v0
        v_lshl_add_u32 v13, {vHF}, 4, v13
        v_lshlrev_b32 v13, 4, v13
        v_lshl_add_u32 v12, v12, 16, v13
        """)
        return o
    def epi_v(self, acc, tmp, tag):
        o = []
        for h in range(2):
            a = acc + 8 * h
            for i in range(8): o.append(f'v_mul_f32 v{a+i}, v{tmp+8*h+i}, v{a+i}')
            for i in range(4): o.append(f'v_cvt_pk_bf16_f32 v{a+i}, v{a+2*i}, v{a+2*i+1}')
            o.append(f'buffer_store_dwordx4 {q4(a)}, v12, {srd(S_WS)}, {sSTB} offen offset:{512*h} sc1 #{tag}')
        return o
    def epi_h(self, acc, tmp, soff, tag, halves=2):
        o = []
        for half in range(halves):
            a = acc + 8 * half
            for i in range(8): o.append(f'v_mul_f32 v{tmp+i}, v{a+i}, v{a+i}')
            for i in range(8): o.append(f'v_fma_f32 v{tmp+i}, v{tmp+i}, v10, v24')
            for i in range(8): o.append(f'v_mul_f32 v{tmp+i}, v{tmp+i}, v{a+i}')
            for i in range(8): o.append(f'v_exp_f32 v{tmp+i}, v{tmp+i}')
            for i in range(8): o.append(f'v_fma_f32 v{tmp+i}, v{tmp+i}, v2, v2')
            for i in range(8): o.append(f'v_rcp_f32 v{tmp+i}, v{tmp+i}')
            for i in range(8): o.append(f'v_mul_f32 v{a+i}, v{a+i}, v{tmp+i}')
            for i in range(4): o.append(f'v_cvt_pk_bf16_f32 v{a+i}, v{a+2*i}, v{a+2*i+1}')
            o.append(f'buffer_store_dwordx4 {q4(a)}, {vL16}, {srd(S_WS)}, {soff} offen offset:{1024*half} sc1 #{tag}')
        return o
    def flag_set(self, tag, base_s, off):
        return [f'WAITVM {tag}', f'buffer_store_dword {self.vF1}, {self.vFL}, {srd(S_WS)}, {base_s} offen offset:{off} sc1']
    def u_rd(self, c0, m, nb):
        c = c0 + (m >> 4); k = m & 15
        base = ((c % 4) * SLOT & 0xffff) + 1024 * (k >> 2); s = k & 3
        b = 48 + 4 * (nb % 4)
        return [f'ds_read_b64_tr_b16 v[{b}:{b+1}], v{6+s} offset:{base}',
                f'ds_read_b64_tr_b16 v[{b+2}:{b+3}], v{6+s} offset:{base + 512}']
    def u_mfma(self, acc, m, nb):
        b = 48 + 4 * (nb % 4); x = 128 + 4 * m
        return f'{MFMA} {blk(acc)}, {q4(b)}, {q4(x)}, {blk(acc)}'
    def fl_addr(self, vT, vtmp):
        return lines(f"""
        v_ashrrev_i32 {vtmp}, 2, {vT}
        v_lshlrev_b32 {vtmp}, 14, {vtmp}
        v_and_b32 {vT}, 3, {vT}
        v_mul_u32_u24 {vT}, {FL_T}, {vT}
        v_add_u32 {vT}, {vT}, {vtmp}
        """)
    def kv_poll_setup(self, va, vt):
        return lines(f"""
        s_lshl_b32 {sT4}, {sRA}, 3
        s_sub_u32 {sT4}, {sT4}, 8
        v_add_u32 {va}, {sT4}, v0
        v_subrev_u32 {vt}, 8, {va}
        v_cmp_gt_u32 vcc, 16, v0
        v_cndmask_b32 {va}, {vt}, {va}, vcc
        """) + self.fl_addr(va, vt) + lines(f"""
        v_mov_b32 {vt}, {F_Q}
        v_cndmask_b32 {vt}, {vt}, 0, vcc
        s_lshr_b32 {sT5}, {sHEAD}, 1
        s_lshl_b32 {sT5}, {sT5}, 4
        s_add_u32 {sT5}, {sT5}, {WS_Z}
        s_lshl_b32 {sT4}, {sW}, 26
        s_add_u32 {sT5}, {sT5}, {sT4}
        v_add3_u32 {va}, {va}, {vt}, {sT5}
        v_cmp_le_u32 vcc, 24, v0
        v_mov_b32 {vt}, 0x40000000
        v_cndmask_b32 {va}, {va}, {vt}, vcc
        s_mov_b32 s68, 0xffffff
        s_cmp_eq_u32 {sRA}, 0
        s_cselect_b32 s68, 0xffff00, s68
        s_mov_b32 s69, 0
        """)
    def kv_loads(self):
        return lines(f"""
        s_add_u32 {sT5}, {sKV}, {WS_V - WS_K}
        buffer_load_dwordx4 v[112:115], {vL16}, {srd(S_WS)}, {sKV} offen sc1
        buffer_load_dwordx4 v[116:119], {vL16}, {srd(S_WS)}, {sKV} offen offset:1024 sc1
        buffer_load_dwordx4 v[32:35], {vL16}, {srd(S_WS)}, {sQO} offen sc1
        buffer_load_dwordx4 v[120:123], {vL16}, {srd(S_WS)}, {sT5} offen sc1
        buffer_load_dwordx4 v[124:127], {vL16}, {srd(S_WS)}, {sT5} offen offset:1024 sc1
        """)
    def pl_ld(self, vaddr, vdst, off=0):
        return [f'buffer_load_dword {vdst}, {vaddr}, {srd(S_WS)}, 0 offen offset:{off} sc1 #kvp']
    def pl_chk(self, vdst, mask):
        if mask == '-1': return [f'v_cmp_ne_u32 vcc, 1, {vdst}', 's_cmp_eq_u64 vcc, 0']
        return [f'v_cmp_ne_u32 vcc, 1, {vdst}', f's_andn2_b64 vcc, {mask}, vcc', f's_cmp_eq_u64 vcc, {mask}']

    def p1(self, typ):
        e = self.e
        if typ == 1:
            e(f"""
            s_lshl_b32 {sCOLC}, {sG}, 7
            s_add_u32 {sCOLA}, {sCOLC}, 1024
            s_add_u32 {sCOLB}, {sCOLC}, 2048
            s_lshr_b32 {sCOLD}, {sG}, 1
            s_add_u32 {sCOLD}, {sCOLD}, 24
            s_lshl_b32 {sCOLD}, {sCOLD}, 7
            s_add_u32 {sT4}, {sCOLA}, {SH - 2048}
            v_add_u32 v12, {sT4}, v37
            v_mov_b32 v13, v12
            """)
        else:
            e(f"""
            s_lshl_b32 {sCOLA}, {sG}, 7
            s_add_u32 {sCOLB}, {sCOLA}, 1024
            s_add_u32 {sCOLC}, {sCOLA}, 2048
            s_add_u32 {sT4}, {sCOLA}, {SH - 2048}
            v_add_u32 v12, {sT4}, v37
            v_add_u32 v13, {sT4}, v38
            """)
        def arm():
            lab = e.newlabel('NOARM')
            e(f"""
            s_or_b32 {sT0}, {sG}, {sW}
            s_cmp_lg_u32 {sT0}, 0
            s_cbranch_scc1 {lab}
            s_lshl_b32 {sT0}, {sRB}, 2
            v_lshl_add_u32 v32, v0, 26, {sT0}
            v_mov_b32 v33, 1
            """)
            saved = list(e.vm)
            e(f'buffer_store_dword v33, v32, {srd(S_DBG)}, 0 offen offset:64 sc1')
            e.vm = saved
            e.label(lab)
        def chunk_dmas(c):
            if c < 8: return self.dma1(c, typ)
            if c < 10: return self.dma2(c, c - 8, 'v22')
            if typ == 1 and c == 10:
                out = []
                for i in range(4):
                    g = [f's_add_u32 m0, {sWB4K}, {2 * SLOT}'] if i == 0 else [f's_add_u32 {sDK}, {sDK}, {16 * PH - 1024}']
                    out.append(g + [f'buffer_load_dwordx4 v23, {srd(S_W1)}, {sDK} offen offset:{1024*i} lds #c10'])
                return out
            if typ == 2 and c == 10: return self.w2_dma(2)
            if c == 11: return self.w2_dma(0)
            return []
        SL = int(OPT.get('sl', -1))
        if SL < 0:
            self.stats_loads()
            e(f"""
            s_lshr_b32 {sT0}, s2, 3
            s_lshr_b32 {sT1}, s2, 6
            s_lshl1_add_u32 {sT0}, {sT1}, {sT0}
            s_and_b32 {sT0}, {sT0}, 7
            s_lshl_b32 {sROT}, {sT0}, 7
            """)
        for grp in chunk_dmas(0): self.run(grp)
        self.stamp('i0')
        if int(OPT.get('ipf', 1)): self.code_prefetch()
        cap = []
        origI = e.I
        e.I = lambda l, tag=None: cap.append(l)
        self.setup(typ)
        del e.__dict__['I']
        ia = max(i for i, l in enumerate(cap) if l.startswith('v_lshl_add_u32 v255')) + 1
        partA, partB = cap[18:ia], cap[:18] + cap[ia:]
        def inject(code, groups, gap):
            out = []; cnt = 0; groups = list(groups)
            for l in code:
                out.append(l); cnt += 1
                if groups and cnt >= gap and not l.startswith(('s_cmp', 's_cselect', 's_sub_u32')):
                    out += groups.pop(0); cnt = 0
            for g in groups: out += g
            return out
        def pieces(code, n):
            out = []; k = (len(code) + n - 1) // n; cur = []
            for l in code:
                cur.append(l)
                if len(cur) >= k and not l.startswith(('s_cmp', 's_cselect', 's_sub_u32')):
                    out.append(cur); cur = []
            if cur: out.append(cur)
            return out
        late = int(OPT.get('late', 1))
        lateB = []
        if late:
            self.run(inject(partA, chunk_dmas(1) + chunk_dmas(2), int(OPT.get('gap', 20))))
            e.wait_vm_tag('zero')
            dq = chunk_dmas(3)
            lateB = pieces(partB, 8)
        else:
            self.run(inject(partA + partB, chunk_dmas(1) + chunk_dmas(2) + chunk_dmas(3), int(OPT.get('gap', 30))))
            e.wait_vm_tag('zero')
            e('s_barrier')
            if typ == 1: arm()
            self.run(self.fill_stats())
            dq = []
        self.stamp('st')
        def rd1(n):
            c, s = n >> 2, n & 3
            slot = (c % 4) * SLOT
            hi = slot >> 16; base = slot & 0xffff
            xa = (80 if hi else 2) + s; wa = (84 if hi else 6) + s
            x = 128 + 4 * n; b = 48 + 8 * (n % 4)
            return [f'ds_read_b128 {q4(x)}, v{xa} offset:{base}',
                  f'ds_read_b64_tr_b16 v[{b}:{b+1}], v{wa} offset:{base + 2048}',
                  f'ds_read_b64_tr_b16 v[{b+2}:{b+3}], v{wa} offset:{base + 2048 + 512}',
                  f'ds_read_b64_tr_b16 v[{b+4}:{b+5}], v{wa} offset:{base + 3072}',
                  f'ds_read_b64_tr_b16 v[{b+6}:{b+7}], v{wa} offset:{base + 3072 + 512}']
        if OPT.get('prio'):
            lab = e.newlabel('NOPRIO')
            e(f's_cmp_eq_u32 {sNH}, {1 - int(OPT["prio"]) % 2}\ns_cbranch_scc1 {lab}\ns_setprio 1')
            e.label(lab)
        self.barrier('c0')
        self.stamp(1)
        self.auto('s1', True)
        self.run(rd1(0) + rd1(1))
        armed_chk = [f'v_cmp_ne_u32 vcc, 1, v249', 's_cmp_eq_u64 vcc, 0']
        armed_ld = [f'buffer_load_dword v249, v248, {srd(S_DBG)}, 0 offen offset:64 sc1']
        fills = {}
        if late and SL >= 0:
            if typ == 1: arm()
            for g in dq: self.run(g)
            dq = []
            self.stats_loads()
            fs = self.fill_stats(); hfs = len(fs) // 2
            order = [0, 1, 2, 3, 6, 7, 8, 9]
            for i, p in enumerate(lateB): fills[order[i]] = p
            fills[4] = fs[:hfs]; fills[5] = fs[hfs:]
            fills[6] = self.fill_cs2() + fills[6]
            fills[7] = fills[7] + armed_ld
        elif late:
            if typ == 1: arm()
            fs = self.fill_stats(); hfs = len(fs) // 2
            fills[0] = fs[:hfs]; fills[1] = fs[hfs:]
            fills[2] = self.fill_cs2()
            for i, p in enumerate(lateB): fills[3 + i] = p
            fills[7] = fills[7] + armed_ld
        else:
            fills[1] = self.fill_cs2()
            fills[5] = armed_ld
        AN = int(OPT.get('an', 11 if late else 9))
        fills[AN] = fills.get(AN, []) + [lambda: self.retry(armed_chk, armed_ld, 'ARM'),
                    f'buffer_store_dwordx2 v[240:241], v252, {srd(S_WS)}, 0 offen sc1',
                    f'buffer_store_dwordx2 v[244:245], v255, {srd(S_WS)}, 0 offen sc1']
        def warm():
            lab = e.newlabel('NOWARM')
            e(f"""
            s_cmp_gt_u32 {sW}, 1
            s_cbranch_scc1 {lab}
            s_lshl_b32 {sT2}, {sW}, 8
            s_add_u32 {sT2}, {sT2}, s2
            s_lshl_b32 {sT2}, {sT2}, 13
            s_add_u32 {sT2}, {sT2}, {SH}
            s_sub_u32 {sT3}, {sT2}, {1792 * 1024}
            s_cmp_lt_u32 {sT2}, {1792 * 1024 + SH}
            s_cselect_b32 {sT3}, 0x40000000, {sT3}
            v_lshlrev_b32 v246, 7, v0
            """)
            saved = list(e.vm)
            e(f"""
            buffer_load_dword v247, v246, {srd(S_W2)}, {sT2} offen
            buffer_load_dword v243, v246, {srd(S_WO)}, {sT3} offen
            """)
            e.vm = saved
            e.label(lab)
        WN = int(OPT.get('warm', 13))
        if WN >= 0: fills[WN] = fills.get(WN, []) + [warm]
        rowg = [f'v_lshlrev_b32 v20, 3, {vTOK}', f'buffer_load_dwordx2 v[{TF}:{TF+1}], v20, {srd(S_WS)}, {sROWG} offen sc1']
        ldA = self.cs_load(sCOLA, 32); ldB = self.cs_load(sCOLB, 40); ldC = self.cs_load(sCOLC, 88)
        GL = int(OPT.get('gl', 21))
        def gdma():
            lab = e.newlabel('NOROWG')
            e(f"""
            s_lshr_b32 {sT2}, {sWB4K}, 2
            s_add_u32 m0, {sT2}, {L_GR}
            buffer_load_dwordx4 {vL16}, {srd(S_WS)}, {sGSRC} offen sc1 lds #gr
            s_cmp_lg_u32 {sW}, 0
            s_cbranch_scc1 {lab}
            s_lshl_b32 {sT2}, {sRB}, 14
            s_add_u32 {sT2}, {sT2}, {WS_Z + Z_ROW}
            s_mov_b32 m0, {L_GR + 8192}
            """)
            saved = list(e.vm)
            e(f'buffer_load_dwordx4 {vL16}, {srd(S_WS)}, {sT2} offen sc1 lds')
            e.raw('s_waitcnt vmcnt(63)')
            e.vm = saved
            e.label(lab)
        self.gdma = gdma
        grd = lines(f"""
        s_lshl_b32 {sT2}, {sTT}, 8
        s_add_u32 {sT2}, {sT2}, {L_GR + 8192}
        v_lshl_add_u32 v20, {vTOK}, 3, {sT2}
        v_add_u32 v21, {L_GR}, {vCSA}
        ds_read_b64 v[{TF}:{TF+1}], v20
        ds_read_b128 v[32:35], v21
        ds_read_b128 v[36:39], v21 offset:16
        ds_read_b128 v[40:43], v21 offset:2048
        ds_read_b128 v[44:47], v21 offset:2064
        ds_read_b128 v[88:91], v21 offset:4096
        ds_read_b128 v[92:95], v21 offset:4112
        """)
        fills[26] = grd
        chk = lines(f"""
        v_and_b32 v20, v{TF+1}, v33
        v_and_b32 v21, v35, v37
        v_and_b32 v20, v20, v39
        v_and_b32 v21, v21, v41
        v_and_b32 v20, v20, v43
        v_and_b32 v21, v21, v45
        v_and_b32 v20, v20, v47
        v_and_b32 v21, v21, v89
        v_and_b32 v20, v20, v91
        v_and_b32 v21, v21, v93
        v_and_b32 v20, v20, v95
        v_and_b32 v20, v20, v21
        v_cmp_ne_u32 vcc, 1, v20
        s_cmp_eq_u64 vcc, 0
        """)
        pre = lines(f"""
        v_add_f32 v32, v32, v34
        v_add_f32 v36, v36, v38
        v_add_f32 v40, v40, v42
        v_add_f32 v44, v44, v46
        v_add_f32 v88, v88, v90
        v_add_f32 v92, v92, v94
        v_add_f32 v32, v32, v36
        v_add_f32 v33, v40, v44
        v_add_f32 v34, v88, v92
        v_and_b32 v2, 0xffff0000, v{TF}
        v_rcp_f32 {vR}, v2
        v_cmp_eq_u32 vcc, 0, {vHF}
        v_cndmask_b32 v{TF+1}, 0, v{TF}, vcc
        v_and_b32 v{TF}, 0xffff, v{TF+1}
        v_lshl_or_b32 v{TF}, v{TF}, 16, v{TF}
        v_mov_b32 v11, v23
        v_mov_b32 v{NF+2}, 0
        v_mov_b32 v{NF+3}, 0
        v_lshlrev_b32 {vBC}, 16, {vBC}
        v_lshlrev_b32 {vBX}, 16, {vBX}
        """)
        pre2 = lines(f"""
        v_mul_f32 v10, {vR}, {vR}
        v_mul_f32 v24, {f32(GA)}, {vR}
        v_mul_f32 v10, {sGB}, v10
        v_mul_f32 v10, v10, {vR}
        v_lshlrev_b32 v3, 26, v0
        v_mov_b32 v4, 1
        """)
        self.vFL, self.vF1 = 'v3', 'v4'
        fills[27] = [lambda: self.retry(chk, rowg + ldA + ldB + ldC, 'GR')] + pre
        fills[28] = self.nf_build(32, '0') + [f'{MFMA} {blk(accA)}, {q4(NF)}, {q4(TF)}, {blk(accA)}']
        if typ == 1:
            fills[29] = pre2 + self.nf_build(33, '0') + [f'{MFMA} {blk(accB)}, {q4(TF)}, {q4(NF)}, {blk(accB)}']
        else:
            fills[29] = pre2 + self.nf_build(33, vBX) + [f'{MFMA} {blk(accB)}, {q4(NF)}, {q4(TF)}, {blk(accB)}']
        fills[30] = self.nf_build(34, vBC) + [f'{MFMA} {blk(accC)}, {q4(NF)}, {q4(TF)}, 0']
        if typ == 1: fills[31] = self.epi_v_pre(32)
        else: fills[31] = [f'v_mul_f32 v32, {f32(0.25 * LOG2E)}, {vR}']
        for n in range(32):
            c, s = n >> 2, n & 3
            if s == 2:
                if n == 22:
                    assert not dq
                    gdma()
                if n == 26:
                    idx = max(i for i, o in enumerate(e.vm) if o.get('tag') == 'gr')
                    e._wait(vm=len(e.vm) - 1 - idx)
                self.barrier(f'c{c+1}')
                self.stamp(f'b{c+1}')
                new = chunk_dmas(c + 4)
                if n >= 26: new = [[l.replace('v23,', 'v11,') if n > 27 else l for l in g] for g in new]
                dq += new
            if n + 2 < 32: self.run(rd1(n + 2))
            elif n == 30: self.run(self.u_rd(8, 0, 0) + self.u_rd(8, 1, 1))
            else: self.run(self.u_rd(8, 2, 2))
            x = 128 + 4 * n; b = 48 + 8 * (n % 4)
            ca = '0' if n == 0 else blk(accA)
            cb = '0' if n == 0 else blk(accB)
            def pop():
                g = dq.pop(0)
                if n > 27: g = [l.replace('v23,', 'v11,') for l in g]
                self.run(g)
            self.run([f'{MFMA} {blk(accA)}, {q4(b)}, {q4(x)}, {ca}'])
            if len(dq) > 4: pop()
            if typ == 1: self.run([f'{MFMA} {blk(accB)}, {q4(x)}, {q4(b+4)}, {cb}'])
            else: self.run([f'{MFMA} {blk(accB)}, {q4(b+4)}, {q4(x)}, {cb}'])
            if dq: pop()
            self.run(fills.get(n, []))
        self.auto('s1', False)
        self.stamp(2)
        self.auto('s2', True)
        def ustream(c0, acc, ms, allms):
            o = []
            for m in ms:
                k = allms.index(m)
                if k + 3 < len(allms): o += self.u_rd(c0, allms[k + 3], k + 3)
                o.append(self.u_mfma(acc, m, k))
                if dq: o += dq.pop(0)
            return o
        def is_main(acc):
            return lambda s: isinstance(s, str) and s.startswith('v_mfma') and any(f'{blk(acc)}, v[{d}' in s for d in '456')
        allC = list(range(32))
        epi3 = self.epi_h(accC, 64, sSTC, 'h')
        n3 = len(epi3)
        pollset = self.kv_poll_setup('v42', 'v43')
        self.WA2 = ['v6', 'v7', 'v12', 'v13', 'v22', 'v23']
        wa_a = lines(f"""
        v_bfe_u32 v39, v0, 2, 2
        v_lshl_add_u32 v38, {vHF}, 2, v39
        v_lshlrev_b32 v38, 7, v38
        v_bfe_u32 v36, v0, 4, 1
        v_bfe_u32 v37, v0, 1, 1
        v_lshl_add_u32 v36, v36, 1, v37
        v_and_b32 v37, 2, v39
        v_lshlrev_b32 v37, 1, v37
        v_xor_b32 v36, v36, v37
        v_lshl_add_u32 v38, v36, 4, v38
        v_and_b32 v37, 1, v0
        v_lshl_add_u32 v38, v37, 3, v38
        s_lshl_b32 {sT3}, {sKQ}, 10
        v_add_u32 v38, {sT3}, v38
        """)
        wa_b = lines(f"""
        v_mov_b32 v6, v38
        v_xor_b32 v7, 64, v38
        v_add_u32 v12, 0x10000, v6
        v_add_u32 v13, 0x10000, v7
        v_add_u32 v22, 0x20000, v6
        v_add_u32 v23, 0x20000, v7
        """)
        def weave(valu, extra):
            out = []; extra = list(extra)
            for l in valu:
                out.append(l)
                if extra: out += extra.pop(0)
            for x in extra: out += x
            return out
        trr = []
        k = 0
        for gi in range(2):
            for j in range(4):
                trr += [[x] for x in self.wrd(gi, j, 192 + 8 * k)]; k += 1
        def x1():
            self.wave0(lambda: self.retry(self.pl_chk('v43', sMSK), self.pl_ld('v42', 'v43'), 'KV'))
            self.barrier()
            self.run(self.kv_loads())
            self.stamp(6)
        def spaced(groups, gapn):
            out = []
            for g in groups: out += [g] + [[]] * gapn
            return out
        if typ == 2:
            hh = self.epi_h(accB, 64, sSTB, 'hb')
            epi = self.epi_qk(accA, 'v32', 'kv') + hh[:len(hh) // 3]
            epi2 = hh[len(hh) // 3:len(hh) // 2] + self.flag_set('kv', sFLB, F_Q) + hh[len(hh) // 2:] + pollset + wa_a
            self.run(ustream(8, accC, allC[0:1], allC))
            self.run(interleave(ustream(8, accC, allC[1:13], allC), epi, is_main(accC)))
            self.stamp(3)
            self.barrier('c9')
            dq += [[]] * 6 + spaced(self.w2_dma(1), 1)
            self.run(interleave(ustream(8, accC, allC[13:32], allC), epi2, is_main(accC)))
            self.run(wa_b)
            self.barrier('w1')
            self.stamp(4)
            self.run(weave(epi3[:n3 // 2], self.w2_dma(3) + [self.flag_set('hb', sFLB, F_HB), self.pl_ld('v42', 'v43')] + trr))
            x1()
            self.run(epi3[n3 // 2:])
        else:
            epi = self.epi_qk(accA, vR, 'kv') + self.epi_v(accB, 32, 'kv')
            ldD = self.cs_load(sCOLD, 32)
            self.run(ustream(8, accC, allC[0:1], allC))
            self.run(interleave(ustream(8, accC, allC[1:8], allC), epi, is_main(accC)))
            self.run([f's_lshl_b32 {sT4}, {sXCH}, 4', f'v_xor_b32 {vCSA}, {sT4}, {vCSA}', f'v_add_u32 v21, {L_GR}, {vCSA}',
                      'ds_read_b128 v[32:35], v21 offset:6144', 'ds_read_b128 v[36:39], v21 offset:6160'])
            self.run(interleave(ustream(8, accC, allC[8:13], allC), pollset, is_main(accC)))
            self.stamp(3)
            self.barrier('c10')
            chkD = lines(f"""
            v_and_b32 v20, v33, v35
            v_and_b32 v20, v20, v37
            v_and_b32 v20, v20, v39
            v_cmp_ne_u32 vcc, 1, v20
            s_cmp_eq_u64 vcc, 0
            """)
            self.retry(chkD, ldD, 'GD')
            nfd = ['v_add_f32 v32, v32, v34', 'v_add_f32 v36, v36, v38', 'v_add_f32 v32, v32, v36'] + self.nf_build(32, vBX) + lines(f"""
            s_sub_u32 {sT4}, {sNH}, 1
            v_and_b32 v{NF}, {sT4}, v{NF}
            v_and_b32 v{NF+1}, {sT4}, v{NF+1}
            {MFMA} {blk(accA)}, {q4(NF)}, {q4(TF)}, 0
            s_lshl1_add_u32 {sT4}, {sTT}, {sNH}
            s_lshl_b32 {sT4}, {sT4}, 12
            s_add_u32 {sT4}, {sT4}, {L_KST}
            v_add_u32 v40, {sT4}, {vL16}
            s_lshl_b32 {sT5}, {sNH}, 11
            s_sub_u32 {sT4}, {sT4}, {sT5}
            v_add_u32 v41, {sT4}, {vL16}
            v_bfe_u32 v44, v0, 2, 2
            v_lshl_add_u32 v44, {vHF}, 3, v44
            v_lshlrev_b32 v44, 6, v44
            v_bfe_u32 v45, v0, 4, 1
            v_lshl_add_u32 v44, v45, 5, v44
            v_and_b32 v45, 3, v0
            v_lshl_add_u32 v44, v45, 3, v44
            s_add_u32 {sT5}, {sT5}, {2 * SLOT}
            v_add_u32 v44, {sT5}, v44
            """) + wa_a
            self.run(interleave(ustream(8, accC, allC[13:21], allC), nfd, is_main(accC)))
            self.run(self.flag_set('kv', sFLB, F_KV))
            dq += spaced(self.w2_dma(1), 1)
            self.run(ustream(8, accC, allC[21:29], allC))
            self.barrier()
            self.stamp(4)
            allD = [m for m in range(32) if (m & 3) < 2]
            def d_rd(m, nb):
                b = 48 + 4 * (nb % 4); off = 4096 * (m >> 2) + 1024 * (m & 1)
                return [f'ds_read_b64_tr_b16 v[{b}:{b+1}], v44 offset:{off}', f'ds_read_b64_tr_b16 v[{b+2}:{b+3}], v44 offset:{off + 256}']
            W3 = self.w2_dma(3)
            self.run(d_rd(allD[0], 0) + [self.u_mfma(accC, 29, 1)] + d_rd(allD[1], 1) + W3[0] + [self.u_mfma(accC, 30, 2)]
                     + d_rd(allD[2], 2) + W3[1] + [self.u_mfma(accC, 31, 3)] + wa_b)
            ds = []
            for k, m in enumerate(allD):
                if k + 3 < 16: ds += d_rd(allD[k + 3], k + 3)
                ds.append(self.u_mfma(accA, m, k))
                if k in (1, 4): ds += W3[2 + (k == 4)]
                if k == 8: ds += self.pl_ld('v42', 'v43')
            self.run(interleave(ds, epi3[:n3 // 2], is_main(accA)))
            xw = [f'ds_write_b128 v40, {q4(accA + 4*q)} offset:{1024*q}' for q in range(4)]
            self.run(epi3[n3 // 2:n3 * 5 // 8] + xw)
            self.barrier('w1')
            self.run(lines(f"""
            ds_read_b128 {q4(accA)}, v41
            ds_read_b128 {q4(accA+4)}, v41 offset:1024
            ds_read_b128 {q4(accA+8)}, v41 offset:4096
            ds_read_b128 {q4(accA+12)}, v41 offset:5120
            """))
            self.run(weave(epi3[n3 * 5 // 8:], self.w2_dma(2) + trr))
            x1()
            self.run([f'v_add_f32 v{accA+i}, v{accA+i}, v{accA+8+i}' for i in range(8)] + self.epi_h(accA, 64, sSTD, 'h', halves=1))
        tl = e.vm[-6:]
        assert [bool(o['dst']) for o in tl] == [True] * 5 + [False] and tl[-1]['tag'] == 'h', tl
        e.vm = tl
        assert not any(dq), dq
        e.wait_lg0(force=True)
        e.settle()
        e(f's_add_u32 {sFLB}, {sFLB}, {F_HC + (256 if typ == 2 else 0)}')
        self.auto('s2', False)
        self.stamp(5)

    def att(self):
        e = self.e
        KB = [36, 40]; VB = [44, 52]; P = 60; SB = [68, 84]; NM = 100; MK = 116; O = 132
        Q = 'v[32:35]'
        self.auto('att', True)
        self.vFL, self.vF1 = 'v24', 'v25'
        W = {gi: self.w2_dma(gi) for gi in range(4, 6)}
        H = {gi: self.hload(gi) for gi in range(9)}
        self.run(['v_mov_b32 v24, v3', 'v_mov_b32 v25, 1'])
        self.run(lines(f"""
        v_lshlrev_b32 v20, 2, {vHF}
        v_sub_u32 v20, {vTOK}, v20
        v_mov_b32 v21, {NEGBIG}
        s_lshr_b32 {sT2}, {sWB4K}, 2
        s_add_u32 {sT2}, {sT2}, {L_KST}
        v_add_u32 v2, {sT2}, {vL16}
        s_lshr_b32 {sT3}, {sWB4K}, 2
        v_add_u32 v41, {sT3}, v2
        v_and_b32 v3, 15, v0
        v_lshl_add_u32 v3, {vHF}, 4, v3
        v_lshlrev_b32 v3, 4, v3
        v_add_u32 v3, {sT2}, v3
        v_mov_b32 v17, 0
        """))
        pairs = ['vcc', 's[86:87]', 's[88:89]']
        ml = []
        for r in range(16):
            c = 8 * (r >> 2) + (r & 3)
            ml.append(f'v_cmp_le_i32 {pairs[r % 3]}, {c}, v20')
            if r >= 2: ml.append(f'v_cndmask_b32 v{SB[0]+r-2}, v21, 0, {pairs[(r - 2) % 3]}')
        for r in (14, 15): ml.append(f'v_cndmask_b32 v{SB[0]+r}, v21, 0, {pairs[r % 3]}')
        self.run(ml)
        self.run([f'v_mov_b32 v{r}, {vONE}' for r in list(range(8, 12)) + list(range(44, 60))])
        self.run([f's_lshl_b32 {sT2}, {sR2}, 1', f'v_add_u32 v28, {sT2}, {vHF}'] + self.fl_addr('v28', 'v29') + lines(f"""
        s_lshl_b32 {sT2}, {sW}, 26
        s_add_u32 {sT2}, {sT2}, {WS_Z}
        v_lshl_add_u32 v28, {vTOK}, 4, v28
        v_add_u32 v28, {sT2}, v28
        s_mov_b32 s90, 0xffff
        s_mov_b32 s91, 0xffff
        v_mov_b32 v29, {L_KST}
        """) + self.pl_ld('v28', 'v30', F_HB))
        self.run(self.flag_set('h', sFLB, 0))
        self.run(lines(f"""
        ds_write_b128 v41, v[112:115]
        ds_write_b128 v41, v[116:119] offset:1024
        ds_write_b128 v41, v[120:123] offset:16384
        ds_write_b128 v41, v[124:127] offset:17408
        """))
        self.run([f'v_sub_f32 v{MK+r}, v21, v{SB[0]+r}' for r in range(16)])
        def hb():
            e(f'ds_write_b32 v29, v17')
            self.retry(self.pl_chk('v30', sEX), self.pl_ld('v28', 'v30', F_HB), 'HB')
            e.wait_lg0()
        self.wave0(hb)
        self.barrier()
        self.stamp(7)
        def kread(i, b): self.run([f'ds_read_b128 {q4(b)}, v2 offset:{1024*i}'])
        def vread(i, b):
            e(f"""
            s_mov_b64 exec, {sEX}
            ds_read_b128 {q4(b)}, v3 offset:{16384 + 1024*i}
            ds_read_b128 {q4(b+4)}, v3 offset:{16384 + 1024*i+512}
            s_mov_b64 exec, -1
            """)
        def hc0():
            def f():
                self.retry(self.pl_chk('v30', '-1'), self.pl_ld('v28', 'v30', F_HC), 'HC')
                e(f'ds_write_b32 v29, v25')
            self.wave0(f)
        def hcw():
            lp = e.newlabel('HCW'); lo = e.newlabel('HCD')
            e.settle()
            e(f's_mov_b32 {sCNT}, 0')
            e.label(lp)
            e.raw(f'ds_read_b32 v21, v29')
            e.raw(f's_add_u32 {sCNT}, {sCNT}, 1')
            e.raw('s_waitcnt lgkmcnt(0)'); e.lg = []
            e.raw(f'v_readfirstlane_b32 {sT2}, v21')
            e.raw(f's_cmp_gt_u32 {sCNT}, 0x1000000')
            e.raw(f's_cbranch_scc1 {lo}')
            e.raw(f's_cmp_eq_u32 {sT2}, 0')
            e.raw(f's_cbranch_scc1 {lp}')
            e.label(lo)
            e.t += 6
        hcp = int(OPT.get('hcp', 7))
        acts = [
            [H[0][0] + H[0][1], H[0][2] + H[0][3], W[4][0]],
            [W[4][1], W[4][2], W[4][3]],
            [H[1][0] + H[1][1], H[1][2] + H[1][3]],
            [W[5][0], W[5][1]],
            [W[5][2], W[5][3]],
            [], [], [], [],
        ]
        acts[hcp - 2].append(self.pl_ld('v28', 'v30', F_HC))
        acts[hcp].append([hc0])
        if hcp + 1 <= 8:
            acts[hcp + 1] += [[hcw], H[2][0], H[2][1], H[2][2]]
            self.Hrest = [H[2][3]] + H[3] + H[4]
        else:
            self.Hrest = [[hcw]] + H[2] + H[3] + H[4]
        self.H = H
        kread(8, KB[0]); kread(7, KB[1])
        e(f'{MFMA} {blk(SB[0])}, {q4(KB[0])}, {Q}, {blk(SB[0])}')
        vread(8, VB[0])
        e(f'v_max3_f32 v20, v{SB[0]}, v{SB[0]+1}, v{SB[0]+2}')
        e(f'v_max3_f32 v21, v{SB[0]+3}, v{SB[0]+4}, v{SB[0]+5}')
        for j in range(3, 8):
            e(f'v_max3_f32 v{20 + (j & 1)}, v{SB[0]+2*j}, v{SB[0]+2*j+1}, v{20 + (j & 1)}')
        lp2 = e.newlabel('PASS2')
        e.label(lp2)
        e(f"""
        v_max_f32 v20, v20, v21
        v_mov_b32 v21, v20
        v_permlane32_swap_b32 v20, v21
        v_max_f32 v20, v20, v21
        v_cvt_pk_bf16_f32 v21, v20, v20
        v_lshlrev_b32 v21, 16, v21
        v_sub_f32 v21, v21, v20
        v_cvt_pk_bf16_f32 v16, -v20, v21
        v_cmp_eq_u32 vcc, 0, {vHF}
        v_cndmask_b32 v16, 0, v16, vcc
        {MFMA} {blk(SB[0])}, v[8:11], v[16:19], {blk(SB[0])}
        {MFMA} {blk(NM)}, v[8:11], v[16:19], 0
        """)
        tails = {i: e.newlabel(f'TAIL{i}') for i in range(1, 9)}
        lend2 = e.newlabel('P2END')
        for n, i in enumerate(range(8, -1, -1)):
            cur = SB[n % 2]; nx = SB[(n + 1) % 2]; V = VB[n % 2]
            A = list(acts[n])
            if i > 0:
                if i - 1 == 0:
                    e(f'{MFMA} {blk(nx)}, v[8:11], v[16:19], {blk(MK)}')
                    e(f'{MFMA} {blk(nx)}, {q4(KB[(n + 1) % 2])}, {Q}, {blk(nx)}')
                else:
                    e(f'{MFMA} {blk(nx)}, {q4(KB[(n + 1) % 2])}, {Q}, {blk(NM)}')
                if i > 1: kread(i - 2, KB[n % 2])
                vread(i - 1, VB[(n + 1) % 2])
            for kb in range(2):
                for j in range(8):
                    e(f'v_exp_f32 v{cur+8*kb+j}, v{cur+8*kb+j}')
                    if j == 3 and A: self.run(A.pop(0))
                for j in range(4): e(f'v_cvt_pk_bf16_f32 v{P+4*kb+j}, v{cur+8*kb+2*j}, v{cur+8*kb+2*j+1}')
                if kb == 0 and A: self.run(A.pop(0))
                c = '0' if (n == 0 and kb == 0) else blk(O)
                e(f'{MFMA} {blk(O)}, {q4(V+4*kb)}, {q4(P+4*kb)}, {c}')
            for a in A: self.run(a)
            self.stamp(f't{n}')
            if i > 0:
                e(f's_cmp_eq_u32 {sIMIN}, {i}\ns_cbranch_scc1 {tails[i]}')
                if i == 8: exit_st = self.snap()
        e(f's_branch {lend2}')
        self.auto('att', False)
        st = self.snap()
        self.restore(exit_st)
        for i in range(8, 0, -1):
            e.label(tails[i])
            e.settle()
            for a in acts[8 - i + 1]: self.run(a)
        self.restore(st)
        e.label(lend2)
        e.wait_lg0(force=True)
        e.nop(12)
        lok = e.newlabel('SMOK')
        e(f"""
        v_mov_b32 v21, {f32(2.0**100)}
        v_cmp_nle_f32 vcc, v{O+8}, v21
        s_cmp_eq_u64 vcc, 0
        s_cbranch_scc1 {lok}
        s_cmp_lg_u32 {sREDO}, 0
        s_cbranch_scc1 {lok}
        s_mov_b32 {sREDO}, 1
        """)
        st = self.snap()
        e.raw('s_waitcnt vmcnt(0) lgkmcnt(0)'); e.vm = []; e.lg = []
        e(f'v_mov_b32 v20, {NEGBIG}\nv_mov_b32 v21, {NEGBIG}\nv_mov_b32 v30, {NEGBIG}')
        for i in range(0, 9):
            lsk = e.newlabel('RSK')
            if i < 8: e(f's_cmp_gt_u32 {sIMIN}, {i}\ns_cbranch_scc1 {lsk}')
            kread(i, KB[0])
            if i == 8:
                for r in range(16): e(f'v_sub_f32 v{SB[0]+r}, v30, v{MK+r}')
            c = blk(MK) if i == 0 else (blk(SB[0]) if i == 8 else '0')
            e(f'{MFMA} {blk(SB[0])}, {q4(KB[0])}, {Q}, {c}')
            for j in range(8):
                e(f'v_max3_f32 v{20 + (j & 1)}, v{SB[0]+2*j}, v{SB[0]+2*j+1}, v{20 + (j & 1)}')
            e.settle()
            e.label(lsk)
        kread(7, KB[1]); vread(8, VB[0])
        e('v_mov_b32 v30, 1')
        e.raw('s_waitcnt lgkmcnt(0)'); e.lg = []
        e.settle()
        e(f's_branch {lp2}')
        self.restore(st)
        e.label(lok)
        e(f'v_rcp_f32 v20, v{O+8}')
        for j in range(8): e(f'v_mul_f32 v{O+j}, v20, v{O+j}')
        for j in range(4): e(f'v_cvt_pk_bf16_f32 v{P+j}, v{O+2*j}, v{O+2*j+1}')
        e(f'buffer_store_dwordx4 {q4(P)}, {vL16}, {srd(S_WS)}, {sOST} offen sc1 #o')
        self.stamp(8)

    def g2(self):
        e = self.e
        ACC = [80, 96]
        H = self.H
        self.auto('g2', True)
        first = [True]
        def mm(gi, j, b):
            hb = self.hq(gi, j)
            assert OPT.get('drop_g2') or OPT.get('drop_att') or any(f'buffer_load_dwordx4 {q4(hb)}, {vL16}, {srd(S_WS)}, {sKX} offen' in l for l in e.lines), (gi, j)
            c = ['0' if first[0] else blk(ACC[nt]) for nt in range(2)]; first[0] = False
            return [f'{MFMA} {blk(ACC[nt])}, {q4(b+4*nt)}, {q4(hb)}, {c[nt]}' for nt in range(2)]
        vq = list(self.Hrest)
        k = 0
        for gi in range(2):
            for j in range(4):
                for l in mm(gi, j, 192 + 8 * k):
                    self.run([l])
                    if vq: self.run(vq.pop(0))
                k += 1
                if k == 4: self.run(self.flag_set('o', sFLO, 0))
        self.run(lines(f"""
        v_lshrrev_b32 v35, 3, v0
        v_and_b32 v36, 7, v0
        s_lshl3_add_u32 {sT3}, {sR2}, {sW}
        s_lshl_b32 {sT3}, {sT3}, 3
        v_add_u32 v37, {sT3}, v35
        s_lshl_b32 {sT4}, {sC64}, 7
        v_lshl_add_u32 v38, v36, 4, {sT4}
        v_lshl_add_u32 v8, v37, 10, v38
        """))
        e.wait_lg0(force=True)
        e('s_barrier')
        self.stamp(9)
        WB = [48, 56, 64, 72]
        steps = [(gi, j) for gi in range(2, 9) for j in range(4)]
        self.run(self.wrd(2, 0, WB[0]) + self.wrd(2, 1, WB[1]))
        W6 = self.w2_dma(6)
        vq += [W6[0], W6[1], W6[2], W6[3]] + H[5] + H[6]
        OPL = int(OPT.get('opl', 10))
        bar = {3: (None, 7), 7: (None, 8), 14: ('w6', None), 18: ('w8', None)}
        for k, (gi, j) in enumerate(steps):
            if k in bar:
                tag, rel = bar[k]
                while tag and vq and any(isinstance(l, str) and f'#{tag}' in l for x in vq for l in x): self.run(vq.pop(0))
                if k == 14:
                    while vq: self.run(vq.pop(0))
                    self.wave0(lambda: self.retry(self.pl_chk('v30', '-1'), self.pl_ld('v28', 'v30', F_O), 'OC'))
                self.barrier(tag)
                self.stamp(f'g{k}')
                if rel: vq += self.w2_dma(rel)
                if k == 14: vq = H[7] + H[8]
            if k == OPL: self.run(self.pl_ld('v28', 'v30', F_O))
            if k == 19:
                vq.append([f'buffer_load_dwordx4 v[40:43], v8, {srd(S_X)}, 0 offen', f'buffer_load_dwordx4 v[44:47], v38, {srd(S_B2)}, 0 offen'])
            if k + 2 < len(steps): self.run(self.wrd(*steps[k + 2], WB[(k + 2) % 4]))
            need = [f'#h{a}_{b}' for (a, b) in steps[k:k + 3]]
            while vq and any(isinstance(l, str) and nd in l for x in vq for l in x for nd in need): self.run(vq.pop(0))
            for l in mm(gi, j, WB[k % 4]):
                self.run([l])
                if vq: self.run(vq.pop(0))
        assert not vq, vq
        self.stamp(11)
        PS = 1056
        self.run(lines(f"""
        s_lshl1_add_u32 {sT4}, {sKQ}, {sNH}
        s_lshl_b32 {sT4}, {sT4}, 13
        s_lshr_b32 {sT3}, {sKQ}, 1
        s_lshl_b32 {sT3}, {sT3}, 16
        s_add_u32 {sT4}, {sT4}, {sT3}
        v_add_u32 v9, {sT4}, {vL16}
        """))
        for nt in range(2):
            for q in range(4):
                pl = nt * 4 + q
                self.run([f'v_xor_b32 v10, {pl << 5}, v9', f'ds_write_b128 v10, v[{ACC[nt]+4*q}:{ACC[nt]+4*q+3}] offset:{pl * 1024}'])
        self.run(lines(f"""
        s_lshl_b32 {sT4}, {sKQ}, 7
        s_lshl_b32 {sT3}, {sNH}, 13
        s_add_u32 {sT4}, {sT4}, {sT3}
        v_lshl_add_u32 v9, v35, 4, {sT4}
        v_lshlrev_b32 v10, 5, v36
        v_xor_b32 v9, v9, v10
        v_lshl_add_u32 v9, v36, 10, v9
        v_add_u32 v10, 0x10000, v9
        """))
        for j in range(4):
            self.run(lines(f"""
            v_lshlrev_b32 v{112+2*j}, 16, v{40+j}
            v_and_b32 v{113+2*j}, 0xffff0000, v{40+j}
            v_lshlrev_b32 v{120+2*j}, 16, v{44+j}
            v_and_b32 v{121+2*j}, 0xffff0000, v{44+j}
            """))
        self.run([f'v_add_f32 v{112+j}, v{112+j}, v{120+j}' for j in range(8)])
        self.barrier()
        for kq in range(4):
            for hf in range(2):
                b = 48 + 8 * kq + 4 * hf
                self.run([f'ds_read_b128 v[{b}:{b+3}], v{9 + (kq >> 1)} offset:{kq * 16384 + hf * 512}'])
        for j in range(8): self.run([f'v_add_f32 v{112+j}, v{112+j}, v{48+j}'])
        for j in range(8): self.run([f'v_add_f32 v{56+j}, v{56+j}, v{64+j}'])
        for j in range(8): self.run([f'v_add_f32 v{112+j}, v{112+j}, v{72+j}'])
        for j in range(8): self.run([f'v_add_f32 v{112+j}, v{112+j}, v{56+j}'])
        for j in range(4): self.run([f'v_cvt_pk_bf16_f32 v{48+j}, v{112+2*j}, v{112+2*j+1}'])
        e(f'buffer_store_dwordx4 v[48:51], v8, {srd(S_OUT)}, 0 offen')
        self.auto('g2', False)
        self.stamp(12)

    def prof_out(self):
        e = self.e
        e(f"""
        s_lshl3_add_u32 {sT0}, s2, {sW}
        s_lshl_b32 {sT0}, {sT0}, 8
        s_add_u32 {sT0}, {sT0}, {WS_PROF}
        v_lshlrev_b32 v2, 2, v0
        buffer_store_dword v31, v2, {srd(S_WS)}, {sT0} offen
        """)

    def build(self):
        e = self.e
        if self.prof:
            e.raw('s_memrealtime s[6:7]')
            e.raw('s_memtime s[4:5]')
            e.raw('s_waitcnt lgkmcnt(0)')
            e.raw('s_mov_b32 s7, s4')
            e.raw('v_mov_b32 v31, 0')
        self.prologue()
        e(f"""
        s_cmp_eq_u32 {sTYPE}, 1
        s_cbranch_scc1 L_type2
        """)
        st = self.snap()
        self.p1(1)
        e('s_branch L_att')
        self.restore(st)
        e.label('L_type2')
        self.p1(2)
        e.label('L_att')
        if self.stop_after != 'p1':
            self.att()
            if self.stop_after != 'att':
                self.g2()
        if self.prof:
            e.raw('v_writelane_b32 v31, s6, 63')
            e.raw('v_writelane_b32 v31, s7, 60')
            e.raw('s_memtime s[4:5]')
            e.raw('s_memrealtime s[64:65]')
            e.raw('s_waitcnt lgkmcnt(0)')
            e.raw('s_sub_u32 s4, s4, s7')
            e.raw('v_writelane_b32 v31, s4, 62')
            e.raw('v_writelane_b32 v31, s64, 61')
            self.prof_out()
        e.label('L_end')
        e.raw('s_endpgm')
        hdr = open('cdna_kernels/' + NAME + '.s.ref').read().split('\n')
        cm = [l for l in hdr if l.startswith(';') and '@launch' not in l]
        out = '\n'.join(cm) + f'\n; @launch grid=(256,1,1) block=(512,1,1) lds={LDS_BYTES}\n'
        out += f""".amdgcn_target "amdgcn-amd-amdhsa--gfx950"
.text
.globl {NAME}_kernel
.p2align 8
.type {NAME}_kernel,@function
{NAME}_kernel:
"""
        out += e.text()
        out += f""".section .rodata,"a"
.p2align 6
.amdhsa_kernel {NAME}_kernel
  .amdhsa_next_free_vgpr 256
  .amdhsa_next_free_sgpr 102
  .amdhsa_accum_offset 256
  .amdhsa_group_segment_fixed_size 0
  .amdhsa_kernarg_size 88
  .amdhsa_user_sgpr_count 2
  .amdhsa_user_sgpr_kernarg_segment_ptr 1
  .amdhsa_system_sgpr_workgroup_id_x 1
.end_amdhsa_kernel
"""
        return out

if __name__ == '__main__':
    import argparse
    ap = argparse.ArgumentParser()
    ap.add_argument('-o', default='k.s')
    ap.add_argument('--stop', default=None)
    ap.add_argument('--prof', default=None)
    ap.add_argument('--cyc', action='store_true')
    ap.add_argument('--opt', default='')
    a = ap.parse_args()
    for kv in a.opt.split(','):
        if kv: OPT[kv.split('=')[0]] = kv.split('=')[1]
    g = G(stop_after=a.stop, prof=a.prof.split(',') if a.prof else None, cyc=a.cyc)
    txt = g.build()
    open(a.o, 'w').write(txt)
    if g.prof: open(a.o + '.names', 'w').write(','.join(g.prof))
    print('instrs', g.e.ninstr, 'nops', g.e.nnops)
```

```python
import sys, math, struct, copy
from em import Em, lines, interleave

NAME = "parallel_sum__sliding_block__dense_activation_gelu__prompt"
OPT = {}
WS_AH = 0
AH_T = 144 * 1024
WS_K = 0x900000
WS_V = 0xB00000
WS_Q = 0xD00000
WS_Z = 0xF00000
FL_T = 1792
F_KV, F_Q, F_HB, F_HC, F_O = 0, 256, 512, 768, 1280
Z_ROW = 7168
Z_CSG = 8192
WS_PROF = 0x1000000
WS_SIZE = 0x1100000
SH = 4096
SLOT = 32768
L_KST = 131072
L_VST = 147456
L_CSP = 147456
L_RV = 149504
L_GR = 131072
L_OK = 163824
LDS_BYTES = 163840

def f32(x): return struct.unpack('<I', struct.pack('<f', x))[0]
LOG2E = 1.4426950408889634
GA = -2.0 * math.sqrt(2.0 / math.pi) * LOG2E
GB = GA * 0.044715
NEGBIG = f32(-1e30)
ONES = 0x3f803f80

S_X, S_QKV, S_W1, S_W2, S_WO, S_WS, S_OUT, S_DBG, S_B1, S_B2 = [8 + 4 * i for i in range(10)]
S_TMP = 80
def srd(b): return f's[{b}:{b+3}]'
_names = """sW sNH sTT sRB sG sT sTYPE sWB4K sCOLA sCOLB sCOLC sCOLD sT0 sT1 sKX sKW""".split()
for _i, _n in enumerate(_names): globals()[_n] = f's{48+_i}'
sT2, sT3, sT4, sT5 = 's86', 's87', 's88', 's89'
sEX = 's[90:91]'; sROW = 's90'
sFLB = 's92'; sGB = 's93'; sCNT = 's94'; sR2 = 's95'; sC64 = 's96'; sXCH = 's97'; sQTR = 's98'; sHEAD = 's99'; sKW2 = 's100'; sUID = 's101'
sPIT = 's3'; sROT = 's3'; sGSRC = 's98'; sDK = 's78'
sTA = 's64'; sRA = 's65'; sKV = 's66'; sQO = 's67'; sMSK = 's[68:69]'; sT2G = 's70'; sAH2 = 's71'; sREDO = 's72'
sRC = 's73'; sOST = 's74'; sIMIN = 's75'; sKQ = 's76'; sFLO = 's77'; sFLIP = 's78'; sWLO = 's79'
sSTA = 's80'; sSTB = 's81'; sSTC = 's82'; sSTD = 's83'; sWHI = 's84'; sROWG = 's85'
vW2 = 'v1'; vONE = 'v14'; vL16 = 'v15'; TF = 16; NF = 20; vR = 'v25'; vTOK = 'v26'; vHF = 'v27'
vBC = 'v28'; vBX = 'v29'; vCSA = 'v30'
accC, accA, accB = 80, 96, 112
def blk(b): return f'v[{b}:{b+15}]'
def q4(b): return f'v[{b}:{b+3}]'
MFMA = 'v_mfma_f32_32x32x16_bf16'
PQ, PH = 3072, 3584

class G:
    def __init__(self, stop_after=None, prof=None, cyc=False):
        self.e = Em()
        self.stop_after = stop_after
        self.prof = prof
        self.cyc = cyc
        self.auto_on = False; self.auto_n = int(OPT.get('auton', 40)); self.auto_idx = 1; self.auto_last = 0

    def stamp(self, name):
        if not self.prof: return
        name = str(name)
        if name not in self.prof: return
        idx = self.prof.index(name)
        e = self.e
        e.raw('s_memtime s[4:5]' if self.cyc else 's_memrealtime s[4:5]')
        e.raw('s_waitcnt lgkmcnt(0)'); e.lg = []
        e.raw(f'v_writelane_b32 v31, s4, {idx}'); e.t += 3
    def snap(self):
        return copy.deepcopy({k: v for k, v in self.e.__dict__.items() if k != 'lines'})
    def restore(self, s):
        uid = self.e.uid; ni = self.e.ninstr; nn = self.e.nnops
        self.e.__dict__.update(copy.deepcopy(s)); self.e.uid = uid; self.e.ninstr = ni; self.e.nnops = nn
    def run(self, ls):
        for l in ls:
            if callable(l): l(); continue
            self.e.I(l)
            if self.auto_on and self.e.ninstr - self.auto_last >= self.auto_n and not l.startswith(('s_add_u32 m0', 's_cmp', 'v_cmp', 's_mov_b64 exec', 'ds_read', 's_and_b64')) and self.auto_idx < 46:
                self.auto_last = self.e.ninstr
                if f'x{self.auto_idx}' not in self.prof: self.prof.append(f'x{self.auto_idx}')
                self.e.comment(f'AUTO {self.auto_idx}')
                self.stamp(f'x{self.auto_idx}')
                self.auto_idx += 1
    def auto(self, name, on):
        for ph in name, {'s1': 'p1', 's2': 'p1'}.get(name, name):
            if OPT.get('drop_' + ph): self.e.drop = OPT['drop_' + ph].replace('+', '|') if on else None
        if OPT.get('auto') == name:
            self.auto_on = on; self.auto_last = self.e.ninstr
            if on: self.auto_idx = 1
    def mk(self, b, lo, size, shift=0):
        if shift:
            self.e(f"""
            s_sub_u32 s{b}, s{lo}, {shift}
            s_subb_u32 s{b+1}, s{lo+1}, 0
            s_and_b32 s{b+1}, s{b+1}, 0xffff
            s_mov_b32 s{b+2}, {size + shift}
            s_mov_b32 s{b+3}, 0x20000
            """)
        else:
            self.e(f"""
            s_mov_b32 s{b}, s{lo}
            s_and_b32 s{b+1}, s{lo+1}, 0xffff
            s_mov_b32 s{b+2}, {size}
            s_mov_b32 s{b+3}, 0x20000
            """)
    def retry(self, check_lines, reload_lines, name):
        e = self.e
        lok = e.newlabel(name + 'OK'); lp = e.newlabel(name + 'LP')
        if OPT.get('nochk') and name != 'ARM': return
        ao = self.auto_on; self.auto_on = False
        self.run(check_lines)
        e(f's_cbranch_scc1 {lok}\ns_mov_b32 {sCNT}, 0')
        e.label(lp)
        st = self.snap()
        e.settle()
        e('s_sleep 2')
        self.run(reload_lines)
        e.raw('s_waitcnt vmcnt(0)'); e.vm = []
        e(f's_add_u32 {sCNT}, {sCNT}, 1')
        if self.prof:
            sites = ['ARM', 'GR', 'GD', 'KV', 'HB', 'HC', 'OC']
            e.raw(f'v_writelane_b32 v31, {sCNT}, {50 + sites.index(name)}')
        e(f's_cmp_gt_u32 {sCNT}, 0x40000\ns_cbranch_scc1 {lok}')
        self.run(check_lines)
        e(f's_cbranch_scc0 {lp}')
        e.settle()
        self.restore(st)
        e.label(lok)
        self.auto_on = ao
    def wave0(self, fn):
        e = self.e
        lab = e.newlabel('W0')
        e.settle()
        e(f's_cmp_lg_u32 {sW}, 0\ns_cbranch_scc1 {lab}')
        st = self.snap()
        fn()
        e.settle()
        self.restore(st)
        e.label(lab)
    def barrier(self, tag=None):
        if tag: self.e.wait_vm_tag(tag)
        self.e.wait_lg0(); self.e('s_barrier')

    def prologue(self):
        e = self.e
        e(f"""
        s_cmp_ge_u32 s2, 256
        s_cbranch_scc1 L_end
        s_load_dwordx16 s[64:79], s[0:1], 0
        s_load_dwordx4 s[80:83], s[0:1], 64
        s_load_dwordx2 s[84:85], s[0:1], 80
        v_lshrrev_b32 v1, 6, v0
        v_and_b32 v0, 63, v0
        v_readfirstlane_b32 {sW}, v1
        s_and_b32 {sT0}, s2, 7
        s_lshr_b32 {sT1}, s2, 3
        s_and_b32 {sRB}, {sT0}, 1
        s_and_b32 {sT2}, {sT1}, 7
        s_lshl3_add_u32 {sRB}, {sRB}, {sT2}
        s_lshr_b32 {sTYPE}, {sT1}, 4
        s_and_b32 {sG}, {sT0}, 6
        s_bfe_u32 {sT4}, {sT1}, 0x10003
        s_add_u32 {sG}, {sG}, {sT4}
        s_lshr_b32 {sNH}, {sW}, 2
        s_lshl1_add_u32 {sTT}, {sNH}, {sW}
        s_and_b32 {sTT}, {sTT}, 3
        s_lshl2_add_u32 {sT}, {sRB}, {sTT}
        s_lshl_b32 {sWB4K}, {sW}, 12
        s_and_b32 {sT2}, {sT0}, 1
        s_lshl_b32 {sT2}, {sT2}, 5
        s_add_u32 {sT2}, {sT2}, {sT1}
        s_and_b32 {sQTR}, {sT2}, 3
        s_lshr_b32 {sT2}, {sT2}, 2
        s_lshr_b32 {sT3}, {sT0}, 1
        s_lshr_b32 {sUID}, {sT2}, 1
        s_and_b32 {sT4}, {sT2}, 1
        s_lshl3_add_u32 {sUID}, {sUID}, {sT4}
        s_lshl1_add_u32 {sUID}, {sT3}, {sUID}
        s_add_u32 {sT4}, {sT3}, 48
        s_cmp_eq_u32 {sT2}, 12
        s_cselect_b32 {sUID}, {sT4}, {sUID}
        s_cmp_gt_u32 {sT2}, 12
        s_cselect_b32 {sUID}, 52, {sUID}
        s_and_b32 {sROW}, {sT0}, 1
        s_lshl2_add_u32 {sROW}, {sROW}, {sT3}
        s_lshl_b32 {sROW}, {sROW}, 5
        s_add_u32 {sROW}, {sROW}, {sT1}
        s_lshl3_add_u32 {sROW}, {sROW}, {sW}
        s_movk_i32 {sPIT}, {PQ}
        s_cmp_ge_u32 {sUID}, 24
        s_cselect_b32 {sPIT}, {PH}, {sPIT}
        s_and_b32 {sT4}, {sT1}, 3
        s_lshl2_add_u32 {sR2}, {sT0}, {sT4}
        s_lshr_b32 {sC64}, {sT1}, 2
        s_and_b32 {sHEAD}, s2, 31
        """)
        e(f"""
        v_lshrrev_b32 v32, 3, v0
        v_and_b32 v33, 7, v0
        v_lshlrev_b32 {vL16}, 4, v0
        v_mov_b32 {vONE}, {ONES}
        s_lshl_b32 {sT5}, {sW}, 4
        s_lshl_b32 {sT4}, {sRB}, 7
        s_add_u32 {sT4}, {sT4}, {sT5}
        v_add_u32 v34, {sT4}, v32
        v_lshrrev_b32 v35, 1, v32
        v_xor_b32 v35, v35, v33
        v_lshlrev_b32 v35, 4, v35
        v_lshl_add_u32 v10, v34, 10, v35
        v_xor_b32 v11, 64, v10
        v_add_u32 v11, {8192 - 1024}, v11
        v_and_b32 v35, 2, v32
        v_lshlrev_b32 v35, 1, v35
        v_xor_b32 v35, v35, v33
        v_lshlrev_b32 v35, 4, v35
        v_add_u32 v34, {sT5}, v32
        v_mad_u32_u24 v20, v34, {sPIT}, v35
        s_lshl_b32 {sT5}, {sW}, 3
        v_add_u32 v36, {sT5}, v32
        v_mul_u32_u24 v37, {PQ}, v36
        v_add_u32 v37, v37, v35
        v_mul_u32_u24 v38, {PH}, v36
        v_add_u32 v38, v38, v35
        v_lshl_add_u32 {vW2}, v36, 10, v35
        s_lshl_b32 {sT4}, {sC64}, 7
        s_add_u32 {sT4}, {sT4}, {SH}
        v_add_u32 {vW2}, {sT4}, {vW2}
        """)
        e.wait_lg0()
        self.mk(S_X, 64, 2048 * 1024)
        self.mk(S_QKV, 66, 512 * PQ, SH)
        self.mk(S_W1, 72, 512 * PH, SH)
        self.mk(S_WS, 84, WS_SIZE)
        self.mk(S_OUT, 80, 2048 * 1024)
        self.mk(S_DBG, 82, 256)
        self.stamp('ka')
        lab = e.newlabel('NORST')
        e(f"""
        s_or_b32 {sT0}, {sG}, {sTYPE}
        s_cmp_lg_u32 {sT0}, 0
        s_cbranch_scc1 {lab}
        s_lshl3_add_u32 {sT0}, {sRB}, {sW}
        s_lshl_b32 {sT0}, {sT0}, 11
        s_add_u32 {sT0}, {sT0}, {WS_Z}
        v_mov_b32 v40, 0
        v_mov_b32 v41, 0
        v_mov_b32 v42, 0
        v_mov_b32 v43, 0
        buffer_store_dwordx4 v[40:43], {vL16}, {srd(S_WS)}, {sT0} offen sc1 #zero
        buffer_store_dwordx4 v[40:43], {vL16}, {srd(S_WS)}, {sT0} offen offset:1024 sc1 #zero
        """)
        e.settle()
        e.label(lab)

    def stats_loads(self):
        self.e(f"""
        s_lshl_b32 {sT0}, {sROW}, 10
        buffer_load_dwordx4 v[240:243], {vL16}, {srd(S_X)}, {sT0} offen
        s_cmp_ge_u32 {sUID}, 24
        s_cselect_b32 s{S_TMP}, s{S_W1}, s{S_QKV}
        s_cselect_b32 s{S_TMP+1}, s{S_W1+1}, s{S_QKV+1}
        s_cselect_b32 s{S_TMP+2}, s{S_W1+2}, s{S_QKV+2}
        s_mov_b32 s{S_TMP+3}, 0x20000
        s_cselect_b32 {sT1}, 24, 0
        s_sub_u32 {sT1}, {sUID}, {sT1}
        s_lshl_b32 {sT1}, {sT1}, 7
        s_lshl_b32 {sT0}, {sQTR}, 7
        s_mul_i32 {sT0}, {sT0}, {sPIT}
        s_add_u32 {sT0}, {sT0}, {sT1}
        s_add_u32 {sT0}, {sT0}, {SH}
        s_lshl3_add_u32 {sT1}, {sPIT}, {sT0}
        s_sub_u32 {sT1}, {sT1}, 1024
        s_lshr_b32 {sT2}, {sWB4K}, 1
        s_add_u32 m0, {sT2}, {L_KST}
        buffer_load_dwordx4 v20, {srd(S_TMP)}, {sT0} offen lds #cs
        buffer_load_dwordx4 v20, {srd(S_TMP)}, {sT1} offen offset:1024 lds #cs
        """)

    def code_prefetch(self):
        e = self.e
        lab = e.newlabel('NOIPF')
        e(f"""
        s_cmp_lg_u32 {sW}, 2
        s_cbranch_scc1 {lab}
        s_getpc_b64 s[4:5]
        """)
        l2 = e.newlabel('PCREF')
        e.label(l2)
        e(f"""
        s_sub_u32 s4, s4, {l2}-{NAME}_kernel
        s_subb_u32 s5, s5, 0
        s_bfe_u32 {sT0}, s2, 0x20003
        s_lshl_b32 {sT0}, {sT0}, 13
        v_lshlrev_b32 v44, 7, v0
        v_add_u32 v44, {sT0}, v44
        v_min_u32 v44, L_end-{NAME}_kernel, v44
        """)
        saved = list(e.vm)
        e(f'global_load_dword v45, v44, s[4:5]')
        e.vm = saved
        e.label(lab)

    def csg_off(self, dst, scol, isq):
        return f"""
        s_lshr_b32 {sT2}, {scol}, 7
        s_add_u32 {sT2}, {sT2}, {0 if isq else 24}
        s_lshr_b32 {sT3}, {sT2}, 2
        s_lshl_b32 {sT3}, {sT3}, 14
        s_and_b32 {sT2}, {sT2}, 3
        s_lshl_b32 {sT2}, {sT2}, 11
        s_add_u32 {sT2}, {sT2}, {sT3}
        s_add_u32 {dst}, {sT2}, {WS_Z + Z_CSG}
        """

    def setup(self, typ):
        e = self.e
        self.mk(S_WO, 68, 512 * 1024, SH)
        self.mk(S_B1, 74, 1792 * 2)
        self.mk(S_W2, 76, 1792 * 1024, SH)
        self.mk(S_B2, 78, 1024)
        e(f"""
        v_and_b32 {vTOK}, 31, v0
        v_lshrrev_b32 {vHF}, 5, v0
        v_bfe_u32 v34, {vTOK}, 1, 3
        v_xor_b32 v34, v34, {vHF}
        v_lshlrev_b32 v34, 4, v34
        v_and_b32 v35, 15, v0
        v_lshl_add_u32 v34, v35, 7, v34
        v_bfe_u32 v35, v0, 4, 1
        v_lshl_add_u32 v34, v35, 12, v34
        s_lshl_b32 {sT4}, {sTT}, 13
        s_lshl_b32 {sT5}, {sNH}, 6
        s_or_b32 {sT4}, {sT4}, {sT5}
        v_xor_b32 v34, {sT4}, v34
        v_bfe_u32 v36, v0, 2, 2
        v_bfe_u32 v33, v0, 1, 1
        v_lshl_add_u32 v32, v35, 1, v33
        v_and_b32 v33, 2, v36
        v_lshlrev_b32 v33, 1, v33
        v_xor_b32 v32, v32, v33
        v_lshlrev_b32 v32, 4, v32
        v_and_b32 v33, 1, v0
        v_lshl_add_u32 v32, v33, 3, v32
        v_lshl_add_u32 v32, v36, 7, v32
        v_lshl_add_u32 v250, {vHF}, 10, v32
        s_lshr_b32 {sT4}, {sWB4K}, 1
        s_add_u32 {sT4}, {sT4}, {L_KST}
        v_add_u32 v250, {sT4}, v250
        v_xor_b32 v251, 64, v250
        v_lshl_add_u32 v35, {vHF}, 12, v32
        s_lshl_b32 {sT4}, {sNH}, 14
        s_or_b32 {sT4}, {sT4}, {sT5}
        v_xor_b32 v35, {sT4}, v35
        """)
        for s in range(4):
            e(f"""
            v_xor_b32 v{2+s}, {s << 5}, v34
            v_xor_b32 v{6+s}, {s << 13}, v35
            v_add_u32 v{80+s}, 0x10000, v{2+s}
            v_add_u32 v{84+s}, 0x10000, v{6+s}
            """)
        e(f"""
        s_mov_b32 {sGB}, {f32(GB)}
        v_mov_b32 v{TF+2}, 0
        v_mov_b32 v{TF+3}, 0
        s_lshl_b32 {sT4}, {sNH}, 10
        v_lshl_add_u32 {vCSA}, {vTOK}, 5, {sT4}
        s_lshl_b32 {sFLB}, {sRB}, 14
        s_mul_i32 {sT4}, {sTT}, {FL_T}
        s_add_u32 {sFLB}, {sFLB}, {sT4}
        s_lshl1_add_u32 {sT5}, {sG}, {sNH}
        s_lshl4_add_u32 {sFLB}, {sT5}, {sFLB}
        s_add_u32 {sFLB}, {sFLB}, {WS_Z}
        s_lshr_b32 {sT1}, {sROW}, 7
        s_lshl_b32 {sT1}, {sT1}, 14
        s_and_b32 {sT0}, {sROW}, 127
        s_lshl3_add_u32 {sT0}, {sT0}, {sT1}
        s_add_u32 {sT0}, {sT0}, {WS_Z + Z_ROW}
        v_lshl_add_u32 v252, v0, 26, {sT0}
        s_lshl_b32 {sT0}, {sW}, 2
        s_add_u32 {sT0}, {sT0}, {L_CSP}
        v_lshl_add_u32 v253, v0, 5, {sT0}
        v_lshlrev_b32 v254, 5, v0
        v_add_u32 v254, {L_CSP}, v254
        v_and_b32 v248, 15, v0
        v_lshlrev_b32 v248, 2, v248
        s_lshr_b32 {sT2}, {sUID}, 2
        s_lshl_b32 {sT2}, {sT2}, 14
        s_and_b32 {sT3}, {sUID}, 3
        s_lshl_b32 {sT3}, {sT3}, 11
        s_add_u32 {sT2}, {sT2}, {sT3}
        s_lshl3_add_u32 {sT2}, {sQTR}, {sT2}
        s_add_u32 {sT2}, {sT2}, {WS_Z + Z_CSG}
        s_cmp_ge_u32 {sUID}, 52
        s_cselect_b32 {sT3}, 1, {sW}
        s_lshl_b32 {sT3}, {sT3}, 26
        s_add_u32 {sT2}, {sT2}, {sT3}
        v_lshl_add_u32 v255, v0, 5, {sT2}
        """)
        e(f"""
        s_lshl_b32 {sT4}, {sNH}, 6
        v_lshl_add_u32 v34, {vTOK}, 1, {sT4}
        buffer_load_ushort {vBC}, v34, {srd(S_B1)}, {sCOLC} offen
        s_xor_b32 {sXCH}, {sNH}, {sG}
        s_and_b32 {sXCH}, {sXCH}, 1
        s_lshl_b32 {sXCH}, {sXCH}, 6
        """)
        if typ == 1:
            e(f'v_xor_b32 v34, {sXCH}, v34\nbuffer_load_ushort {vBX}, v34, {srd(S_B1)}, {sCOLD} offen')
        else:
            e(f'buffer_load_ushort {vBX}, v34, {srd(S_B1)}, {sCOLB} offen')
        e(f"""
        s_lshl1_add_u32 {sT2}, {sG}, {sNH}
        s_lshl_b32 {sT2}, {sT2}, 17
        s_lshl_b32 {sT3}, {sT}, 10
        s_add_u32 {sT2}, {sT2}, {sT3}
        s_add_u32 {sSTA}, {sT2}, {WS_K if typ == 1 else WS_Q}
        s_mul_i32 {sT4}, {sT}, {AH_T}
        s_lshl_b32 {sT3}, {sNH}, 11
        s_add_u32 {sT3}, {sT3}, {sT4}
        s_lshl_b32 {sT5}, {sCOLC}, 5
        s_add_u32 {sSTC}, {sT5}, {sT3}
        """)
        if typ == 1:
            e(f"""
            s_add_u32 {sSTB}, {sT2}, {WS_V}
            s_and_b32 {sT3}, {sG}, 1
            s_lshl1_add_u32 {sT3}, {sT3}, {sNH}
            s_lshl_b32 {sT3}, {sT3}, 10
            s_add_u32 {sT3}, {sT3}, {sT4}
            s_lshl_b32 {sT5}, {sCOLD}, 5
            s_add_u32 {sSTD}, {sT5}, {sT3}
            """)
        else:
            e(f"""
            s_lshl_b32 {sT5}, {sCOLB}, 5
            s_add_u32 {sSTB}, {sT5}, {sT3}
            """)
        e(f"""
        s_lshl_b32 {sROWG}, {sRB}, 14
        s_lshl_b32 {sT3}, {sTT}, 8
        s_add_u32 {sROWG}, {sROWG}, {sT3}
        s_add_u32 {sROWG}, {sROWG}, {WS_Z + Z_ROW}
        """)
        e(f"""
        s_add_u32 {sT4}, {sCOLC}, {SH - 3072}
        v_add_u32 v22, {sT4}, v38
        """)
        if typ == 1:
            e(f"""
            v_lshrrev_b32 v32, 2, v0
            v_mul_u32_u24 v23, {PH}, v32
            v_and_b32 v32, 3, v0
            v_lshl_add_u32 v23, v32, 4, v23
            s_and_b32 {sT4}, {sG}, 1
            s_lshl_b32 {sT4}, {sT4}, 6
            s_add_u32 {sT4}, {sT4}, {sCOLD}
            s_add_u32 {sT4}, {sT4}, {SH}
            v_add_u32 v23, {sT4}, v23
            s_lshl_b32 {sDK}, {sW}, 7
            s_add_u32 {sDK}, {sDK}, {sROT if OPT.get('rot', 'none') != 'none' else 0}
            s_and_b32 {sDK}, {sDK}, 1023
            s_mul_i32 {sDK}, {sDK}, {PH // 2}
            """)
        e(self.csg_off(sCOLA, sCOLA, True)); e(self.csg_off(sCOLB, sCOLB, typ == 1)); e(self.csg_off(sCOLC, sCOLC, False))
        if typ == 1: e(self.csg_off(sCOLD, sCOLD, False))
        e(f"""
        s_lshr_b32 {sT2}, {sW}, 1
        s_mov_b32 {sGSRC}, {sCOLA}
        s_cmp_eq_u32 {sT2}, 1
        s_cselect_b32 {sGSRC}, {sCOLB}, {sGSRC}
        s_cmp_eq_u32 {sT2}, 2
        s_cselect_b32 {sGSRC}, {sCOLC}, {sGSRC}
        s_cmp_eq_u32 {sT2}, 3
        s_cselect_b32 {sGSRC}, {sCOLD if typ == 1 else sCOLC}, {sGSRC}
        s_and_b32 {sT2}, {sW}, 1
        s_lshl_b32 {sT2}, {sT2}, 10
        s_add_u32 {sGSRC}, {sGSRC}, {sT2}
        """)
        e(f"""
        s_lshr_b32 {sRA}, s2, 5
        s_lshl_b32 {sTA}, {sRA}, 3
        s_sub_u32 {sKV}, {sTA}, 8
        s_add_u32 {sTA}, {sTA}, {sW}
        s_sub_u32 {sIMIN}, 8, {sTA}
        s_cmp_gt_u32 {sTA}, 8
        s_cselect_b32 {sIMIN}, 0, {sIMIN}
        s_lshl1_add_u32 {sKV}, {sW}, {sKV}
        s_lshl_b32 {sKV}, {sKV}, 10
        s_lshl_b32 {sT1}, {sHEAD}, 16
        s_add_u32 {sKV}, {sKV}, {sT1}
        s_add_u32 {sKV}, {sKV}, {WS_K}
        s_lshl_b32 {sQO}, {sTA}, 10
        s_add_u32 {sQO}, {sQO}, {sT1}
        s_add_u32 {sQO}, {sQO}, {WS_Q}
        s_lshl1_add_u32 {sT2G}, {sR2}, {sNH}
        s_and_b32 {sKQ}, {sW}, 3
        s_mul_i32 {sAH2}, {sT2G}, {AH_T}
        s_lshl_b32 {sT1}, {sKQ}, 12
        s_add_u32 {sAH2}, {sAH2}, {sT1}
        s_mov_b32 {sREDO}, {1 if OPT.get('nofb') else 0}
        s_lshr_b32 {sFLO}, {sTA}, 2
        s_lshl_b32 {sFLO}, {sFLO}, 14
        s_and_b32 {sT1}, {sTA}, 3
        s_mul_i32 {sT1}, {sT1}, {FL_T}
        s_add_u32 {sFLO}, {sFLO}, {sT1}
        s_lshl4_add_u32 {sFLO}, {sHEAD}, {sFLO}
        s_add_u32 {sFLO}, {sFLO}, {WS_Z + F_O}
        s_mul_i32 {sOST}, {sTA}, {AH_T}
        s_lshl_b32 {sT1}, {sHEAD}, 10
        s_add_u32 {sOST}, {sOST}, {sT1}
        s_add_u32 {sOST}, {sOST}, {112 * 1024}
        s_mov_b32 s40, 0x41065410
        s_mov_b32 s41, 5
        ; rotation seed rc = (c64 + 2*(r64&3)) ; class1 uses rc&1 ; class2 uses rc mod 5
        s_and_b32 {sT1}, {sR2}, 3
        s_lshl1_add_u32 {sRC}, {sT1}, {sC64}
        s_mul_i32 {sT1}, {sRC}, 52
        s_lshr_b32 {sT1}, {sT1}, 8
        s_mul_i32 {sT1}, {sT1}, 5
        s_sub_u32 {sT1}, {sRC}, {sT1}
        s_add_u32 {sRC}, {sC64}, {sR2}
        s_and_b32 {sRC}, {sRC}, 1
        s_lshl3_add_u32 {sRC}, {sRC}, {sT1}
        """)

    def fill_stats(self):
        o = lines(f"""
        WAITVM cs
        ds_read_b64_tr_b16 v[232:233], v250
        ds_read_b64_tr_b16 v[234:235], v250 offset:512
        ds_read_b64_tr_b16 v[236:237], v251
        ds_read_b64_tr_b16 v[238:239], v251 offset:512
        v_dot2_f32_bf16 v244, v240, {vONE}, 0
        v_dot2_f32_bf16 v245, v240, v240, 0
        """)
        for j in range(1, 4):
            o += [f'v_dot2_f32_bf16 v244, v{240+j}, {vONE}, v244', f'v_dot2_f32_bf16 v245, v{240+j}, v{240+j}, v245']
        o += [f'v_dot2_f32_bf16 v228, v232, {vONE}, 0', f'v_dot2_f32_bf16 v229, v236, {vONE}, 0']
        for j in range(1, 4):
            o += [f'v_dot2_f32_bf16 v228, v{232+j}, {vONE}, v228', f'v_dot2_f32_bf16 v229, v{236+j}, {vONE}, v229']
        for dpp in ('quad_perm:[1,0,3,2]', 'quad_perm:[2,3,0,1]', 'row_half_mirror', 'row_mirror'):
            o += [f'v_add_f32_dpp v244, v244, v244 {dpp} row_mask:0xf bank_mask:0xf',
                  f'v_add_f32_dpp v245, v245, v245 {dpp} row_mask:0xf bank_mask:0xf']
            if dpp.startswith('quad_perm:[1'):
                o += ['v_permlane32_swap_b32 v228, v229', 'v_add_f32 v228, v228, v229', 'ds_write_b32 v253, v228']
        for sw in ('v_permlane16_swap_b32', 'v_permlane32_swap_b32'):
            o += lines(f"""
            v_mov_b32 v246, v244
            v_mov_b32 v247, v245
            {sw} v244, v246
            {sw} v245, v247
            v_add_f32 v244, v244, v246
            v_add_f32 v245, v245, v247
            """)
        o += lines(f"""
        v_mul_f32 v244, {f32(1/512)}, v244
        v_mul_f32 v245, {f32(1/512)}, v245
        v_fma_f32 v245, -v244, v244, v245
        v_max_f32 v245, 0, v245
        v_cvt_pk_bf16_f32 v246, v245, v245
        v_lshlrev_b32 v246, 16, v246
        v_add_f32 v246, {f32(1e-5)}, v246
        v_cvt_pk_bf16_f32 v246, v246, v246
        v_lshlrev_b32 v246, 16, v246
        v_sqrt_f32 v246, v246
        v_cvt_pk_bf16_f32 v240, -v244, v246
        v_mov_b32 v241, 1
        """)
        return o

    def fill_cs2(self):
        return lines(f"""
        ds_read_b128 v[232:235], v254
        ds_read_b128 v[236:239], v254 offset:16
        v_add_f32 v232, v232, v233
        v_add_f32 v234, v234, v235
        v_add_f32 v236, v236, v237
        v_add_f32 v238, v238, v239
        v_add_f32 v232, v232, v234
        v_add_f32 v236, v236, v238
        v_add_f32 v244, v232, v236
        v_mov_b32 v245, 1
        """)

    def dma1(self, c, typ):
        slot = (c % 4) * SLOT
        if OPT.get('rot', 'none') == 'none':
            kx = [f's_movk_i32 {sKX}, {128 * c}']; kq = [f's_mov_b32 {sKW}, {64 * PQ * c}']; kh = [f's_mov_b32 {sKW}, {64 * PH * c}']
        else:
            kx = [f's_add_u32 {sKX}, {sROT}, {128 * c}', f's_and_b32 {sKX}, {sKX}, 1023']
            kq = [f's_mul_i32 {sKW}, {sKX}, {PQ // 2}']; kh = [f's_mul_i32 {sKW}, {sKX}, {PH // 2}']
        g0 = [f's_add_u32 m0, {sWB4K}, {slot}'] + kx + [f'buffer_load_dwordx4 v10, {srd(S_X)}, {sKX} offen lds #c{c}']
        g1 = [f'buffer_load_dwordx4 v11, {srd(S_X)}, {sKX} offen offset:1024 lds #c{c}']
        g2 = kq + [f'buffer_load_dwordx4 v12, {srd(S_QKV)}, {sKW} offen offset:2048 lds #c{c}']
        if typ == 1:
            g3 = [f'buffer_load_dwordx4 v13, {srd(S_QKV)}, {sKW} offen offset:3072 lds #c{c}']
        else:
            g3 = kh + [f'buffer_load_dwordx4 v13, {srd(S_W1)}, {sKW} offen offset:3072 lds #c{c}']
        return [g0, g1, g2, g3]
    def dma2(self, c, half, vo):
        slot = (c % 4) * SLOT
        out = []
        for i in range(4):
            cc = 4 * half + i
            g = [f's_add_u32 m0, {sWB4K}, {slot}'] if i == 0 else []
            if OPT.get('rot', 'none') == 'none':
                g += [f's_mov_b32 {sKW}, {64 * PH * cc + 1024 * (3 - i)}']
            else:
                g += [f's_add_u32 {sKX}, {sROT}, {128 * cc}', f's_and_b32 {sKX}, {sKX}, 1023', f's_mul_i32 {sKW}, {sKX}, {PH // 2}']
                if i < 3: g += [f's_add_u32 {sKW}, {sKW}, {1024 * (3 - i)}']
            g += [f'buffer_load_dwordx4 {vo}, {srd(S_W1)}, {sKW} offen offset:{1024*i} lds #c{c}']
            out.append(g)
        return out

    def grp_idx(self, gi):
        if gi < 2 or gi >= 7:
            b = 2 if gi < 2 else 7
            k = gi if gi < 2 else gi - 7
            return [f's_bfe_u32 {sT0}, {sRC}, 0x10003', f's_xor_b32 {sT0}, {sT0}, {k}', f's_add_u32 {sT0}, {sT0}, {b}']
        return [f's_and_b32 {sT0}, {sRC}, 7', f's_add_u32 {sT0}, {sT0}, {gi - 2}', f's_lshl_b32 {sT0}, {sT0}, 2',
                f's_lshr_b64 s[{sT0[1:]}:{sT1[1:]}], s[40:41], {sT0}', f's_and_b32 {sT0}, {sT0}, 15']
    def wpos(self, gi):
        return [3, 0, 2, 1, 3, 0, 4, 2, 1][gi]
    def w2_dma(self, gi):
        out = []
        g = self.grp_idx(gi)
        if gi >= 7: g = g[:-1]
        g += [f's_add_u32 m0, {sWB4K}, {self.wpos(gi) * SLOT}', f's_lshl_b32 {sKW2}, {sT0}, 18']
        sr = S_W2 if gi < 7 else S_WO
        for i in range(4):
            if i: g = [f's_add_u32 {sKW2}, {sKW2}, {65536 - 1024}']
            g.append(f'buffer_load_dwordx4 {vW2}, {srd(sr)}, {sKW2} offen offset:{1024*i} lds #w{gi}')
            out.append(g)
        return out
    def hq(self, gi, j):
        tab = {0: [148, 152, 156, 160], 1: [164, 168, 172, 176], 2: [180, 184, 188, 112], 3: [116, 120, 124, 128], 4: [132, 136, 140, 144],
               5: [192, 196, 200, 204], 6: [208, 212, 216, 220], 7: [224, 228, 232, 236], 8: [240, 244, 248, 252]}
        return tab[gi][j]
    def hload(self, gi):
        out = []
        for j in range(4):
            g = []
            if j == 0: g = self.grp_idx(gi) + [f's_lshl_b32 {sKX}, {sT0}, 14', f's_add_u32 {sKX}, {sKX}, {sAH2}']
            g.append(f'buffer_load_dwordx4 {q4(self.hq(gi, j))}, {vL16}, {srd(S_WS)}, {sKX} offen offset:{1024*j} sc1 #h{gi}_{j}')
            out.append(g)
        return out
    def wrd(self, gi, j, b):
        pos = self.wpos(gi)
        a0, a1 = self.WA2[2 * (pos >> 1)], self.WA2[2 * (pos >> 1) + 1]
        off = (pos & 1) * SLOT + 8192 * j
        return [f'ds_read_b64_tr_b16 v[{b}:{b+1}], {a0} offset:{off}',
                f'ds_read_b64_tr_b16 v[{b+2}:{b+3}], {a0} offset:{off + 4096}',
                f'ds_read_b64_tr_b16 v[{b+4}:{b+5}], {a1} offset:{off}',
                f'ds_read_b64_tr_b16 v[{b+6}:{b+7}], {a1} offset:{off + 4096}']

    def cs_load(self, soff, dst):
        return [f'buffer_load_dwordx4 v[{dst}:{dst+3}], {vCSA}, {srd(S_WS)}, {soff} offen sc1',
                f'buffer_load_dwordx4 v[{dst+4}:{dst+7}], {vCSA}, {srd(S_WS)}, {soff} offen offset:16 sc1']
    def nf_build(self, cs, bias):
        return lines(f"""
        v_cvt_pk_bf16_f32 v46, v{cs}, v{cs}
        v_lshlrev_b32 v46, 16, v46
        v_sub_f32 v46, v{cs}, v46
        v_cvt_pk_bf16_f32 v{NF}, v{cs}, v46
        v_and_b32 v47, 0xffff0000, v{NF}
        v_sub_f32 v46, v46, v47
        v_cvt_pk_bf16_f32 v{NF+1}, v46, {bias}
        """)
    def epi_qk(self, acc, rreg, tag):
        o = []
        for h in range(2):
            a = acc + 8 * h
            for i in range(8): o.append(f'v_mul_f32 v{a+i}, {rreg}, v{a+i}')
            for i in range(4): o.append(f'v_cvt_pk_bf16_f32 v{a+i}, v{a+2*i}, v{a+2*i+1}')
            if h: o.append(f's_add_u32 {sSTA}, {sSTA}, 65536')
            o.append(f'buffer_store_dwordx4 {q4(a)}, {vL16}, {srd(S_WS)}, {sSTA} offen sc1 #{tag}')
        return o
    def epi_v_pre(self, tmp):
        o = lines(f"""
        s_lshr_b32 {sT2}, {sWB4K}, 5
        s_add_u32 {sT2}, {sT2}, {L_RV}
        v_lshl_add_u32 v12, {vTOK}, 2, {sT2}
        v_lshl_add_u32 v13, {vHF}, 4, {sT2}
        ds_write_b32 v12, {vR}
        """)
        for q in range(4): o.append(f'ds_read_b128 v[{tmp+4*q}:{tmp+4*q+3}], v13 offset:{32*q}')
        o += lines(f"""
        v_bfe_u32 v12, v0, 4, 1
        v_and_b32 v13, 15, v0
        v_lshl_add_u32 v13, {vHF}, 4, v13
        v_lshlrev_b32 v13, 4, v13
        v_lshl_add_u32 v12, v12, 16, v13
        """)
        return o
    def epi_v(self, acc, tmp, tag):
        o = []
        for h in range(2):
            a = acc + 8 * h
            for i in range(8): o.append(f'v_mul_f32 v{a+i}, v{tmp+8*h+i}, v{a+i}')
            for i in range(4): o.append(f'v_cvt_pk_bf16_f32 v{a+i}, v{a+2*i}, v{a+2*i+1}')
            o.append(f'buffer_store_dwordx4 {q4(a)}, v12, {srd(S_WS)}, {sSTB} offen offset:{512*h} sc1 #{tag}')
        return o
    def epi_h(self, acc, tmp, soff, tag, halves=2):
        o = []
        for half in range(halves):
            a = acc + 8 * half
            for i in range(8): o.append(f'v_mul_f32 v{tmp+i}, v{a+i}, v{a+i}')
            for i in range(8): o.append(f'v_fma_f32 v{tmp+i}, v{tmp+i}, v10, v24')
            for i in range(8): o.append(f'v_mul_f32 v{tmp+i}, v{tmp+i}, v{a+i}')
            for i in range(8): o.append(f'v_exp_f32 v{tmp+i}, v{tmp+i}')
            for i in range(8): o.append(f'v_fma_f32 v{tmp+i}, v{tmp+i}, v2, v2')
            for i in range(8): o.append(f'v_rcp_f32 v{tmp+i}, v{tmp+i}')
            for i in range(8): o.append(f'v_mul_f32 v{a+i}, v{a+i}, v{tmp+i}')
            for i in range(4): o.append(f'v_cvt_pk_bf16_f32 v{a+i}, v{a+2*i}, v{a+2*i+1}')
            o.append(f'buffer_store_dwordx4 {q4(a)}, {vL16}, {srd(S_WS)}, {soff} offen offset:{1024*half} sc1 #{tag}')
        return o
    def flag_set(self, tag, base_s, off):
        return [f'WAITVM {tag}', f'buffer_store_dword {self.vF1}, {self.vFL}, {srd(S_WS)}, {base_s} offen offset:{off} sc1']
    def u_rd(self, c0, m, nb):
        c = c0 + (m >> 4); k = m & 15
        base = ((c % 4) * SLOT & 0xffff) + 1024 * (k >> 2); s = k & 3
        b = 48 + 4 * (nb % 4)
        return [f'ds_read_b64_tr_b16 v[{b}:{b+1}], v{6+s} offset:{base}',
                f'ds_read_b64_tr_b16 v[{b+2}:{b+3}], v{6+s} offset:{base + 512}']
    def u_mfma(self, acc, m, nb):
        b = 48 + 4 * (nb % 4); x = 128 + 4 * m
        return f'{MFMA} {blk(acc)}, {q4(b)}, {q4(x)}, {blk(acc)}'
    def fl_addr(self, vT, vtmp):
        return lines(f"""
        v_ashrrev_i32 {vtmp}, 2, {vT}
        v_lshlrev_b32 {vtmp}, 14, {vtmp}
        v_and_b32 {vT}, 3, {vT}
        v_mul_u32_u24 {vT}, {FL_T}, {vT}
        v_add_u32 {vT}, {vT}, {vtmp}
        """)
    def kv_poll_setup(self, va, vt):
        return lines(f"""
        s_lshl_b32 {sT4}, {sRA}, 3
        s_sub_u32 {sT4}, {sT4}, 8
        v_add_u32 {va}, {sT4}, v0
        v_subrev_u32 {vt}, 8, {va}
        v_cmp_gt_u32 vcc, 16, v0
        v_cndmask_b32 {va}, {vt}, {va}, vcc
        """) + self.fl_addr(va, vt) + lines(f"""
        v_mov_b32 {vt}, {F_Q}
        v_cndmask_b32 {vt}, {vt}, 0, vcc
        s_lshr_b32 {sT5}, {sHEAD}, 1
        s_lshl_b32 {sT5}, {sT5}, 4
        s_add_u32 {sT5}, {sT5}, {WS_Z}
        s_lshl_b32 {sT4}, {sW}, 26
        s_add_u32 {sT5}, {sT5}, {sT4}
        v_add3_u32 {va}, {va}, {vt}, {sT5}
        v_cmp_le_u32 vcc, 24, v0
        v_mov_b32 {vt}, 0x40000000
        v_cndmask_b32 {va}, {va}, {vt}, vcc
        s_mov_b32 s68, 0xffffff
        s_cmp_eq_u32 {sRA}, 0
        s_cselect_b32 s68, 0xffff00, s68
        s_mov_b32 s69, 0
        """)
    def kv_loads(self):
        return lines(f"""
        s_add_u32 {sT5}, {sKV}, {WS_V - WS_K}
        buffer_load_dwordx4 v[112:115], {vL16}, {srd(S_WS)}, {sKV} offen sc1
        buffer_load_dwordx4 v[116:119], {vL16}, {srd(S_WS)}, {sKV} offen offset:1024 sc1
        buffer_load_dwordx4 v[32:35], {vL16}, {srd(S_WS)}, {sQO} offen sc1
        buffer_load_dwordx4 v[120:123], {vL16}, {srd(S_WS)}, {sT5} offen sc1
        buffer_load_dwordx4 v[124:127], {vL16}, {srd(S_WS)}, {sT5} offen offset:1024 sc1
        """)
    def pl_ld(self, vaddr, vdst, off=0):
        return [f'buffer_load_dword {vdst}, {vaddr}, {srd(S_WS)}, 0 offen offset:{off} sc1 #kvp']
    def pl_chk(self, vdst, mask):
        if mask == '-1': return [f'v_cmp_ne_u32 vcc, 1, {vdst}', 's_cmp_eq_u64 vcc, 0']
        return [f'v_cmp_ne_u32 vcc, 1, {vdst}', f's_andn2_b64 vcc, {mask}, vcc', f's_cmp_eq_u64 vcc, {mask}']

    def p1(self, typ):
        e = self.e
        if typ == 1:
            e(f"""
            s_lshl_b32 {sCOLC}, {sG}, 7
            s_add_u32 {sCOLA}, {sCOLC}, 1024
            s_add_u32 {sCOLB}, {sCOLC}, 2048
            s_lshr_b32 {sCOLD}, {sG}, 1
            s_add_u32 {sCOLD}, {sCOLD}, 24
            s_lshl_b32 {sCOLD}, {sCOLD}, 7
            s_add_u32 {sT4}, {sCOLA}, {SH - 2048}
            v_add_u32 v12, {sT4}, v37
            v_mov_b32 v13, v12
            """)
        else:
            e(f"""
            s_lshl_b32 {sCOLA}, {sG}, 7
            s_add_u32 {sCOLB}, {sCOLA}, 1024
            s_add_u32 {sCOLC}, {sCOLA}, 2048
            s_add_u32 {sT4}, {sCOLA}, {SH - 2048}
            v_add_u32 v12, {sT4}, v37
            v_add_u32 v13, {sT4}, v38
            """)
        def arm():
            lab = e.newlabel('NOARM')
            e(f"""
            s_or_b32 {sT0}, {sG}, {sW}
            s_cmp_lg_u32 {sT0}, 0
            s_cbranch_scc1 {lab}
            s_lshl_b32 {sT0}, {sRB}, 2
            v_lshl_add_u32 v32, v0, 26, {sT0}
            v_mov_b32 v33, 1
            """)
            saved = list(e.vm)
            e(f'buffer_store_dword v33, v32, {srd(S_DBG)}, 0 offen offset:64 sc1')
            e.vm = saved
            e.label(lab)
        def chunk_dmas(c):
            if c < 8: return self.dma1(c, typ)
            if c < 10: return self.dma2(c, c - 8, 'v22')
            if typ == 1 and c == 10:
                out = []
                for i in range(4):
                    g = [f's_add_u32 m0, {sWB4K}, {2 * SLOT}'] if i == 0 else [f's_add_u32 {sDK}, {sDK}, {16 * PH - 1024}']
                    out.append(g + [f'buffer_load_dwordx4 v23, {srd(S_W1)}, {sDK} offen offset:{1024*i} lds #c10'])
                return out
            if typ == 2 and c == 10: return self.w2_dma(2)
            if c == 11: return self.w2_dma(0)
            return []
        SL = int(OPT.get('sl', -1))
        if SL < 0:
            self.stats_loads()
            e(f"""
            s_lshr_b32 {sT0}, s2, 3
            s_lshr_b32 {sT1}, s2, 6
            s_lshl1_add_u32 {sT0}, {sT1}, {sT0}
            s_and_b32 {sT0}, {sT0}, 7
            s_lshl_b32 {sROT}, {sT0}, 7
            """)
        for grp in chunk_dmas(0): self.run(grp)
        self.stamp('i0')
        if int(OPT.get('ipf', 1)): self.code_prefetch()
        cap = []
        origI = e.I
        e.I = lambda l, tag=None: cap.append(l)
        self.setup(typ)
        del e.__dict__['I']
        ia = max(i for i, l in enumerate(cap) if l.startswith('v_lshl_add_u32 v255')) + 1
        partA, partB = cap[18:ia], cap[:18] + cap[ia:]
        def inject(code, groups, gap):
            out = []; cnt = 0; groups = list(groups)
            for l in code:
                out.append(l); cnt += 1
                if groups and cnt >= gap and not l.startswith(('s_cmp', 's_cselect', 's_sub_u32')):
                    out += groups.pop(0); cnt = 0
            for g in groups: out += g
            return out
        def pieces(code, n):
            out = []; k = (len(code) + n - 1) // n; cur = []
            for l in code:
                cur.append(l)
                if len(cur) >= k and not l.startswith(('s_cmp', 's_cselect', 's_sub_u32')):
                    out.append(cur); cur = []
            if cur: out.append(cur)
            return out
        late = int(OPT.get('late', 1))
        lateB = []
        if late:
            self.run(inject(partA, chunk_dmas(1) + chunk_dmas(2), int(OPT.get('gap', 20))))
            e.wait_vm_tag('zero')
            dq = chunk_dmas(3)
            lateB = pieces(partB, 8)
        else:
            self.run(inject(partA + partB, chunk_dmas(1) + chunk_dmas(2) + chunk_dmas(3), int(OPT.get('gap', 30))))
            e.wait_vm_tag('zero')
            e('s_barrier')
            if typ == 1: arm()
            self.run(self.fill_stats())
            dq = []
        self.stamp('st')
        def rd1(n):
            c, s = n >> 2, n & 3
            slot = (c % 4) * SLOT
            hi = slot >> 16; base = slot & 0xffff
            xa = (80 if hi else 2) + s; wa = (84 if hi else 6) + s
            x = 128 + 4 * n; b = 48 + 8 * (n % 4)
            return [f'ds_read_b128 {q4(x)}, v{xa} offset:{base}',
                  f'ds_read_b64_tr_b16 v[{b}:{b+1}], v{wa} offset:{base + 2048}',
                  f'ds_read_b64_tr_b16 v[{b+2}:{b+3}], v{wa} offset:{base + 2048 + 512}',
                  f'ds_read_b64_tr_b16 v[{b+4}:{b+5}], v{wa} offset:{base + 3072}',
                  f'ds_read_b64_tr_b16 v[{b+6}:{b+7}], v{wa} offset:{base + 3072 + 512}']
        if OPT.get('prio'):
            lab = e.newlabel('NOPRIO')
            e(f's_cmp_eq_u32 {sNH}, {1 - int(OPT["prio"]) % 2}\ns_cbranch_scc1 {lab}\ns_setprio 1')
            e.label(lab)
        self.barrier('c0')
        self.stamp(1)
        self.auto('s1', True)
        self.run(rd1(0) + rd1(1))
        armed_chk = [f'v_cmp_ne_u32 vcc, 1, v249', 's_cmp_eq_u64 vcc, 0']
        armed_ld = [f'buffer_load_dword v249, v248, {srd(S_DBG)}, 0 offen offset:64 sc1']
        fills = {}
        if late and SL >= 0:
            if typ == 1: arm()
            for g in dq: self.run(g)
            dq = []
            self.stats_loads()
            fs = self.fill_stats(); hfs = len(fs) // 2
            order = [0, 1, 2, 3, 6, 7, 8, 9]
            for i, p in enumerate(lateB): fills[order[i]] = p
            fills[4] = fs[:hfs]; fills[5] = fs[hfs:]
            fills[6] = self.fill_cs2() + fills[6]
            fills[7] = fills[7] + armed_ld
        elif late:
            if typ == 1: arm()
            fs = self.fill_stats(); hfs = len(fs) // 2
            fills[0] = fs[:hfs]; fills[1] = fs[hfs:]
            fills[2] = self.fill_cs2()
            for i, p in enumerate(lateB): fills[3 + i] = p
            fills[7] = fills[7] + armed_ld
        else:
            fills[1] = self.fill_cs2()
            fills[5] = armed_ld
        AN = int(OPT.get('an', 11 if late else 9))
        fills[AN] = fills.get(AN, []) + [lambda: self.retry(armed_chk, armed_ld, 'ARM'),
                    f'buffer_store_dwordx2 v[240:241], v252, {srd(S_WS)}, 0 offen sc1',
                    f'buffer_store_dwordx2 v[244:245], v255, {srd(S_WS)}, 0 offen sc1']
        def warm():
            lab = e.newlabel('NOWARM')
            e(f"""
            s_cmp_gt_u32 {sW}, 1
            s_cbranch_scc1 {lab}
            s_lshl_b32 {sT2}, {sW}, 8
            s_add_u32 {sT2}, {sT2}, s2
            s_lshl_b32 {sT2}, {sT2}, 13
            s_add_u32 {sT2}, {sT2}, {SH}
            s_sub_u32 {sT3}, {sT2}, {1792 * 1024}
            s_cmp_lt_u32 {sT2}, {1792 * 1024 + SH}
            s_cselect_b32 {sT3}, 0x40000000, {sT3}
            v_lshlrev_b32 v246, 7, v0
            """)
            saved = list(e.vm)
            e(f"""
            buffer_load_dword v247, v246, {srd(S_W2)}, {sT2} offen
            buffer_load_dword v243, v246, {srd(S_WO)}, {sT3} offen
            """)
            e.vm = saved
            e.label(lab)
        WN = int(OPT.get('warm', 13))
        if WN >= 0: fills[WN] = fills.get(WN, []) + [warm]
        rowg = [f'v_lshlrev_b32 v20, 3, {vTOK}', f'buffer_load_dwordx2 v[{TF}:{TF+1}], v20, {srd(S_WS)}, {sROWG} offen sc1']
        ldA = self.cs_load(sCOLA, 32); ldB = self.cs_load(sCOLB, 40); ldC = self.cs_load(sCOLC, 88)
        GL = int(OPT.get('gl', 21))
        def gdma():
            lab = e.newlabel('NOROWG')
            e(f"""
            s_lshr_b32 {sT2}, {sWB4K}, 2
            s_add_u32 m0, {sT2}, {L_GR}
            buffer_load_dwordx4 {vL16}, {srd(S_WS)}, {sGSRC} offen sc1 lds #gr
            s_cmp_lg_u32 {sW}, 0
            s_cbranch_scc1 {lab}
            s_lshl_b32 {sT2}, {sRB}, 14
            s_add_u32 {sT2}, {sT2}, {WS_Z + Z_ROW}
            s_mov_b32 m0, {L_GR + 8192}
            """)
            saved = list(e.vm)
            e(f'buffer_load_dwordx4 {vL16}, {srd(S_WS)}, {sT2} offen sc1 lds')
            e.raw('s_waitcnt vmcnt(63)')
            e.vm = saved
            e.label(lab)
        self.gdma = gdma
        grd = lines(f"""
        s_lshl_b32 {sT2}, {sTT}, 8
        s_add_u32 {sT2}, {sT2}, {L_GR + 8192}
        v_lshl_add_u32 v20, {vTOK}, 3, {sT2}
        v_add_u32 v21, {L_GR}, {vCSA}
        ds_read_b64 v[{TF}:{TF+1}], v20
        ds_read_b128 v[32:35], v21
        ds_read_b128 v[36:39], v21 offset:16
        ds_read_b128 v[40:43], v21 offset:2048
        ds_read_b128 v[44:47], v21 offset:2064
        ds_read_b128 v[88:91], v21 offset:4096
        ds_read_b128 v[92:95], v21 offset:4112
        """)
        fills[26] = grd
        chk = lines(f"""
        v_and_b32 v20, v{TF+1}, v33
        v_and_b32 v21, v35, v37
        v_and_b32 v20, v20, v39
        v_and_b32 v21, v21, v41
        v_and_b32 v20, v20, v43
        v_and_b32 v21, v21, v45
        v_and_b32 v20, v20, v47
        v_and_b32 v21, v21, v89
        v_and_b32 v20, v20, v91
        v_and_b32 v21, v21, v93
        v_and_b32 v20, v20, v95
        v_and_b32 v20, v20, v21
        v_cmp_ne_u32 vcc, 1, v20
        s_cmp_eq_u64 vcc, 0
        """)
        pre = lines(f"""
        v_add_f32 v32, v32, v34
        v_add_f32 v36, v36, v38
        v_add_f32 v40, v40, v42
        v_add_f32 v44, v44, v46
        v_add_f32 v88, v88, v90
        v_add_f32 v92, v92, v94
        v_add_f32 v32, v32, v36
        v_add_f32 v33, v40, v44
        v_add_f32 v34, v88, v92
        v_and_b32 v2, 0xffff0000, v{TF}
        v_rcp_f32 {vR}, v2
        v_cmp_eq_u32 vcc, 0, {vHF}
        v_cndmask_b32 v{TF+1}, 0, v{TF}, vcc
        v_and_b32 v{TF}, 0xffff, v{TF+1}
        v_lshl_or_b32 v{TF}, v{TF}, 16, v{TF}
        v_mov_b32 v11, v23
        v_mov_b32 v{NF+2}, 0
        v_mov_b32 v{NF+3}, 0
        v_lshlrev_b32 {vBC}, 16, {vBC}
        v_lshlrev_b32 {vBX}, 16, {vBX}
        """)
        pre2 = lines(f"""
        v_mul_f32 v10, {vR}, {vR}
        v_mul_f32 v24, {f32(GA)}, {vR}
        v_mul_f32 v10, {sGB}, v10
        v_mul_f32 v10, v10, {vR}
        v_lshlrev_b32 v3, 26, v0
        v_mov_b32 v4, 1
        """)
        self.vFL, self.vF1 = 'v3', 'v4'
        fills[27] = [lambda: self.retry(chk, rowg + ldA + ldB + ldC, 'GR')] + pre
        fills[28] = self.nf_build(32, '0') + [f'{MFMA} {blk(accA)}, {q4(NF)}, {q4(TF)}, {blk(accA)}']
        if typ == 1:
            fills[29] = pre2 + self.nf_build(33, '0') + [f'{MFMA} {blk(accB)}, {q4(TF)}, {q4(NF)}, {blk(accB)}']
        else:
            fills[29] = pre2 + self.nf_build(33, vBX) + [f'{MFMA} {blk(accB)}, {q4(NF)}, {q4(TF)}, {blk(accB)}']
        fills[30] = self.nf_build(34, vBC) + [f'{MFMA} {blk(accC)}, {q4(NF)}, {q4(TF)}, 0']
        if typ == 1: fills[31] = self.epi_v_pre(32)
        else: fills[31] = [f'v_mul_f32 v32, {f32(0.25 * LOG2E)}, {vR}']
        for n in range(32):
            c, s = n >> 2, n & 3
            if s == 2:
                if n == 22:
                    assert not dq
                    gdma()
                if n == 26:
                    idx = max(i for i, o in enumerate(e.vm) if o.get('tag') == 'gr')
                    e._wait(vm=len(e.vm) - 1 - idx)
                self.barrier(f'c{c+1}')
                self.stamp(f'b{c+1}')
                new = chunk_dmas(c + 4)
                if n >= 26: new = [[l.replace('v23,', 'v11,') if n > 27 else l for l in g] for g in new]
                dq += new
            if n + 2 < 32: self.run(rd1(n + 2))
            elif n == 30: self.run(self.u_rd(8, 0, 0) + self.u_rd(8, 1, 1))
            else: self.run(self.u_rd(8, 2, 2))
            x = 128 + 4 * n; b = 48 + 8 * (n % 4)
            ca = '0' if n == 0 else blk(accA)
            cb = '0' if n == 0 else blk(accB)
            def pop():
                g = dq.pop(0)
                if n > 27: g = [l.replace('v23,', 'v11,') for l in g]
                self.run(g)
            self.run([f'{MFMA} {blk(accA)}, {q4(b)}, {q4(x)}, {ca}'])
            if len(dq) > 4: pop()
            if typ == 1: self.run([f'{MFMA} {blk(accB)}, {q4(x)}, {q4(b+4)}, {cb}'])
            else: self.run([f'{MFMA} {blk(accB)}, {q4(b+4)}, {q4(x)}, {cb}'])
            if dq: pop()
            self.run(fills.get(n, []))
        self.auto('s1', False)
        self.stamp(2)
        self.auto('s2', True)
        def ustream(c0, acc, ms, allms):
            o = []
            for m in ms:
                k = allms.index(m)
                if k + 3 < len(allms): o += self.u_rd(c0, allms[k + 3], k + 3)
                o.append(self.u_mfma(acc, m, k))
                if dq: o += dq.pop(0)
            return o
        def is_main(acc):
            return lambda s: isinstance(s, str) and s.startswith('v_mfma') and any(f'{blk(acc)}, v[{d}' in s for d in '456')
        allC = list(range(32))
        epi3 = self.epi_h(accC, 64, sSTC, 'h')
        n3 = len(epi3)
        pollset = self.kv_poll_setup('v42', 'v43')
        self.WA2 = ['v6', 'v7', 'v12', 'v13', 'v22', 'v23']
        wa_a = lines(f"""
        v_bfe_u32 v39, v0, 2, 2
        v_lshl_add_u32 v38, {vHF}, 2, v39
        v_lshlrev_b32 v38, 7, v38
        v_bfe_u32 v36, v0, 4, 1
        v_bfe_u32 v37, v0, 1, 1
        v_lshl_add_u32 v36, v36, 1, v37
        v_and_b32 v37, 2, v39
        v_lshlrev_b32 v37, 1, v37
        v_xor_b32 v36, v36, v37
        v_lshl_add_u32 v38, v36, 4, v38
        v_and_b32 v37, 1, v0
        v_lshl_add_u32 v38, v37, 3, v38
        s_lshl_b32 {sT3}, {sKQ}, 10
        v_add_u32 v38, {sT3}, v38
        """)
        wa_b = lines(f"""
        v_mov_b32 v6, v38
        v_xor_b32 v7, 64, v38
        v_add_u32 v12, 0x10000, v6
        v_add_u32 v13, 0x10000, v7
        v_add_u32 v22, 0x20000, v6
        v_add_u32 v23, 0x20000, v7
        """)
        def weave(valu, extra):
            out = []; extra = list(extra)
            for l in valu:
                out.append(l)
                if extra: out += extra.pop(0)
            for x in extra: out += x
            return out
        trr = []
        k = 0
        for gi in range(2):
            for j in range(4):
                trr += [[x] for x in self.wrd(gi, j, 192 + 8 * k)]; k += 1
        def x1():
            self.wave0(lambda: self.retry(self.pl_chk('v43', sMSK), self.pl_ld('v42', 'v43'), 'KV'))
            self.barrier()
            self.run(self.kv_loads())
            self.stamp(6)
        def spaced(groups, gapn):
            out = []
            for g in groups: out += [g] + [[]] * gapn
            return out
        if typ == 2:
            hh = self.epi_h(accB, 64, sSTB, 'hb')
            epi = self.epi_qk(accA, 'v32', 'kv') + hh[:len(hh) // 3]
            epi2 = hh[len(hh) // 3:len(hh) // 2] + self.flag_set('kv', sFLB, F_Q) + hh[len(hh) // 2:] + pollset + wa_a
            self.run(ustream(8, accC, allC[0:1], allC))
            self.run(interleave(ustream(8, accC, allC[1:13], allC), epi, is_main(accC)))
            self.stamp(3)
            self.barrier('c9')
            dq += [[]] * 6 + spaced(self.w2_dma(1), 1)
            self.run(interleave(ustream(8, accC, allC[13:32], allC), epi2, is_main(accC)))
            self.run(wa_b)
            self.barrier('w1')
            self.stamp(4)
            self.run(weave(epi3[:n3 // 2], self.w2_dma(3) + [self.flag_set('hb', sFLB, F_HB), self.pl_ld('v42', 'v43')] + trr))
            x1()
            self.run(epi3[n3 // 2:])
        else:
            epi = self.epi_qk(accA, vR, 'kv') + self.epi_v(accB, 32, 'kv')
            ldD = self.cs_load(sCOLD, 32)
            self.run(ustream(8, accC, allC[0:1], allC))
            self.run(interleave(ustream(8, accC, allC[1:8], allC), epi, is_main(accC)))
            self.run([f's_lshl_b32 {sT4}, {sXCH}, 4', f'v_xor_b32 {vCSA}, {sT4}, {vCSA}', f'v_add_u32 v21, {L_GR}, {vCSA}',
                      'ds_read_b128 v[32:35], v21 offset:6144', 'ds_read_b128 v[36:39], v21 offset:6160'])
            self.run(interleave(ustream(8, accC, allC[8:13], allC), pollset, is_main(accC)))
            self.stamp(3)
            self.barrier('c10')
            chkD = lines(f"""
            v_and_b32 v20, v33, v35
            v_and_b32 v20, v20, v37
            v_and_b32 v20, v20, v39
            v_cmp_ne_u32 vcc, 1, v20
            s_cmp_eq_u64 vcc, 0
            """)
            self.retry(chkD, ldD, 'GD')
            nfd = ['v_add_f32 v32, v32, v34', 'v_add_f32 v36, v36, v38', 'v_add_f32 v32, v32, v36'] + self.nf_build(32, vBX) + lines(f"""
            s_sub_u32 {sT4}, {sNH}, 1
            v_and_b32 v{NF}, {sT4}, v{NF}
            v_and_b32 v{NF+1}, {sT4}, v{NF+1}
            {MFMA} {blk(accA)}, {q4(NF)}, {q4(TF)}, 0
            s_lshl1_add_u32 {sT4}, {sTT}, {sNH}
            s_lshl_b32 {sT4}, {sT4}, 12
            s_add_u32 {sT4}, {sT4}, {L_KST}
            v_add_u32 v40, {sT4}, {vL16}
            s_lshl_b32 {sT5}, {sNH}, 11
            s_sub_u32 {sT4}, {sT4}, {sT5}
            v_add_u32 v41, {sT4}, {vL16}
            v_bfe_u32 v44, v0, 2, 2
            v_lshl_add_u32 v44, {vHF}, 3, v44
            v_lshlrev_b32 v44, 6, v44
            v_bfe_u32 v45, v0, 4, 1
            v_lshl_add_u32 v44, v45, 5, v44
            v_and_b32 v45, 3, v0
            v_lshl_add_u32 v44, v45, 3, v44
            s_add_u32 {sT5}, {sT5}, {2 * SLOT}
            v_add_u32 v44, {sT5}, v44
            """) + wa_a
            self.run(interleave(ustream(8, accC, allC[13:21], allC), nfd, is_main(accC)))
            self.run(self.flag_set('kv', sFLB, F_KV))
            dq += spaced(self.w2_dma(1), 1)
            self.run(ustream(8, accC, allC[21:29], allC))
            self.barrier()
            self.stamp(4)
            allD = [m for m in range(32) if (m & 3) < 2]
            def d_rd(m, nb):
                b = 48 + 4 * (nb % 4); off = 4096 * (m >> 2) + 1024 * (m & 1)
                return [f'ds_read_b64_tr_b16 v[{b}:{b+1}], v44 offset:{off}', f'ds_read_b64_tr_b16 v[{b+2}:{b+3}], v44 offset:{off + 256}']
            W3 = self.w2_dma(3)
            self.run(d_rd(allD[0], 0) + [self.u_mfma(accC, 29, 1)] + d_rd(allD[1], 1) + W3[0] + [self.u_mfma(accC, 30, 2)]
                     + d_rd(allD[2], 2) + W3[1] + [self.u_mfma(accC, 31, 3)] + wa_b)
            ds = []
            for k, m in enumerate(allD):
                if k + 3 < 16: ds += d_rd(allD[k + 3], k + 3)
                ds.append(self.u_mfma(accA, m, k))
                if k in (1, 4): ds += W3[2 + (k == 4)]
                if k == 8: ds += self.pl_ld('v42', 'v43')
            self.run(interleave(ds, epi3[:n3 // 2], is_main(accA)))
            xw = [f'ds_write_b128 v40, {q4(accA + 4*q)} offset:{1024*q}' for q in range(4)]
            self.run(epi3[n3 // 2:n3 * 5 // 8] + xw)
            self.barrier('w1')
            self.run(lines(f"""
            ds_read_b128 {q4(accA)}, v41
            ds_read_b128 {q4(accA+4)}, v41 offset:1024
            ds_read_b128 {q4(accA+8)}, v41 offset:4096
            ds_read_b128 {q4(accA+12)}, v41 offset:5120
            """))
            self.run(weave(epi3[n3 * 5 // 8:], self.w2_dma(2) + trr))
            x1()
            self.run([f'v_add_f32 v{accA+i}, v{accA+i}, v{accA+8+i}' for i in range(8)] + self.epi_h(accA, 64, sSTD, 'h', halves=1))
        tl = e.vm[-6:]
        assert [bool(o['dst']) for o in tl] == [True] * 5 + [False] and tl[-1]['tag'] == 'h', tl
        e.vm = tl
        assert not any(dq), dq
        e.wait_lg0(force=True)
        e.settle()
        e(f's_add_u32 {sFLB}, {sFLB}, {F_HC + (256 if typ == 2 else 0)}')
        self.auto('s2', False)
        self.stamp(5)

    def att(self):
        e = self.e
        KB = [36, 40]; VB = [44, 52]; P = 60; SB = [68, 84]; NM = 100; MK = 116; O = 132
        Q = 'v[32:35]'
        self.auto('att', True)
        self.vFL, self.vF1 = 'v24', 'v25'
        W = {gi: self.w2_dma(gi) for gi in range(4, 6)}
        H = {gi: self.hload(gi) for gi in range(9)}
        self.run(['v_mov_b32 v24, v3', 'v_mov_b32 v25, 1'])
        self.run(lines(f"""
        v_lshlrev_b32 v20, 2, {vHF}
        v_sub_u32 v20, {vTOK}, v20
        v_mov_b32 v21, {NEGBIG}
        s_lshr_b32 {sT2}, {sWB4K}, 2
        s_add_u32 {sT2}, {sT2}, {L_KST}
        v_add_u32 v2, {sT2}, {vL16}
        s_lshr_b32 {sT3}, {sWB4K}, 2
        v_add_u32 v41, {sT3}, v2
        v_and_b32 v3, 15, v0
        v_lshl_add_u32 v3, {vHF}, 4, v3
        v_lshlrev_b32 v3, 4, v3
        v_add_u32 v3, {sT2}, v3
        v_mov_b32 v17, 0
        """))
        pairs = ['vcc', 's[86:87]', 's[88:89]']
        ml = []
        for r in range(16):
            c = 8 * (r >> 2) + (r & 3)
            ml.append(f'v_cmp_le_i32 {pairs[r % 3]}, {c}, v20')
            if r >= 2: ml.append(f'v_cndmask_b32 v{SB[0]+r-2}, v21, 0, {pairs[(r - 2) % 3]}')
        for r in (14, 15): ml.append(f'v_cndmask_b32 v{SB[0]+r}, v21, 0, {pairs[r % 3]}')
        self.run(ml)
        self.run([f'v_mov_b32 v{r}, {vONE}' for r in list(range(8, 12)) + list(range(44, 60))])
        self.run([f's_lshl_b32 {sT2}, {sR2}, 1', f'v_add_u32 v28, {sT2}, {vHF}'] + self.fl_addr('v28', 'v29') + lines(f"""
        s_lshl_b32 {sT2}, {sW}, 26
        s_add_u32 {sT2}, {sT2}, {WS_Z}
        v_lshl_add_u32 v28, {vTOK}, 4, v28
        v_add_u32 v28, {sT2}, v28
        s_mov_b32 s90, 0xffff
        s_mov_b32 s91, 0xffff
        v_mov_b32 v29, {L_KST}
        """) + self.pl_ld('v28', 'v30', F_HB))
        self.run(self.flag_set('h', sFLB, 0))
        self.run(lines(f"""
        ds_write_b128 v41, v[112:115]
        ds_write_b128 v41, v[116:119] offset:1024
        ds_write_b128 v41, v[120:123] offset:16384
        ds_write_b128 v41, v[124:127] offset:17408
        """))
        self.run([f'v_sub_f32 v{MK+r}, v21, v{SB[0]+r}' for r in range(16)])
        def hb():
            e(f'ds_write_b32 v29, v17')
            self.retry(self.pl_chk('v30', sEX), self.pl_ld('v28', 'v30', F_HB), 'HB')
            e.wait_lg0()
        self.wave0(hb)
        self.barrier()
        self.stamp(7)
        def kread(i, b): self.run([f'ds_read_b128 {q4(b)}, v2 offset:{1024*i}'])
        def vread(i, b):
            e(f"""
            s_mov_b64 exec, {sEX}
            ds_read_b128 {q4(b)}, v3 offset:{16384 + 1024*i}
            ds_read_b128 {q4(b+4)}, v3 offset:{16384 + 1024*i+512}
            s_mov_b64 exec, -1
            """)
        def hc0():
            def f():
                self.retry(self.pl_chk('v30', '-1'), self.pl_ld('v28', 'v30', F_HC), 'HC')
                e(f'ds_write_b32 v29, v25')
            self.wave0(f)
        def hcw():
            lp = e.newlabel('HCW'); lo = e.newlabel('HCD')
            e.settle()
            e(f's_mov_b32 {sCNT}, 0')
            e.label(lp)
            e.raw(f'ds_read_b32 v21, v29')
            e.raw(f's_add_u32 {sCNT}, {sCNT}, 1')
            e.raw('s_waitcnt lgkmcnt(0)'); e.lg = []
            e.raw(f'v_readfirstlane_b32 {sT2}, v21')
            e.raw(f's_cmp_gt_u32 {sCNT}, 0x1000000')
            e.raw(f's_cbranch_scc1 {lo}')
            e.raw(f's_cmp_eq_u32 {sT2}, 0')
            e.raw(f's_cbranch_scc1 {lp}')
            e.label(lo)
            e.t += 6
        hcp = int(OPT.get('hcp', 7))
        acts = [
            [H[0][0] + H[0][1], H[0][2] + H[0][3], W[4][0]],
            [W[4][1], W[4][2], W[4][3]],
            [H[1][0] + H[1][1], H[1][2] + H[1][3]],
            [W[5][0], W[5][1]],
            [W[5][2], W[5][3]],
            [], [], [], [],
        ]
        acts[hcp - 2].append(self.pl_ld('v28', 'v30', F_HC))
        acts[hcp].append([hc0])
        if hcp + 1 <= 8:
            acts[hcp + 1] += [[hcw], H[2][0], H[2][1], H[2][2]]
            self.Hrest = [H[2][3]] + H[3] + H[4]
        else:
            self.Hrest = [[hcw]] + H[2] + H[3] + H[4]
        self.H = H
        kread(8, KB[0]); kread(7, KB[1])
        e(f'{MFMA} {blk(SB[0])}, {q4(KB[0])}, {Q}, {blk(SB[0])}')
        vread(8, VB[0])
        e(f'v_max3_f32 v20, v{SB[0]}, v{SB[0]+1}, v{SB[0]+2}')
        e(f'v_max3_f32 v21, v{SB[0]+3}, v{SB[0]+4}, v{SB[0]+5}')
        for j in range(3, 8):
            e(f'v_max3_f32 v{20 + (j & 1)}, v{SB[0]+2*j}, v{SB[0]+2*j+1}, v{20 + (j & 1)}')
        lp2 = e.newlabel('PASS2')
        e.label(lp2)
        e(f"""
        v_max_f32 v20, v20, v21
        v_mov_b32 v21, v20
        v_permlane32_swap_b32 v20, v21
        v_max_f32 v20, v20, v21
        v_cvt_pk_bf16_f32 v21, v20, v20
        v_lshlrev_b32 v21, 16, v21
        v_sub_f32 v21, v21, v20
        v_cvt_pk_bf16_f32 v16, -v20, v21
        v_cmp_eq_u32 vcc, 0, {vHF}
        v_cndmask_b32 v16, 0, v16, vcc
        {MFMA} {blk(SB[0])}, v[8:11], v[16:19], {blk(SB[0])}
        {MFMA} {blk(NM)}, v[8:11], v[16:19], 0
        """)
        tails = {i: e.newlabel(f'TAIL{i}') for i in range(1, 9)}
        lend2 = e.newlabel('P2END')
        for n, i in enumerate(range(8, -1, -1)):
            cur = SB[n % 2]; nx = SB[(n + 1) % 2]; V = VB[n % 2]
            A = list(acts[n])
            if i > 0:
                if i - 1 == 0:
                    e(f'{MFMA} {blk(nx)}, v[8:11], v[16:19], {blk(MK)}')
                    e(f'{MFMA} {blk(nx)}, {q4(KB[(n + 1) % 2])}, {Q}, {blk(nx)}')
                else:
                    e(f'{MFMA} {blk(nx)}, {q4(KB[(n + 1) % 2])}, {Q}, {blk(NM)}')
                if i > 1: kread(i - 2, KB[n % 2])
                vread(i - 1, VB[(n + 1) % 2])
            for kb in range(2):
                for j in range(8):
                    e(f'v_exp_f32 v{cur+8*kb+j}, v{cur+8*kb+j}')
                    if j == 3 and A: self.run(A.pop(0))
                for j in range(4): e(f'v_cvt_pk_bf16_f32 v{P+4*kb+j}, v{cur+8*kb+2*j}, v{cur+8*kb+2*j+1}')
                if kb == 0 and A: self.run(A.pop(0))
                c = '0' if (n == 0 and kb == 0) else blk(O)
                e(f'{MFMA} {blk(O)}, {q4(V+4*kb)}, {q4(P+4*kb)}, {c}')
            for a in A: self.run(a)
            self.stamp(f't{n}')
            if i > 0:
                e(f's_cmp_eq_u32 {sIMIN}, {i}\ns_cbranch_scc1 {tails[i]}')
                if i == 8: exit_st = self.snap()
        e(f's_branch {lend2}')
        self.auto('att', False)
        st = self.snap()
        self.restore(exit_st)
        for i in range(8, 0, -1):
            e.label(tails[i])
            e.settle()
            for a in acts[8 - i + 1]: self.run(a)
        self.restore(st)
        e.label(lend2)
        e.wait_lg0(force=True)
        e.nop(12)
        lok = e.newlabel('SMOK')
        e(f"""
        v_mov_b32 v21, {f32(2.0**100)}
        v_cmp_nle_f32 vcc, v{O+8}, v21
        s_cmp_eq_u64 vcc, 0
        s_cbranch_scc1 {lok}
        s_cmp_lg_u32 {sREDO}, 0
        s_cbranch_scc1 {lok}
        s_mov_b32 {sREDO}, 1
        """)
        st = self.snap()
        e.raw('s_waitcnt vmcnt(0) lgkmcnt(0)'); e.vm = []; e.lg = []
        e(f'v_mov_b32 v20, {NEGBIG}\nv_mov_b32 v21, {NEGBIG}\nv_mov_b32 v30, {NEGBIG}')
        for i in range(0, 9):
            lsk = e.newlabel('RSK')
            if i < 8: e(f's_cmp_gt_u32 {sIMIN}, {i}\ns_cbranch_scc1 {lsk}')
            kread(i, KB[0])
            if i == 8:
                for r in range(16): e(f'v_sub_f32 v{SB[0]+r}, v30, v{MK+r}')
            c = blk(MK) if i == 0 else (blk(SB[0]) if i == 8 else '0')
            e(f'{MFMA} {blk(SB[0])}, {q4(KB[0])}, {Q}, {c}')
            for j in range(8):
                e(f'v_max3_f32 v{20 + (j & 1)}, v{SB[0]+2*j}, v{SB[0]+2*j+1}, v{20 + (j & 1)}')
            e.settle()
            e.label(lsk)
        kread(7, KB[1]); vread(8, VB[0])
        e('v_mov_b32 v30, 1')
        e.raw('s_waitcnt lgkmcnt(0)'); e.lg = []
        e.settle()
        e(f's_branch {lp2}')
        self.restore(st)
        e.label(lok)
        e(f'v_rcp_f32 v20, v{O+8}')
        for j in range(8): e(f'v_mul_f32 v{O+j}, v20, v{O+j}')
        for j in range(4): e(f'v_cvt_pk_bf16_f32 v{P+j}, v{O+2*j}, v{O+2*j+1}')
        e(f'buffer_store_dwordx4 {q4(P)}, {vL16}, {srd(S_WS)}, {sOST} offen sc1 #o')
        self.stamp(8)

    def g2(self):
        e = self.e
        ACC = [80, 96]
        H = self.H
        self.auto('g2', True)
        first = [True]
        def mm(gi, j, b):
            hb = self.hq(gi, j)
            assert OPT.get('drop_g2') or OPT.get('drop_att') or any(f'buffer_load_dwordx4 {q4(hb)}, {vL16}, {srd(S_WS)}, {sKX} offen' in l for l in e.lines), (gi, j)
            c = ['0' if first[0] else blk(ACC[nt]) for nt in range(2)]; first[0] = False
            return [f'{MFMA} {blk(ACC[nt])}, {q4(b+4*nt)}, {q4(hb)}, {c[nt]}' for nt in range(2)]
        vq = list(self.Hrest)
        k = 0
        for gi in range(2):
            for j in range(4):
                for l in mm(gi, j, 192 + 8 * k):
                    self.run([l])
                    if vq: self.run(vq.pop(0))
                k += 1
                if k == 4: self.run(self.flag_set('o', sFLO, 0))
        self.run(lines(f"""
        v_lshrrev_b32 v35, 3, v0
        v_and_b32 v36, 7, v0
        s_lshl3_add_u32 {sT3}, {sR2}, {sW}
        s_lshl_b32 {sT3}, {sT3}, 3
        v_add_u32 v37, {sT3}, v35
        s_lshl_b32 {sT4}, {sC64}, 7
        v_lshl_add_u32 v38, v36, 4, {sT4}
        v_lshl_add_u32 v8, v37, 10, v38
        """))
        e.wait_lg0(force=True)
        e('s_barrier')
        self.stamp(9)
        WB = [48, 56, 64, 72]
        steps = [(gi, j) for gi in range(2, 9) for j in range(4)]
        self.run(self.wrd(2, 0, WB[0]) + self.wrd(2, 1, WB[1]))
        W6 = self.w2_dma(6)
        vq += [W6[0], W6[1], W6[2], W6[3]] + H[5] + H[6]
        OPL = int(OPT.get('opl', 10))
        bar = {3: (None, 7), 7: (None, 8), 14: ('w6', None), 18: ('w8', None)}
        for k, (gi, j) in enumerate(steps):
            if k in bar:
                tag, rel = bar[k]
                while tag and vq and any(isinstance(l, str) and f'#{tag}' in l for x in vq for l in x): self.run(vq.pop(0))
                if k == 14:
                    while vq: self.run(vq.pop(0))
                    self.wave0(lambda: self.retry(self.pl_chk('v30', '-1'), self.pl_ld('v28', 'v30', F_O), 'OC'))
                self.barrier(tag)
                self.stamp(f'g{k}')
                if rel: vq += self.w2_dma(rel)
                if k == 14: vq = H[7] + H[8]
            if k == OPL: self.run(self.pl_ld('v28', 'v30', F_O))
            if k == 19:
                vq.append([f'buffer_load_dwordx4 v[40:43], v8, {srd(S_X)}, 0 offen', f'buffer_load_dwordx4 v[44:47], v38, {srd(S_B2)}, 0 offen'])
            if k + 2 < len(steps): self.run(self.wrd(*steps[k + 2], WB[(k + 2) % 4]))
            need = [f'#h{a}_{b}' for (a, b) in steps[k:k + 3]]
            while vq and any(isinstance(l, str) and nd in l for x in vq for l in x for nd in need): self.run(vq.pop(0))
            for l in mm(gi, j, WB[k % 4]):
                self.run([l])
                if vq: self.run(vq.pop(0))
        assert not vq, vq
        self.stamp(11)
        PS = 1056
        self.run(lines(f"""
        s_lshl1_add_u32 {sT4}, {sKQ}, {sNH}
        s_lshl_b32 {sT4}, {sT4}, 13
        s_lshr_b32 {sT3}, {sKQ}, 1
        s_lshl_b32 {sT3}, {sT3}, 16
        s_add_u32 {sT4}, {sT4}, {sT3}
        v_add_u32 v9, {sT4}, {vL16}
        """))
        for nt in range(2):
            for q in range(4):
                pl = nt * 4 + q
                self.run([f'v_xor_b32 v10, {pl << 5}, v9', f'ds_write_b128 v10, v[{ACC[nt]+4*q}:{ACC[nt]+4*q+3}] offset:{pl * 1024}'])
        self.run(lines(f"""
        s_lshl_b32 {sT4}, {sKQ}, 7
        s_lshl_b32 {sT3}, {sNH}, 13
        s_add_u32 {sT4}, {sT4}, {sT3}
        v_lshl_add_u32 v9, v35, 4, {sT4}
        v_lshlrev_b32 v10, 5, v36
        v_xor_b32 v9, v9, v10
        v_lshl_add_u32 v9, v36, 10, v9
        v_add_u32 v10, 0x10000, v9
        """))
        for j in range(4):
            self.run(lines(f"""
            v_lshlrev_b32 v{112+2*j}, 16, v{40+j}
            v_and_b32 v{113+2*j}, 0xffff0000, v{40+j}
            v_lshlrev_b32 v{120+2*j}, 16, v{44+j}
            v_and_b32 v{121+2*j}, 0xffff0000, v{44+j}
            """))
        self.run([f'v_add_f32 v{112+j}, v{112+j}, v{120+j}' for j in range(8)])
        self.barrier()
        for kq in range(4):
            for hf in range(2):
                b = 48 + 8 * kq + 4 * hf
                self.run([f'ds_read_b128 v[{b}:{b+3}], v{9 + (kq >> 1)} offset:{kq * 16384 + hf * 512}'])
        for j in range(8): self.run([f'v_add_f32 v{112+j}, v{112+j}, v{48+j}'])
        for j in range(8): self.run([f'v_add_f32 v{56+j}, v{56+j}, v{64+j}'])
        for j in range(8): self.run([f'v_add_f32 v{112+j}, v{112+j}, v{72+j}'])
        for j in range(8): self.run([f'v_add_f32 v{112+j}, v{112+j}, v{56+j}'])
        for j in range(4): self.run([f'v_cvt_pk_bf16_f32 v{48+j}, v{112+2*j}, v{112+2*j+1}'])
        e(f'buffer_store_dwordx4 v[48:51], v8, {srd(S_OUT)}, 0 offen')
        self.auto('g2', False)
        self.stamp(12)

    def prof_out(self):
        e = self.e
        e(f"""
        s_lshl3_add_u32 {sT0}, s2, {sW}
        s_lshl_b32 {sT0}, {sT0}, 8
        s_add_u32 {sT0}, {sT0}, {WS_PROF}
        v_lshlrev_b32 v2, 2, v0
        buffer_store_dword v31, v2, {srd(S_WS)}, {sT0} offen
        """)

    def build(self):
        e = self.e
        if OPT.get('diag'):
            e.raw('s_memrealtime s[6:7]')
            e.raw('s_waitcnt lgkmcnt(0)')
        if self.prof:
            e.raw('s_memrealtime s[6:7]')
            e.raw('s_memtime s[4:5]')
            e.raw('s_waitcnt lgkmcnt(0)')
            e.raw('s_mov_b32 s7, s4')
            e.raw('v_mov_b32 v31, 0')
        self.prologue()
        e(f"""
        s_cmp_eq_u32 {sTYPE}, 1
        s_cbranch_scc1 L_type2
        """)
        st = self.snap()
        self.p1(1)
        e('s_branch L_att')
        self.restore(st)
        e.label('L_type2')
        self.p1(2)
        e.label('L_att')
        if self.stop_after != 'p1':
            self.att()
            if self.stop_after != 'att':
                self.g2()
        if self.prof:
            e.raw('v_writelane_b32 v31, s6, 63')
            e.raw('v_writelane_b32 v31, s7, 60')
            e.raw('s_memtime s[4:5]')
            e.raw('s_memrealtime s[64:65]')
            e.raw('s_waitcnt lgkmcnt(0)')
            e.raw('s_sub_u32 s4, s4, s7')
            e.raw('v_writelane_b32 v31, s4, 62')
            e.raw('v_writelane_b32 v31, s64, 61')
            self.prof_out()
        if OPT.get('diag'):
            e.raw('s_memrealtime s[4:5]')
            e.raw('s_waitcnt lgkmcnt(0)')
            e.raw('s_sub_u32 s7, s4, s6')
            e.raw(f's_mul_i32 s7, s7, {int(OPT["diag"])}')
            e.raw('s_min_u32 s7, s7, 100000')
            e.label('L_diag')
            e.raw('s_memrealtime s[64:65]')
            e.raw('s_waitcnt lgkmcnt(0)')
            e.raw('s_sub_u32 s64, s64, s4')
            e.raw('s_cmp_lt_u32 s64, s7')
            e.raw('s_cbranch_scc1 L_diag')
        e.label('L_end')
        e.raw('s_endpgm')
        hdr = open('cdna_kernels/' + NAME + '.s.ref').read().split('\n')
        cm = [l for l in hdr if l.startswith(';') and '@launch' not in l]
        out = '\n'.join(cm) + f'\n; @launch grid=(256,1,1) block=(512,1,1) lds={LDS_BYTES}\n'
        out += f""".amdgcn_target "amdgcn-amd-amdhsa--gfx950"
.text
.globl {NAME}_kernel
.p2align 8
.type {NAME}_kernel,@function
{NAME}_kernel:
"""
        out += e.text()
        out += f""".section .rodata,"a"
.p2align 6
.amdhsa_kernel {NAME}_kernel
  .amdhsa_next_free_vgpr 256
  .amdhsa_next_free_sgpr 102
  .amdhsa_accum_offset 256
  .amdhsa_group_segment_fixed_size 0
  .amdhsa_kernarg_size 88
  .amdhsa_user_sgpr_count 2
  .amdhsa_user_sgpr_kernarg_segment_ptr 1
  .amdhsa_system_sgpr_workgroup_id_x 1
.end_amdhsa_kernel
"""
        return out

if __name__ == '__main__':
    import argparse
    ap = argparse.ArgumentParser()
    ap.add_argument('-o', default='k.s')
    ap.add_argument('--stop', default=None)
    ap.add_argument('--prof', default=None)
    ap.add_argument('--cyc', action='store_true')
    ap.add_argument('--opt', default='')
    a = ap.parse_args()
    for kv in a.opt.split(','):
        if kv: OPT[kv.split('=')[0]] = kv.split('=')[1]
    g = G(stop_after=a.stop, prof=a.prof.split(',') if a.prof else None, cyc=a.cyc)
    txt = g.build()
    open(a.o, 'w').write(txt)
    if g.prof: open(a.o + '.names', 'w').write(','.join(g.prof))
    print('instrs', g.e.ninstr, 'nops', g.e.nnops)
```

```python
import sys, math, struct, copy
from em import Em, lines, interleave

NAME = "parallel_sum__sliding_block__dense_activation_gelu__prompt"
OPT = {}
WS_AH = 0
AH_T = 144 * 1024
WS_K = 0x900000
WS_V = 0xB00000
WS_Q = 0xD00000
WS_Z = 0xF00000
FL_T = 1792
F_KV, F_Q, F_HB, F_HC, F_O = 0, 256, 512, 768, 1280
Z_ROW = 7168
Z_CSG = 8192
WS_PROF = 0x1000000
WS_SIZE = 0x1100000
SH = 4096
SLOT = 32768
L_KST = 131072
L_VST = 147456
L_CSP = 147456
L_RV = 149504
L_GR = 131072
L_OK = 163824
LDS_BYTES = 163840

def f32(x): return struct.unpack('<I', struct.pack('<f', x))[0]
LOG2E = 1.4426950408889634
GA = -2.0 * math.sqrt(2.0 / math.pi) * LOG2E
GB = GA * 0.044715
NEGBIG = f32(-1e30)
ONES = 0x3f803f80

S_X, S_QKV, S_W1, S_W2, S_WO, S_WS, S_OUT, S_DBG, S_B1, S_B2 = [8 + 4 * i for i in range(10)]
S_TMP = 80
def srd(b): return f's[{b}:{b+3}]'
_names = """sW sNH sTT sRB sG sT sTYPE sWB4K sCOLA sCOLB sCOLC sCOLD sT0 sT1 sKX sKW""".split()
for _i, _n in enumerate(_names): globals()[_n] = f's{48+_i}'
sT2, sT3, sT4, sT5 = 's86', 's87', 's88', 's89'
sEX = 's[90:91]'; sROW = 's90'
sFLB = 's92'; sGB = 's93'; sCNT = 's94'; sR2 = 's95'; sC64 = 's96'; sXCH = 's97'; sQTR = 's98'; sHEAD = 's99'; sKW2 = 's100'; sUID = 's101'
sPIT = 's3'; sROT = 's3'; sGSRC = 's98'; sDK = 's78'
sTA = 's64'; sRA = 's65'; sKV = 's66'; sQO = 's67'; sMSK = 's[68:69]'; sT2G = 's70'; sAH2 = 's71'; sREDO = 's72'
sRC = 's73'; sOST = 's74'; sIMIN = 's75'; sKQ = 's76'; sFLO = 's77'; sFLIP = 's78'; sWLO = 's79'
sSTA = 's80'; sSTB = 's81'; sSTC = 's82'; sSTD = 's83'; sWHI = 's84'; sROWG = 's85'
vW2 = 'v1'; vONE = 'v14'; vL16 = 'v15'; TF = 16; NF = 20; vR = 'v25'; vTOK = 'v26'; vHF = 'v27'
vBC = 'v28'; vBX = 'v29'; vCSA = 'v30'
accC, accA, accB = 80, 96, 112
def blk(b): return f'v[{b}:{b+15}]'
def q4(b): return f'v[{b}:{b+3}]'
MFMA = 'v_mfma_f32_32x32x16_bf16'
PQ, PH = 3072, 3584

class G:
    def __init__(self, stop_after=None, prof=None, cyc=False):
        self.e = Em()
        self.stop_after = stop_after
        self.prof = prof
        self.cyc = cyc
        self.auto_on = False; self.auto_n = int(OPT.get('auton', 40)); self.auto_idx = 1; self.auto_last = 0

    def stamp(self, name):
        if not self.prof: return
        name = str(name)
        if name not in self.prof: return
        idx = self.prof.index(name)
        e = self.e
        e.raw('s_memtime s[4:5]' if self.cyc else 's_memrealtime s[4:5]')
        e.raw('s_waitcnt lgkmcnt(0)'); e.lg = []
        e.raw(f'v_writelane_b32 v31, s4, {idx}'); e.t += 3
    def snap(self):
        return copy.deepcopy({k: v for k, v in self.e.__dict__.items() if k != 'lines'})
    def restore(self, s):
        uid = self.e.uid; ni = self.e.ninstr; nn = self.e.nnops
        self.e.__dict__.update(copy.deepcopy(s)); self.e.uid = uid; self.e.ninstr = ni; self.e.nnops = nn
    def run(self, ls):
        for l in ls:
            if callable(l): l(); continue
            self.e.I(l)
            if self.auto_on and self.e.ninstr - self.auto_last >= self.auto_n and not l.startswith(('s_add_u32 m0', 's_cmp', 'v_cmp', 's_mov_b64 exec', 'ds_read', 's_and_b64')) and self.auto_idx < 46:
                self.auto_last = self.e.ninstr
                if f'x{self.auto_idx}' not in self.prof: self.prof.append(f'x{self.auto_idx}')
                self.e.comment(f'AUTO {self.auto_idx}')
                self.stamp(f'x{self.auto_idx}')
                self.auto_idx += 1
    def auto(self, name, on):
        for ph in name, {'s1': 'p1', 's2': 'p1'}.get(name, name):
            if OPT.get('drop_' + ph): self.e.drop = OPT['drop_' + ph].replace('+', '|') if on else None
        if OPT.get('auto') == name:
            self.auto_on = on; self.auto_last = self.e.ninstr
            if on: self.auto_idx = 1
    def mk(self, b, lo, size, shift=0):
        if shift:
            self.e(f"""
            s_sub_u32 s{b}, s{lo}, {shift}
            s_subb_u32 s{b+1}, s{lo+1}, 0
            s_and_b32 s{b+1}, s{b+1}, 0xffff
            s_mov_b32 s{b+2}, {size + shift}
            s_mov_b32 s{b+3}, 0x20000
            """)
        else:
            self.e(f"""
            s_mov_b32 s{b}, s{lo}
            s_and_b32 s{b+1}, s{lo+1}, 0xffff
            s_mov_b32 s{b+2}, {size}
            s_mov_b32 s{b+3}, 0x20000
            """)
    def retry(self, check_lines, reload_lines, name):
        e = self.e
        lok = e.newlabel(name + 'OK'); lp = e.newlabel(name + 'LP')
        if OPT.get('nochk') and name != 'ARM': return
        ao = self.auto_on; self.auto_on = False
        self.run(check_lines)
        e(f's_cbranch_scc1 {lok}\ns_mov_b32 {sCNT}, 0')
        e.label(lp)
        st = self.snap()
        e.settle()
        e('s_sleep 2')
        self.run(reload_lines)
        e.raw('s_waitcnt vmcnt(0)'); e.vm = []
        e(f's_add_u32 {sCNT}, {sCNT}, 1')
        if self.prof:
            sites = ['ARM', 'GR', 'GD', 'KV', 'HB', 'HC', 'OC']
            e.raw(f'v_writelane_b32 v31, {sCNT}, {50 + sites.index(name)}')
        e(f's_cmp_gt_u32 {sCNT}, 0x40000\ns_cbranch_scc1 {lok}')
        self.run(check_lines)
        e(f's_cbranch_scc0 {lp}')
        e.settle()
        self.restore(st)
        e.label(lok)
        self.auto_on = ao
    def wave0(self, fn):
        e = self.e
        lab = e.newlabel('W0')
        e.settle()
        e(f's_cmp_lg_u32 {sW}, 0\ns_cbranch_scc1 {lab}')
        st = self.snap()
        fn()
        e.settle()
        self.restore(st)
        e.label(lab)
    def barrier(self, tag=None):
        if tag: self.e.wait_vm_tag(tag)
        self.e.wait_lg0(); self.e('s_barrier')

    def prologue(self):
        e = self.e
        e(f"""
        s_cmp_ge_u32 s2, 256
        s_cbranch_scc1 L_end
        s_load_dwordx16 s[64:79], s[0:1], 0
        s_load_dwordx4 s[80:83], s[0:1], 64
        s_load_dwordx2 s[84:85], s[0:1], 80
        v_lshrrev_b32 v1, 6, v0
        v_and_b32 v0, 63, v0
        v_readfirstlane_b32 {sW}, v1
        s_and_b32 {sT0}, s2, 7
        s_lshr_b32 {sT1}, s2, 3
        s_and_b32 {sRB}, {sT0}, 1
        s_and_b32 {sT2}, {sT1}, 7
        s_lshl3_add_u32 {sRB}, {sRB}, {sT2}
        s_lshr_b32 {sTYPE}, {sT1}, 4
        s_and_b32 {sG}, {sT0}, 6
        s_bfe_u32 {sT4}, {sT1}, 0x10003
        s_add_u32 {sG}, {sG}, {sT4}
        s_lshr_b32 {sNH}, {sW}, 2
        s_lshl1_add_u32 {sTT}, {sNH}, {sW}
        s_and_b32 {sTT}, {sTT}, 3
        s_lshl2_add_u32 {sT}, {sRB}, {sTT}
        s_lshl_b32 {sWB4K}, {sW}, 12
        s_and_b32 {sT2}, {sT0}, 1
        s_lshl_b32 {sT2}, {sT2}, 5
        s_add_u32 {sT2}, {sT2}, {sT1}
        s_and_b32 {sQTR}, {sT2}, 3
        s_lshr_b32 {sT2}, {sT2}, 2
        s_lshr_b32 {sT3}, {sT0}, 1
        s_lshr_b32 {sUID}, {sT2}, 1
        s_and_b32 {sT4}, {sT2}, 1
        s_lshl3_add_u32 {sUID}, {sUID}, {sT4}
        s_lshl1_add_u32 {sUID}, {sT3}, {sUID}
        s_add_u32 {sT4}, {sT3}, 48
        s_cmp_eq_u32 {sT2}, 12
        s_cselect_b32 {sUID}, {sT4}, {sUID}
        s_cmp_gt_u32 {sT2}, 12
        s_cselect_b32 {sUID}, 52, {sUID}
        s_and_b32 {sROW}, {sT0}, 1
        s_lshl2_add_u32 {sROW}, {sROW}, {sT3}
        s_lshl_b32 {sROW}, {sROW}, 5
        s_add_u32 {sROW}, {sROW}, {sT1}
        s_lshl3_add_u32 {sROW}, {sROW}, {sW}
        s_movk_i32 {sPIT}, {PQ}
        s_cmp_ge_u32 {sUID}, 24
        s_cselect_b32 {sPIT}, {PH}, {sPIT}
        s_and_b32 {sT4}, {sT1}, 3
        s_lshl2_add_u32 {sR2}, {sT0}, {sT4}
        s_lshr_b32 {sC64}, {sT1}, 2
        s_and_b32 {sHEAD}, s2, 31
        """)
        e(f"""
        v_lshrrev_b32 v32, 3, v0
        v_and_b32 v33, 7, v0
        v_lshlrev_b32 {vL16}, 4, v0
        v_mov_b32 {vONE}, {ONES}
        s_lshl_b32 {sT5}, {sW}, 4
        s_lshl_b32 {sT4}, {sRB}, 7
        s_add_u32 {sT4}, {sT4}, {sT5}
        v_add_u32 v34, {sT4}, v32
        v_lshrrev_b32 v35, 1, v32
        v_xor_b32 v35, v35, v33
        v_lshlrev_b32 v35, 4, v35
        v_lshl_add_u32 v10, v34, 10, v35
        v_xor_b32 v11, 64, v10
        v_add_u32 v11, {8192 - 1024}, v11
        v_and_b32 v35, 2, v32
        v_lshlrev_b32 v35, 1, v35
        v_xor_b32 v35, v35, v33
        v_lshlrev_b32 v35, 4, v35
        v_add_u32 v34, {sT5}, v32
        v_mad_u32_u24 v20, v34, {sPIT}, v35
        s_lshl_b32 {sT5}, {sW}, 3
        v_add_u32 v36, {sT5}, v32
        v_mul_u32_u24 v37, {PQ}, v36
        v_add_u32 v37, v37, v35
        v_mul_u32_u24 v38, {PH}, v36
        v_add_u32 v38, v38, v35
        v_lshl_add_u32 {vW2}, v36, 10, v35
        s_lshl_b32 {sT4}, {sC64}, 7
        s_add_u32 {sT4}, {sT4}, {SH}
        v_add_u32 {vW2}, {sT4}, {vW2}
        """)
        e.wait_lg0()
        self.mk(S_X, 64, 2048 * 1024)
        self.mk(S_QKV, 66, 512 * PQ, SH)
        self.mk(S_W1, 72, 512 * PH, SH)
        self.mk(S_WS, 84, WS_SIZE)
        self.mk(S_OUT, 80, 2048 * 1024)
        self.mk(S_DBG, 82, 256)
        self.stamp('ka')
        lab = e.newlabel('NORST')
        e(f"""
        s_or_b32 {sT0}, {sG}, {sTYPE}
        s_cmp_lg_u32 {sT0}, 0
        s_cbranch_scc1 {lab}
        s_lshl3_add_u32 {sT0}, {sRB}, {sW}
        s_lshl_b32 {sT0}, {sT0}, 11
        s_add_u32 {sT0}, {sT0}, {WS_Z}
        v_mov_b32 v40, 0
        v_mov_b32 v41, 0
        v_mov_b32 v42, 0
        v_mov_b32 v43, 0
        buffer_store_dwordx4 v[40:43], {vL16}, {srd(S_WS)}, {sT0} offen sc1 #zero
        buffer_store_dwordx4 v[40:43], {vL16}, {srd(S_WS)}, {sT0} offen offset:1024 sc1 #zero
        """)
        e.settle()
        e.label(lab)

    def stats_loads(self):
        self.e(f"""
        s_lshl_b32 {sT0}, {sROW}, 10
        buffer_load_dwordx4 v[240:243], {vL16}, {srd(S_X)}, {sT0} offen
        s_cmp_ge_u32 {sUID}, 24
        s_cselect_b32 s{S_TMP}, s{S_W1}, s{S_QKV}
        s_cselect_b32 s{S_TMP+1}, s{S_W1+1}, s{S_QKV+1}
        s_cselect_b32 s{S_TMP+2}, s{S_W1+2}, s{S_QKV+2}
        s_mov_b32 s{S_TMP+3}, 0x20000
        s_cselect_b32 {sT1}, 24, 0
        s_sub_u32 {sT1}, {sUID}, {sT1}
        s_lshl_b32 {sT1}, {sT1}, 7
        s_lshl_b32 {sT0}, {sQTR}, 7
        s_mul_i32 {sT0}, {sT0}, {sPIT}
        s_add_u32 {sT0}, {sT0}, {sT1}
        s_add_u32 {sT0}, {sT0}, {SH}
        s_lshl3_add_u32 {sT1}, {sPIT}, {sT0}
        s_sub_u32 {sT1}, {sT1}, 1024
        s_lshr_b32 {sT2}, {sWB4K}, 1
        s_add_u32 m0, {sT2}, {L_KST}
        buffer_load_dwordx4 v20, {srd(S_TMP)}, {sT0} offen lds #cs
        buffer_load_dwordx4 v20, {srd(S_TMP)}, {sT1} offen offset:1024 lds #cs
        """)

    def code_prefetch(self):
        e = self.e
        lab = e.newlabel('NOIPF')
        e(f"""
        s_cmp_lg_u32 {sW}, 2
        s_cbranch_scc1 {lab}
        s_getpc_b64 s[4:5]
        """)
        l2 = e.newlabel('PCREF')
        e.label(l2)
        e(f"""
        s_sub_u32 s4, s4, {l2}-{NAME}_kernel
        s_subb_u32 s5, s5, 0
        s_bfe_u32 {sT0}, s2, 0x20003
        s_lshl_b32 {sT0}, {sT0}, 13
        v_lshlrev_b32 v44, 7, v0
        v_add_u32 v44, {sT0}, v44
        v_min_u32 v44, L_end-{NAME}_kernel, v44
        """)
        saved = list(e.vm)
        e(f'global_load_dword v45, v44, s[4:5]')
        e.vm = saved
        e.label(lab)

    def csg_off(self, dst, scol, isq):
        return f"""
        s_lshr_b32 {sT2}, {scol}, 7
        s_add_u32 {sT2}, {sT2}, {0 if isq else 24}
        s_lshr_b32 {sT3}, {sT2}, 2
        s_lshl_b32 {sT3}, {sT3}, 14
        s_and_b32 {sT2}, {sT2}, 3
        s_lshl_b32 {sT2}, {sT2}, 11
        s_add_u32 {sT2}, {sT2}, {sT3}
        s_add_u32 {dst}, {sT2}, {WS_Z + Z_CSG}
        """

    def setup(self, typ):
        e = self.e
        self.mk(S_WO, 68, 512 * 1024, SH)
        self.mk(S_B1, 74, 1792 * 2)
        self.mk(S_W2, 76, 1792 * 1024, SH)
        self.mk(S_B2, 78, 1024)
        e(f"""
        v_and_b32 {vTOK}, 31, v0
        v_lshrrev_b32 {vHF}, 5, v0
        v_bfe_u32 v34, {vTOK}, 1, 3
        v_xor_b32 v34, v34, {vHF}
        v_lshlrev_b32 v34, 4, v34
        v_and_b32 v35, 15, v0
        v_lshl_add_u32 v34, v35, 7, v34
        v_bfe_u32 v35, v0, 4, 1
        v_lshl_add_u32 v34, v35, 12, v34
        s_lshl_b32 {sT4}, {sTT}, 13
        s_lshl_b32 {sT5}, {sNH}, 6
        s_or_b32 {sT4}, {sT4}, {sT5}
        v_xor_b32 v34, {sT4}, v34
        v_bfe_u32 v36, v0, 2, 2
        v_bfe_u32 v33, v0, 1, 1
        v_lshl_add_u32 v32, v35, 1, v33
        v_and_b32 v33, 2, v36
        v_lshlrev_b32 v33, 1, v33
        v_xor_b32 v32, v32, v33
        v_lshlrev_b32 v32, 4, v32
        v_and_b32 v33, 1, v0
        v_lshl_add_u32 v32, v33, 3, v32
        v_lshl_add_u32 v32, v36, 7, v32
        v_lshl_add_u32 v250, {vHF}, 10, v32
        s_lshr_b32 {sT4}, {sWB4K}, 1
        s_add_u32 {sT4}, {sT4}, {L_KST}
        v_add_u32 v250, {sT4}, v250
        v_xor_b32 v251, 64, v250
        v_lshl_add_u32 v35, {vHF}, 12, v32
        s_lshl_b32 {sT4}, {sNH}, 14
        s_or_b32 {sT4}, {sT4}, {sT5}
        v_xor_b32 v35, {sT4}, v35
        """)
        for s in range(4):
            e(f"""
            v_xor_b32 v{2+s}, {s << 5}, v34
            v_xor_b32 v{6+s}, {s << 13}, v35
            v_add_u32 v{80+s}, 0x10000, v{2+s}
            v_add_u32 v{84+s}, 0x10000, v{6+s}
            """)
        e(f"""
        s_mov_b32 {sGB}, {f32(GB)}
        v_mov_b32 v{TF+2}, 0
        v_mov_b32 v{TF+3}, 0
        s_lshl_b32 {sT4}, {sNH}, 10
        v_lshl_add_u32 {vCSA}, {vTOK}, 5, {sT4}
        s_lshl_b32 {sFLB}, {sRB}, 14
        s_mul_i32 {sT4}, {sTT}, {FL_T}
        s_add_u32 {sFLB}, {sFLB}, {sT4}
        s_lshl1_add_u32 {sT5}, {sG}, {sNH}
        s_lshl4_add_u32 {sFLB}, {sT5}, {sFLB}
        s_add_u32 {sFLB}, {sFLB}, {WS_Z}
        s_lshr_b32 {sT1}, {sROW}, 7
        s_lshl_b32 {sT1}, {sT1}, 14
        s_and_b32 {sT0}, {sROW}, 127
        s_lshl3_add_u32 {sT0}, {sT0}, {sT1}
        s_add_u32 {sT0}, {sT0}, {WS_Z + Z_ROW}
        v_lshl_add_u32 v252, v0, 26, {sT0}
        s_lshl_b32 {sT0}, {sW}, 2
        s_add_u32 {sT0}, {sT0}, {L_CSP}
        v_lshl_add_u32 v253, v0, 5, {sT0}
        v_lshlrev_b32 v254, 5, v0
        v_add_u32 v254, {L_CSP}, v254
        v_and_b32 v248, 15, v0
        v_lshlrev_b32 v248, 2, v248
        s_lshr_b32 {sT2}, {sUID}, 2
        s_lshl_b32 {sT2}, {sT2}, 14
        s_and_b32 {sT3}, {sUID}, 3
        s_lshl_b32 {sT3}, {sT3}, 11
        s_add_u32 {sT2}, {sT2}, {sT3}
        s_lshl3_add_u32 {sT2}, {sQTR}, {sT2}
        s_add_u32 {sT2}, {sT2}, {WS_Z + Z_CSG}
        s_cmp_ge_u32 {sUID}, 52
        s_cselect_b32 {sT3}, 1, {sW}
        s_lshl_b32 {sT3}, {sT3}, 26
        s_add_u32 {sT2}, {sT2}, {sT3}
        v_lshl_add_u32 v255, v0, 5, {sT2}
        """)
        e(f"""
        s_lshl_b32 {sT4}, {sNH}, 6
        v_lshl_add_u32 v34, {vTOK}, 1, {sT4}
        buffer_load_ushort {vBC}, v34, {srd(S_B1)}, {sCOLC} offen
        s_xor_b32 {sXCH}, {sNH}, {sG}
        s_and_b32 {sXCH}, {sXCH}, 1
        s_lshl_b32 {sXCH}, {sXCH}, 6
        """)
        if typ == 1:
            e(f'v_xor_b32 v34, {sXCH}, v34\nbuffer_load_ushort {vBX}, v34, {srd(S_B1)}, {sCOLD} offen')
        else:
            e(f'buffer_load_ushort {vBX}, v34, {srd(S_B1)}, {sCOLB} offen')
        e(f"""
        s_lshl1_add_u32 {sT2}, {sG}, {sNH}
        s_lshl_b32 {sT2}, {sT2}, 17
        s_lshl_b32 {sT3}, {sT}, 10
        s_add_u32 {sT2}, {sT2}, {sT3}
        s_add_u32 {sSTA}, {sT2}, {WS_K if typ == 1 else WS_Q}
        s_mul_i32 {sT4}, {sT}, {AH_T}
        s_lshl_b32 {sT3}, {sNH}, 11
        s_add_u32 {sT3}, {sT3}, {sT4}
        s_lshl_b32 {sT5}, {sCOLC}, 5
        s_add_u32 {sSTC}, {sT5}, {sT3}
        """)
        if typ == 1:
            e(f"""
            s_add_u32 {sSTB}, {sT2}, {WS_V}
            s_and_b32 {sT3}, {sG}, 1
            s_lshl1_add_u32 {sT3}, {sT3}, {sNH}
            s_lshl_b32 {sT3}, {sT3}, 10
            s_add_u32 {sT3}, {sT3}, {sT4}
            s_lshl_b32 {sT5}, {sCOLD}, 5
            s_add_u32 {sSTD}, {sT5}, {sT3}
            """)
        else:
            e(f"""
            s_lshl_b32 {sT5}, {sCOLB}, 5
            s_add_u32 {sSTB}, {sT5}, {sT3}
            """)
        e(f"""
        s_lshl_b32 {sROWG}, {sRB}, 14
        s_lshl_b32 {sT3}, {sTT}, 8
        s_add_u32 {sROWG}, {sROWG}, {sT3}
        s_add_u32 {sROWG}, {sROWG}, {WS_Z + Z_ROW}
        """)
        e(f"""
        s_add_u32 {sT4}, {sCOLC}, {SH - 3072}
        v_add_u32 v22, {sT4}, v38
        """)
        if typ == 1:
            e(f"""
            v_lshrrev_b32 v32, 2, v0
            v_mul_u32_u24 v23, {PH}, v32
            v_and_b32 v32, 3, v0
            v_lshl_add_u32 v23, v32, 4, v23
            s_and_b32 {sT4}, {sG}, 1
            s_lshl_b32 {sT4}, {sT4}, 6
            s_add_u32 {sT4}, {sT4}, {sCOLD}
            s_add_u32 {sT4}, {sT4}, {SH}
            v_add_u32 v23, {sT4}, v23
            s_lshl_b32 {sDK}, {sW}, 7
            s_add_u32 {sDK}, {sDK}, {sROT if OPT.get('rot', 'none') != 'none' else 0}
            s_and_b32 {sDK}, {sDK}, 1023
            s_mul_i32 {sDK}, {sDK}, {PH // 2}
            """)
        e(self.csg_off(sCOLA, sCOLA, True)); e(self.csg_off(sCOLB, sCOLB, typ == 1)); e(self.csg_off(sCOLC, sCOLC, False))
        if typ == 1: e(self.csg_off(sCOLD, sCOLD, False))
        e(f"""
        s_lshr_b32 {sT2}, {sW}, 1
        s_mov_b32 {sGSRC}, {sCOLA}
        s_cmp_eq_u32 {sT2}, 1
        s_cselect_b32 {sGSRC}, {sCOLB}, {sGSRC}
        s_cmp_eq_u32 {sT2}, 2
        s_cselect_b32 {sGSRC}, {sCOLC}, {sGSRC}
        s_cmp_eq_u32 {sT2}, 3
        s_cselect_b32 {sGSRC}, {sCOLD if typ == 1 else sCOLC}, {sGSRC}
        s_and_b32 {sT2}, {sW}, 1
        s_lshl_b32 {sT2}, {sT2}, 10
        s_add_u32 {sGSRC}, {sGSRC}, {sT2}
        """)
        e(f"""
        s_lshr_b32 {sRA}, s2, 5
        s_lshl_b32 {sTA}, {sRA}, 3
        s_sub_u32 {sKV}, {sTA}, 8
        s_add_u32 {sTA}, {sTA}, {sW}
        s_sub_u32 {sIMIN}, 8, {sTA}
        s_cmp_gt_u32 {sTA}, 8
        s_cselect_b32 {sIMIN}, 0, {sIMIN}
        s_lshl1_add_u32 {sKV}, {sW}, {sKV}
        s_lshl_b32 {sKV}, {sKV}, 10
        s_lshl_b32 {sT1}, {sHEAD}, 16
        s_add_u32 {sKV}, {sKV}, {sT1}
        s_add_u32 {sKV}, {sKV}, {WS_K}
        s_lshl_b32 {sQO}, {sTA}, 10
        s_add_u32 {sQO}, {sQO}, {sT1}
        s_add_u32 {sQO}, {sQO}, {WS_Q}
        s_lshl1_add_u32 {sT2G}, {sR2}, {sNH}
        s_and_b32 {sKQ}, {sW}, 3
        s_mul_i32 {sAH2}, {sT2G}, {AH_T}
        s_lshl_b32 {sT1}, {sKQ}, 12
        s_add_u32 {sAH2}, {sAH2}, {sT1}
        s_mov_b32 {sREDO}, {1 if OPT.get('nofb') else 0}
        s_lshr_b32 {sFLO}, {sTA}, 2
        s_lshl_b32 {sFLO}, {sFLO}, 14
        s_and_b32 {sT1}, {sTA}, 3
        s_mul_i32 {sT1}, {sT1}, {FL_T}
        s_add_u32 {sFLO}, {sFLO}, {sT1}
        s_lshl4_add_u32 {sFLO}, {sHEAD}, {sFLO}
        s_add_u32 {sFLO}, {sFLO}, {WS_Z + F_O}
        s_mul_i32 {sOST}, {sTA}, {AH_T}
        s_lshl_b32 {sT1}, {sHEAD}, 10
        s_add_u32 {sOST}, {sOST}, {sT1}
        s_add_u32 {sOST}, {sOST}, {112 * 1024}
        s_mov_b32 s40, 0x41065410
        s_mov_b32 s41, 5
        ; rotation seed rc = (c64 + 2*(r64&3)) ; class1 uses rc&1 ; class2 uses rc mod 5
        s_and_b32 {sT1}, {sR2}, 3
        s_lshl1_add_u32 {sRC}, {sT1}, {sC64}
        s_mul_i32 {sT1}, {sRC}, 52
        s_lshr_b32 {sT1}, {sT1}, 8
        s_mul_i32 {sT1}, {sT1}, 5
        s_sub_u32 {sT1}, {sRC}, {sT1}
        s_add_u32 {sRC}, {sC64}, {sR2}
        s_and_b32 {sRC}, {sRC}, 1
        s_lshl3_add_u32 {sRC}, {sRC}, {sT1}
        """)

    def fill_stats(self):
        o = lines(f"""
        WAITVM cs
        ds_read_b64_tr_b16 v[232:233], v250
        ds_read_b64_tr_b16 v[234:235], v250 offset:512
        ds_read_b64_tr_b16 v[236:237], v251
        ds_read_b64_tr_b16 v[238:239], v251 offset:512
        v_dot2_f32_bf16 v244, v240, {vONE}, 0
        v_dot2_f32_bf16 v245, v240, v240, 0
        """)
        for j in range(1, 4):
            o += [f'v_dot2_f32_bf16 v244, v{240+j}, {vONE}, v244', f'v_dot2_f32_bf16 v245, v{240+j}, v{240+j}, v245']
        o += [f'v_dot2_f32_bf16 v228, v232, {vONE}, 0', f'v_dot2_f32_bf16 v229, v236, {vONE}, 0']
        for j in range(1, 4):
            o += [f'v_dot2_f32_bf16 v228, v{232+j}, {vONE}, v228', f'v_dot2_f32_bf16 v229, v{236+j}, {vONE}, v229']
        for dpp in ('quad_perm:[1,0,3,2]', 'quad_perm:[2,3,0,1]', 'row_half_mirror', 'row_mirror'):
            o += [f'v_add_f32_dpp v244, v244, v244 {dpp} row_mask:0xf bank_mask:0xf',
                  f'v_add_f32_dpp v245, v245, v245 {dpp} row_mask:0xf bank_mask:0xf']
            if dpp.startswith('quad_perm:[1'):
                o += ['v_permlane32_swap_b32 v228, v229', 'v_add_f32 v228, v228, v229', 'ds_write_b32 v253, v228']
        for sw in ('v_permlane16_swap_b32', 'v_permlane32_swap_b32'):
            o += lines(f"""
            v_mov_b32 v246, v244
            v_mov_b32 v247, v245
            {sw} v244, v246
            {sw} v245, v247
            v_add_f32 v244, v244, v246
            v_add_f32 v245, v245, v247
            """)
        o += lines(f"""
        v_mul_f32 v244, {f32(1/512)}, v244
        v_mul_f32 v245, {f32(1/512)}, v245
        v_fma_f32 v245, -v244, v244, v245
        v_max_f32 v245, 0, v245
        v_cvt_pk_bf16_f32 v246, v245, v245
        v_lshlrev_b32 v246, 16, v246
        v_add_f32 v246, {f32(1e-5)}, v246
        v_cvt_pk_bf16_f32 v246, v246, v246
        v_lshlrev_b32 v246, 16, v246
        v_sqrt_f32 v246, v246
        v_cvt_pk_bf16_f32 v240, -v244, v246
        v_mov_b32 v241, 1
        """)
        return o

    def fill_cs2(self):
        return lines(f"""
        ds_read_b128 v[232:235], v254
        ds_read_b128 v[236:239], v254 offset:16
        v_add_f32 v232, v232, v233
        v_add_f32 v234, v234, v235
        v_add_f32 v236, v236, v237
        v_add_f32 v238, v238, v239
        v_add_f32 v232, v232, v234
        v_add_f32 v236, v236, v238
        v_add_f32 v244, v232, v236
        v_mov_b32 v245, 1
        """)

    def dma1(self, c, typ):
        slot = (c % 4) * SLOT
        if OPT.get('rot', 'none') == 'none':
            kx = [f's_movk_i32 {sKX}, {128 * c}']; kq = [f's_mov_b32 {sKW}, {64 * PQ * c}']; kh = [f's_mov_b32 {sKW}, {64 * PH * c}']
        else:
            kx = [f's_add_u32 {sKX}, {sROT}, {128 * c}', f's_and_b32 {sKX}, {sKX}, 1023']
            kq = [f's_mul_i32 {sKW}, {sKX}, {PQ // 2}']; kh = [f's_mul_i32 {sKW}, {sKX}, {PH // 2}']
        g0 = [f's_add_u32 m0, {sWB4K}, {slot}'] + kx + [f'buffer_load_dwordx4 v10, {srd(S_X)}, {sKX} offen lds #c{c}']
        g1 = [f'buffer_load_dwordx4 v11, {srd(S_X)}, {sKX} offen offset:1024 lds #c{c}']
        g2 = kq + [f'buffer_load_dwordx4 v12, {srd(S_QKV)}, {sKW} offen offset:2048 lds #c{c}']
        if typ == 1:
            g3 = [f'buffer_load_dwordx4 v13, {srd(S_QKV)}, {sKW} offen offset:3072 lds #c{c}']
        else:
            g3 = kh + [f'buffer_load_dwordx4 v13, {srd(S_W1)}, {sKW} offen offset:3072 lds #c{c}']
        return [g0, g1, g2, g3]
    def dma2(self, c, half, vo):
        slot = (c % 4) * SLOT
        out = []
        for i in range(4):
            cc = 4 * half + i
            g = [f's_add_u32 m0, {sWB4K}, {slot}'] if i == 0 else []
            if OPT.get('rot', 'none') == 'none':
                g += [f's_mov_b32 {sKW}, {64 * PH * cc + 1024 * (3 - i)}']
            else:
                g += [f's_add_u32 {sKX}, {sROT}, {128 * cc}', f's_and_b32 {sKX}, {sKX}, 1023', f's_mul_i32 {sKW}, {sKX}, {PH // 2}']
                if i < 3: g += [f's_add_u32 {sKW}, {sKW}, {1024 * (3 - i)}']
            g += [f'buffer_load_dwordx4 {vo}, {srd(S_W1)}, {sKW} offen offset:{1024*i} lds #c{c}']
            out.append(g)
        return out

    def grp_idx(self, gi):
        if gi < 2 or gi >= 7:
            b = 2 if gi < 2 else 7
            k = gi if gi < 2 else gi - 7
            return [f's_bfe_u32 {sT0}, {sRC}, 0x10003', f's_xor_b32 {sT0}, {sT0}, {k}', f's_add_u32 {sT0}, {sT0}, {b}']
        return [f's_and_b32 {sT0}, {sRC}, 7', f's_add_u32 {sT0}, {sT0}, {gi - 2}', f's_lshl_b32 {sT0}, {sT0}, 2',
                f's_lshr_b64 s[{sT0[1:]}:{sT1[1:]}], s[40:41], {sT0}', f's_and_b32 {sT0}, {sT0}, 15']
    def wpos(self, gi):
        return [3, 0, 2, 1, 3, 0, 4, 2, 1][gi]
    def w2_dma(self, gi):
        out = []
        g = self.grp_idx(gi)
        if gi >= 7: g = g[:-1]
        g += [f's_add_u32 m0, {sWB4K}, {self.wpos(gi) * SLOT}', f's_lshl_b32 {sKW2}, {sT0}, 18']
        sr = S_W2 if gi < 7 else S_WO
        for i in range(4):
            if i: g = [f's_add_u32 {sKW2}, {sKW2}, {65536 - 1024}']
            g.append(f'buffer_load_dwordx4 {vW2}, {srd(sr)}, {sKW2} offen offset:{1024*i} lds #w{gi}')
            out.append(g)
        return out
    def hq(self, gi, j):
        base = {0: 156, 1: 172, 2: 192, 3: 208, 4: 224, 5: 240, 6: 156, 7: 172, 8: 60}[gi]
        return base + 4 * j
    def hload(self, gi):
        out = []
        for j in range(4):
            g = []
            if j == 0: g = self.grp_idx(gi) + [f's_lshl_b32 {sKX}, {sT0}, 14', f's_add_u32 {sKX}, {sKX}, {sAH2}']
            g.append(f'buffer_load_dwordx4 {q4(self.hq(gi, j))}, {vL16}, {srd(S_WS)}, {sKX} offen offset:{1024*j} sc1 #h{gi}_{j}')
            out.append(g)
        return out
    def wrd(self, gi, j, b):
        pos = self.wpos(gi)
        a0, a1 = self.WA2[2 * (pos >> 1)], self.WA2[2 * (pos >> 1) + 1]
        off = (pos & 1) * SLOT + 8192 * j
        return [f'ds_read_b64_tr_b16 v[{b}:{b+1}], {a0} offset:{off}',
                f'ds_read_b64_tr_b16 v[{b+2}:{b+3}], {a0} offset:{off + 4096}',
                f'ds_read_b64_tr_b16 v[{b+4}:{b+5}], {a1} offset:{off}',
                f'ds_read_b64_tr_b16 v[{b+6}:{b+7}], {a1} offset:{off + 4096}']

    def cs_load(self, soff, dst):
        return [f'buffer_load_dwordx4 v[{dst}:{dst+3}], {vCSA}, {srd(S_WS)}, {soff} offen sc1',
                f'buffer_load_dwordx4 v[{dst+4}:{dst+7}], {vCSA}, {srd(S_WS)}, {soff} offen offset:16 sc1']
    def nf_build(self, cs, bias):
        return lines(f"""
        v_cvt_pk_bf16_f32 v46, v{cs}, v{cs}
        v_lshlrev_b32 v46, 16, v46
        v_sub_f32 v46, v{cs}, v46
        v_cvt_pk_bf16_f32 v{NF}, v{cs}, v46
        v_and_b32 v47, 0xffff0000, v{NF}
        v_sub_f32 v46, v46, v47
        v_cvt_pk_bf16_f32 v{NF+1}, v46, {bias}
        """)
    def epi_qk(self, acc, rreg, tag):
        o = []
        for h in range(2):
            a = acc + 8 * h
            for i in range(8): o.append(f'v_mul_f32 v{a+i}, {rreg}, v{a+i}')
            for i in range(4): o.append(f'v_cvt_pk_bf16_f32 v{a+i}, v{a+2*i}, v{a+2*i+1}')
            if h: o.append(f's_add_u32 {sSTA}, {sSTA}, 65536')
            o.append(f'buffer_store_dwordx4 {q4(a)}, {vL16}, {srd(S_WS)}, {sSTA} offen sc1 #{tag}')
        return o
    def epi_v_pre(self, tmp):
        o = lines(f"""
        s_lshr_b32 {sT2}, {sWB4K}, 5
        s_add_u32 {sT2}, {sT2}, {L_RV}
        v_lshl_add_u32 v12, {vTOK}, 2, {sT2}
        v_lshl_add_u32 v13, {vHF}, 4, {sT2}
        ds_write_b32 v12, {vR}
        """)
        for q in range(4): o.append(f'ds_read_b128 v[{tmp+4*q}:{tmp+4*q+3}], v13 offset:{32*q}')
        o += lines(f"""
        v_bfe_u32 v12, v0, 4, 1
        v_and_b32 v13, 15, v0
        v_lshl_add_u32 v13, {vHF}, 4, v13
        v_lshlrev_b32 v13, 4, v13
        v_lshl_add_u32 v12, v12, 16, v13
        """)
        return o
    def epi_v(self, acc, tmp, tag):
        o = []
        for h in range(2):
            a = acc + 8 * h
            for i in range(8): o.append(f'v_mul_f32 v{a+i}, v{tmp+8*h+i}, v{a+i}')
            for i in range(4): o.append(f'v_cvt_pk_bf16_f32 v{a+i}, v{a+2*i}, v{a+2*i+1}')
            o.append(f'buffer_store_dwordx4 {q4(a)}, v12, {srd(S_WS)}, {sSTB} offen offset:{512*h} sc1 #{tag}')
        return o
    def epi_h(self, acc, tmp, soff, tag, halves=2):
        o = []
        for half in range(halves):
            a = acc + 8 * half
            for i in range(8): o.append(f'v_mul_f32 v{tmp+i}, v{a+i}, v{a+i}')
            for i in range(8): o.append(f'v_fma_f32 v{tmp+i}, v{tmp+i}, v10, v24')
            for i in range(8): o.append(f'v_mul_f32 v{tmp+i}, v{tmp+i}, v{a+i}')
            for i in range(8): o.append(f'v_exp_f32 v{tmp+i}, v{tmp+i}')
            for i in range(8): o.append(f'v_fma_f32 v{tmp+i}, v{tmp+i}, v2, v2')
            for i in range(8): o.append(f'v_rcp_f32 v{tmp+i}, v{tmp+i}')
            for i in range(8): o.append(f'v_mul_f32 v{a+i}, v{a+i}, v{tmp+i}')
            for i in range(4): o.append(f'v_cvt_pk_bf16_f32 v{a+i}, v{a+2*i}, v{a+2*i+1}')
            o.append(f'buffer_store_dwordx4 {q4(a)}, {vL16}, {srd(S_WS)}, {soff} offen offset:{1024*half} sc1 #{tag}')
        return o
    def flag_set(self, tag, base_s, off):
        return [f'WAITVM {tag}', f'buffer_store_dword {self.vF1}, {self.vFL}, {srd(S_WS)}, {base_s} offen offset:{off} sc1']
    def u_rd(self, c0, m, nb):
        c = c0 + (m >> 4); k = m & 15
        base = ((c % 4) * SLOT & 0xffff) + 1024 * (k >> 2); s = k & 3
        b = 48 + 4 * (nb % 4)
        return [f'ds_read_b64_tr_b16 v[{b}:{b+1}], v{6+s} offset:{base}',
                f'ds_read_b64_tr_b16 v[{b+2}:{b+3}], v{6+s} offset:{base + 512}']
    def u_mfma(self, acc, m, nb):
        b = 48 + 4 * (nb % 4); x = 128 + 4 * m
        return f'{MFMA} {blk(acc)}, {q4(b)}, {q4(x)}, {blk(acc)}'
    def fl_addr(self, vT, vtmp):
        return lines(f"""
        v_ashrrev_i32 {vtmp}, 2, {vT}
        v_lshlrev_b32 {vtmp}, 14, {vtmp}
        v_and_b32 {vT}, 3, {vT}
        v_mul_u32_u24 {vT}, {FL_T}, {vT}
        v_add_u32 {vT}, {vT}, {vtmp}
        """)
    def kv_poll_setup(self, va, vt):
        return lines(f"""
        s_lshl_b32 {sT4}, {sRA}, 3
        s_sub_u32 {sT4}, {sT4}, 8
        v_add_u32 {va}, {sT4}, v0
        v_subrev_u32 {vt}, 8, {va}
        v_cmp_gt_u32 vcc, 16, v0
        v_cndmask_b32 {va}, {vt}, {va}, vcc
        """) + self.fl_addr(va, vt) + lines(f"""
        v_mov_b32 {vt}, {F_Q}
        v_cndmask_b32 {vt}, {vt}, 0, vcc
        s_lshr_b32 {sT5}, {sHEAD}, 1
        s_lshl_b32 {sT5}, {sT5}, 4
        s_add_u32 {sT5}, {sT5}, {WS_Z}
        s_lshl_b32 {sT4}, {sW}, 26
        s_add_u32 {sT5}, {sT5}, {sT4}
        v_add3_u32 {va}, {va}, {vt}, {sT5}
        v_cmp_le_u32 vcc, 24, v0
        v_mov_b32 {vt}, 0x40000000
        v_cndmask_b32 {va}, {va}, {vt}, vcc
        s_mov_b32 s68, 0xffffff
        s_cmp_eq_u32 {sRA}, 0
        s_cselect_b32 s68, 0xffff00, s68
        s_mov_b32 s69, 0
        """)
    def kv_loads(self):
        return lines(f"""
        s_add_u32 {sT5}, {sKV}, {WS_V - WS_K}
        buffer_load_dwordx4 v[112:115], {vL16}, {srd(S_WS)}, {sKV} offen sc1
        buffer_load_dwordx4 v[116:119], {vL16}, {srd(S_WS)}, {sKV} offen offset:1024 sc1
        buffer_load_dwordx4 v[32:35], {vL16}, {srd(S_WS)}, {sQO} offen sc1
        buffer_load_dwordx4 v[120:123], {vL16}, {srd(S_WS)}, {sT5} offen sc1
        buffer_load_dwordx4 v[124:127], {vL16}, {srd(S_WS)}, {sT5} offen offset:1024 sc1
        """)
    def pl_ld(self, vaddr, vdst, off=0):
        return [f'buffer_load_dword {vdst}, {vaddr}, {srd(S_WS)}, 0 offen offset:{off} sc1 #kvp']
    def pl_chk(self, vdst, mask):
        if mask == '-1': return [f'v_cmp_ne_u32 vcc, 1, {vdst}', 's_cmp_eq_u64 vcc, 0']
        return [f'v_cmp_ne_u32 vcc, 1, {vdst}', f's_andn2_b64 vcc, {mask}, vcc', f's_cmp_eq_u64 vcc, {mask}']

    def p1(self, typ):
        e = self.e
        if typ == 1:
            e(f"""
            s_lshl_b32 {sCOLC}, {sG}, 7
            s_add_u32 {sCOLA}, {sCOLC}, 1024
            s_add_u32 {sCOLB}, {sCOLC}, 2048
            s_lshr_b32 {sCOLD}, {sG}, 1
            s_add_u32 {sCOLD}, {sCOLD}, 24
            s_lshl_b32 {sCOLD}, {sCOLD}, 7
            s_add_u32 {sT4}, {sCOLA}, {SH - 2048}
            v_add_u32 v12, {sT4}, v37
            v_mov_b32 v13, v12
            """)
        else:
            e(f"""
            s_lshl_b32 {sCOLA}, {sG}, 7
            s_add_u32 {sCOLB}, {sCOLA}, 1024
            s_add_u32 {sCOLC}, {sCOLA}, 2048
            s_add_u32 {sT4}, {sCOLA}, {SH - 2048}
            v_add_u32 v12, {sT4}, v37
            v_add_u32 v13, {sT4}, v38
            """)
        def arm():
            lab = e.newlabel('NOARM')
            e(f"""
            s_or_b32 {sT0}, {sG}, {sW}
            s_cmp_lg_u32 {sT0}, 0
            s_cbranch_scc1 {lab}
            s_lshl_b32 {sT0}, {sRB}, 2
            v_lshl_add_u32 v32, v0, 26, {sT0}
            v_mov_b32 v33, 1
            """)
            saved = list(e.vm)
            e(f'buffer_store_dword v33, v32, {srd(S_DBG)}, 0 offen offset:64 sc1')
            e.vm = saved
            e.label(lab)
        def chunk_dmas(c):
            if c < 8: return self.dma1(c, typ)
            if c < 10: return self.dma2(c, c - 8, 'v22')
            if typ == 1 and c == 10:
                out = []
                for i in range(4):
                    g = [f's_add_u32 m0, {sWB4K}, {2 * SLOT}'] if i == 0 else [f's_add_u32 {sDK}, {sDK}, {16 * PH - 1024}']
                    out.append(g + [f'buffer_load_dwordx4 v23, {srd(S_W1)}, {sDK} offen offset:{1024*i} lds #c10'])
                return out
            if typ == 2 and c == 10: return self.w2_dma(2)
            if c == 11: return self.w2_dma(0)
            return []
        SL = int(OPT.get('sl', -1))
        if SL < 0:
            self.stats_loads()
            e(f"""
            s_lshr_b32 {sT0}, s2, 3
            s_lshr_b32 {sT1}, s2, 6
            s_lshl1_add_u32 {sT0}, {sT1}, {sT0}
            s_and_b32 {sT0}, {sT0}, 7
            s_lshl_b32 {sROT}, {sT0}, 7
            """)
        for grp in chunk_dmas(0): self.run(grp)
        self.stamp('i0')
        if int(OPT.get('ipf', 1)): self.code_prefetch()
        cap = []
        origI = e.I
        e.I = lambda l, tag=None: cap.append(l)
        self.setup(typ)
        del e.__dict__['I']
        ia = max(i for i, l in enumerate(cap) if l.startswith('v_lshl_add_u32 v255')) + 1
        partA, partB = cap[18:ia], cap[:18] + cap[ia:]
        def inject(code, groups, gap):
            out = []; cnt = 0; groups = list(groups)
            for l in code:
                out.append(l); cnt += 1
                if groups and cnt >= gap and not l.startswith(('s_cmp', 's_cselect', 's_sub_u32')):
                    out += groups.pop(0); cnt = 0
            for g in groups: out += g
            return out
        def pieces(code, n):
            out = []; k = (len(code) + n - 1) // n; cur = []
            for l in code:
                cur.append(l)
                if len(cur) >= k and not l.startswith(('s_cmp', 's_cselect', 's_sub_u32')):
                    out.append(cur); cur = []
            if cur: out.append(cur)
            return out
        late = int(OPT.get('late', 1))
        lateB = []
        if late:
            self.run(inject(partA, chunk_dmas(1) + chunk_dmas(2), int(OPT.get('gap', 20))))
            e.wait_vm_tag('zero')
            dq = chunk_dmas(3)
            lateB = pieces(partB, 8)
        else:
            self.run(inject(partA + partB, chunk_dmas(1) + chunk_dmas(2) + chunk_dmas(3), int(OPT.get('gap', 30))))
            e.wait_vm_tag('zero')
            e('s_barrier')
            if typ == 1: arm()
            self.run(self.fill_stats())
            dq = []
        self.stamp('st')
        def rd1(n):
            c, s = n >> 2, n & 3
            slot = (c % 4) * SLOT
            hi = slot >> 16; base = slot & 0xffff
            xa = (80 if hi else 2) + s; wa = (84 if hi else 6) + s
            x = 128 + 4 * n; b = 48 + 8 * (n % 4)
            return [f'ds_read_b128 {q4(x)}, v{xa} offset:{base}',
                  f'ds_read_b64_tr_b16 v[{b}:{b+1}], v{wa} offset:{base + 2048}',
                  f'ds_read_b64_tr_b16 v[{b+2}:{b+3}], v{wa} offset:{base + 2048 + 512}',
                  f'ds_read_b64_tr_b16 v[{b+4}:{b+5}], v{wa} offset:{base + 3072}',
                  f'ds_read_b64_tr_b16 v[{b+6}:{b+7}], v{wa} offset:{base + 3072 + 512}']
        if OPT.get('prio'):
            lab = e.newlabel('NOPRIO')
            e(f's_cmp_eq_u32 {sNH}, {1 - int(OPT["prio"]) % 2}\ns_cbranch_scc1 {lab}\ns_setprio 1')
            e.label(lab)
        self.barrier('c0')
        self.stamp(1)
        self.auto('s1', True)
        self.run(rd1(0) + rd1(1))
        armed_chk = [f'v_cmp_ne_u32 vcc, 1, v249', 's_cmp_eq_u64 vcc, 0']
        armed_ld = [f'buffer_load_dword v249, v248, {srd(S_DBG)}, 0 offen offset:64 sc1']
        fills = {}
        if late and SL >= 0:
            if typ == 1: arm()
            for g in dq: self.run(g)
            dq = []
            self.stats_loads()
            fs = self.fill_stats(); hfs = len(fs) // 2
            order = [0, 1, 2, 3, 6, 7, 8, 9]
            for i, p in enumerate(lateB): fills[order[i]] = p
            fills[4] = fs[:hfs]; fills[5] = fs[hfs:]
            fills[6] = self.fill_cs2() + fills[6]
            fills[7] = fills[7] + armed_ld
        elif late:
            if typ == 1: arm()
            fs = self.fill_stats(); hfs = len(fs) // 2
            fills[0] = fs[:hfs]; fills[1] = fs[hfs:]
            fills[2] = self.fill_cs2()
            for i, p in enumerate(lateB): fills[3 + i] = p
            fills[7] = fills[7] + armed_ld
        else:
            fills[1] = self.fill_cs2()
            fills[5] = armed_ld
        AN = int(OPT.get('an', 11 if late else 9))
        fills[AN] = fills.get(AN, []) + [lambda: self.retry(armed_chk, armed_ld, 'ARM'),
                    f'buffer_store_dwordx2 v[240:241], v252, {srd(S_WS)}, 0 offen sc1',
                    f'buffer_store_dwordx2 v[244:245], v255, {srd(S_WS)}, 0 offen sc1']
        def warm():
            lab = e.newlabel('NOWARM')
            e(f"""
            s_cmp_gt_u32 {sW}, 1
            s_cbranch_scc1 {lab}
            s_lshl_b32 {sT2}, {sW}, 8
            s_add_u32 {sT2}, {sT2}, s2
            s_lshl_b32 {sT2}, {sT2}, 13
            s_add_u32 {sT2}, {sT2}, {SH}
            s_sub_u32 {sT3}, {sT2}, {1792 * 1024}
            s_cmp_lt_u32 {sT2}, {1792 * 1024 + SH}
            s_cselect_b32 {sT3}, 0x40000000, {sT3}
            v_lshlrev_b32 v246, 7, v0
            """)
            saved = list(e.vm)
            e(f"""
            buffer_load_dword v247, v246, {srd(S_W2)}, {sT2} offen
            buffer_load_dword v243, v246, {srd(S_WO)}, {sT3} offen
            """)
            e.vm = saved
            e.label(lab)
        WN = int(OPT.get('warm', 13))
        if WN >= 0: fills[WN] = fills.get(WN, []) + [warm]
        rowg = [f'v_lshlrev_b32 v20, 3, {vTOK}', f'buffer_load_dwordx2 v[{TF}:{TF+1}], v20, {srd(S_WS)}, {sROWG} offen sc1']
        ldA = self.cs_load(sCOLA, 32); ldB = self.cs_load(sCOLB, 40); ldC = self.cs_load(sCOLC, 88)
        GL = int(OPT.get('gl', 21))
        def gdma():
            lab = e.newlabel('NOROWG')
            e(f"""
            s_lshr_b32 {sT2}, {sWB4K}, 2
            s_add_u32 m0, {sT2}, {L_GR}
            buffer_load_dwordx4 {vL16}, {srd(S_WS)}, {sGSRC} offen sc1 lds #gr
            s_cmp_lg_u32 {sW}, 0
            s_cbranch_scc1 {lab}
            s_lshl_b32 {sT2}, {sRB}, 14
            s_add_u32 {sT2}, {sT2}, {WS_Z + Z_ROW}
            s_mov_b32 m0, {L_GR + 8192}
            """)
            saved = list(e.vm)
            e(f'buffer_load_dwordx4 {vL16}, {srd(S_WS)}, {sT2} offen sc1 lds')
            e.raw('s_waitcnt vmcnt(63)')
            e.vm = saved
            e.label(lab)
        self.gdma = gdma
        grd = lines(f"""
        s_lshl_b32 {sT2}, {sTT}, 8
        s_add_u32 {sT2}, {sT2}, {L_GR + 8192}
        v_lshl_add_u32 v20, {vTOK}, 3, {sT2}
        v_add_u32 v21, {L_GR}, {vCSA}
        ds_read_b64 v[{TF}:{TF+1}], v20
        ds_read_b128 v[32:35], v21
        ds_read_b128 v[36:39], v21 offset:16
        ds_read_b128 v[40:43], v21 offset:2048
        ds_read_b128 v[44:47], v21 offset:2064
        ds_read_b128 v[88:91], v21 offset:4096
        ds_read_b128 v[92:95], v21 offset:4112
        """)
        fills[26] = grd
        chk = lines(f"""
        v_and_b32 v20, v{TF+1}, v33
        v_and_b32 v21, v35, v37
        v_and_b32 v20, v20, v39
        v_and_b32 v21, v21, v41
        v_and_b32 v20, v20, v43
        v_and_b32 v21, v21, v45
        v_and_b32 v20, v20, v47
        v_and_b32 v21, v21, v89
        v_and_b32 v20, v20, v91
        v_and_b32 v21, v21, v93
        v_and_b32 v20, v20, v95
        v_and_b32 v20, v20, v21
        v_cmp_ne_u32 vcc, 1, v20
        s_cmp_eq_u64 vcc, 0
        """)
        pre = lines(f"""
        v_add_f32 v32, v32, v34
        v_add_f32 v36, v36, v38
        v_add_f32 v40, v40, v42
        v_add_f32 v44, v44, v46
        v_add_f32 v88, v88, v90
        v_add_f32 v92, v92, v94
        v_add_f32 v32, v32, v36
        v_add_f32 v33, v40, v44
        v_add_f32 v34, v88, v92
        v_and_b32 v2, 0xffff0000, v{TF}
        v_rcp_f32 {vR}, v2
        v_cmp_eq_u32 vcc, 0, {vHF}
        v_cndmask_b32 v{TF+1}, 0, v{TF}, vcc
        v_and_b32 v{TF}, 0xffff, v{TF+1}
        v_lshl_or_b32 v{TF}, v{TF}, 16, v{TF}
        v_mov_b32 v11, v23
        v_mov_b32 v{NF+2}, 0
        v_mov_b32 v{NF+3}, 0
        v_lshlrev_b32 {vBC}, 16, {vBC}
        v_lshlrev_b32 {vBX}, 16, {vBX}
        """)
        pre2 = lines(f"""
        v_mul_f32 v10, {vR}, {vR}
        v_mul_f32 v24, {f32(GA)}, {vR}
        v_mul_f32 v10, {sGB}, v10
        v_mul_f32 v10, v10, {vR}
        v_lshlrev_b32 v3, 26, v0
        v_mov_b32 v4, 1
        """)
        self.vFL, self.vF1 = 'v3', 'v4'
        fills[27] = [lambda: self.retry(chk, rowg + ldA + ldB + ldC, 'GR')] + pre
        fills[28] = self.nf_build(32, '0') + [f'{MFMA} {blk(accA)}, {q4(NF)}, {q4(TF)}, {blk(accA)}']
        if typ == 1:
            fills[29] = pre2 + self.nf_build(33, '0') + [f'{MFMA} {blk(accB)}, {q4(TF)}, {q4(NF)}, {blk(accB)}']
        else:
            fills[29] = pre2 + self.nf_build(33, vBX) + [f'{MFMA} {blk(accB)}, {q4(NF)}, {q4(TF)}, {blk(accB)}']
        fills[30] = self.nf_build(34, vBC) + [f'{MFMA} {blk(accC)}, {q4(NF)}, {q4(TF)}, 0']
        if typ == 1: fills[31] = self.epi_v_pre(32)
        else: fills[31] = [f'v_mul_f32 v32, {f32(0.25 * LOG2E)}, {vR}']
        for n in range(32):
            c, s = n >> 2, n & 3
            if s == 2:
                if n == 22:
                    assert not dq
                    gdma()
                if n == 26:
                    idx = max(i for i, o in enumerate(e.vm) if o.get('tag') == 'gr')
                    e._wait(vm=len(e.vm) - 1 - idx)
                self.barrier(f'c{c+1}')
                self.stamp(f'b{c+1}')
                new = chunk_dmas(c + 4)
                if n >= 26: new = [[l.replace('v23,', 'v11,') if n > 27 else l for l in g] for g in new]
                dq += new
            if n + 2 < 32: self.run(rd1(n + 2))
            elif n == 30: self.run(self.u_rd(8, 0, 0) + self.u_rd(8, 1, 1))
            else: self.run(self.u_rd(8, 2, 2))
            x = 128 + 4 * n; b = 48 + 8 * (n % 4)
            ca = '0' if n == 0 else blk(accA)
            cb = '0' if n == 0 else blk(accB)
            def pop():
                g = dq.pop(0)
                if n > 27: g = [l.replace('v23,', 'v11,') for l in g]
                self.run(g)
            self.run([f'{MFMA} {blk(accA)}, {q4(b)}, {q4(x)}, {ca}'])
            if len(dq) > 4: pop()
            if typ == 1: self.run([f'{MFMA} {blk(accB)}, {q4(x)}, {q4(b+4)}, {cb}'])
            else: self.run([f'{MFMA} {blk(accB)}, {q4(b+4)}, {q4(x)}, {cb}'])
            if dq: pop()
            self.run(fills.get(n, []))
        self.auto('s1', False)
        self.stamp(2)
        self.auto('s2', True)
        def ustream(c0, acc, ms, allms):
            o = []
            for m in ms:
                k = allms.index(m)
                if k + 3 < len(allms): o += self.u_rd(c0, allms[k + 3], k + 3)
                o.append(self.u_mfma(acc, m, k))
                if dq: o += dq.pop(0)
            return o
        def is_main(acc):
            return lambda s: isinstance(s, str) and s.startswith('v_mfma') and any(f'{blk(acc)}, v[{d}' in s for d in '456')
        allC = list(range(32))
        epi3 = self.epi_h(accC, 64, sSTC, 'h')
        n3 = len(epi3)
        pollset = self.kv_poll_setup('v42', 'v43')
        self.WA2 = ['v6', 'v7', 'v12', 'v13', 'v22', 'v23']
        wa_a = lines(f"""
        v_bfe_u32 v39, v0, 2, 2
        v_lshl_add_u32 v38, {vHF}, 2, v39
        v_lshlrev_b32 v38, 7, v38
        v_bfe_u32 v36, v0, 4, 1
        v_bfe_u32 v37, v0, 1, 1
        v_lshl_add_u32 v36, v36, 1, v37
        v_and_b32 v37, 2, v39
        v_lshlrev_b32 v37, 1, v37
        v_xor_b32 v36, v36, v37
        v_lshl_add_u32 v38, v36, 4, v38
        v_and_b32 v37, 1, v0
        v_lshl_add_u32 v38, v37, 3, v38
        s_lshl_b32 {sT3}, {sKQ}, 10
        v_add_u32 v38, {sT3}, v38
        """)
        wa_b = lines(f"""
        v_mov_b32 v6, v38
        v_xor_b32 v7, 64, v38
        v_add_u32 v12, 0x10000, v6
        v_add_u32 v13, 0x10000, v7
        v_add_u32 v22, 0x20000, v6
        v_add_u32 v23, 0x20000, v7
        """)
        def weave(valu, extra):
            out = []; extra = list(extra)
            for l in valu:
                out.append(l)
                if extra: out += extra.pop(0)
            for x in extra: out += x
            return out
        trr = []
        k = 0
        for gi in range(2):
            for j in range(4):
                trr += [[x] for x in self.wrd(gi, j, 192 + 8 * k)]; k += 1
        def x1():
            self.wave0(lambda: self.retry(self.pl_chk('v43', sMSK), self.pl_ld('v42', 'v43'), 'KV'))
            self.barrier()
            self.run(self.kv_loads())
            self.stamp(6)
        def spaced(groups, gapn):
            out = []
            for g in groups: out += [g] + [[]] * gapn
            return out
        if typ == 2:
            hh = self.epi_h(accB, 64, sSTB, 'hb')
            epi = self.epi_qk(accA, 'v32', 'kv') + hh[:len(hh) // 3]
            epi2 = hh[len(hh) // 3:len(hh) // 2] + self.flag_set('kv', sFLB, F_Q) + hh[len(hh) // 2:] + pollset + wa_a
            self.run(ustream(8, accC, allC[0:1], allC))
            self.run(interleave(ustream(8, accC, allC[1:13], allC), epi, is_main(accC)))
            self.stamp(3)
            self.barrier('c9')
            dq += [[]] * 6 + spaced(self.w2_dma(1), 1)
            self.run(interleave(ustream(8, accC, allC[13:32], allC), epi2, is_main(accC)))
            self.run(wa_b)
            self.barrier('w1')
            self.stamp(4)
            self.run(weave(epi3[:n3 // 2], self.w2_dma(3) + [self.flag_set('hb', sFLB, F_HB), self.pl_ld('v42', 'v43')] + trr))
            x1()
            self.run(epi3[n3 // 2:])
        else:
            epi = self.epi_qk(accA, vR, 'kv') + self.epi_v(accB, 32, 'kv')
            ldD = self.cs_load(sCOLD, 32)
            self.run(ustream(8, accC, allC[0:1], allC))
            self.run(interleave(ustream(8, accC, allC[1:8], allC), epi, is_main(accC)))
            self.run([f's_lshl_b32 {sT4}, {sXCH}, 4', f'v_xor_b32 {vCSA}, {sT4}, {vCSA}', f'v_add_u32 v21, {L_GR}, {vCSA}',
                      'ds_read_b128 v[32:35], v21 offset:6144', 'ds_read_b128 v[36:39], v21 offset:6160'])
            self.run(interleave(ustream(8, accC, allC[8:13], allC), pollset, is_main(accC)))
            self.stamp(3)
            self.barrier('c10')
            chkD = lines(f"""
            v_and_b32 v20, v33, v35
            v_and_b32 v20, v20, v37
            v_and_b32 v20, v20, v39
            v_cmp_ne_u32 vcc, 1, v20
            s_cmp_eq_u64 vcc, 0
            """)
            self.retry(chkD, ldD, 'GD')
            nfd = ['v_add_f32 v32, v32, v34', 'v_add_f32 v36, v36, v38', 'v_add_f32 v32, v32, v36'] + self.nf_build(32, vBX) + lines(f"""
            s_sub_u32 {sT4}, {sNH}, 1
            v_and_b32 v{NF}, {sT4}, v{NF}
            v_and_b32 v{NF+1}, {sT4}, v{NF+1}
            {MFMA} {blk(accA)}, {q4(NF)}, {q4(TF)}, 0
            s_lshl1_add_u32 {sT4}, {sTT}, {sNH}
            s_lshl_b32 {sT4}, {sT4}, 12
            s_add_u32 {sT4}, {sT4}, {L_KST}
            v_add_u32 v40, {sT4}, {vL16}
            s_lshl_b32 {sT5}, {sNH}, 11
            s_sub_u32 {sT4}, {sT4}, {sT5}
            v_add_u32 v41, {sT4}, {vL16}
            v_bfe_u32 v44, v0, 2, 2
            v_lshl_add_u32 v44, {vHF}, 3, v44
            v_lshlrev_b32 v44, 6, v44
            v_bfe_u32 v45, v0, 4, 1
            v_lshl_add_u32 v44, v45, 5, v44
            v_and_b32 v45, 3, v0
            v_lshl_add_u32 v44, v45, 3, v44
            s_add_u32 {sT5}, {sT5}, {2 * SLOT}
            v_add_u32 v44, {sT5}, v44
            """) + wa_a
            self.run(interleave(ustream(8, accC, allC[13:21], allC), nfd, is_main(accC)))
            self.run(self.flag_set('kv', sFLB, F_KV))
            dq += spaced(self.w2_dma(1), 1)
            self.run(ustream(8, accC, allC[21:29], allC))
            self.barrier()
            self.stamp(4)
            allD = [m for m in range(32) if (m & 3) < 2]
            def d_rd(m, nb):
                b = 48 + 4 * (nb % 4); off = 4096 * (m >> 2) + 1024 * (m & 1)
                return [f'ds_read_b64_tr_b16 v[{b}:{b+1}], v44 offset:{off}', f'ds_read_b64_tr_b16 v[{b+2}:{b+3}], v44 offset:{off + 256}']
            W3 = self.w2_dma(3)
            self.run(d_rd(allD[0], 0) + [self.u_mfma(accC, 29, 1)] + d_rd(allD[1], 1) + W3[0] + [self.u_mfma(accC, 30, 2)]
                     + d_rd(allD[2], 2) + W3[1] + [self.u_mfma(accC, 31, 3)] + wa_b)
            ds = []
            for k, m in enumerate(allD):
                if k + 3 < 16: ds += d_rd(allD[k + 3], k + 3)
                ds.append(self.u_mfma(accA, m, k))
                if k in (1, 4): ds += W3[2 + (k == 4)]
                if k == 8: ds += self.pl_ld('v42', 'v43')
            self.run(interleave(ds, epi3[:n3 // 2], is_main(accA)))
            xw = [f'ds_write_b128 v40, {q4(accA + 4*q)} offset:{1024*q}' for q in range(4)]
            self.run(epi3[n3 // 2:n3 * 5 // 8] + xw)
            self.barrier('w1')
            self.run(lines(f"""
            ds_read_b128 {q4(accA)}, v41
            ds_read_b128 {q4(accA+4)}, v41 offset:1024
            ds_read_b128 {q4(accA+8)}, v41 offset:4096
            ds_read_b128 {q4(accA+12)}, v41 offset:5120
            """))
            self.run(weave(epi3[n3 * 5 // 8:], self.w2_dma(2) + trr))
            x1()
            self.run([f'v_add_f32 v{accA+i}, v{accA+i}, v{accA+8+i}' for i in range(8)] + self.epi_h(accA, 64, sSTD, 'h', halves=1))
        tl = e.vm[-6:]
        assert [bool(o['dst']) for o in tl] == [True] * 5 + [False] and tl[-1]['tag'] == 'h', tl
        e.vm = tl
        assert not any(dq), dq
        e.wait_lg0(force=True)
        e.settle()
        e(f's_add_u32 {sFLB}, {sFLB}, {F_HC + (256 if typ == 2 else 0)}')
        self.auto('s2', False)
        self.stamp(5)

    def att(self):
        e = self.e
        KB = [36, 40]; VB = [44, 52]; SB = [60, 76]; MK = 92; O = 108
        self.ACC = ACC = [124, 140]
        Q = 'v[32:35]'
        self.auto('att', True)
        self.vFL, self.vF1 = 'v24', 'v25'
        W = {gi: self.w2_dma(gi) for gi in range(4, 6)}
        H = {gi: self.hload(gi) for gi in range(9)}
        self.run(lines(f"""
        v_mov_b32 v24, v3
        v_mov_b32 v25, 1
        v_lshlrev_b32 v20, 2, {vHF}
        v_sub_u32 v20, {vTOK}, v20
        v_mov_b32 v21, {NEGBIG}
        s_lshr_b32 {sT3}, {sWB4K}, 2
        s_add_u32 {sT2}, {sT3}, {L_KST}
        v_add_u32 v2, {sT2}, {vL16}
        v_add_u32 v41, {sT3}, v2
        v_and_b32 v3, 15, v0
        v_lshl_add_u32 v3, {vHF}, 4, v3
        v_lshlrev_b32 v3, 4, v3
        v_add_u32 v3, {sT2}, v3
        v_mov_b32 v17, 0
        s_lshl_b32 {sT2}, {sR2}, 1
        v_add_u32 v28, {sT2}, {vHF}
        """) + self.fl_addr('v28', 'v29') + lines(f"""
        s_lshl_b32 {sT2}, {sW}, 26
        s_add_u32 {sT2}, {sT2}, {WS_Z}
        v_lshl_add_u32 v28, {vTOK}, 4, v28
        v_add_u32 v28, {sT2}, v28
        s_mov_b32 s90, 0xffff
        s_mov_b32 s91, 0xffff
        v_mov_b32 v29, {L_KST}
        """) + self.pl_ld('v28', 'v30', F_HB) + W[4][0] + W[4][1] + lines(f"""
        ds_write_b128 v41, v[112:115]
        ds_write_b128 v41, v[116:119] offset:1024
        ds_write_b128 v41, v[120:123] offset:16384
        ds_write_b128 v41, v[124:127] offset:17408
        """))
        self.run(self.flag_set('h', sFLB, 0))
        pairs = ['vcc', 's[86:87]', 's[88:89]']
        ml = []
        for r in range(16):
            c = 8 * (r >> 2) + (r & 3)
            ml.append(f'v_cmp_le_i32 {pairs[r % 3]}, {c}, v20')
            if r >= 2: ml.append(f'v_cndmask_b32 v{SB[0]+r-2}, v21, 0, {pairs[(r - 2) % 3]}')
        for r in (14, 15): ml.append(f'v_cndmask_b32 v{SB[0]+r}, v21, 0, {pairs[r % 3]}')
        def hb():
            e(f'ds_write_b32 v29, v17')
            self.retry(self.pl_chk('v30', sEX), self.pl_ld('v28', 'v30', F_HB), 'HB')
            e.wait_lg0()
        self.wave0(hb)
        self.barrier()
        self.stamp(7)
        def kread(i, b): self.run([f'ds_read_b128 {q4(b)}, v2 offset:{1024*i}'])
        def vread(i, b):
            e(f"""
            s_mov_b64 exec, {sEX}
            ds_read_b128 {q4(b)}, v3 offset:{16384 + 1024*i}
            ds_read_b128 {q4(b+4)}, v3 offset:{16384 + 1024*i+512}
            s_mov_b64 exec, -1
            """)
        self.run(H[0][0] + H[0][1] + H[0][2] + H[0][3])
        kread(8, KB[0]); kread(7, KB[1])
        self.run(ml)
        self.run([f'v_mov_b32 v{r}, {vONE}' for r in list(range(8, 12)) + list(range(44, 60))])
        self.run([f'v_sub_f32 v{MK+r}, v21, v{SB[0]+r}' for r in range(16)])
        def hc0():
            def f():
                self.retry(self.pl_chk('v30', '-1'), self.pl_ld('v28', 'v30', F_HC), 'HC')
                e(f'ds_write_b32 v29, v25')
            self.wave0(f)
        def hcw():
            lp = e.newlabel('HCW'); lo = e.newlabel('HCD')
            e.settle()
            e(f's_mov_b32 {sCNT}, 0')
            e.label(lp)
            e.raw(f'ds_read_b32 v21, v29')
            e.raw(f's_add_u32 {sCNT}, {sCNT}, 1')
            e.raw('s_waitcnt lgkmcnt(0)'); e.lg = []
            e.raw(f'v_readfirstlane_b32 {sT2}, v21')
            e.raw(f's_cmp_gt_u32 {sCNT}, 0x1000000')
            e.raw(f's_cbranch_scc1 {lo}')
            e.raw(f's_cmp_eq_u32 {sT2}, 0')
            e.raw(f's_cbranch_scc1 {lp}')
            e.label(lo)
            e.t += 6
        def c1(k):
            gi, j = k >> 2, k & 3
            return [f'{MFMA} {blk(ACC[nt])}, {q4(192 + 8*k + 4*nt)}, {q4(self.hq(gi, j))}, {"0" if k == 0 else blk(ACC[nt])}' for nt in range(2)]
        hcp = int(OPT.get('hcp', 4))
        acts = [
            [W[4][2], W[4][3], H[1][0] + H[1][1]],
            [H[1][2] + H[1][3], W[5][0], W[5][1]],
            [W[5][2], W[5][3], c1(0), c1(1)],
            [c1(2), c1(3), c1(4)],
            [c1(5), c1(6), c1(7)],
            [], [], [], [],
        ]
        acts[hcp - 2].append(self.pl_ld('v28', 'v30', F_HC))
        acts[hcp].append([hc0])
        hl = H[2] + H[3] + H[4] + H[5]
        acts[hcp + 1].append([hcw])
        npt = int(OPT.get('npt', 4))
        for t in range(hcp + 1, 8 + int(OPT.get('l8', 0))):
            for _ in range(npt):
                if hl: acts[t].append(hl.pop(0))
        self.Hrest = hl
        self.H = H
        e(f'{MFMA} {blk(SB[0])}, {q4(KB[0])}, {Q}, {blk(SB[0])}')
        vread(8, VB[0])
        e(f'v_max3_f32 v20, v{SB[0]}, v{SB[0]+1}, v{SB[0]+2}')
        e(f'v_max3_f32 v21, v{SB[0]+3}, v{SB[0]+4}, v{SB[0]+5}')
        for j in range(3, 8):
            e(f'v_max3_f32 v{20 + (j & 1)}, v{SB[0]+2*j}, v{SB[0]+2*j+1}, v{20 + (j & 1)}')
        def pass2(acts, lend):
            e(f"""
            v_max_f32 v20, v20, v21
            v_mov_b32 v21, v20
            v_permlane32_swap_b32 v20, v21
            v_max_f32 v20, v20, v21
            v_cvt_pk_bf16_f32 v21, v20, v20
            v_lshlrev_b32 v21, 16, v21
            v_sub_f32 v21, v21, v20
            v_cvt_pk_bf16_f32 v16, -v20, v21
            v_cmp_eq_u32 vcc, 0, {vHF}
            v_cndmask_b32 v16, 0, v16, vcc
            {MFMA} {blk(SB[0])}, v[8:11], v[16:19], {blk(SB[0])}
            """)
            tails = {i: (e.newlabel(f'TAIL{i}') if acts else lend) for i in range(1, 9)}
            for n, i in enumerate(range(8, -1, -1)):
                cur = SB[n % 2]; nx = SB[(n + 1) % 2]; V = VB[n % 2]
                A = list(acts[n]) if acts else []
                if i > 0:
                    e(f'{MFMA} {blk(nx)}, v[8:11], v[16:19], {blk(MK) if i == 1 else "0"}')
                    e(f'{MFMA} {blk(nx)}, {q4(KB[(n + 1) % 2])}, {Q}, {blk(nx)}')
                    if i > 1: kread(i - 2, KB[n % 2])
                    vread(i - 1, VB[(n + 1) % 2])
                for kb in range(2):
                    p = cur + 8 * kb
                    for j in range(8):
                        e(f'v_exp_f32 v{p+j}, v{p+j}')
                        if j in (2, 5) and A: self.run(A.pop(0))
                    for j in range(4): e(f'v_cvt_pk_bf16_f32 v{p+j}, v{p+2*j}, v{p+2*j+1}')
                    if A: self.run(A.pop(0))
                    c = '0' if (n == 0 and kb == 0) else blk(O)
                    e(f'{MFMA} {blk(O)}, {q4(V+4*kb)}, {q4(p)}, {c}')
                for a in A: self.run(a)
                if acts: self.stamp(f't{n}')
                if i > 0:
                    e(f's_cmp_eq_u32 {sIMIN}, {i}\ns_cbranch_scc1 {tails[i]}')
                    if i == 8: exit_st = self.snap()
            if acts:
                e(f's_branch {lend}')
                st = self.snap()
                self.restore(exit_st)
                for i in range(8, 0, -1):
                    e.label(tails[i])
                    e.nop(12)
                    for a in acts[8 - i + 1]: self.run(a)
                e.settle()
                self.restore(st)
        lend2 = e.newlabel('P2END')
        pass2(acts, lend2)
        self.auto('att', False)
        e.label(lend2)
        e.wait_lg0(force=True)
        e.nop(12)
        lok = e.newlabel('SMOK')
        e(f"""
        v_mov_b32 v21, {f32(2.0**100)}
        v_cmp_nle_f32 vcc, v{O+8}, v21
        s_cmp_eq_u64 vcc, 0
        s_cbranch_scc1 {lok}
        """)
        if OPT.get('nofb'): e(f's_branch {lok}')
        st = self.snap()
        e(f'v_mov_b32 v20, {NEGBIG}\nv_mov_b32 v21, {NEGBIG}\nv_mov_b32 v16, {NEGBIG}')
        for i in range(0, 9):
            lsk = e.newlabel('RSK')
            if i < 8: e(f's_cmp_gt_u32 {sIMIN}, {i}\ns_cbranch_scc1 {lsk}')
            kread(i, KB[0])
            if i == 8:
                for r in range(16): e(f'v_sub_f32 v{SB[0]+r}, v16, v{MK+r}')
            c = blk(MK) if i == 0 else (blk(SB[0]) if i == 8 else '0')
            e(f'{MFMA} {blk(SB[0])}, {q4(KB[0])}, {Q}, {c}')
            for j in range(8):
                e(f'v_max3_f32 v{20 + (j & 1)}, v{SB[0]+2*j}, v{SB[0]+2*j+1}, v{20 + (j & 1)}')
            e.settle()
            e.label(lsk)
        kread(7, KB[1]); vread(8, VB[0])
        lend3 = e.newlabel('P3END')
        pass2(None, lend3)
        e.label(lend3)
        e.raw('s_waitcnt lgkmcnt(0)')
        e.nop(12)
        self.restore(st)
        e.label(lok)
        e(f'v_rcp_f32 v20, v{O+8}')
        for j in range(8): e(f'v_mul_f32 v{O+j}, v20, v{O+j}')
        for j in range(4): e(f'v_cvt_pk_bf16_f32 v{O+j}, v{O+2*j}, v{O+2*j+1}')
        e(f'buffer_store_dwordx4 {q4(O)}, {vL16}, {srd(S_WS)}, {sOST} offen sc1 #o')
        self.stamp(8)

    def g2(self):
        e = self.e
        ACC = self.ACC
        H = self.H
        self.auto('g2', True)
        issued = set()
        def mm(gi, j, b):
            hb = self.hq(gi, j)
            return [f'{MFMA} {blk(ACC[nt])}, {q4(b+4*nt)}, {q4(hb)}, {blk(ACC[nt])}' for nt in range(2)]
        vq = list(self.Hrest) + H[6]
        WB = [76, 84, 92, 100]
        steps = [(gi, j) for gi in range(2, 9) for j in range(4)]
        self.run(self.wrd(2, 0, WB[0]) + self.wrd(2, 1, WB[1]))
        self.run(lines(f"""
        v_lshrrev_b32 v35, 3, v0
        v_and_b32 v36, 7, v0
        s_lshl3_add_u32 {sT3}, {sR2}, {sW}
        s_lshl_b32 {sT3}, {sT3}, 3
        v_add_u32 v37, {sT3}, v35
        s_lshl_b32 {sT4}, {sC64}, 7
        v_lshl_add_u32 v38, v36, 4, {sT4}
        v_lshl_add_u32 v8, v37, 10, v38
        """))
        OPL = int(OPT.get('opl', 10))
        OFL = int(OPT.get('ofl', 2))
        bar = {3: (None, (6, 7)), 7: (None, (8,)), 14: ('w6', ()), 18: ('w8', ())}
        for k, (gi, j) in enumerate(steps):
            if k == OFL: self.run(self.flag_set('o', sFLO, 0))
            if k in bar:
                tag, rel = bar[k]
                while tag and vq and any(isinstance(l, str) and f'#{tag}' in l for x in vq for l in x): self.run(vq.pop(0))
                if k == 14:
                    while vq: self.run(vq.pop(0))
                    self.wave0(lambda: self.retry(self.pl_chk('v30', '-1'), self.pl_ld('v28', 'v30', F_O), 'OC'))
                self.barrier(tag)
                self.stamp(f'g{k}')
                for r in rel: vq += self.w2_dma(r)
                if k == 14: vq = H[7] + H[8]
            if k == OPL: self.run(self.pl_ld('v28', 'v30', F_O))
            if k == 19:
                vq.append([f'buffer_load_dwordx4 v[40:43], v8, {srd(S_X)}, 0 offen', f'buffer_load_dwordx4 v[44:47], v38, {srd(S_B2)}, 0 offen'])
            if k + 2 < len(steps): self.run(self.wrd(*steps[k + 2], WB[(k + 2) % 4]))
            need = [f'#h{a}_{b}' for (a, b) in steps[k:k + 3]]
            while vq and any(isinstance(l, str) and nd in l for x in vq for l in x for nd in need): self.run(vq.pop(0))
            for l in mm(gi, j, WB[k % 4]):
                self.run([l])
                if vq: self.run(vq.pop(0))
        assert not vq, vq
        self.stamp(11)
        PS = 1056
        self.run(lines(f"""
        s_lshl1_add_u32 {sT4}, {sKQ}, {sNH}
        s_lshl_b32 {sT4}, {sT4}, 13
        s_lshr_b32 {sT3}, {sKQ}, 1
        s_lshl_b32 {sT3}, {sT3}, 16
        s_add_u32 {sT4}, {sT4}, {sT3}
        v_add_u32 v9, {sT4}, {vL16}
        """))
        for nt in range(2):
            for q in range(4):
                pl = nt * 4 + q
                self.run([f'v_xor_b32 v10, {pl << 5}, v9', f'ds_write_b128 v10, v[{ACC[nt]+4*q}:{ACC[nt]+4*q+3}] offset:{pl * 1024}'])
        self.run(lines(f"""
        s_lshl_b32 {sT4}, {sKQ}, 7
        s_lshl_b32 {sT3}, {sNH}, 13
        s_add_u32 {sT4}, {sT4}, {sT3}
        v_lshl_add_u32 v9, v35, 4, {sT4}
        v_lshlrev_b32 v10, 5, v36
        v_xor_b32 v9, v9, v10
        v_lshl_add_u32 v9, v36, 10, v9
        v_add_u32 v10, 0x10000, v9
        """))
        for j in range(4):
            self.run(lines(f"""
            v_lshlrev_b32 v{160+2*j}, 16, v{40+j}
            v_and_b32 v{161+2*j}, 0xffff0000, v{40+j}
            v_lshlrev_b32 v{168+2*j}, 16, v{44+j}
            v_and_b32 v{169+2*j}, 0xffff0000, v{44+j}
            """))
        self.run([f'v_add_f32 v{160+j}, v{160+j}, v{168+j}' for j in range(8)])
        self.barrier()
        for kq in range(4):
            for hf in range(2):
                b = 48 + 8 * kq + 4 * hf
                self.run([f'ds_read_b128 v[{b}:{b+3}], v{9 + (kq >> 1)} offset:{kq * 16384 + hf * 512}'])
        for j in range(8): self.run([f'v_add_f32 v{160+j}, v{160+j}, v{48+j}'])
        for j in range(8): self.run([f'v_add_f32 v{56+j}, v{56+j}, v{64+j}'])
        for j in range(8): self.run([f'v_add_f32 v{160+j}, v{160+j}, v{72+j}'])
        for j in range(8): self.run([f'v_add_f32 v{160+j}, v{160+j}, v{56+j}'])
        for j in range(4): self.run([f'v_cvt_pk_bf16_f32 v{48+j}, v{160+2*j}, v{160+2*j+1}'])
        e(f'buffer_store_dwordx4 v[48:51], v8, {srd(S_OUT)}, 0 offen')
        self.auto('g2', False)
        self.stamp(12)

    def prof_out(self):
        e = self.e
        e(f"""
        s_lshl3_add_u32 {sT0}, s2, {sW}
        s_lshl_b32 {sT0}, {sT0}, 8
        s_add_u32 {sT0}, {sT0}, {WS_PROF}
        v_lshlrev_b32 v2, 2, v0
        buffer_store_dword v31, v2, {srd(S_WS)}, {sT0} offen
        """)

    def build(self):
        e = self.e
        if OPT.get('diag'):
            e.raw('s_memrealtime s[6:7]')
            e.raw('s_waitcnt lgkmcnt(0)')
        if self.prof:
            e.raw('s_memrealtime s[6:7]')
            e.raw('s_memtime s[4:5]')
            e.raw('s_waitcnt lgkmcnt(0)')
            e.raw('s_mov_b32 s7, s4')
            e.raw('v_mov_b32 v31, 0')
        self.prologue()
        e(f"""
        s_cmp_eq_u32 {sTYPE}, 1
        s_cbranch_scc1 L_type2
        """)
        st = self.snap()
        self.p1(1)
        e('s_branch L_att')
        self.restore(st)
        e.label('L_type2')
        self.p1(2)
        e.label('L_att')
        if self.stop_after != 'p1':
            self.att()
            if self.stop_after != 'att':
                self.g2()
        if self.prof:
            e.raw('v_writelane_b32 v31, s6, 63')
            e.raw('v_writelane_b32 v31, s7, 60')
            e.raw('s_memtime s[4:5]')
            e.raw('s_memrealtime s[64:65]')
            e.raw('s_waitcnt lgkmcnt(0)')
            e.raw('s_sub_u32 s4, s4, s7')
            e.raw('v_writelane_b32 v31, s4, 62')
            e.raw('v_writelane_b32 v31, s64, 61')
            self.prof_out()
        if OPT.get('diag'):
            e.raw('s_memrealtime s[4:5]')
            e.raw('s_waitcnt lgkmcnt(0)')
            e.raw('s_sub_u32 s7, s4, s6')
            e.raw(f's_mul_i32 s7, s7, {int(OPT["diag"])}')
            e.raw('s_min_u32 s7, s7, 100000')
            e.label('L_diag')
            e.raw('s_memrealtime s[64:65]')
            e.raw('s_waitcnt lgkmcnt(0)')
            e.raw('s_sub_u32 s64, s64, s4')
            e.raw('s_cmp_lt_u32 s64, s7')
            e.raw('s_cbranch_scc1 L_diag')
        e.label('L_end')
        e.raw('s_endpgm')
        hdr = open('cdna_kernels/' + NAME + '.s.ref').read().split('\n')
        cm = [l for l in hdr if l.startswith(';') and '@launch' not in l]
        out = '\n'.join(cm) + f'\n; @launch grid=(256,1,1) block=(512,1,1) lds={LDS_BYTES}\n'
        out += f""".amdgcn_target "amdgcn-amd-amdhsa--gfx950"
.text
.globl {NAME}_kernel
.p2align 8
.type {NAME}_kernel,@function
{NAME}_kernel:
"""
        out += e.text()
        out += f""".section .rodata,"a"
.p2align 6
.amdhsa_kernel {NAME}_kernel
  .amdhsa_next_free_vgpr 256
  .amdhsa_next_free_sgpr 102
  .amdhsa_accum_offset 256
  .amdhsa_group_segment_fixed_size 0
  .amdhsa_kernarg_size 88
  .amdhsa_user_sgpr_count 2
  .amdhsa_user_sgpr_kernarg_segment_ptr 1
  .amdhsa_system_sgpr_workgroup_id_x 1
.end_amdhsa_kernel
"""
        return out

if __name__ == '__main__':
    import argparse
    ap = argparse.ArgumentParser()
    ap.add_argument('-o', default='k.s')
    ap.add_argument('--stop', default=None)
    ap.add_argument('--prof', default=None)
    ap.add_argument('--cyc', action='store_true')
    ap.add_argument('--opt', default='')
    a = ap.parse_args()
    for kv in a.opt.split(','):
        if kv: OPT[kv.split('=')[0]] = kv.split('=')[1]
    g = G(stop_after=a.stop, prof=a.prof.split(',') if a.prof else None, cyc=a.cyc)
    txt = g.build()
    open(a.o, 'w').write(txt)
    if g.prof: open(a.o + '.names', 'w').write(','.join(g.prof))
    print('instrs', g.e.ninstr, 'nops', g.e.nnops)
```

```python
import sys, math, struct, copy
from em import Em, lines, interleave

NAME = "parallel_sum__sliding_block__dense_activation_gelu__prompt"
OPT = {}
WS_AH = 0
AH_T = 144 * 1024
WS_K = 0x900000
WS_V = 0xB00000
WS_Q = 0xD00000
WS_Z = 0xF00000
FL_T = 1792
F_KV, F_Q, F_HB, F_HC, F_O = 0, 256, 512, 768, 1280
Z_ROW = 7168
Z_CSG = 8192
WS_PROF = 0x1000000
WS_SIZE = 0x1100000
SH = 4096
SLOT = 32768
L_KST = 131072
L_VST = 147456
L_CSP = 147456
L_RV = 149504
L_GR = 131072
L_OK = 163824
LDS_BYTES = 163840

def f32(x): return struct.unpack('<I', struct.pack('<f', x))[0]
LOG2E = 1.4426950408889634
GA = -2.0 * math.sqrt(2.0 / math.pi) * LOG2E
GB = GA * 0.044715
NEGBIG = f32(-1e30)
ONES = 0x3f803f80

S_X, S_QKV, S_W1, S_W2, S_WO, S_WS, S_OUT, S_DBG, S_B1, S_B2 = [8 + 4 * i for i in range(10)]
S_TMP = 80
def srd(b): return f's[{b}:{b+3}]'
_names = """sW sNH sTT sRB sG sT sTYPE sWB4K sCOLA sCOLB sCOLC sCOLD sT0 sT1 sKX sKW""".split()
for _i, _n in enumerate(_names): globals()[_n] = f's{48+_i}'
sT2, sT3, sT4, sT5 = 's86', 's87', 's88', 's89'
sEX = 's[90:91]'; sROW = 's90'
sFLB = 's92'; sGB = 's93'; sCNT = 's94'; sR2 = 's95'; sC64 = 's96'; sXCH = 's97'; sQTR = 's98'; sHEAD = 's99'; sKW2 = 's100'; sUID = 's101'
sPIT = 's3'; sROT = 's3'; sGSRC = 's98'; sDK = 's78'
sTA = 's64'; sRA = 's65'; sKV = 's66'; sQO = 's67'; sMSK = 's[68:69]'; sT2G = 's70'; sAH2 = 's71'; sREDO = 's72'
sRC = 's73'; sOST = 's74'; sIMIN = 's75'; sKQ = 's76'; sFLO = 's77'; sFLIP = 's78'; sWLO = 's79'
sSTA = 's80'; sSTB = 's81'; sSTC = 's82'; sSTD = 's83'; sWHI = 's84'; sROWG = 's85'
vW2 = 'v1'; vONE = 'v14'; vL16 = 'v15'; TF = 16; NF = 20; vR = 'v25'; vTOK = 'v26'; vHF = 'v27'
vBC = 'v28'; vBX = 'v29'; vCSA = 'v30'
accC, accA, accB = 80, 96, 112
def blk(b): return f'v[{b}:{b+15}]'
def q4(b): return f'v[{b}:{b+3}]'
MFMA = 'v_mfma_f32_32x32x16_bf16'
PQ, PH = 3072, 3584

class G:
    def __init__(self, stop_after=None, prof=None, cyc=False):
        self.e = Em()
        self.stop_after = stop_after
        self.prof = prof
        self.cyc = cyc
        self.auto_on = False; self.auto_n = int(OPT.get('auton', 40)); self.auto_idx = 1; self.auto_last = 0

    def stamp(self, name):
        if not self.prof: return
        name = str(name)
        if name not in self.prof: return
        idx = self.prof.index(name)
        e = self.e
        e.raw('s_memtime s[4:5]' if self.cyc else 's_memrealtime s[4:5]')
        e.raw('s_waitcnt lgkmcnt(0)'); e.lg = []
        e.raw(f'v_writelane_b32 v31, s4, {idx}'); e.t += 3
    def snap(self):
        return copy.deepcopy({k: v for k, v in self.e.__dict__.items() if k != 'lines'})
    def restore(self, s):
        uid = self.e.uid; ni = self.e.ninstr; nn = self.e.nnops
        self.e.__dict__.update(copy.deepcopy(s)); self.e.uid = uid; self.e.ninstr = ni; self.e.nnops = nn
    def run(self, ls):
        for l in ls:
            if callable(l): l(); continue
            self.e.I(l)
            if self.auto_on and self.e.ninstr - self.auto_last >= self.auto_n and not l.startswith(('s_add_u32 m0', 's_cmp', 'v_cmp', 's_mov_b64 exec', 'ds_read', 's_and_b64')) and self.auto_idx < 46:
                self.auto_last = self.e.ninstr
                if f'x{self.auto_idx}' not in self.prof: self.prof.append(f'x{self.auto_idx}')
                self.e.comment(f'AUTO {self.auto_idx}')
                self.stamp(f'x{self.auto_idx}')
                self.auto_idx += 1
    def auto(self, name, on):
        for ph in name, {'s1': 'p1', 's2': 'p1'}.get(name, name):
            if OPT.get('drop_' + ph): self.e.drop = OPT['drop_' + ph].replace('+', '|') if on else None
        if OPT.get('auto') == name:
            self.auto_on = on; self.auto_last = self.e.ninstr
            if on: self.auto_idx = 1
    def mk(self, b, lo, size, shift=0):
        if shift:
            self.e(f"""
            s_sub_u32 s{b}, s{lo}, {shift}
            s_subb_u32 s{b+1}, s{lo+1}, 0
            s_and_b32 s{b+1}, s{b+1}, 0xffff
            s_mov_b32 s{b+2}, {size + shift}
            s_mov_b32 s{b+3}, 0x20000
            """)
        else:
            self.e(f"""
            s_mov_b32 s{b}, s{lo}
            s_and_b32 s{b+1}, s{lo+1}, 0xffff
            s_mov_b32 s{b+2}, {size}
            s_mov_b32 s{b+3}, 0x20000
            """)
    def retry(self, check_lines, reload_lines, name):
        e = self.e
        lok = e.newlabel(name + 'OK'); lp = e.newlabel(name + 'LP')
        if OPT.get('nochk') and name != 'ARM': return
        ao = self.auto_on; self.auto_on = False
        self.run(check_lines)
        e(f's_cbranch_scc1 {lok}\ns_mov_b32 {sCNT}, 0')
        e.label(lp)
        st = self.snap()
        e.settle()
        e('s_sleep 2')
        self.run(reload_lines)
        e.raw('s_waitcnt vmcnt(0)'); e.vm = []
        e(f's_add_u32 {sCNT}, {sCNT}, 1')
        if self.prof:
            sites = ['ARM', 'GR', 'GD', 'KV', 'HB', 'HC', 'OC']
            e.raw(f'v_writelane_b32 v31, {sCNT}, {50 + sites.index(name)}')
        e(f's_cmp_gt_u32 {sCNT}, 0x40000\ns_cbranch_scc1 {lok}')
        self.run(check_lines)
        e(f's_cbranch_scc0 {lp}')
        e.settle()
        self.restore(st)
        e.label(lok)
        self.auto_on = ao
    def wave0(self, fn):
        e = self.e
        lab = e.newlabel('W0')
        e.settle()
        e(f's_cmp_lg_u32 {sW}, 0\ns_cbranch_scc1 {lab}')
        st = self.snap()
        fn()
        e.settle()
        self.restore(st)
        e.label(lab)
    def barrier(self, tag=None):
        if tag: self.e.wait_vm_tag(tag)
        self.e.wait_lg0(); self.e('s_barrier')

    def prologue(self):
        e = self.e
        e(f"""
        s_cmp_ge_u32 s2, 256
        s_cbranch_scc1 L_end
        s_load_dwordx16 s[64:79], s[0:1], 0
        s_load_dwordx4 s[80:83], s[0:1], 64
        s_load_dwordx2 s[84:85], s[0:1], 80
        v_lshrrev_b32 v1, 6, v0
        v_and_b32 v0, 63, v0
        v_readfirstlane_b32 {sW}, v1
        s_and_b32 {sT0}, s2, 7
        s_lshr_b32 {sT1}, s2, 3
        s_and_b32 {sRB}, {sT0}, 1
        s_and_b32 {sT2}, {sT1}, 7
        s_lshl3_add_u32 {sRB}, {sRB}, {sT2}
        s_lshr_b32 {sTYPE}, {sT1}, 4
        s_and_b32 {sG}, {sT0}, 6
        s_bfe_u32 {sT4}, {sT1}, 0x10003
        s_add_u32 {sG}, {sG}, {sT4}
        s_lshr_b32 {sNH}, {sW}, 2
        s_lshl1_add_u32 {sTT}, {sNH}, {sW}
        s_and_b32 {sTT}, {sTT}, 3
        s_lshl2_add_u32 {sT}, {sRB}, {sTT}
        s_lshl_b32 {sWB4K}, {sW}, 12
        s_and_b32 {sT2}, {sT0}, 1
        s_lshl_b32 {sT2}, {sT2}, 5
        s_add_u32 {sT2}, {sT2}, {sT1}
        s_and_b32 {sQTR}, {sT2}, 3
        s_lshr_b32 {sT2}, {sT2}, 2
        s_lshr_b32 {sT3}, {sT0}, 1
        s_lshr_b32 {sUID}, {sT2}, 1
        s_and_b32 {sT4}, {sT2}, 1
        s_lshl3_add_u32 {sUID}, {sUID}, {sT4}
        s_lshl1_add_u32 {sUID}, {sT3}, {sUID}
        s_add_u32 {sT4}, {sT3}, 48
        s_cmp_eq_u32 {sT2}, 12
        s_cselect_b32 {sUID}, {sT4}, {sUID}
        s_cmp_gt_u32 {sT2}, 12
        s_cselect_b32 {sUID}, 52, {sUID}
        s_and_b32 {sROW}, {sT0}, 1
        s_lshl2_add_u32 {sROW}, {sROW}, {sT3}
        s_lshl_b32 {sROW}, {sROW}, 5
        s_add_u32 {sROW}, {sROW}, {sT1}
        s_lshl3_add_u32 {sROW}, {sROW}, {sW}
        s_movk_i32 {sPIT}, {PQ}
        s_cmp_ge_u32 {sUID}, 24
        s_cselect_b32 {sPIT}, {PH}, {sPIT}
        s_and_b32 {sT4}, {sT1}, 3
        s_lshl2_add_u32 {sR2}, {sT0}, {sT4}
        s_lshr_b32 {sC64}, {sT1}, 2
        s_and_b32 {sHEAD}, s2, 31
        """)
        e(f"""
        v_lshrrev_b32 v32, 3, v0
        v_and_b32 v33, 7, v0
        v_lshlrev_b32 {vL16}, 4, v0
        v_mov_b32 {vONE}, {ONES}
        s_lshl_b32 {sT5}, {sW}, 4
        s_lshl_b32 {sT4}, {sRB}, 7
        s_add_u32 {sT4}, {sT4}, {sT5}
        v_add_u32 v34, {sT4}, v32
        v_lshrrev_b32 v35, 1, v32
        v_xor_b32 v35, v35, v33
        v_lshlrev_b32 v35, 4, v35
        v_lshl_add_u32 v10, v34, 10, v35
        v_xor_b32 v11, 64, v10
        v_add_u32 v11, {8192 - 1024}, v11
        v_and_b32 v35, 2, v32
        v_lshlrev_b32 v35, 1, v35
        v_xor_b32 v35, v35, v33
        v_lshlrev_b32 v35, 4, v35
        v_add_u32 v34, {sT5}, v32
        v_mad_u32_u24 v20, v34, {sPIT}, v35
        s_lshl_b32 {sT5}, {sW}, 3
        v_add_u32 v36, {sT5}, v32
        v_mul_u32_u24 v37, {PQ}, v36
        v_add_u32 v37, v37, v35
        v_mul_u32_u24 v38, {PH}, v36
        v_add_u32 v38, v38, v35
        v_lshl_add_u32 {vW2}, v36, 10, v35
        s_lshl_b32 {sT4}, {sC64}, 7
        s_add_u32 {sT4}, {sT4}, {SH}
        v_add_u32 {vW2}, {sT4}, {vW2}
        """)
        e.wait_lg0()
        self.mk(S_X, 64, 2048 * 1024)
        self.mk(S_QKV, 66, 512 * PQ, SH)
        self.mk(S_W1, 72, 512 * PH, SH)
        self.mk(S_WS, 84, WS_SIZE)
        self.mk(S_OUT, 80, 2048 * 1024)
        self.mk(S_DBG, 82, 256)
        self.stamp('ka')
        lab = e.newlabel('NORST')
        e(f"""
        s_or_b32 {sT0}, {sG}, {sTYPE}
        s_cmp_lg_u32 {sT0}, 0
        s_cbranch_scc1 {lab}
        s_lshl3_add_u32 {sT0}, {sRB}, {sW}
        s_lshl_b32 {sT0}, {sT0}, 11
        s_add_u32 {sT0}, {sT0}, {WS_Z}
        v_mov_b32 v40, 0
        v_mov_b32 v41, 0
        v_mov_b32 v42, 0
        v_mov_b32 v43, 0
        buffer_store_dwordx4 v[40:43], {vL16}, {srd(S_WS)}, {sT0} offen sc1 #zero
        buffer_store_dwordx4 v[40:43], {vL16}, {srd(S_WS)}, {sT0} offen offset:1024 sc1 #zero
        """)
        e.settle()
        e.label(lab)

    def stats_loads(self):
        self.e(f"""
        s_lshl_b32 {sT0}, {sROW}, 10
        buffer_load_dwordx4 v[240:243], {vL16}, {srd(S_X)}, {sT0} offen
        s_cmp_ge_u32 {sUID}, 24
        s_cselect_b32 s{S_TMP}, s{S_W1}, s{S_QKV}
        s_cselect_b32 s{S_TMP+1}, s{S_W1+1}, s{S_QKV+1}
        s_cselect_b32 s{S_TMP+2}, s{S_W1+2}, s{S_QKV+2}
        s_mov_b32 s{S_TMP+3}, 0x20000
        s_cselect_b32 {sT1}, 24, 0
        s_sub_u32 {sT1}, {sUID}, {sT1}
        s_lshl_b32 {sT1}, {sT1}, 7
        s_lshl_b32 {sT0}, {sQTR}, 7
        s_mul_i32 {sT0}, {sT0}, {sPIT}
        s_add_u32 {sT0}, {sT0}, {sT1}
        s_add_u32 {sT0}, {sT0}, {SH}
        s_lshl3_add_u32 {sT1}, {sPIT}, {sT0}
        s_sub_u32 {sT1}, {sT1}, 1024
        s_lshr_b32 {sT2}, {sWB4K}, 1
        s_add_u32 m0, {sT2}, {L_KST}
        buffer_load_dwordx4 v20, {srd(S_TMP)}, {sT0} offen lds #cs
        buffer_load_dwordx4 v20, {srd(S_TMP)}, {sT1} offen offset:1024 lds #cs
        """)

    def code_prefetch(self):
        e = self.e
        lab = e.newlabel('NOIPF')
        e(f"""
        s_cmp_lg_u32 {sW}, 2
        s_cbranch_scc1 {lab}
        s_getpc_b64 s[4:5]
        """)
        l2 = e.newlabel('PCREF')
        e.label(l2)
        e(f"""
        s_sub_u32 s4, s4, {l2}-{NAME}_kernel
        s_subb_u32 s5, s5, 0
        s_bfe_u32 {sT0}, s2, 0x20003
        s_lshl_b32 {sT0}, {sT0}, 13
        v_lshlrev_b32 v44, 7, v0
        v_add_u32 v44, {sT0}, v44
        v_min_u32 v44, L_end-{NAME}_kernel, v44
        """)
        saved = list(e.vm)
        e(f'global_load_dword v45, v44, s[4:5]')
        e.vm = saved
        e.label(lab)

    def csg_off(self, dst, scol, isq):
        return f"""
        s_lshr_b32 {sT2}, {scol}, 7
        s_add_u32 {sT2}, {sT2}, {0 if isq else 24}
        s_lshr_b32 {sT3}, {sT2}, 2
        s_lshl_b32 {sT3}, {sT3}, 14
        s_and_b32 {sT2}, {sT2}, 3
        s_lshl_b32 {sT2}, {sT2}, 11
        s_add_u32 {sT2}, {sT2}, {sT3}
        s_add_u32 {dst}, {sT2}, {WS_Z + Z_CSG}
        """

    def setup(self, typ):
        e = self.e
        self.mk(S_WO, 68, 512 * 1024, SH)
        self.mk(S_B1, 74, 1792 * 2)
        self.mk(S_W2, 76, 1792 * 1024, SH)
        self.mk(S_B2, 78, 1024)
        e(f"""
        v_and_b32 {vTOK}, 31, v0
        v_lshrrev_b32 {vHF}, 5, v0
        v_bfe_u32 v34, {vTOK}, 1, 3
        v_xor_b32 v34, v34, {vHF}
        v_lshlrev_b32 v34, 4, v34
        v_and_b32 v35, 15, v0
        v_lshl_add_u32 v34, v35, 7, v34
        v_bfe_u32 v35, v0, 4, 1
        v_lshl_add_u32 v34, v35, 12, v34
        s_lshl_b32 {sT4}, {sTT}, 13
        s_lshl_b32 {sT5}, {sNH}, 6
        s_or_b32 {sT4}, {sT4}, {sT5}
        v_xor_b32 v34, {sT4}, v34
        v_bfe_u32 v36, v0, 2, 2
        v_bfe_u32 v33, v0, 1, 1
        v_lshl_add_u32 v32, v35, 1, v33
        v_and_b32 v33, 2, v36
        v_lshlrev_b32 v33, 1, v33
        v_xor_b32 v32, v32, v33
        v_lshlrev_b32 v32, 4, v32
        v_and_b32 v33, 1, v0
        v_lshl_add_u32 v32, v33, 3, v32
        v_lshl_add_u32 v32, v36, 7, v32
        v_lshl_add_u32 v250, {vHF}, 10, v32
        s_lshr_b32 {sT4}, {sWB4K}, 1
        s_add_u32 {sT4}, {sT4}, {L_KST}
        v_add_u32 v250, {sT4}, v250
        v_xor_b32 v251, 64, v250
        v_lshl_add_u32 v35, {vHF}, 12, v32
        s_lshl_b32 {sT4}, {sNH}, 14
        s_or_b32 {sT4}, {sT4}, {sT5}
        v_xor_b32 v35, {sT4}, v35
        """)
        for s in range(4):
            e(f"""
            v_xor_b32 v{2+s}, {s << 5}, v34
            v_xor_b32 v{6+s}, {s << 13}, v35
            v_add_u32 v{80+s}, 0x10000, v{2+s}
            v_add_u32 v{84+s}, 0x10000, v{6+s}
            """)
        e(f"""
        s_mov_b32 {sGB}, {f32(GB)}
        v_mov_b32 v{TF+2}, 0
        v_mov_b32 v{TF+3}, 0
        s_lshl_b32 {sT4}, {sNH}, 10
        v_lshl_add_u32 {vCSA}, {vTOK}, 5, {sT4}
        s_lshl_b32 {sFLB}, {sRB}, 14
        s_lshl_b32 {sT5}, {sG}, 5
        s_add_u32 {sFLB}, {sFLB}, {sT5}
        s_add_u32 {sFLB}, {sFLB}, {WS_Z}
        s_lshr_b32 {sT1}, {sROW}, 7
        s_lshl_b32 {sT1}, {sT1}, 14
        s_and_b32 {sT0}, {sROW}, 127
        s_lshl3_add_u32 {sT0}, {sT0}, {sT1}
        s_add_u32 {sT0}, {sT0}, {WS_Z + Z_ROW}
        v_lshl_add_u32 v252, v0, 26, {sT0}
        s_lshl_b32 {sT0}, {sW}, 2
        s_add_u32 {sT0}, {sT0}, {L_CSP}
        v_lshl_add_u32 v253, v0, 5, {sT0}
        v_lshlrev_b32 v254, 5, v0
        v_add_u32 v254, {L_CSP}, v254
        v_and_b32 v248, 15, v0
        v_lshlrev_b32 v248, 2, v248
        s_lshr_b32 {sT2}, {sUID}, 2
        s_lshl_b32 {sT2}, {sT2}, 14
        s_and_b32 {sT3}, {sUID}, 3
        s_lshl_b32 {sT3}, {sT3}, 11
        s_add_u32 {sT2}, {sT2}, {sT3}
        s_lshl3_add_u32 {sT2}, {sQTR}, {sT2}
        s_add_u32 {sT2}, {sT2}, {WS_Z + Z_CSG}
        s_cmp_ge_u32 {sUID}, 52
        s_cselect_b32 {sT3}, 1, {sW}
        s_lshl_b32 {sT3}, {sT3}, 26
        s_add_u32 {sT2}, {sT2}, {sT3}
        v_lshl_add_u32 v255, v0, 5, {sT2}
        """)
        e(f"""
        s_lshl_b32 {sT4}, {sNH}, 6
        v_lshl_add_u32 v34, {vTOK}, 1, {sT4}
        buffer_load_ushort {vBC}, v34, {srd(S_B1)}, {sCOLC} offen
        s_xor_b32 {sXCH}, {sNH}, {sG}
        s_and_b32 {sXCH}, {sXCH}, 1
        s_lshl_b32 {sXCH}, {sXCH}, 6
        """)
        if typ == 1:
            e(f'v_xor_b32 v34, {sXCH}, v34\nbuffer_load_ushort {vBX}, v34, {srd(S_B1)}, {sCOLD} offen')
        else:
            e(f'buffer_load_ushort {vBX}, v34, {srd(S_B1)}, {sCOLB} offen')
        e(f"""
        s_lshl1_add_u32 {sT2}, {sG}, {sNH}
        s_lshl_b32 {sT2}, {sT2}, 17
        s_lshl_b32 {sT3}, {sT}, 10
        s_add_u32 {sT2}, {sT2}, {sT3}
        s_add_u32 {sSTA}, {sT2}, {WS_K if typ == 1 else WS_Q}
        s_mul_i32 {sT4}, {sT}, {AH_T}
        s_lshl_b32 {sT3}, {sNH}, 11
        s_add_u32 {sT3}, {sT3}, {sT4}
        s_lshl_b32 {sT5}, {sCOLC}, 5
        s_add_u32 {sSTC}, {sT5}, {sT3}
        """)
        if typ == 1:
            e(f"""
            s_add_u32 {sSTB}, {sT2}, {WS_V}
            s_and_b32 {sT3}, {sG}, 1
            s_lshl1_add_u32 {sT3}, {sT3}, {sNH}
            s_lshl_b32 {sT3}, {sT3}, 10
            s_add_u32 {sT3}, {sT3}, {sT4}
            s_lshl_b32 {sT5}, {sCOLD}, 5
            s_add_u32 {sSTD}, {sT5}, {sT3}
            """)
        else:
            e(f"""
            s_lshl_b32 {sT5}, {sCOLB}, 5
            s_add_u32 {sSTB}, {sT5}, {sT3}
            """)
        e(f"""
        s_lshl_b32 {sROWG}, {sRB}, 14
        s_lshl_b32 {sT3}, {sTT}, 8
        s_add_u32 {sROWG}, {sROWG}, {sT3}
        s_add_u32 {sROWG}, {sROWG}, {WS_Z + Z_ROW}
        """)
        e(f"""
        s_add_u32 {sT4}, {sCOLC}, {SH - 3072}
        v_add_u32 v22, {sT4}, v38
        """)
        if typ == 1:
            e(f"""
            v_lshrrev_b32 v32, 2, v0
            v_mul_u32_u24 v23, {PH}, v32
            v_and_b32 v32, 3, v0
            v_lshl_add_u32 v23, v32, 4, v23
            s_and_b32 {sT4}, {sG}, 1
            s_lshl_b32 {sT4}, {sT4}, 6
            s_add_u32 {sT4}, {sT4}, {sCOLD}
            s_add_u32 {sT4}, {sT4}, {SH}
            v_add_u32 v23, {sT4}, v23
            s_lshl_b32 {sDK}, {sW}, 7
            s_add_u32 {sDK}, {sDK}, {sROT if OPT.get('rot', 'none') != 'none' else 0}
            s_and_b32 {sDK}, {sDK}, 1023
            s_mul_i32 {sDK}, {sDK}, {PH // 2}
            """)
        e(self.csg_off(sCOLA, sCOLA, True)); e(self.csg_off(sCOLB, sCOLB, typ == 1)); e(self.csg_off(sCOLC, sCOLC, False))
        if typ == 1: e(self.csg_off(sCOLD, sCOLD, False))
        e(f"""
        s_lshr_b32 {sT2}, {sW}, 1
        s_mov_b32 {sGSRC}, {sCOLA}
        s_cmp_eq_u32 {sT2}, 1
        s_cselect_b32 {sGSRC}, {sCOLB}, {sGSRC}
        s_cmp_eq_u32 {sT2}, 2
        s_cselect_b32 {sGSRC}, {sCOLC}, {sGSRC}
        s_cmp_eq_u32 {sT2}, 3
        s_cselect_b32 {sGSRC}, {sCOLD if typ == 1 else sCOLC}, {sGSRC}
        s_and_b32 {sT2}, {sW}, 1
        s_lshl_b32 {sT2}, {sT2}, 10
        s_add_u32 {sGSRC}, {sGSRC}, {sT2}
        """)
        e(f"""
        s_lshr_b32 {sRA}, s2, 5
        s_lshl_b32 {sTA}, {sRA}, 3
        s_sub_u32 {sKV}, {sTA}, 8
        s_add_u32 {sTA}, {sTA}, {sW}
        s_sub_u32 {sIMIN}, 8, {sTA}
        s_cmp_gt_u32 {sTA}, 8
        s_cselect_b32 {sIMIN}, 0, {sIMIN}
        s_lshl1_add_u32 {sKV}, {sW}, {sKV}
        s_lshl_b32 {sKV}, {sKV}, 10
        s_lshl_b32 {sT1}, {sHEAD}, 16
        s_add_u32 {sKV}, {sKV}, {sT1}
        s_add_u32 {sKV}, {sKV}, {WS_K}
        s_lshl_b32 {sQO}, {sTA}, 10
        s_add_u32 {sQO}, {sQO}, {sT1}
        s_add_u32 {sQO}, {sQO}, {WS_Q}
        s_lshl1_add_u32 {sT2G}, {sR2}, {sNH}
        s_and_b32 {sKQ}, {sW}, 3
        s_mul_i32 {sAH2}, {sT2G}, {AH_T}
        s_lshl_b32 {sT1}, {sKQ}, 12
        s_add_u32 {sAH2}, {sAH2}, {sT1}
        s_mov_b32 {sREDO}, {1 if OPT.get('nofb') else 0}
        s_lshl_b32 {sFLO}, {sRA}, 15
        s_lshl_b32 {sT1}, {sHEAD}, 5
        s_add_u32 {sFLO}, {sFLO}, {sT1}
        s_add_u32 {sFLO}, {sFLO}, {WS_Z + F_O}
        s_mul_i32 {sOST}, {sTA}, {AH_T}
        s_lshl_b32 {sT1}, {sHEAD}, 10
        s_add_u32 {sOST}, {sOST}, {sT1}
        s_add_u32 {sOST}, {sOST}, {112 * 1024}
        s_mov_b32 s40, 0x41065410
        s_mov_b32 s41, 5
        ; rotation seed rc = (c64 + 2*(r64&3)) ; class1 uses rc&1 ; class2 uses rc mod 5
        s_and_b32 {sT1}, {sR2}, 3
        s_or_b32 {sRC}, {sC64}, {int(OPT.get('rcor', 4))}
        s_lshl1_add_u32 {sRC}, {sT1}, {sRC}
        s_mul_i32 {sT1}, {sRC}, 52
        s_lshr_b32 {sT1}, {sT1}, 8
        s_mul_i32 {sT1}, {sT1}, 5
        s_sub_u32 {sT1}, {sRC}, {sT1}
        s_add_u32 {sRC}, {sC64}, {sR2}
        s_and_b32 {sRC}, {sRC}, 1
        s_lshl3_add_u32 {sRC}, {sRC}, {sT1}
        """)

    def fill_stats(self):
        o = lines(f"""
        WAITVM cs
        ds_read_b64_tr_b16 v[232:233], v250
        ds_read_b64_tr_b16 v[234:235], v250 offset:512
        ds_read_b64_tr_b16 v[236:237], v251
        ds_read_b64_tr_b16 v[238:239], v251 offset:512
        v_dot2_f32_bf16 v244, v240, {vONE}, 0
        v_dot2_f32_bf16 v245, v240, v240, 0
        """)
        for j in range(1, 4):
            o += [f'v_dot2_f32_bf16 v244, v{240+j}, {vONE}, v244', f'v_dot2_f32_bf16 v245, v{240+j}, v{240+j}, v245']
        o += [f'v_dot2_f32_bf16 v228, v232, {vONE}, 0', f'v_dot2_f32_bf16 v229, v236, {vONE}, 0']
        for j in range(1, 4):
            o += [f'v_dot2_f32_bf16 v228, v{232+j}, {vONE}, v228', f'v_dot2_f32_bf16 v229, v{236+j}, {vONE}, v229']
        for dpp in ('quad_perm:[1,0,3,2]', 'quad_perm:[2,3,0,1]', 'row_half_mirror', 'row_mirror'):
            o += [f'v_add_f32_dpp v244, v244, v244 {dpp} row_mask:0xf bank_mask:0xf',
                  f'v_add_f32_dpp v245, v245, v245 {dpp} row_mask:0xf bank_mask:0xf']
            if dpp.startswith('quad_perm:[1'):
                o += ['v_permlane32_swap_b32 v228, v229', 'v_add_f32 v228, v228, v229', 'ds_write_b32 v253, v228']
        for sw in ('v_permlane16_swap_b32', 'v_permlane32_swap_b32'):
            o += lines(f"""
            v_mov_b32 v246, v244
            v_mov_b32 v247, v245
            {sw} v244, v246
            {sw} v245, v247
            v_add_f32 v244, v244, v246
            v_add_f32 v245, v245, v247
            """)
        o += lines(f"""
        v_mul_f32 v244, {f32(1/512)}, v244
        v_mul_f32 v245, {f32(1/512)}, v245
        v_fma_f32 v245, -v244, v244, v245
        v_max_f32 v245, 0, v245
        v_cvt_pk_bf16_f32 v246, v245, v245
        v_lshlrev_b32 v246, 16, v246
        v_add_f32 v246, {f32(1e-5)}, v246
        v_cvt_pk_bf16_f32 v246, v246, v246
        v_lshlrev_b32 v246, 16, v246
        v_sqrt_f32 v246, v246
        v_cvt_pk_bf16_f32 v240, -v244, v246
        v_mov_b32 v241, 1
        """)
        return o

    def fill_cs2(self):
        return lines(f"""
        ds_read_b128 v[232:235], v254
        ds_read_b128 v[236:239], v254 offset:16
        v_add_f32 v232, v232, v233
        v_add_f32 v234, v234, v235
        v_add_f32 v236, v236, v237
        v_add_f32 v238, v238, v239
        v_add_f32 v232, v232, v234
        v_add_f32 v236, v236, v238
        v_add_f32 v244, v232, v236
        v_mov_b32 v245, 1
        """)

    def dma1(self, c, typ):
        slot = (c % 4) * SLOT
        if OPT.get('rot', 'none') == 'none':
            kx = [f's_movk_i32 {sKX}, {128 * c}']; kq = [f's_mov_b32 {sKW}, {64 * PQ * c}']; kh = [f's_mov_b32 {sKW}, {64 * PH * c}']
        else:
            kx = [f's_add_u32 {sKX}, {sROT}, {128 * c}', f's_and_b32 {sKX}, {sKX}, 1023']
            kq = [f's_mul_i32 {sKW}, {sKX}, {PQ // 2}']; kh = [f's_mul_i32 {sKW}, {sKX}, {PH // 2}']
        g0 = [f's_add_u32 m0, {sWB4K}, {slot}'] + kx + [f'buffer_load_dwordx4 v10, {srd(S_X)}, {sKX} offen lds #c{c}']
        g1 = [f'buffer_load_dwordx4 v11, {srd(S_X)}, {sKX} offen offset:1024 lds #c{c}']
        g2 = kq + [f'buffer_load_dwordx4 v12, {srd(S_QKV)}, {sKW} offen offset:2048 lds #c{c}']
        if typ == 1:
            g3 = [f'buffer_load_dwordx4 v13, {srd(S_QKV)}, {sKW} offen offset:3072 lds #c{c}']
        else:
            g3 = kh + [f'buffer_load_dwordx4 v13, {srd(S_W1)}, {sKW} offen offset:3072 lds #c{c}']
        return [g0, g1, g2, g3]
    def dma2(self, c, half, vo):
        slot = (c % 4) * SLOT
        out = []
        for i in range(4):
            cc = 4 * half + i
            g = [f's_add_u32 m0, {sWB4K}, {slot}'] if i == 0 else []
            if OPT.get('rot', 'none') == 'none':
                g += [f's_mov_b32 {sKW}, {64 * PH * cc + 1024 * (3 - i)}']
            else:
                g += [f's_add_u32 {sKX}, {sROT}, {128 * cc}', f's_and_b32 {sKX}, {sKX}, 1023', f's_mul_i32 {sKW}, {sKX}, {PH // 2}']
                if i < 3: g += [f's_add_u32 {sKW}, {sKW}, {1024 * (3 - i)}']
            g += [f'buffer_load_dwordx4 {vo}, {srd(S_W1)}, {sKW} offen offset:{1024*i} lds #c{c}']
            out.append(g)
        return out

    def grp_idx(self, gi):
        if gi < 2 or gi >= 7:
            b = 2 if gi < 2 else 7
            k = gi if gi < 2 else gi - 7
            return [f's_bfe_u32 {sT0}, {sRC}, 0x10003', f's_xor_b32 {sT0}, {sT0}, {k}', f's_add_u32 {sT0}, {sT0}, {b}']
        return [f's_and_b32 {sT0}, {sRC}, 7', f's_add_u32 {sT0}, {sT0}, {gi - 2}', f's_lshl_b32 {sT0}, {sT0}, 2',
                f's_lshr_b64 s[{sT0[1:]}:{sT1[1:]}], s[40:41], {sT0}', f's_and_b32 {sT0}, {sT0}, 15']
    def wpos(self, gi):
        return [3, 0, 2, 1, 3, 0, 4, 2, 1][gi]
    def w2_dma(self, gi):
        out = []
        g = self.grp_idx(gi)
        if gi >= 7: g = g[:-1]
        g += [f's_add_u32 m0, {sWB4K}, {self.wpos(gi) * SLOT}', f's_lshl_b32 {sKW2}, {sT0}, 18']
        sr = S_W2 if gi < 7 else S_WO
        for i in range(4):
            if i: g = [f's_add_u32 {sKW2}, {sKW2}, {65536 - 1024}']
            g.append(f'buffer_load_dwordx4 {vW2}, {srd(sr)}, {sKW2} offen offset:{1024*i} lds #w{gi}')
            out.append(g)
        return out
    def hq(self, gi, j):
        tab = {0: [148, 152, 156, 160], 1: [164, 168, 172, 176], 2: [180, 184, 188, 112], 3: [116, 120, 124, 128], 4: [132, 136, 140, 144],
               5: [192, 196, 200, 204], 6: [208, 212, 216, 220], 7: [224, 228, 232, 236], 8: [240, 244, 248, 252]}
        return tab[gi][j]
    def hload(self, gi):
        out = []
        for j in range(4):
            g = []
            if j == 0: g = self.grp_idx(gi) + [f's_lshl_b32 {sKX}, {sT0}, 14', f's_add_u32 {sKX}, {sKX}, {sAH2}']
            g.append(f'buffer_load_dwordx4 {q4(self.hq(gi, j))}, {vL16}, {srd(S_WS)}, {sKX} offen offset:{1024*j} sc1 #h{gi}_{j}')
            out.append(g)
        return out
    def wrd(self, gi, j, b):
        pos = self.wpos(gi)
        a0, a1 = self.WA2[2 * (pos >> 1)], self.WA2[2 * (pos >> 1) + 1]
        off = (pos & 1) * SLOT + 8192 * j
        return [f'ds_read_b64_tr_b16 v[{b}:{b+1}], {a0} offset:{off}',
                f'ds_read_b64_tr_b16 v[{b+2}:{b+3}], {a0} offset:{off + 4096}',
                f'ds_read_b64_tr_b16 v[{b+4}:{b+5}], {a1} offset:{off}',
                f'ds_read_b64_tr_b16 v[{b+6}:{b+7}], {a1} offset:{off + 4096}']

    def cs_load(self, soff, dst):
        return [f'buffer_load_dwordx4 v[{dst}:{dst+3}], {vCSA}, {srd(S_WS)}, {soff} offen sc1',
                f'buffer_load_dwordx4 v[{dst+4}:{dst+7}], {vCSA}, {srd(S_WS)}, {soff} offen offset:16 sc1']
    def nf_build(self, cs, bias):
        return lines(f"""
        v_cvt_pk_bf16_f32 v46, v{cs}, v{cs}
        v_lshlrev_b32 v46, 16, v46
        v_sub_f32 v46, v{cs}, v46
        v_cvt_pk_bf16_f32 v{NF}, v{cs}, v46
        v_and_b32 v47, 0xffff0000, v{NF}
        v_sub_f32 v46, v46, v47
        v_cvt_pk_bf16_f32 v{NF+1}, v46, {bias}
        """)
    def epi_qk(self, acc, rreg, tag):
        o = []
        for h in range(2):
            a = acc + 8 * h
            for i in range(8): o.append(f'v_mul_f32 v{a+i}, {rreg}, v{a+i}')
            for i in range(4): o.append(f'v_cvt_pk_bf16_f32 v{a+i}, v{a+2*i}, v{a+2*i+1}')
            if h: o.append(f's_add_u32 {sSTA}, {sSTA}, 65536')
            o.append(f'buffer_store_dwordx4 {q4(a)}, {vL16}, {srd(S_WS)}, {sSTA} offen sc1 #{tag}')
        return o
    def epi_v_pre(self, tmp):
        o = lines(f"""
        s_lshr_b32 {sT2}, {sWB4K}, 5
        s_add_u32 {sT2}, {sT2}, {L_RV}
        v_lshl_add_u32 v12, {vTOK}, 2, {sT2}
        v_lshl_add_u32 v13, {vHF}, 4, {sT2}
        ds_write_b32 v12, {vR}
        """)
        for q in range(4): o.append(f'ds_read_b128 v[{tmp+4*q}:{tmp+4*q+3}], v13 offset:{32*q}')
        o += lines(f"""
        v_bfe_u32 v12, v0, 4, 1
        v_and_b32 v13, 15, v0
        v_lshl_add_u32 v13, {vHF}, 4, v13
        v_lshlrev_b32 v13, 4, v13
        v_lshl_add_u32 v12, v12, 16, v13
        """)
        return o
    def epi_v(self, acc, tmp, tag):
        o = []
        for h in range(2):
            a = acc + 8 * h
            for i in range(8): o.append(f'v_mul_f32 v{a+i}, v{tmp+8*h+i}, v{a+i}')
            for i in range(4): o.append(f'v_cvt_pk_bf16_f32 v{a+i}, v{a+2*i}, v{a+2*i+1}')
            o.append(f'buffer_store_dwordx4 {q4(a)}, v12, {srd(S_WS)}, {sSTB} offen offset:{512*h} sc1 #{tag}')
        return o
    def epi_h(self, acc, tmp, soff, tag, halves=2):
        o = []
        for half in range(halves):
            a = acc + 8 * half
            for i in range(8): o.append(f'v_mul_f32 v{tmp+i}, v{a+i}, v{a+i}')
            for i in range(8): o.append(f'v_fma_f32 v{tmp+i}, v{tmp+i}, v10, v24')
            for i in range(8): o.append(f'v_mul_f32 v{tmp+i}, v{tmp+i}, v{a+i}')
            for i in range(8): o.append(f'v_exp_f32 v{tmp+i}, v{tmp+i}')
            for i in range(8): o.append(f'v_fma_f32 v{tmp+i}, v{tmp+i}, v2, v2')
            for i in range(8): o.append(f'v_rcp_f32 v{tmp+i}, v{tmp+i}')
            for i in range(8): o.append(f'v_mul_f32 v{a+i}, v{a+i}, v{tmp+i}')
            for i in range(4): o.append(f'v_cvt_pk_bf16_f32 v{a+i}, v{a+2*i}, v{a+2*i+1}')
            o.append(f'buffer_store_dwordx4 {q4(a)}, {vL16}, {srd(S_WS)}, {soff} offen offset:{1024*half} sc1 #{tag}')
        return o
    def flag_wg(self, base_s, off, vaddr=None):
        self.wave0(lambda: self.e(f'buffer_store_dword {self.vF1}, {vaddr or self.vFL}, {srd(S_WS)}, {base_s} offen offset:{off} sc1'))
    def u_rd(self, c0, m, nb):
        c = c0 + (m >> 4); k = m & 15
        base = ((c % 4) * SLOT & 0xffff) + 1024 * (k >> 2); s = k & 3
        b = 48 + 4 * (nb % 4)
        return [f'ds_read_b64_tr_b16 v[{b}:{b+1}], v{6+s} offset:{base}',
                f'ds_read_b64_tr_b16 v[{b+2}:{b+3}], v{6+s} offset:{base + 512}']
    def u_mfma(self, acc, m, nb):
        b = 48 + 4 * (nb % 4); x = 128 + 4 * m
        return f'{MFMA} {blk(acc)}, {q4(b)}, {q4(x)}, {blk(acc)}'
    def fl_addr(self, vT, vtmp):
        return lines(f"""
        v_ashrrev_i32 {vtmp}, 2, {vT}
        v_lshlrev_b32 {vtmp}, 14, {vtmp}
        v_and_b32 {vT}, 3, {vT}
        v_mul_u32_u24 {vT}, {FL_T}, {vT}
        v_add_u32 {vT}, {vT}, {vtmp}
        """)
    def kv_poll_setup(self, va, vt):
        return lines(f"""
        s_lshl_b32 {sT4}, {sRA}, 1
        s_sub_u32 {sT4}, {sT4}, 2
        v_add_u32 {va}, {sT4}, v0
        v_lshlrev_b32 {va}, 14, {va}
        v_add_u32 {vt}, {F_Q - 2 * 16384}, {va}
        v_cmp_gt_u32 vcc, 4, v0
        v_cndmask_b32 {va}, {vt}, {va}, vcc
        s_lshr_b32 {sT5}, {sHEAD}, 2
        s_lshl_b32 {sT5}, {sT5}, 5
        s_add_u32 {sT5}, {sT5}, {WS_Z}
        s_lshl_b32 {sT4}, {sW}, 26
        s_add_u32 {sT5}, {sT5}, {sT4}
        v_add_u32 {va}, {sT5}, {va}
        v_cmp_le_u32 vcc, 6, v0
        v_mov_b32 {vt}, 0x40000000
        v_cndmask_b32 {va}, {va}, {vt}, vcc
        s_cmp_eq_u32 {sRA}, 0
        s_cselect_b32 s68, 60, 63
        s_mov_b32 s69, 0
        """)
    def kv_loads(self):
        return lines(f"""
        s_add_u32 {sT5}, {sKV}, {WS_V - WS_K}
        buffer_load_dwordx4 v[112:115], {vL16}, {srd(S_WS)}, {sKV} offen sc1
        buffer_load_dwordx4 v[116:119], {vL16}, {srd(S_WS)}, {sKV} offen offset:1024 sc1
        buffer_load_dwordx4 v[32:35], {vL16}, {srd(S_WS)}, {sQO} offen sc1
        buffer_load_dwordx4 v[120:123], {vL16}, {srd(S_WS)}, {sT5} offen sc1
        buffer_load_dwordx4 v[124:127], {vL16}, {srd(S_WS)}, {sT5} offen offset:1024 sc1
        """)
    def pl_ld(self, vaddr, vdst, off=0):
        return [f'buffer_load_dword {vdst}, {vaddr}, {srd(S_WS)}, 0 offen offset:{off} sc1 #kvp']
    def pl_chk(self, vdst, mask):
        if mask == '-1': return [f'v_cmp_ne_u32 vcc, 1, {vdst}', 's_cmp_eq_u64 vcc, 0']
        return [f'v_cmp_ne_u32 vcc, 1, {vdst}', f's_andn2_b64 vcc, {mask}, vcc', f's_cmp_eq_u64 vcc, {mask}']

    def p1(self, typ):
        e = self.e
        if typ == 1:
            e(f"""
            s_lshl_b32 {sCOLC}, {sG}, 7
            s_add_u32 {sCOLA}, {sCOLC}, 1024
            s_add_u32 {sCOLB}, {sCOLC}, 2048
            s_lshr_b32 {sCOLD}, {sG}, 1
            s_add_u32 {sCOLD}, {sCOLD}, 24
            s_lshl_b32 {sCOLD}, {sCOLD}, 7
            s_add_u32 {sT4}, {sCOLA}, {SH - 2048}
            v_add_u32 v12, {sT4}, v37
            v_mov_b32 v13, v12
            """)
        else:
            e(f"""
            s_lshl_b32 {sCOLA}, {sG}, 7
            s_add_u32 {sCOLB}, {sCOLA}, 1024
            s_add_u32 {sCOLC}, {sCOLA}, 2048
            s_add_u32 {sT4}, {sCOLA}, {SH - 2048}
            v_add_u32 v12, {sT4}, v37
            v_add_u32 v13, {sT4}, v38
            """)
        def arm():
            lab = e.newlabel('NOARM')
            e(f"""
            s_or_b32 {sT0}, {sG}, {sW}
            s_cmp_lg_u32 {sT0}, 0
            s_cbranch_scc1 {lab}
            s_lshl_b32 {sT0}, {sRB}, 2
            v_lshl_add_u32 v32, v0, 26, {sT0}
            v_mov_b32 v33, 1
            """)
            saved = list(e.vm)
            e(f'buffer_store_dword v33, v32, {srd(S_DBG)}, 0 offen offset:64 sc1')
            e.vm = saved
            e.label(lab)
        def chunk_dmas(c):
            if c < 8: return self.dma1(c, typ)
            if c < 10: return self.dma2(c, c - 8, 'v22')
            if typ == 1 and c == 10:
                out = []
                for i in range(4):
                    g = [f's_add_u32 m0, {sWB4K}, {2 * SLOT}'] if i == 0 else [f's_add_u32 {sDK}, {sDK}, {16 * PH - 1024}']
                    out.append(g + [f'buffer_load_dwordx4 v23, {srd(S_W1)}, {sDK} offen offset:{1024*i} lds #c10'])
                return out
            if typ == 2 and c == 10: return self.w2_dma(2)
            if c == 11: return self.w2_dma(0)
            return []
        SL = int(OPT.get('sl', -1))
        if SL < 0:
            self.stats_loads()
            e(f"""
            s_lshr_b32 {sT0}, s2, 3
            s_lshr_b32 {sT1}, s2, 6
            s_lshl1_add_u32 {sT0}, {sT1}, {sT0}
            s_and_b32 {sT0}, {sT0}, 7
            s_lshl_b32 {sROT}, {sT0}, 7
            """)
        for grp in chunk_dmas(0): self.run(grp)
        self.stamp('i0')
        if int(OPT.get('ipf', 1)): self.code_prefetch()
        cap = []
        origI = e.I
        e.I = lambda l, tag=None: cap.append(l)
        self.setup(typ)
        del e.__dict__['I']
        ia = max(i for i, l in enumerate(cap) if l.startswith('v_lshl_add_u32 v255')) + 1
        partA, partB = cap[18:ia], cap[:18] + cap[ia:]
        def inject(code, groups, gap):
            out = []; cnt = 0; groups = list(groups)
            for l in code:
                out.append(l); cnt += 1
                if groups and cnt >= gap and not l.startswith(('s_cmp', 's_cselect', 's_sub_u32')):
                    out += groups.pop(0); cnt = 0
            for g in groups: out += g
            return out
        def pieces(code, n):
            out = []; k = (len(code) + n - 1) // n; cur = []
            for l in code:
                cur.append(l)
                if len(cur) >= k and not l.startswith(('s_cmp', 's_cselect', 's_sub_u32')):
                    out.append(cur); cur = []
            if cur: out.append(cur)
            return out
        late = int(OPT.get('late', 1))
        lateB = []
        if late:
            self.run(inject(partA, chunk_dmas(1) + chunk_dmas(2), int(OPT.get('gap', 20))))
            e.wait_vm_tag('zero')
            dq = chunk_dmas(3)
            lateB = pieces(partB, 8)
        else:
            self.run(inject(partA + partB, chunk_dmas(1) + chunk_dmas(2) + chunk_dmas(3), int(OPT.get('gap', 30))))
            e.wait_vm_tag('zero')
            e('s_barrier')
            if typ == 1: arm()
            self.run(self.fill_stats())
            dq = []
        self.stamp('st')
        def rd1(n):
            c, s = n >> 2, n & 3
            slot = (c % 4) * SLOT
            hi = slot >> 16; base = slot & 0xffff
            xa = (80 if hi else 2) + s; wa = (84 if hi else 6) + s
            x = 128 + 4 * n; b = 48 + 8 * (n % 4)
            return [f'ds_read_b128 {q4(x)}, v{xa} offset:{base}',
                  f'ds_read_b64_tr_b16 v[{b}:{b+1}], v{wa} offset:{base + 2048}',
                  f'ds_read_b64_tr_b16 v[{b+2}:{b+3}], v{wa} offset:{base + 2048 + 512}',
                  f'ds_read_b64_tr_b16 v[{b+4}:{b+5}], v{wa} offset:{base + 3072}',
                  f'ds_read_b64_tr_b16 v[{b+6}:{b+7}], v{wa} offset:{base + 3072 + 512}']
        if OPT.get('prio'):
            lab = e.newlabel('NOPRIO')
            e(f's_cmp_eq_u32 {sNH}, {1 - int(OPT["prio"]) % 2}\ns_cbranch_scc1 {lab}\ns_setprio 1')
            e.label(lab)
        self.barrier('c0')
        self.stamp(1)
        self.auto('s1', True)
        self.run(rd1(0) + rd1(1))
        armed_chk = [f'v_cmp_ne_u32 vcc, 1, v249', 's_cmp_eq_u64 vcc, 0']
        armed_ld = [f'buffer_load_dword v249, v248, {srd(S_DBG)}, 0 offen offset:64 sc1']
        fills = {}
        if late and SL >= 0:
            if typ == 1: arm()
            for g in dq: self.run(g)
            dq = []
            self.stats_loads()
            fs = self.fill_stats(); hfs = len(fs) // 2
            order = [0, 1, 2, 3, 6, 7, 8, 9]
            for i, p in enumerate(lateB): fills[order[i]] = p
            fills[4] = fs[:hfs]; fills[5] = fs[hfs:]
            fills[6] = self.fill_cs2() + fills[6]
            fills[7] = fills[7] + armed_ld
        elif late:
            if typ == 1: arm()
            fs = self.fill_stats(); hfs = len(fs) // 2
            fills[0] = fs[:hfs]; fills[1] = fs[hfs:]
            fills[2] = self.fill_cs2()
            for i, p in enumerate(lateB): fills[3 + i] = p
            fills[7] = fills[7] + armed_ld
        else:
            fills[1] = self.fill_cs2()
            fills[5] = armed_ld
        AN = int(OPT.get('an', 11 if late else 9))
        fills[AN] = fills.get(AN, []) + [lambda: self.retry(armed_chk, armed_ld, 'ARM'),
                    f'buffer_store_dwordx2 v[240:241], v252, {srd(S_WS)}, 0 offen sc1',
                    f'buffer_store_dwordx2 v[244:245], v255, {srd(S_WS)}, 0 offen sc1']
        def warm():
            lab = e.newlabel('NOWARM')
            e(f"""
            s_cmp_gt_u32 {sW}, 1
            s_cbranch_scc1 {lab}
            s_lshl_b32 {sT2}, {sW}, 8
            s_add_u32 {sT2}, {sT2}, s2
            s_lshl_b32 {sT2}, {sT2}, 13
            s_add_u32 {sT2}, {sT2}, {SH}
            s_sub_u32 {sT3}, {sT2}, {1792 * 1024}
            s_cmp_lt_u32 {sT2}, {1792 * 1024 + SH}
            s_cselect_b32 {sT3}, 0x40000000, {sT3}
            v_lshlrev_b32 v246, 7, v0
            """)
            saved = list(e.vm)
            e(f"""
            buffer_load_dword v247, v246, {srd(S_W2)}, {sT2} offen
            buffer_load_dword v243, v246, {srd(S_WO)}, {sT3} offen
            """)
            e.vm = saved
            e.label(lab)
        WN = int(OPT.get('warm', 13))
        if WN >= 0: fills[WN] = fills.get(WN, []) + [warm]
        rowg = [f'v_lshlrev_b32 v20, 3, {vTOK}', f'buffer_load_dwordx2 v[{TF}:{TF+1}], v20, {srd(S_WS)}, {sROWG} offen sc1']
        ldA = self.cs_load(sCOLA, 32); ldB = self.cs_load(sCOLB, 40); ldC = self.cs_load(sCOLC, 88)
        GL = int(OPT.get('gl', 21))
        def gdma():
            lab = e.newlabel('NOROWG')
            e(f"""
            s_lshr_b32 {sT2}, {sWB4K}, 2
            s_add_u32 m0, {sT2}, {L_GR}
            buffer_load_dwordx4 {vL16}, {srd(S_WS)}, {sGSRC} offen sc1 lds #gr
            s_cmp_lg_u32 {sW}, 0
            s_cbranch_scc1 {lab}
            s_lshl_b32 {sT2}, {sRB}, 14
            s_add_u32 {sT2}, {sT2}, {WS_Z + Z_ROW}
            s_mov_b32 m0, {L_GR + 8192}
            """)
            saved = list(e.vm)
            e(f'buffer_load_dwordx4 {vL16}, {srd(S_WS)}, {sT2} offen sc1 lds')
            e.raw('s_waitcnt vmcnt(63)')
            e.vm = saved
            e.label(lab)
        self.gdma = gdma
        grd = lines(f"""
        s_lshl_b32 {sT2}, {sTT}, 8
        s_add_u32 {sT2}, {sT2}, {L_GR + 8192}
        v_lshl_add_u32 v20, {vTOK}, 3, {sT2}
        v_add_u32 v21, {L_GR}, {vCSA}
        ds_read_b64 v[{TF}:{TF+1}], v20
        ds_read_b128 v[32:35], v21
        ds_read_b128 v[36:39], v21 offset:16
        ds_read_b128 v[40:43], v21 offset:2048
        ds_read_b128 v[44:47], v21 offset:2064
        ds_read_b128 v[88:91], v21 offset:4096
        ds_read_b128 v[92:95], v21 offset:4112
        """)
        fills[26] = grd
        chk = lines(f"""
        v_and_b32 v20, v{TF+1}, v33
        v_and_b32 v21, v35, v37
        v_and_b32 v20, v20, v39
        v_and_b32 v21, v21, v41
        v_and_b32 v20, v20, v43
        v_and_b32 v21, v21, v45
        v_and_b32 v20, v20, v47
        v_and_b32 v21, v21, v89
        v_and_b32 v20, v20, v91
        v_and_b32 v21, v21, v93
        v_and_b32 v20, v20, v95
        v_and_b32 v20, v20, v21
        v_cmp_ne_u32 vcc, 1, v20
        s_cmp_eq_u64 vcc, 0
        """)
        pre = lines(f"""
        v_add_f32 v32, v32, v34
        v_add_f32 v36, v36, v38
        v_add_f32 v40, v40, v42
        v_add_f32 v44, v44, v46
        v_add_f32 v88, v88, v90
        v_add_f32 v92, v92, v94
        v_add_f32 v32, v32, v36
        v_add_f32 v33, v40, v44
        v_add_f32 v34, v88, v92
        v_and_b32 v2, 0xffff0000, v{TF}
        v_rcp_f32 {vR}, v2
        v_cmp_eq_u32 vcc, 0, {vHF}
        v_cndmask_b32 v{TF+1}, 0, v{TF}, vcc
        v_and_b32 v{TF}, 0xffff, v{TF+1}
        v_lshl_or_b32 v{TF}, v{TF}, 16, v{TF}
        v_mov_b32 v11, v23
        v_mov_b32 v{NF+2}, 0
        v_mov_b32 v{NF+3}, 0
        v_lshlrev_b32 {vBC}, 16, {vBC}
        v_lshlrev_b32 {vBX}, 16, {vBX}
        """)
        pre2 = lines(f"""
        v_mul_f32 v10, {vR}, {vR}
        v_mul_f32 v24, {f32(GA)}, {vR}
        v_mul_f32 v10, {sGB}, v10
        v_mul_f32 v10, v10, {vR}
        v_lshlrev_b32 v3, 26, v0
        v_mov_b32 v4, 1
        """)
        self.vFL, self.vF1 = 'v3', 'v4'
        fills[27] = [lambda: self.retry(chk, rowg + ldA + ldB + ldC, 'GR')] + pre
        fills[28] = self.nf_build(32, '0') + [f'{MFMA} {blk(accA)}, {q4(NF)}, {q4(TF)}, {blk(accA)}']
        if typ == 1:
            fills[29] = pre2 + self.nf_build(33, '0') + [f'{MFMA} {blk(accB)}, {q4(TF)}, {q4(NF)}, {blk(accB)}']
        else:
            fills[29] = pre2 + self.nf_build(33, vBX) + [f'{MFMA} {blk(accB)}, {q4(NF)}, {q4(TF)}, {blk(accB)}']
        fills[30] = self.nf_build(34, vBC) + [f'{MFMA} {blk(accC)}, {q4(NF)}, {q4(TF)}, 0']
        if typ == 1: fills[31] = self.epi_v_pre(32)
        else: fills[31] = [f'v_mul_f32 v32, {f32(0.25 * LOG2E)}, {vR}']
        for n in range(32):
            c, s = n >> 2, n & 3
            if s == 2:
                if n == 22:
                    assert not dq
                    gdma()
                if n == 26:
                    idx = max(i for i, o in enumerate(e.vm) if o.get('tag') == 'gr')
                    e._wait(vm=len(e.vm) - 1 - idx)
                self.barrier(f'c{c+1}')
                self.stamp(f'b{c+1}')
                new = chunk_dmas(c + 4)
                if n >= 26: new = [[l.replace('v23,', 'v11,') if n > 27 else l for l in g] for g in new]
                dq += new
            if n + 2 < 32: self.run(rd1(n + 2))
            elif n == 30: self.run(self.u_rd(8, 0, 0) + self.u_rd(8, 1, 1))
            else: self.run(self.u_rd(8, 2, 2))
            x = 128 + 4 * n; b = 48 + 8 * (n % 4)
            ca = '0' if n == 0 else blk(accA)
            cb = '0' if n == 0 else blk(accB)
            def pop():
                g = dq.pop(0)
                if n > 27: g = [l.replace('v23,', 'v11,') for l in g]
                self.run(g)
            self.run([f'{MFMA} {blk(accA)}, {q4(b)}, {q4(x)}, {ca}'])
            if len(dq) > 4: pop()
            if typ == 1: self.run([f'{MFMA} {blk(accB)}, {q4(x)}, {q4(b+4)}, {cb}'])
            else: self.run([f'{MFMA} {blk(accB)}, {q4(b+4)}, {q4(x)}, {cb}'])
            if dq: pop()
            self.run(fills.get(n, []))
        self.auto('s1', False)
        self.stamp(2)
        self.auto('s2', True)
        def ustream(c0, acc, ms, allms):
            o = []
            for m in ms:
                k = allms.index(m)
                if k + 3 < len(allms): o += self.u_rd(c0, allms[k + 3], k + 3)
                o.append(self.u_mfma(acc, m, k))
                if dq: o += dq.pop(0)
            return o
        def is_main(acc):
            return lambda s: isinstance(s, str) and s.startswith('v_mfma') and any(f'{blk(acc)}, v[{d}' in s for d in '456')
        allC = list(range(32))
        epi3 = self.epi_h(accC, 64, sSTC, 'h')
        n3 = len(epi3)
        pollset = self.kv_poll_setup('v42', 'v43')
        self.WA2 = ['v6', 'v7', 'v12', 'v13', 'v22', 'v23']
        wa_a = lines(f"""
        v_bfe_u32 v39, v0, 2, 2
        v_lshl_add_u32 v38, {vHF}, 2, v39
        v_lshlrev_b32 v38, 7, v38
        v_bfe_u32 v36, v0, 4, 1
        v_bfe_u32 v37, v0, 1, 1
        v_lshl_add_u32 v36, v36, 1, v37
        v_and_b32 v37, 2, v39
        v_lshlrev_b32 v37, 1, v37
        v_xor_b32 v36, v36, v37
        v_lshl_add_u32 v38, v36, 4, v38
        v_and_b32 v37, 1, v0
        v_lshl_add_u32 v38, v37, 3, v38
        s_lshl_b32 {sT3}, {sKQ}, 10
        v_add_u32 v38, {sT3}, v38
        """)
        wa_b = lines(f"""
        v_mov_b32 v6, v38
        v_xor_b32 v7, 64, v38
        v_add_u32 v12, 0x10000, v6
        v_add_u32 v13, 0x10000, v7
        v_add_u32 v22, 0x20000, v6
        v_add_u32 v23, 0x20000, v7
        """)
        def weave(valu, extra):
            out = []; extra = list(extra)
            for l in valu:
                out.append(l)
                if extra: out += extra.pop(0)
            for x in extra: out += x
            return out
        trr = []
        k = 0
        for gi in range(2):
            for j in range(4):
                trr += [[x] for x in self.wrd(gi, j, 192 + 8 * k)]; k += 1
        def x1():
            self.wave0(lambda: self.retry(self.pl_chk('v43', sMSK), self.pl_ld('v42', 'v43'), 'KV'))
            self.barrier()
            self.run(self.kv_loads())
            self.stamp(6)
        def spaced(groups, gapn):
            out = []
            for g in groups: out += [g] + [[]] * gapn
            return out
        if typ == 2:
            hh = self.epi_h(accB, 64, sSTB, 'hb')
            epi = self.epi_qk(accA, 'v32', 'kv') + hh[:len(hh) // 3]
            epi2 = hh[len(hh) // 3:] + pollset + wa_a
            self.run(ustream(8, accC, allC[0:1], allC))
            self.run(interleave(ustream(8, accC, allC[1:13], allC), epi, is_main(accC)))
            self.stamp(3)
            self.barrier('kv')
            self.flag_wg(sFLB, F_Q)
            dq += spaced(self.w2_dma(1), 1)
            self.run(interleave(ustream(8, accC, allC[13:32], allC), epi2, is_main(accC)))
            self.run(wa_b)
            self.barrier('hb')
            self.flag_wg(sFLB, F_HB)
            self.stamp(4)
            self.run(weave(epi3[:n3 // 2], self.w2_dma(3) + [self.pl_ld('v42', 'v43')] + trr))
            x1()
            self.run(epi3[n3 // 2:])
        else:
            epi = self.epi_qk(accA, vR, 'kv') + self.epi_v(accB, 32, 'kv')
            ldD = self.cs_load(sCOLD, 32)
            self.run(ustream(8, accC, allC[0:1], allC))
            self.run(interleave(ustream(8, accC, allC[1:8], allC), epi, is_main(accC)))
            self.run([f's_lshl_b32 {sT4}, {sXCH}, 4', f'v_xor_b32 {vCSA}, {sT4}, {vCSA}', f'v_add_u32 v21, {L_GR}, {vCSA}',
                      'ds_read_b128 v[32:35], v21 offset:6144', 'ds_read_b128 v[36:39], v21 offset:6160'])
            self.run(interleave(ustream(8, accC, allC[8:13], allC), pollset, is_main(accC)))
            self.stamp(3)
            self.barrier('c10')
            chkD = lines(f"""
            v_and_b32 v20, v33, v35
            v_and_b32 v20, v20, v37
            v_and_b32 v20, v20, v39
            v_cmp_ne_u32 vcc, 1, v20
            s_cmp_eq_u64 vcc, 0
            """)
            self.retry(chkD, ldD, 'GD')
            nfd = ['v_add_f32 v32, v32, v34', 'v_add_f32 v36, v36, v38', 'v_add_f32 v32, v32, v36'] + self.nf_build(32, vBX) + lines(f"""
            s_sub_u32 {sT4}, {sNH}, 1
            v_and_b32 v{NF}, {sT4}, v{NF}
            v_and_b32 v{NF+1}, {sT4}, v{NF+1}
            {MFMA} {blk(accA)}, {q4(NF)}, {q4(TF)}, 0
            s_lshl1_add_u32 {sT4}, {sTT}, {sNH}
            s_lshl_b32 {sT4}, {sT4}, 12
            s_add_u32 {sT4}, {sT4}, {L_KST}
            v_add_u32 v40, {sT4}, {vL16}
            s_lshl_b32 {sT5}, {sNH}, 11
            s_sub_u32 {sT4}, {sT4}, {sT5}
            v_add_u32 v41, {sT4}, {vL16}
            v_bfe_u32 v44, v0, 2, 2
            v_lshl_add_u32 v44, {vHF}, 3, v44
            v_lshlrev_b32 v44, 6, v44
            v_bfe_u32 v45, v0, 4, 1
            v_lshl_add_u32 v44, v45, 5, v44
            v_and_b32 v45, 3, v0
            v_lshl_add_u32 v44, v45, 3, v44
            s_add_u32 {sT5}, {sT5}, {2 * SLOT}
            v_add_u32 v44, {sT5}, v44
            """) + wa_a
            self.run(interleave(ustream(8, accC, allC[13:21], allC), nfd, is_main(accC)))
            self.barrier('kv')
            self.flag_wg(sFLB, F_KV)
            dq += spaced(self.w2_dma(1), 1)
            self.run(ustream(8, accC, allC[21:29], allC))
            self.barrier()
            self.stamp(4)
            allD = [m for m in range(32) if (m & 3) < 2]
            def d_rd(m, nb):
                b = 48 + 4 * (nb % 4); off = 4096 * (m >> 2) + 1024 * (m & 1)
                return [f'ds_read_b64_tr_b16 v[{b}:{b+1}], v44 offset:{off}', f'ds_read_b64_tr_b16 v[{b+2}:{b+3}], v44 offset:{off + 256}']
            W3 = self.w2_dma(3)
            self.run(d_rd(allD[0], 0) + [self.u_mfma(accC, 29, 1)] + d_rd(allD[1], 1) + W3[0] + [self.u_mfma(accC, 30, 2)]
                     + d_rd(allD[2], 2) + W3[1] + [self.u_mfma(accC, 31, 3)] + wa_b)
            ds = []
            for k, m in enumerate(allD):
                if k + 3 < 16: ds += d_rd(allD[k + 3], k + 3)
                ds.append(self.u_mfma(accA, m, k))
                if k in (1, 4): ds += W3[2 + (k == 4)]
                if k == 8: ds += self.pl_ld('v42', 'v43')
            self.run(interleave(ds, epi3[:n3 // 2], is_main(accA)))
            xw = [f'ds_write_b128 v40, {q4(accA + 4*q)} offset:{1024*q}' for q in range(4)]
            self.run(epi3[n3 // 2:n3 * 5 // 8] + xw)
            self.barrier('w1')
            self.run(lines(f"""
            ds_read_b128 {q4(accA)}, v41
            ds_read_b128 {q4(accA+4)}, v41 offset:1024
            ds_read_b128 {q4(accA+8)}, v41 offset:4096
            ds_read_b128 {q4(accA+12)}, v41 offset:5120
            """))
            self.run(weave(epi3[n3 * 5 // 8:], self.w2_dma(2) + trr))
            x1()
            self.run([f'v_add_f32 v{accA+i}, v{accA+i}, v{accA+8+i}' for i in range(8)] + self.epi_h(accA, 64, sSTD, 'h', halves=1))
        tl = e.vm[-6:]
        assert [bool(o['dst']) for o in tl] == [True] * 5 + [False] and tl[-1]['tag'] == 'h', tl
        e.vm = tl
        assert not any(dq), dq
        e.wait_lg0(force=True)
        e.settle()
        e(f's_add_u32 {sFLB}, {sFLB}, {F_HC + (256 if typ == 2 else 0)}')
        self.auto('s2', False)
        self.stamp(5)

    def att(self):
        e = self.e
        KB = [36, 40]; VB = [44, 52]; P = 60; SB = [68, 84]; NM = 100; MK = 116; O = 132
        Q = 'v[32:35]'
        self.auto('att', True)
        self.vFL, self.vF1 = 'v24', 'v25'
        W = {gi: self.w2_dma(gi) for gi in range(4, 6)}
        H = {gi: self.hload(gi) for gi in range(9)}
        self.run(['v_mov_b32 v24, v3', 'v_mov_b32 v25, 1'])
        self.run(lines(f"""
        v_lshlrev_b32 v20, 2, {vHF}
        v_sub_u32 v20, {vTOK}, v20
        v_mov_b32 v21, {NEGBIG}
        s_lshr_b32 {sT2}, {sWB4K}, 2
        s_add_u32 {sT2}, {sT2}, {L_KST}
        v_add_u32 v2, {sT2}, {vL16}
        s_lshr_b32 {sT3}, {sWB4K}, 2
        v_add_u32 v41, {sT3}, v2
        v_and_b32 v3, 15, v0
        v_lshl_add_u32 v3, {vHF}, 4, v3
        v_lshlrev_b32 v3, 4, v3
        v_add_u32 v3, {sT2}, v3
        v_mov_b32 v17, 0
        """))
        pairs = ['vcc', 's[86:87]', 's[88:89]']
        ml = []
        for r in range(16):
            c = 8 * (r >> 2) + (r & 3)
            ml.append(f'v_cmp_le_i32 {pairs[r % 3]}, {c}, v20')
            if r >= 2: ml.append(f'v_cndmask_b32 v{SB[0]+r-2}, v21, 0, {pairs[(r - 2) % 3]}')
        for r in (14, 15): ml.append(f'v_cndmask_b32 v{SB[0]+r}, v21, 0, {pairs[r % 3]}')
        self.run(ml)
        self.run([f'v_mov_b32 v{r}, {vONE}' for r in list(range(8, 12)) + list(range(44, 60))])
        self.run(lines(f"""
        s_lshr_b32 {sT3}, {sR2}, 1
        s_lshl_b32 {sT3}, {sT3}, 14
        s_lshl_b32 {sT2}, {sW}, 26
        s_add_u32 {sT2}, {sT2}, {WS_Z}
        s_add_u32 {sT2}, {sT2}, {sT3}
        v_lshl_add_u32 v28, {vTOK}, 5, {sT2}
        v_lshl_add_u32 v28, {vHF}, 29, v28
        s_mov_b32 s90, 0xffff
        s_mov_b32 s91, 0xffff
        v_mov_b32 v29, {L_KST}
        v_lshrrev_b32 v5, 1, v0
        v_lshlrev_b32 v5, 26, v5
        v_lshl_add_u32 v5, v0, 14, v5
        s_mov_b32 s68, 0xff
        """) + self.pl_ld('v28', 'v30', F_HB))
        self.run(lines(f"""
        ds_write_b128 v41, v[112:115]
        ds_write_b128 v41, v[116:119] offset:1024
        ds_write_b128 v41, v[120:123] offset:16384
        ds_write_b128 v41, v[124:127] offset:17408
        """))
        self.run([f'v_sub_f32 v{MK+r}, v21, v{SB[0]+r}' for r in range(16)])
        def hb():
            e(f'ds_write_b32 v29, v17')
            self.retry(self.pl_chk('v30', sMSK), self.pl_ld('v28', 'v30', F_HB), 'HB')
            e.wait_lg0()
        self.wave0(hb)
        self.barrier('h')
        self.flag_wg(sFLB, 0)
        self.stamp(7)
        def kread(i, b): self.run([f'ds_read_b128 {q4(b)}, v2 offset:{1024*i}'])
        def vread(i, b):
            e(f"""
            s_mov_b64 exec, {sEX}
            ds_read_b128 {q4(b)}, v3 offset:{16384 + 1024*i}
            ds_read_b128 {q4(b+4)}, v3 offset:{16384 + 1024*i+512}
            s_mov_b64 exec, -1
            """)
        def hc0():
            def f():
                e('s_mov_b32 s68, 0xffff')
                self.retry(self.pl_chk('v30', sMSK), self.pl_ld('v28', 'v30', F_HC), 'HC')
                e(f'ds_write_b32 v29, v25')
            self.wave0(f)
        def hcw():
            lp = e.newlabel('HCW'); lo = e.newlabel('HCD')
            e.settle()
            e(f's_mov_b32 {sCNT}, 0')
            e.label(lp)
            e.raw(f'ds_read_b32 v21, v29')
            e.raw(f's_add_u32 {sCNT}, {sCNT}, 1')
            e.raw('s_waitcnt lgkmcnt(0)'); e.lg = []
            e.raw(f'v_readfirstlane_b32 {sT2}, v21')
            e.raw(f's_cmp_gt_u32 {sCNT}, 0x1000000')
            e.raw(f's_cbranch_scc1 {lo}')
            e.raw(f's_cmp_eq_u32 {sT2}, 0')
            e.raw(f's_cbranch_scc1 {lp}')
            e.label(lo)
            e.t += 6
        hcp = int(OPT.get('hcp', 7))
        acts = [
            [H[0][0] + H[0][1], H[0][2] + H[0][3], W[4][0]],
            [W[4][1], W[4][2], W[4][3]],
            [H[1][0] + H[1][1], H[1][2] + H[1][3]],
            [W[5][0], W[5][1]],
            [W[5][2], W[5][3]],
            [], [], [], [],
        ]
        acts[hcp - 2].append(self.pl_ld('v28', 'v30', F_HC))
        acts[hcp].append([hc0])
        if hcp + 1 <= 8:
            acts[hcp + 1] += [[hcw], H[2][0], H[2][1], H[2][2]]
            self.Hrest = [H[2][3]] + H[3] + H[4]
        else:
            self.Hrest = [[hcw]] + H[2] + H[3] + H[4]
        self.H = H
        kread(8, KB[0]); kread(7, KB[1])
        e(f'{MFMA} {blk(SB[0])}, {q4(KB[0])}, {Q}, {blk(SB[0])}')
        vread(8, VB[0])
        e(f'v_max3_f32 v20, v{SB[0]}, v{SB[0]+1}, v{SB[0]+2}')
        e(f'v_max3_f32 v21, v{SB[0]+3}, v{SB[0]+4}, v{SB[0]+5}')
        for j in range(3, 8):
            e(f'v_max3_f32 v{20 + (j & 1)}, v{SB[0]+2*j}, v{SB[0]+2*j+1}, v{20 + (j & 1)}')
        lp2 = e.newlabel('PASS2')
        e.label(lp2)
        e(f"""
        v_max_f32 v20, v20, v21
        v_mov_b32 v21, v20
        v_permlane32_swap_b32 v20, v21
        v_max_f32 v20, v20, v21
        v_cvt_pk_bf16_f32 v21, v20, v20
        v_lshlrev_b32 v21, 16, v21
        v_sub_f32 v21, v21, v20
        v_cvt_pk_bf16_f32 v16, -v20, v21
        v_cmp_eq_u32 vcc, 0, {vHF}
        v_cndmask_b32 v16, 0, v16, vcc
        {MFMA} {blk(SB[0])}, v[8:11], v[16:19], {blk(SB[0])}
        {MFMA} {blk(NM)}, v[8:11], v[16:19], 0
        """)
        tails = {i: e.newlabel(f'TAIL{i}') for i in range(1, 9)}
        lend2 = e.newlabel('P2END')
        for n, i in enumerate(range(8, -1, -1)):
            cur = SB[n % 2]; nx = SB[(n + 1) % 2]; V = VB[n % 2]
            A = list(acts[n])
            if i > 0:
                if i - 1 == 0:
                    e(f'{MFMA} {blk(nx)}, v[8:11], v[16:19], {blk(MK)}')
                    e(f'{MFMA} {blk(nx)}, {q4(KB[(n + 1) % 2])}, {Q}, {blk(nx)}')
                else:
                    e(f'{MFMA} {blk(nx)}, {q4(KB[(n + 1) % 2])}, {Q}, {blk(NM)}')
                if i > 1: kread(i - 2, KB[n % 2])
                vread(i - 1, VB[(n + 1) % 2])
            for kb in range(2):
                for j in range(8):
                    e(f'v_exp_f32 v{cur+8*kb+j}, v{cur+8*kb+j}')
                    if j == 3 and A: self.run(A.pop(0))
                for j in range(4): e(f'v_cvt_pk_bf16_f32 v{P+4*kb+j}, v{cur+8*kb+2*j}, v{cur+8*kb+2*j+1}')
                if kb == 0 and A: self.run(A.pop(0))
                c = '0' if (n == 0 and kb == 0) else blk(O)
                e(f'{MFMA} {blk(O)}, {q4(V+4*kb)}, {q4(P+4*kb)}, {c}')
            for a in A: self.run(a)
            self.stamp(f't{n}')
            if i > 0:
                e(f's_cmp_eq_u32 {sIMIN}, {i}\ns_cbranch_scc1 {tails[i]}')
                if i == 8: exit_st = self.snap()
        e(f's_branch {lend2}')
        self.auto('att', False)
        st = self.snap()
        self.restore(exit_st)
        for i in range(8, 0, -1):
            e.label(tails[i])
            e.settle()
            for a in acts[8 - i + 1]: self.run(a)
        self.restore(st)
        e.label(lend2)
        e.wait_lg0(force=True)
        e.nop(12)
        lok = e.newlabel('SMOK')
        e(f"""
        v_mov_b32 v21, {f32(2.0**30)}
        v_cmp_nle_f32 vcc, v{O+8}, v21
        s_cmp_eq_u64 vcc, 0
        s_cbranch_scc1 {lok}
        s_cmp_lg_u32 {sREDO}, 0
        s_cbranch_scc1 {lok}
        s_mov_b32 {sREDO}, 1
        """)
        st = self.snap()
        e.raw('s_waitcnt vmcnt(0) lgkmcnt(0)'); e.vm = []; e.lg = []
        e(f'v_mov_b32 v20, {NEGBIG}\nv_mov_b32 v21, {NEGBIG}\nv_mov_b32 v30, {NEGBIG}')
        for i in range(0, 9):
            lsk = e.newlabel('RSK')
            if i < 8: e(f's_cmp_gt_u32 {sIMIN}, {i}\ns_cbranch_scc1 {lsk}')
            kread(i, KB[0])
            if i == 8:
                for r in range(16): e(f'v_sub_f32 v{SB[0]+r}, v30, v{MK+r}')
            c = blk(MK) if i == 0 else (blk(SB[0]) if i == 8 else '0')
            e(f'{MFMA} {blk(SB[0])}, {q4(KB[0])}, {Q}, {c}')
            for j in range(8):
                e(f'v_max3_f32 v{20 + (j & 1)}, v{SB[0]+2*j}, v{SB[0]+2*j+1}, v{20 + (j & 1)}')
            e.settle()
            e.label(lsk)
        kread(7, KB[1]); vread(8, VB[0])
        e('v_mov_b32 v30, 1')
        e.raw('s_waitcnt lgkmcnt(0)'); e.lg = []
        e.settle()
        e(f's_branch {lp2}')
        self.restore(st)
        e.label(lok)
        e(f'v_rcp_f32 v20, v{O+8}')
        for j in range(8): e(f'v_mul_f32 v{O+j}, v20, v{O+j}')
        for j in range(4): e(f'v_cvt_pk_bf16_f32 v{P+j}, v{O+2*j}, v{O+2*j+1}')
        e(f'buffer_store_dwordx4 {q4(P)}, {vL16}, {srd(S_WS)}, {sOST} offen sc1 #o')
        self.stamp(8)

    def g2(self):
        e = self.e
        ACC = [80, 96]
        H = self.H
        self.auto('g2', True)
        first = [True]
        def mm(gi, j, b):
            hb = self.hq(gi, j)
            assert OPT.get('drop_g2') or OPT.get('drop_att') or any(f'buffer_load_dwordx4 {q4(hb)}, {vL16}, {srd(S_WS)}, {sKX} offen' in l for l in e.lines), (gi, j)
            c = ['0' if first[0] else blk(ACC[nt]) for nt in range(2)]; first[0] = False
            return [f'{MFMA} {blk(ACC[nt])}, {q4(b+4*nt)}, {q4(hb)}, {c[nt]}' for nt in range(2)]
        vq = list(self.Hrest)
        k = 0
        for gi in range(2):
            for j in range(4):
                for l in mm(gi, j, 192 + 8 * k):
                    self.run([l])
                    if vq: self.run(vq.pop(0))
                k += 1
        self.run(lines(f"""
        v_lshrrev_b32 v35, 3, v0
        v_and_b32 v36, 7, v0
        s_lshl3_add_u32 {sT3}, {sR2}, {sW}
        s_lshl_b32 {sT3}, {sT3}, 3
        v_add_u32 v37, {sT3}, v35
        s_lshl_b32 {sT4}, {sC64}, 7
        v_lshl_add_u32 v38, v36, 4, {sT4}
        v_lshl_add_u32 v8, v37, 10, v38
        """))
        e.wait_vm_tag('o')
        e.wait_lg0(force=True)
        e('s_barrier')
        self.flag_wg(sFLO, 0, 'v5')
        self.stamp(9)
        WB = [48, 56, 64, 72]
        steps = [(gi, j) for gi in range(2, 9) for j in range(4)]
        self.run(self.wrd(2, 0, WB[0]) + self.wrd(2, 1, WB[1]))
        W6 = self.w2_dma(6)
        vq += [W6[0], W6[1], W6[2], W6[3]] + H[5] + H[6]
        OPL = int(OPT.get('opl', 10))
        bar = {3: (None, 7), 7: (None, 8), 14: ('w6', None), 18: ('w8', None)}
        for k, (gi, j) in enumerate(steps):
            if k in bar:
                tag, rel = bar[k]
                while tag and vq and any(isinstance(l, str) and f'#{tag}' in l for x in vq for l in x): self.run(vq.pop(0))
                if k == 14:
                    while vq: self.run(vq.pop(0))
                    self.wave0(lambda: (e('s_mov_b32 s68, -1'), self.retry(self.pl_chk('v30', sMSK), self.pl_ld('v28', 'v30', F_O), 'OC')))
                self.barrier(tag)
                self.stamp(f'g{k}')
                if rel: vq += self.w2_dma(rel)
                if k == 14: vq = H[7] + H[8]
            if k == OPL: self.run(self.pl_ld('v28', 'v30', F_O))
            if k == 19:
                vq.append([f'buffer_load_dwordx4 v[40:43], v8, {srd(S_X)}, 0 offen', f'buffer_load_dwordx4 v[44:47], v38, {srd(S_B2)}, 0 offen'])
            if k + 2 < len(steps): self.run(self.wrd(*steps[k + 2], WB[(k + 2) % 4]))
            need = [f'#h{a}_{b}' for (a, b) in steps[k:k + 3]]
            while vq and any(isinstance(l, str) and nd in l for x in vq for l in x for nd in need): self.run(vq.pop(0))
            for l in mm(gi, j, WB[k % 4]):
                self.run([l])
                if vq: self.run(vq.pop(0))
        assert not vq, vq
        self.stamp(11)
        PS = 1056
        self.run(lines(f"""
        s_lshl1_add_u32 {sT4}, {sKQ}, {sNH}
        s_lshl_b32 {sT4}, {sT4}, 13
        s_lshr_b32 {sT3}, {sKQ}, 1
        s_lshl_b32 {sT3}, {sT3}, 16
        s_add_u32 {sT4}, {sT4}, {sT3}
        v_add_u32 v9, {sT4}, {vL16}
        """))
        for nt in range(2):
            for q in range(4):
                pl = nt * 4 + q
                self.run([f'v_xor_b32 v10, {pl << 5}, v9', f'ds_write_b128 v10, v[{ACC[nt]+4*q}:{ACC[nt]+4*q+3}] offset:{pl * 1024}'])
        self.run(lines(f"""
        s_lshl_b32 {sT4}, {sKQ}, 7
        s_lshl_b32 {sT3}, {sNH}, 13
        s_add_u32 {sT4}, {sT4}, {sT3}
        v_lshl_add_u32 v9, v35, 4, {sT4}
        v_lshlrev_b32 v10, 5, v36
        v_xor_b32 v9, v9, v10
        v_lshl_add_u32 v9, v36, 10, v9
        v_add_u32 v10, 0x10000, v9
        """))
        for j in range(4):
            self.run(lines(f"""
            v_lshlrev_b32 v{112+2*j}, 16, v{40+j}
            v_and_b32 v{113+2*j}, 0xffff0000, v{40+j}
            v_lshlrev_b32 v{120+2*j}, 16, v{44+j}
            v_and_b32 v{121+2*j}, 0xffff0000, v{44+j}
            """))
        self.run([f'v_add_f32 v{112+j}, v{112+j}, v{120+j}' for j in range(8)])
        self.barrier()
        for kq in range(4):
            for hf in range(2):
                b = 48 + 8 * kq + 4 * hf
                self.run([f'ds_read_b128 v[{b}:{b+3}], v{9 + (kq >> 1)} offset:{kq * 16384 + hf * 512}'])
        for j in range(8): self.run([f'v_add_f32 v{112+j}, v{112+j}, v{48+j}'])
        for j in range(8): self.run([f'v_add_f32 v{56+j}, v{56+j}, v{64+j}'])
        for j in range(8): self.run([f'v_add_f32 v{112+j}, v{112+j}, v{72+j}'])
        for j in range(8): self.run([f'v_add_f32 v{112+j}, v{112+j}, v{56+j}'])
        for j in range(4): self.run([f'v_cvt_pk_bf16_f32 v{48+j}, v{112+2*j}, v{112+2*j+1}'])
        e(f'buffer_store_dwordx4 v[48:51], v8, {srd(S_OUT)}, 0 offen')
        self.auto('g2', False)
        self.stamp(12)

    def prof_out(self):
        e = self.e
        e(f"""
        s_lshl3_add_u32 {sT0}, s2, {sW}
        s_lshl_b32 {sT0}, {sT0}, 8
        s_add_u32 {sT0}, {sT0}, {WS_PROF}
        v_lshlrev_b32 v2, 2, v0
        buffer_store_dword v31, v2, {srd(S_WS)}, {sT0} offen
        """)

    def build(self):
        e = self.e
        if OPT.get('diag'):
            e.raw('s_memrealtime s[6:7]')
            e.raw('s_waitcnt lgkmcnt(0)')
        if self.prof:
            e.raw('s_memrealtime s[6:7]')
            e.raw('s_memtime s[4:5]')
            e.raw('s_waitcnt lgkmcnt(0)')
            e.raw('s_mov_b32 s7, s4')
            e.raw('v_mov_b32 v31, 0')
        self.prologue()
        e(f"""
        s_cmp_eq_u32 {sTYPE}, 1
        s_cbranch_scc1 L_type2
        """)
        st = self.snap()
        self.p1(1)
        e('s_branch L_att')
        self.restore(st)
        e.label('L_type2')
        self.p1(2)
        e.label('L_att')
        if self.stop_after != 'p1':
            self.att()
            if self.stop_after != 'att':
                self.g2()
        if self.prof:
            e.raw('v_writelane_b32 v31, s6, 63')
            e.raw('v_writelane_b32 v31, s7, 60')
            e.raw('s_memtime s[4:5]')
            e.raw('s_memrealtime s[64:65]')
            e.raw('s_waitcnt lgkmcnt(0)')
            e.raw('s_sub_u32 s4, s4, s7')
            e.raw('v_writelane_b32 v31, s4, 62')
            e.raw('v_writelane_b32 v31, s64, 61')
            self.prof_out()
        if OPT.get('diag'):
            e.raw('s_memrealtime s[4:5]')
            e.raw('s_waitcnt lgkmcnt(0)')
            e.raw('s_sub_u32 s7, s4, s6')
            e.raw(f's_mul_i32 s7, s7, {int(OPT["diag"])}')
            e.raw('s_min_u32 s7, s7, 100000')
            e.label('L_diag')
            e.raw('s_memrealtime s[64:65]')
            e.raw('s_waitcnt lgkmcnt(0)')
            e.raw('s_sub_u32 s64, s64, s4')
            e.raw('s_cmp_lt_u32 s64, s7')
            e.raw('s_cbranch_scc1 L_diag')
        e.label('L_end')
        e.raw('s_endpgm')
        hdr = open('cdna_kernels/' + NAME + '.s.ref').read().split('\n')
        cm = [l for l in hdr if l.startswith(';') and '@launch' not in l]
        out = '\n'.join(cm) + f'\n; @launch grid=(256,1,1) block=(512,1,1) lds={LDS_BYTES}\n'
        out += f""".amdgcn_target "amdgcn-amd-amdhsa--gfx950"
.text
.globl {NAME}_kernel
.p2align 8
.type {NAME}_kernel,@function
{NAME}_kernel:
"""
        out += e.text()
        out += f""".section .rodata,"a"
.p2align 6
.amdhsa_kernel {NAME}_kernel
  .amdhsa_next_free_vgpr 256
  .amdhsa_next_free_sgpr 102
  .amdhsa_accum_offset 256
  .amdhsa_group_segment_fixed_size 0
  .amdhsa_kernarg_size 88
  .amdhsa_user_sgpr_count 2
  .amdhsa_user_sgpr_kernarg_segment_ptr 1
  .amdhsa_system_sgpr_workgroup_id_x 1
.end_amdhsa_kernel
"""
        return out

if __name__ == '__main__':
    import argparse
    ap = argparse.ArgumentParser()
    ap.add_argument('-o', default='k.s')
    ap.add_argument('--stop', default=None)
    ap.add_argument('--prof', default=None)
    ap.add_argument('--cyc', action='store_true')
    ap.add_argument('--opt', default='')
    a = ap.parse_args()
    for kv in a.opt.split(','):
        if kv: OPT[kv.split('=')[0]] = kv.split('=')[1]
    g = G(stop_after=a.stop, prof=a.prof.split(',') if a.prof else None, cyc=a.cyc)
    txt = g.build()
    open(a.o, 'w').write(txt)
    if g.prof: open(a.o + '.names', 'w').write(','.join(g.prof))
    print('instrs', g.e.ninstr, 'nops', g.e.nnops)
```

```python
import sys, math, struct, copy
from em import Em, lines, interleave

NAME = "parallel_sum__sliding_block__dense_activation_gelu__prompt"
OPT = {}
WS_AH = 0
AH_T = 144 * 1024
WS_K = 0x900000
WS_V = 0xB00000
WS_Q = 0xD00000
WS_Z = 0xF00000
FL_T = 1792
F_1, F_2, F_3, F_O = 0, 512, 1024, 1536
Z_ROW = 7168
Z_CSG = 8192
WS_PROF = 0x1000000
WS_SIZE = 0x1100000
SH = 4096
SLOT = 32768
L_KST = 131072
L_VST = 147456
L_CSP = 147456
L_RV = 149504
L_GR = 131072
L_OK = 163824
LDS_BYTES = 163840

def f32(x): return struct.unpack('<I', struct.pack('<f', x))[0]
LOG2E = 1.4426950408889634
GA = -2.0 * math.sqrt(2.0 / math.pi) * LOG2E
GB = GA * 0.044715
NEGBIG = f32(-1e30)
ONES = 0x3f803f80

S_X, S_QKV, S_W1, S_W2, S_WO, S_WS, S_OUT, S_DBG, S_B1, S_B2 = [8 + 4 * i for i in range(10)]
S_TMP = 80
def srd(b): return f's[{b}:{b+3}]'
_names = """sW sNH sTT sRB sG sT sTYPE sWB4K sCOLA sCOLB sCOLC sCOLD sT0 sT1 sKX sKW""".split()
for _i, _n in enumerate(_names): globals()[_n] = f's{48+_i}'
sT2, sT3, sT4, sT5 = 's86', 's87', 's88', 's89'
sEX = 's[90:91]'; sROW = 's90'
sFLB = 's92'; sGB = 's93'; sCNT = 's94'; sR2 = 's95'; sC64 = 's96'; sXCH = 's97'; sQTR = 's98'; sHEAD = 's99'; sKW2 = 's100'; sUID = 's101'
sPIT = 's3'; sROT = 's3'; sGSRC = 's98'; sDK = 's78'
sTA = 's64'; sRA = 's65'; sKV = 's66'; sQO = 's67'; sMSK = 's[68:69]'; sT2G = 's70'; sAH2 = 's71'; sREDO = 's72'
sRC = 's73'; sOST = 's74'; sIMIN = 's75'; sKQ = 's76'; sFLO = 's77'; sFLIP = 's78'; sWLO = 's79'
sSTA = 's80'; sSTB = 's81'; sSTC = 's82'; sSTD = 's83'; sWHI = 's84'; sROWG = 's85'
vW2 = 'v1'; vONE = 'v14'; vL16 = 'v15'; TF = 16; NF = 20; vR = 'v25'; vTOK = 'v26'; vHF = 'v27'
vBC = 'v28'; vBX = 'v29'; vCSA = 'v30'
accC, accA, accB = 80, 96, 112
def blk(b): return f'v[{b}:{b+15}]'
def q4(b): return f'v[{b}:{b+3}]'
MFMA = 'v_mfma_f32_32x32x16_bf16'
PQ, PH = 3072, 3584

class G:
    def __init__(self, stop_after=None, prof=None, cyc=False):
        self.e = Em()
        self.stop_after = stop_after
        self.prof = prof
        self.cyc = cyc
        self.auto_on = False; self.auto_n = int(OPT.get('auton', 40)); self.auto_idx = 1; self.auto_last = 0

    def stamp(self, name):
        if not self.prof: return
        name = str(name)
        if name not in self.prof: return
        idx = self.prof.index(name)
        e = self.e
        e.raw('s_memtime s[4:5]' if self.cyc else 's_memrealtime s[4:5]')
        e.raw('s_waitcnt lgkmcnt(0)'); e.lg = []
        e.raw(f'v_writelane_b32 v31, s4, {idx}'); e.t += 3
    def snap(self):
        return copy.deepcopy({k: v for k, v in self.e.__dict__.items() if k != 'lines'})
    def restore(self, s):
        uid = self.e.uid; ni = self.e.ninstr; nn = self.e.nnops
        self.e.__dict__.update(copy.deepcopy(s)); self.e.uid = uid; self.e.ninstr = ni; self.e.nnops = nn
    def run(self, ls):
        for l in ls:
            if callable(l): l(); continue
            self.e.I(l)
            if self.auto_on and self.e.ninstr - self.auto_last >= self.auto_n and not l.startswith(('s_add_u32 m0', 's_cmp', 'v_cmp', 's_mov_b64 exec', 'ds_read', 's_and_b64')) and self.auto_idx < 46:
                self.auto_last = self.e.ninstr
                if f'x{self.auto_idx}' not in self.prof: self.prof.append(f'x{self.auto_idx}')
                self.e.comment(f'AUTO {self.auto_idx}')
                self.stamp(f'x{self.auto_idx}')
                self.auto_idx += 1
    def auto(self, name, on):
        for ph in name, {'s1': 'p1', 's2': 'p1'}.get(name, name):
            if OPT.get('drop_' + ph): self.e.drop = OPT['drop_' + ph].replace('+', '|') if on else None
        if OPT.get('auto') == name:
            self.auto_on = on; self.auto_last = self.e.ninstr
            if on: self.auto_idx = 1
    def mk(self, b, lo, size, shift=0):
        if shift:
            self.e(f"""
            s_sub_u32 s{b}, s{lo}, {shift}
            s_subb_u32 s{b+1}, s{lo+1}, 0
            s_and_b32 s{b+1}, s{b+1}, 0xffff
            s_mov_b32 s{b+2}, {size + shift}
            s_mov_b32 s{b+3}, 0x20000
            """)
        else:
            self.e(f"""
            s_mov_b32 s{b}, s{lo}
            s_and_b32 s{b+1}, s{lo+1}, 0xffff
            s_mov_b32 s{b+2}, {size}
            s_mov_b32 s{b+3}, 0x20000
            """)
    def retry(self, check_lines, reload_lines, name):
        e = self.e
        lok = e.newlabel(name + 'OK'); lp = e.newlabel(name + 'LP')
        if OPT.get('nochk') and name != 'ARM': return
        ao = self.auto_on; self.auto_on = False
        self.run(check_lines)
        e(f's_cbranch_scc1 {lok}\ns_mov_b32 {sCNT}, 0')
        e.label(lp)
        st = self.snap()
        e.settle()
        e('s_sleep 2')
        self.run(reload_lines)
        e.raw('s_waitcnt vmcnt(0)'); e.vm = []
        e(f's_add_u32 {sCNT}, {sCNT}, 1')
        if self.prof:
            sites = ['ARM', 'GR', 'GD', 'KV', 'HB', 'HC', 'OC']
            e.raw(f'v_writelane_b32 v31, {sCNT}, {50 + sites.index(name)}')
        e(f's_cmp_gt_u32 {sCNT}, 0x40000\ns_cbranch_scc1 {lok}')
        self.run(check_lines)
        e(f's_cbranch_scc0 {lp}')
        e.settle()
        self.restore(st)
        e.label(lok)
        self.auto_on = ao
    def wave0(self, fn):
        e = self.e
        lab = e.newlabel('W0')
        e.settle()
        e(f's_cmp_lg_u32 {sW}, 0\ns_cbranch_scc1 {lab}')
        st = self.snap()
        fn()
        e.settle()
        self.restore(st)
        e.label(lab)
    def barrier(self, tag=None):
        if tag: self.e.wait_vm_tag(tag)
        self.e.wait_lg0(); self.e('s_barrier')

    def prologue(self):
        e = self.e
        e(f"""
        s_cmp_ge_u32 s2, 256
        s_cbranch_scc1 L_end
        s_load_dwordx16 s[64:79], s[0:1], 0
        s_load_dwordx4 s[80:83], s[0:1], 64
        s_load_dwordx2 s[84:85], s[0:1], 80
        v_lshrrev_b32 v1, 6, v0
        v_and_b32 v0, 63, v0
        v_readfirstlane_b32 {sW}, v1
        s_and_b32 {sT0}, s2, 7
        s_lshr_b32 {sT1}, s2, 3
        s_lshr_b32 {sT3}, {sT0}, 1
        s_mul_i32 {sT2}, {sT3}, 26
        s_add_u32 {sT2}, {sT2}, {sT1}
        s_lshr_b32 {sG}, {sT2}, 3
        s_and_b32 {sRB}, {sT0}, 1
        s_and_b32 {sT2}, {sT2}, 7
        s_lshl3_add_u32 {sRB}, {sRB}, {sT2}
        s_lshr_b32 {sNH}, {sW}, 2
        s_lshl1_add_u32 {sTT}, {sNH}, {sW}
        s_and_b32 {sTT}, {sTT}, 3
        s_lshl2_add_u32 {sT}, {sRB}, {sTT}
        s_lshl_b32 {sWB4K}, {sW}, 12
        s_and_b32 {sROW}, {sT0}, 1
        s_lshl2_add_u32 {sROW}, {sROW}, {sT3}
        s_lshl_b32 {sROW}, {sROW}, 5
        s_add_u32 {sROW}, {sROW}, {sT1}
        s_lshl3_add_u32 {sROW}, {sROW}, {sW}
        s_and_b32 {sT4}, {sT1}, 3
        s_lshl2_add_u32 {sR2}, {sT0}, {sT4}
        s_lshr_b32 {sC64}, {sT1}, 2
        s_and_b32 {sHEAD}, s2, 31
        s_mul_i32 {sUID}, {sT0}, 6
        s_add_u32 {sUID}, {sUID}, {sT1}
        s_sub_u32 {sUID}, {sUID}, 26
        s_mov_b32 {sTYPE}, {sT1}
        v_lshrrev_b32 v32, 3, v0
        v_and_b32 v33, 7, v0
        v_lshlrev_b32 {vL16}, 4, v0
        v_mov_b32 {vONE}, {ONES}
        s_lshl_b32 {sT5}, {sW}, 4
        s_lshl_b32 {sT4}, {sRB}, 7
        s_add_u32 {sT4}, {sT4}, {sT5}
        v_add_u32 v34, {sT4}, v32
        v_lshrrev_b32 v35, 1, v32
        v_xor_b32 v35, v35, v33
        v_lshlrev_b32 v35, 4, v35
        v_lshl_add_u32 v10, v34, 10, v35
        v_xor_b32 v11, 64, v10
        v_add_u32 v11, {8192 - 1024}, v11
        v_and_b32 v35, 2, v32
        v_lshlrev_b32 v35, 1, v35
        v_xor_b32 v35, v35, v33
        v_lshlrev_b32 v39, 4, v35
        s_lshl_b32 {sT5}, {sW}, 3
        v_add_u32 v36, {sT5}, v32
        v_mul_u32_u24 v37, {PQ}, v36
        v_add_u32 v37, v37, v39
        v_mul_u32_u24 v38, {PH}, v36
        v_add_u32 v38, v38, v39
        v_lshl_add_u32 {vW2}, v36, 10, v39
        s_lshl_b32 {sT4}, {sC64}, 7
        s_add_u32 {sT4}, {sT4}, {SH}
        v_add_u32 {vW2}, {sT4}, {vW2}
        v_mov_b32 v40, v32
        """)
        e.wait_lg0()
        self.mk(S_X, 64, 2048 * 1024)
        self.mk(S_QKV, 66, 512 * PQ, SH)
        self.mk(S_W1, 72, 512 * PH, SH)
        self.mk(S_WS, 84, WS_SIZE)
        self.mk(S_OUT, 80, 2048 * 1024)
        self.mk(S_DBG, 82, 256)
        self.stamp('ka')
        e(f"""
        s_lshl_b32 {sT0}, {sROW}, 10
        buffer_load_dwordx4 v[240:243], {vL16}, {srd(S_X)}, {sT0} offen
        """)

    def code_prefetch(self):
        e = self.e
        lab = e.newlabel('NOIPF')
        e(f"""
        s_cmp_lg_u32 {sW}, 2
        s_cbranch_scc1 {lab}
        s_getpc_b64 s[4:5]
        """)
        l2 = e.newlabel('PCREF')
        e.label(l2)
        e(f"""
        s_sub_u32 s4, s4, {l2}-{NAME}_kernel
        s_subb_u32 s5, s5, 0
        s_bfe_u32 {sT0}, s2, 0x30003
        s_lshl_b32 {sT0}, {sT0}, 13
        v_lshlrev_b32 v44, 7, v0
        v_add_u32 v44, {sT0}, v44
        v_min_u32 v44, L_end-{NAME}_kernel, v44
        """)
        saved = list(e.vm)
        e(f'global_load_dword v45, v44, s[4:5]')
        e.vm = saved
        e.label(lab)

    def csg_off(self, dst, suid):
        return f"""
        s_lshr_b32 {sT3}, {suid}, 2
        s_lshl_b32 {sT3}, {sT3}, 14
        s_and_b32 {sT2}, {suid}, 3
        s_lshl_b32 {sT2}, {sT2}, 11
        s_add_u32 {sT2}, {sT2}, {sT3}
        s_add_u32 {dst}, {sT2}, {WS_Z + Z_CSG}
        """

    def setupA(self):
        e = self.e
        e(f"""
        v_and_b32 {vTOK}, 31, v0
        v_lshrrev_b32 {vHF}, 5, v0
        v_bfe_u32 v34, {vTOK}, 1, 3
        v_xor_b32 v34, v34, {vHF}
        v_lshlrev_b32 v34, 4, v34
        v_and_b32 v35, 15, v0
        v_lshl_add_u32 v34, v35, 7, v34
        v_bfe_u32 v35, v0, 4, 1
        v_lshl_add_u32 v34, v35, 12, v34
        s_lshl_b32 {sT4}, {sTT}, 13
        s_lshl_b32 {sT5}, {sNH}, 6
        v_add_u32 v34, {sT4}, v34
        v_bfe_u32 v36, v0, 2, 2
        v_bfe_u32 v33, v0, 1, 1
        v_lshl_add_u32 v32, v35, 1, v33
        v_and_b32 v33, 2, v36
        v_lshlrev_b32 v33, 1, v33
        v_xor_b32 v32, v32, v33
        v_lshlrev_b32 v32, 4, v32
        v_and_b32 v33, 1, v0
        v_lshl_add_u32 v32, v33, 3, v32
        v_lshl_add_u32 v32, v36, 7, v32
        v_lshl_add_u32 v35, {vHF}, 12, v32
        v_xor_b32 v35, {sT5}, v35
        """)
        for s in range(4):
            e(f"""
            v_xor_b32 v{2+s}, {s << 5}, v34
            v_add_u32 v{6+s}, {s << 13}, v35
            v_add_u32 v{80+s}, 0x10000, v{2+s}
            v_add_u32 v{84+s}, 0x10000, v{6+s}
            """)
        e(f"""
        s_lshr_b32 {sT1}, {sROW}, 7
        s_lshl_b32 {sT1}, {sT1}, 14
        s_and_b32 {sT0}, {sROW}, 127
        s_lshl3_add_u32 {sT0}, {sT0}, {sT1}
        s_add_u32 {sT0}, {sT0}, {WS_Z + Z_ROW}
        v_lshl_add_u32 v252, v0, 26, {sT0}
        v_and_b32 v248, 15, v0
        v_lshlrev_b32 v248, 2, v248
        """)

    def setupB(self, typ):
        e = self.e
        self.mk(S_WO, 68, 512 * 1024, SH)
        self.mk(S_B1, 74, 1792 * 2)
        self.mk(S_W2, 76, 1792 * 1024, SH)
        self.mk(S_B2, 78, 1024)
        if typ != 'X':
            e(f"""
            s_mov_b32 {sGB}, {f32(GB)}
            v_mov_b32 v{TF+2}, 0
            v_mov_b32 v{TF+3}, 0
            s_lshl_b32 {sT4}, {sNH}, 10
            v_lshl_add_u32 {vCSA}, {vTOK}, 5, {sT4}
            s_lshl_b32 {sFLB}, {sRB}, 14
            s_lshl_b32 {sT5}, {sG}, 5
            s_add_u32 {sFLB}, {sFLB}, {sT5}
            s_add_u32 {sFLB}, {sFLB}, {WS_Z}
            s_lshl_b32 {sT4}, {sNH}, 6
            v_lshl_add_u32 v34, {vTOK}, 1, {sT4}
            s_lshl_b32 {sT5}, {sG}, 7
            buffer_load_ushort {vBC}, v34, {srd(S_B1)}, {sT5} offen
            buffer_load_ushort {vBX}, v34, {srd(S_B1)}, {sT5} offen offset:{15 * 128}
            s_add_u32 {sT4}, {sT5}, {SH - 3072}
            v_add_u32 v22, {sT4}, v38
            s_mul_i32 {sT4}, {sT}, {AH_T}
            s_lshl_b32 {sT3}, {sNH}, 11
            s_add_u32 {sT3}, {sT3}, {sT4}
            s_lshl_b32 {sT5}, {sG}, 12
            s_add_u32 {sSTC}, {sT5}, {sT3}
            s_add_u32 {sSTD}, {sSTC}, {15 * 4096}
            """)
            if typ == 'H':
                e(f"""
                s_add_u32 {sSTA}, {sT3}, {13 * 4096}
                s_add_u32 {sSTB}, {sT3}, {14 * 4096}
                s_mov_b32 {sCOLA}, {24 + 13}
                s_mov_b32 {sCOLB}, {24 + 14}
                """)
            else:
                if typ == 'K': e(f's_mov_b32 {sT2}, {sG}\ns_add_u32 {sCOLA}, {sG}, 8\ns_add_u32 {sCOLB}, {sG}, 16')
                else: e(f's_sub_u32 {sT2}, {sG}, 8\ns_lshl_b32 {sT2}, {sT2}, 1\ns_mov_b32 {sCOLA}, {sT2}\ns_add_u32 {sCOLB}, {sT2}, 1')
                e(f"""
                s_lshl1_add_u32 {sT2}, {sT2}, {sNH}
                s_lshl_b32 {sT2}, {sT2}, 17
                s_lshl_b32 {sT3}, {sT}, 10
                s_add_u32 {sT2}, {sT2}, {sT3}
                s_add_u32 {sSTA}, {sT2}, {WS_K if typ == 'K' else WS_Q}
                s_add_u32 {sSTB}, {sT2}, {WS_V if typ == 'K' else WS_Q + 4 * 65536}
                """)
            e(f"""
            s_add_u32 {sCOLC}, {sG}, 24
            s_add_u32 {sCOLD}, {sG}, 39
            s_lshl_b32 {sROWG}, {sRB}, 14
            s_lshl_b32 {sT3}, {sTT}, 8
            s_add_u32 {sROWG}, {sROWG}, {sT3}
            s_add_u32 {sROWG}, {sROWG}, {WS_Z + Z_ROW}
            """)
            for c in (sCOLA, sCOLB, sCOLC, sCOLD): e(self.csg_off(c, c))
            e(f"""
            s_lshr_b32 {sT2}, {sW}, 1
            s_mov_b32 {sGSRC}, {sCOLA}
            s_cmp_eq_u32 {sT2}, 1
            s_cselect_b32 {sGSRC}, {sCOLB}, {sGSRC}
            s_cmp_eq_u32 {sT2}, 2
            s_cselect_b32 {sGSRC}, {sCOLC}, {sGSRC}
            s_cmp_eq_u32 {sT2}, 3
            s_cselect_b32 {sGSRC}, {sCOLD}, {sGSRC}
            s_and_b32 {sT2}, {sW}, 1
            s_lshl_b32 {sT2}, {sT2}, 10
            s_add_u32 {sGSRC}, {sGSRC}, {sT2}
            """)
        else:
            e(f's_mov_b32 {sFLB}, 0x40000000\nv_mov_b32 v{TF+2}, 0\nv_mov_b32 v{TF+3}, 0')
        e(f"""
        s_lshr_b32 {sRA}, s2, 5
        s_lshl_b32 {sTA}, {sRA}, 3
        s_sub_u32 {sKV}, {sTA}, 8
        s_add_u32 {sTA}, {sTA}, {sW}
        s_sub_u32 {sIMIN}, 8, {sTA}
        s_cmp_gt_u32 {sTA}, 8
        s_cselect_b32 {sIMIN}, 0, {sIMIN}
        s_lshl1_add_u32 {sKV}, {sW}, {sKV}
        s_lshl_b32 {sKV}, {sKV}, 10
        s_lshl_b32 {sT1}, {sHEAD}, 16
        s_add_u32 {sKV}, {sKV}, {sT1}
        s_add_u32 {sKV}, {sKV}, {WS_K}
        s_lshl_b32 {sQO}, {sTA}, 10
        s_add_u32 {sQO}, {sQO}, {sT1}
        s_add_u32 {sQO}, {sQO}, {WS_Q}
        s_lshl1_add_u32 {sT2G}, {sR2}, {sNH}
        s_and_b32 {sKQ}, {sW}, 3
        s_mul_i32 {sAH2}, {sT2G}, {AH_T}
        s_lshl_b32 {sT1}, {sKQ}, 12
        s_add_u32 {sAH2}, {sAH2}, {sT1}
        s_mov_b32 {sREDO}, {1 if OPT.get('nofb') else 0}
        s_lshl_b32 {sFLO}, {sRA}, 15
        s_lshl_b32 {sT1}, {sHEAD}, 5
        s_add_u32 {sFLO}, {sFLO}, {sT1}
        s_add_u32 {sFLO}, {sFLO}, {WS_Z + F_O}
        s_mul_i32 {sOST}, {sTA}, {AH_T}
        s_lshl_b32 {sT1}, {sHEAD}, 10
        s_add_u32 {sOST}, {sOST}, {sT1}
        s_add_u32 {sOST}, {sOST}, {112 * 1024}
        s_add_u32 {sRC}, {sC64}, {sR2}
        s_and_b32 {sRC}, {sRC}, 15
        s_mul_i32 {sT1}, {sRC}, 86
        s_lshr_b32 {sT1}, {sT1}, 8
        s_mul_i32 {sT1}, {sT1}, 3
        s_sub_u32 {sT1}, {sRC}, {sT1}
        s_and_b32 {sRC}, {sRC}, 3
        s_lshl_b32 {sT1}, {sT1}, 10
        s_add_u32 {sRC}, {sRC}, {sT1}
        """)

    def fill_stats(self):
        o = [f'v_dot2_f32_bf16 v244, v240, {vONE}, 0', 'v_dot2_f32_bf16 v245, v240, v240, 0']
        for j in range(1, 4):
            o += [f'v_dot2_f32_bf16 v244, v{240+j}, {vONE}, v244', f'v_dot2_f32_bf16 v245, v{240+j}, v{240+j}, v245']
        for dpp in ('quad_perm:[1,0,3,2]', 'quad_perm:[2,3,0,1]', 'row_half_mirror', 'row_mirror'):
            o += [f'v_add_f32_dpp v244, v244, v244 {dpp} row_mask:0xf bank_mask:0xf',
                  f'v_add_f32_dpp v245, v245, v245 {dpp} row_mask:0xf bank_mask:0xf']
        for sw in ('v_permlane16_swap_b32', 'v_permlane32_swap_b32'):
            o += lines(f"""
            v_mov_b32 v246, v244
            v_mov_b32 v247, v245
            {sw} v244, v246
            {sw} v245, v247
            v_add_f32 v244, v244, v246
            v_add_f32 v245, v245, v247
            """)
        o += lines(f"""
        v_mul_f32 v244, {f32(1/512)}, v244
        v_mul_f32 v245, {f32(1/512)}, v245
        v_fma_f32 v245, -v244, v244, v245
        v_max_f32 v245, 0, v245
        v_cvt_pk_bf16_f32 v246, v245, v245
        v_lshlrev_b32 v246, 16, v246
        v_add_f32 v246, {f32(1e-5)}, v246
        v_cvt_pk_bf16_f32 v246, v246, v246
        v_lshlrev_b32 v246, 16, v246
        v_sqrt_f32 v246, v246
        v_cvt_pk_bf16_f32 v240, -v244, v246
        v_mov_b32 v241, 1
        """)
        return o

    def dma1(self, c, typ):
        slot = (c % 4) * SLOT
        P, sr = (PH, S_W1) if typ == 'H' else (PQ, S_QKV)
        g0 = [f's_add_u32 m0, {sWB4K}, {slot}', f's_movk_i32 {sKX}, {128 * c}', f'buffer_load_dwordx4 v10, {srd(S_X)}, {sKX} offen lds #c{c}']
        g1 = [f'buffer_load_dwordx4 v11, {srd(S_X)}, {sKX} offen offset:1024 lds #c{c}']
        g2 = [f's_mov_b32 {sKW}, {64 * P * c}', f'buffer_load_dwordx4 v12, {srd(sr)}, {sKW} offen offset:2048 lds #c{c}']
        g3 = [f'buffer_load_dwordx4 v13, {srd(sr)}, {sKW} offen offset:3072 lds #c{c}']
        return [g0, g1, g2, g3]
    def dma2(self, c, vo):
        slot = (c % 4) * SLOT
        out = []
        for i in range(4):
            cc = 4 * (c & 1) + i
            g = [f's_add_u32 m0, {sWB4K}, {slot}'] if i == 0 else []
            g += [f's_mov_b32 {sKW}, {64 * PH * cc + 1024 * (3 - i) + (15 * 128 if c >= 10 else 0)}',
                  f'buffer_load_dwordx4 {vo}, {srd(S_W1)}, {sKW} offen offset:{1024*i} lds #c{c}']
            out.append(g)
        return out
    def grp_idx(self, gi):
        if gi < 3:
            return [f's_lshr_b32 {sT0}, {sRC}, 8', f's_add_u32 {sT0}, {sT0}, {4 * gi}', f's_lshr_b32 {sT0}, 0x10210, {sT0}', f's_and_b32 {sT0}, {sT0}, 15']
        if gi < 7:
            return [f's_add_u32 {sT0}, {sRC}, {gi - 3}', f's_and_b32 {sT0}, {sT0}, 3', f's_add_u32 {sT0}, {sT0}, 3']
        return [f's_add_u32 {sT0}, {sRC}, {gi - 7}', f's_and_b32 {sT0}, {sT0}, 1', f's_add_u32 {sT0}, {sT0}, 7']
    def wpos(self, gi):
        return [0, 1, 2, 3, 0, 1, 4, 2, 3][gi]
    def w2_dma(self, gi):
        out = []
        g = self.grp_idx(gi)
        if gi >= 7: g = g[:-1]
        g += [f's_add_u32 m0, {sWB4K}, {self.wpos(gi) * SLOT}', f's_lshl_b32 {sKW2}, {sT0}, 18']
        sr = S_W2 if gi < 7 else S_WO
        for i in range(4):
            if i: g = [f's_add_u32 {sKW2}, {sKW2}, {65536 - 1024}']
            g.append(f'buffer_load_dwordx4 {vW2}, {srd(sr)}, {sKW2} offen offset:{1024*i} lds #w{gi}')
            out.append(g)
        return out
    def hq(self, gi, j):
        tab = {0: [148, 152, 156, 160], 1: [164, 168, 172, 176], 2: [180, 184, 188, 112], 3: [116, 120, 124, 128], 4: [132, 136, 140, 144],
               5: [192, 196, 200, 204], 6: [208, 212, 216, 220], 7: [224, 228, 232, 236], 8: [240, 244, 248, 252]}
        return tab[gi][j]
    def hload(self, gi):
        out = []
        for j in range(4):
            g = []
            if j == 0: g = self.grp_idx(gi) + [f's_lshl_b32 {sKX}, {sT0}, 14', f's_add_u32 {sKX}, {sKX}, {sAH2}']
            g.append(f'buffer_load_dwordx4 {q4(self.hq(gi, j))}, {vL16}, {srd(S_WS)}, {sKX} offen offset:{1024*j} sc1 #h{gi}_{j}')
            out.append(g)
        return out
    def wrd(self, gi, j, b):
        pos = self.wpos(gi)
        a0, a1 = self.WA2[2 * (pos >> 1)], self.WA2[2 * (pos >> 1) + 1]
        off = (pos & 1) * SLOT + 8192 * j
        return [f'ds_read_b64_tr_b16 v[{b}:{b+1}], {a0} offset:{off}',
                f'ds_read_b64_tr_b16 v[{b+2}:{b+3}], {a0} offset:{off + 4096}',
                f'ds_read_b64_tr_b16 v[{b+4}:{b+5}], {a1} offset:{off}',
                f'ds_read_b64_tr_b16 v[{b+6}:{b+7}], {a1} offset:{off + 4096}']

    def cs_load(self, soff, dst):
        return [f'buffer_load_dwordx4 v[{dst}:{dst+3}], {vCSA}, {srd(S_WS)}, {soff} offen sc1',
                f'buffer_load_dwordx4 v[{dst+4}:{dst+7}], {vCSA}, {srd(S_WS)}, {soff} offen offset:16 sc1']
    def nf_build(self, cs, bias):
        return lines(f"""
        v_cvt_pk_bf16_f32 v46, v{cs}, v{cs}
        v_lshlrev_b32 v46, 16, v46
        v_sub_f32 v46, v{cs}, v46
        v_cvt_pk_bf16_f32 v{NF}, v{cs}, v46
        v_and_b32 v47, 0xffff0000, v{NF}
        v_sub_f32 v46, v46, v47
        v_cvt_pk_bf16_f32 v{NF+1}, v46, {bias}
        """)
    def epi_qk(self, acc, rreg, tag, sST):
        o = []
        for h in range(2):
            a = acc + 8 * h
            for i in range(8): o.append(f'v_mul_f32 v{a+i}, {rreg}, v{a+i}')
            for i in range(4): o.append(f'v_cvt_pk_bf16_f32 v{a+i}, v{a+2*i}, v{a+2*i+1}')
            if h: o.append(f's_add_u32 {sST}, {sST}, 65536')
            o.append(f'buffer_store_dwordx4 {q4(a)}, {vL16}, {srd(S_WS)}, {sST} offen sc1 #{tag}')
        return o
    def epi_v_pre(self, tmp):
        o = lines(f"""
        s_lshr_b32 {sT2}, {sWB4K}, 5
        s_add_u32 {sT2}, {sT2}, {L_RV}
        v_lshl_add_u32 v12, {vTOK}, 2, {sT2}
        v_lshl_add_u32 v13, {vHF}, 4, {sT2}
        ds_write_b32 v12, {vR}
        """)
        for q in range(4): o.append(f'ds_read_b128 v[{tmp+4*q}:{tmp+4*q+3}], v13 offset:{32*q}')
        o += lines(f"""
        v_bfe_u32 v12, v0, 4, 1
        v_and_b32 v13, 15, v0
        v_lshl_add_u32 v13, {vHF}, 4, v13
        v_lshlrev_b32 v13, 4, v13
        v_lshl_add_u32 v12, v12, 16, v13
        """)
        return o
    def epi_v(self, acc, tmp, tag):
        o = []
        for h in range(2):
            a = acc + 8 * h
            for i in range(8): o.append(f'v_mul_f32 v{a+i}, v{tmp+8*h+i}, v{a+i}')
            for i in range(4): o.append(f'v_cvt_pk_bf16_f32 v{a+i}, v{a+2*i}, v{a+2*i+1}')
            o.append(f'buffer_store_dwordx4 {q4(a)}, v12, {srd(S_WS)}, {sSTB} offen offset:{512*h} sc1 #{tag}')
        return o
    def epi_h(self, acc, tmp, soff, tag, halves=2):
        o = []
        for half in range(halves):
            a = acc + 8 * half
            for i in range(8): o.append(f'v_mul_f32 v{tmp+i}, v{a+i}, v{a+i}')
            for i in range(8): o.append(f'v_fma_f32 v{tmp+i}, v{tmp+i}, v10, v24')
            for i in range(8): o.append(f'v_mul_f32 v{tmp+i}, v{tmp+i}, v{a+i}')
            for i in range(8): o.append(f'v_exp_f32 v{tmp+i}, v{tmp+i}')
            for i in range(8): o.append(f'v_fma_f32 v{tmp+i}, v{tmp+i}, v2, v2')
            for i in range(8): o.append(f'v_rcp_f32 v{tmp+i}, v{tmp+i}')
            for i in range(8): o.append(f'v_mul_f32 v{a+i}, v{a+i}, v{tmp+i}')
            for i in range(4): o.append(f'v_cvt_pk_bf16_f32 v{a+i}, v{a+2*i}, v{a+2*i+1}')
            o.append(f'buffer_store_dwordx4 {q4(a)}, {vL16}, {srd(S_WS)}, {soff} offen offset:{1024*half} sc1 #{tag}')
        return o
    def flag_wg(self, base_s, off, vaddr=None):
        self.wave0(lambda: self.e(f'buffer_store_dword {self.vF1}, {vaddr or self.vFL}, {srd(S_WS)}, {base_s} offen offset:{off} sc1'))
    def u_rd(self, c0, m, nb):
        c = c0 + (m >> 4); k = m & 15
        base = ((c % 4) * SLOT & 0xffff) + 1024 * (k >> 2); s = k & 3
        b = 48 + 4 * (nb % 4)
        return [f'ds_read_b64_tr_b16 v[{b}:{b+1}], v{6+s} offset:{base}',
                f'ds_read_b64_tr_b16 v[{b+2}:{b+3}], v{6+s} offset:{base + 512}']
    def u_mfma(self, acc, m, nb):
        b = 48 + 4 * (nb % 4); x = 128 + 4 * m
        return f'{MFMA} {blk(acc)}, {q4(b)}, {q4(x)}, {blk(acc)}'
    def fl_addr(self, vT, vtmp):
        return lines(f"""
        v_ashrrev_i32 {vtmp}, 2, {vT}
        v_lshlrev_b32 {vtmp}, 14, {vtmp}
        v_and_b32 {vT}, 3, {vT}
        v_mul_u32_u24 {vT}, {FL_T}, {vT}
        v_add_u32 {vT}, {vT}, {vtmp}
        """)
    def kv_poll_setup(self, va, vt):
        return lines(f"""
        s_lshl_b32 {sT4}, {sRA}, 1
        s_sub_u32 {sT4}, {sT4}, 2
        v_add_u32 {va}, {sT4}, v0
        v_lshlrev_b32 {va}, 14, {va}
        s_lshr_b32 {sT5}, {sHEAD}, 2
        s_lshr_b32 {sT4}, {sHEAD}, 3
        s_sub_u32 {sT4}, {sT4}, {sT5}
        s_lshl_b32 {sT4}, {sT4}, 5
        s_add_u32 {sT4}, {sT4}, {8 * 32 - 2 * 16384}
        v_add_u32 {vt}, {sT4}, {va}
        v_cmp_gt_u32 vcc, 4, v0
        v_cndmask_b32 {va}, {vt}, {va}, vcc
        s_lshl_b32 {sT5}, {sT5}, 5
        s_add_u32 {sT5}, {sT5}, {WS_Z + F_1}
        s_lshl_b32 {sT4}, {sW}, 26
        s_add_u32 {sT5}, {sT5}, {sT4}
        v_add_u32 {va}, {sT5}, {va}
        v_cmp_le_u32 vcc, 6, v0
        v_mov_b32 {vt}, 0x40000000
        v_cndmask_b32 {va}, {va}, {vt}, vcc
        s_cmp_eq_u32 {sRA}, 0
        s_cselect_b32 s68, 60, 63
        s_mov_b32 s69, 0
        """)
    def kv_loads(self):
        return lines(f"""
        s_add_u32 {sT5}, {sKV}, {WS_V - WS_K}
        buffer_load_dwordx4 v[112:115], {vL16}, {srd(S_WS)}, {sKV} offen sc1
        buffer_load_dwordx4 v[116:119], {vL16}, {srd(S_WS)}, {sKV} offen offset:1024 sc1
        buffer_load_dwordx4 v[32:35], {vL16}, {srd(S_WS)}, {sQO} offen sc1
        buffer_load_dwordx4 v[120:123], {vL16}, {srd(S_WS)}, {sT5} offen sc1
        buffer_load_dwordx4 v[124:127], {vL16}, {srd(S_WS)}, {sT5} offen offset:1024 sc1
        """)
    def pl_ld(self, vaddr, vdst, off=0):
        return [f'buffer_load_dword {vdst}, {vaddr}, {srd(S_WS)}, 0 offen offset:{off} sc1 #kvp']
    def pl_chk(self, vdst, mask):
        if mask == '-1': return [f'v_cmp_ne_u32 vcc, 1, {vdst}', 's_cmp_eq_u64 vcc, 0']
        return [f'v_cmp_ne_u32 vcc, 1, {vdst}', f's_andn2_b64 vcc, {mask}, vcc', f's_cmp_eq_u64 vcc, {mask}']

    def capture(self, fn):
        cap = []
        self.e.I = lambda l, tag=None: cap.append(l)
        fn()
        del self.e.__dict__['I']
        return cap
    def tail_parts(self):
        self.WA2 = ['v6', 'v7', 'v12', 'v13', 'v22', 'v23']
        wa_a = lines(f"""
        v_bfe_u32 v39, v0, 2, 2
        v_lshl_add_u32 v38, {vHF}, 2, v39
        v_lshlrev_b32 v38, 7, v38
        v_bfe_u32 v36, v0, 4, 1
        v_bfe_u32 v37, v0, 1, 1
        v_lshl_add_u32 v36, v36, 1, v37
        v_and_b32 v37, 2, v39
        v_lshlrev_b32 v37, 1, v37
        v_xor_b32 v36, v36, v37
        v_lshl_add_u32 v38, v36, 4, v38
        v_and_b32 v37, 1, v0
        v_lshl_add_u32 v38, v37, 3, v38
        s_lshl_b32 {sT3}, {sKQ}, 10
        v_add_u32 v38, {sT3}, v38
        """)
        wa_b = lines(f"""
        v_mov_b32 v6, v38
        v_xor_b32 v7, 64, v38
        v_add_u32 v12, 0x10000, v6
        v_add_u32 v13, 0x10000, v7
        v_add_u32 v22, 0x20000, v6
        v_add_u32 v23, 0x20000, v7
        """)
        trr = []
        k = 0
        for gi in range(2):
            for j in range(4):
                trr += [[x] for x in self.wrd(gi, j, 192 + 8 * k)]; k += 1
        return wa_a, wa_b, trr
    def x1(self):
        self.wave0(lambda: self.retry(self.pl_chk('v43', sMSK), self.pl_ld('v42', 'v43'), 'KV'))
        self.barrier()
        self.run(self.kv_loads())
        self.stamp(6)
    def p1_end(self):
        e = self.e
        tl = e.vm[-6:]
        assert [bool(o['dst']) for o in tl] == [True] * 5 + [False] and tl[-1]['tag'] == 'h', tl
        e.vm = tl
        e.wait_lg0(force=True)
        e.settle()
        self.auto('s2', False)
        self.stamp(5)

    def helper(self):
        e = self.e
        armed_chk = [f'v_cmp_ne_u32 vcc, 1, v249', 's_cmp_eq_u64 vcc, 0']
        armed_ld = [f'buffer_load_dword v249, v248, {srd(S_DBG)}, 0 offen offset:64 sc1']
        lab = e.newlabel('NORST')
        e(f"""
        s_cmp_lg_u32 {sW}, 7
        s_cbranch_scc1 {lab}
        s_cmp_ge_u32 {sUID}, 16
        s_cbranch_scc1 {lab}
        s_setprio 3
        s_lshl_b32 {sT0}, {sUID}, 14
        s_add_u32 {sT0}, {sT0}, {WS_Z}
        v_mov_b32 v44, 0
        v_mov_b32 v45, 0
        v_mov_b32 v46, 0
        v_mov_b32 v47, 0
        """)
        st0 = self.snap()
        for i in range(16):
            if i in (3, 4, 5, 6): continue
            if i and i % 4 == 0 or i == 7: e(f's_add_u32 {sT0}, {sT0}, 4096')
            e(f'buffer_store_dwordx4 v[44:47], {vL16}, {srd(S_WS)}, {sT0} offen offset:{1024 * (i % 4)} sc1')
        e(f"""
        s_lshl_b32 {sT0}, {sUID}, 2
        v_lshl_add_u32 v42, v0, 26, {sT0}
        v_mov_b32 v43, 1
        """)
        e.raw('s_waitcnt vmcnt(0)')
        e(f'buffer_store_dword v43, v42, {srd(S_DBG)}, 0 offen offset:64 sc1\ns_setprio 0')
        e.settle()
        self.restore(st0)
        e.label(lab)
        e(f"""
        s_mul_i32 {sCOLA}, {sW}, 48
        s_add_u32 {sCOLA}, {sCOLA}, {sUID}
        s_and_b32 {sCOLB}, {sCOLA}, 3
        s_lshr_b32 {sCOLA}, {sCOLA}, 2
        """)
        lno = e.newlabel('NOCS')
        e(f"""
        s_cmp_ge_u32 {sCOLA}, 52
        s_cbranch_scc1 {lno}
        s_movk_i32 {sPIT}, {PQ}
        s_cmp_ge_u32 {sCOLA}, 24
        s_cselect_b32 {sPIT}, {PH}, {sPIT}
        s_cselect_b32 s{S_TMP}, s{S_W1}, s{S_QKV}
        s_cselect_b32 s{S_TMP+1}, s{S_W1+1}, s{S_QKV+1}
        s_cselect_b32 s{S_TMP+2}, s{S_W1+2}, s{S_QKV+2}
        s_mov_b32 s{S_TMP+3}, 0x20000
        s_cselect_b32 {sT1}, 24, 0
        s_sub_u32 {sT1}, {sCOLA}, {sT1}
        s_lshl_b32 {sT1}, {sT1}, 7
        s_lshl_b32 {sT0}, {sCOLB}, 7
        s_mul_i32 {sT0}, {sT0}, {sPIT}
        s_add_u32 {sT0}, {sT0}, {sT1}
        s_add_u32 {sT0}, {sT0}, {SH}
        s_lshl_b32 {sT1}, {sPIT}, 3
        v_mad_u32_u24 v20, v40, {sPIT}, v39
        s_lshl_b32 {sT2}, {sWB4K}, 2
        """)
        saved = list(e.vm)
        for i in range(16):
            if i % 4 == 0: e(f's_add_u32 m0, {sT2}, {1024 * i}')
            e(f'buffer_load_dwordx4 v20, {srd(S_TMP)}, {sT0} offen offset:{1024 * (i % 4)} lds')
            e(f's_add_u32 {sT0}, {sT0}, {sT1}')
            e(f's_add_u32 {sT0}, {sT0}, {3072 if i % 4 == 3 else -1024}')
        e.vm = saved
        e.label(lno)
        self.setupA()
        e.raw('s_waitcnt vmcnt(16)')
        lz = e.newlabel('HZ')
        e(f's_cmp_lt_u32 {sCOLA}, 52\ns_cbranch_scc1 {lz}')
        e.raw('s_waitcnt vmcnt(0)')
        e.label(lz)
        e.vm = []
        self.run(self.fill_stats())
        self.setupB('X')
        lno = e.newlabel('NOCS2')
        e(f"""
        v_lshl_add_u32 v250, {vHF}, 10, v32
        s_lshl_b32 {sT2}, {sWB4K}, 2
        v_add_u32 v250, {sT2}, v250
        v_xor_b32 v251, 64, v250
        v_mov_b32 v8, {vONE}
        v_mov_b32 v9, {vONE}
        v_mov_b32 v10, {vONE}
        v_mov_b32 v11, {vONE}
        v_mov_b32 v245, 1
        """)
        e(self.csg_off(sT4, sCOLA))
        e(f"""
        s_lshl3_add_u32 {sT4}, {sCOLB}, {sT4}
        s_cmp_ge_u32 {sCOLA}, 52
        s_cselect_b32 {sT4}, 0x40000000, {sT4}
        v_lshl_add_u32 v255, v0, 5, {sT4}
        """)
        e.raw('s_waitcnt vmcnt(0)')
        for st in range(8):
            for h in range(2):
                b = 128 + 8 * st + 4 * h
                e(f'ds_read_b64_tr_b16 v[{b}:{b+1}], v{250+h} offset:{2048*st}')
                e(f'ds_read_b64_tr_b16 v[{b+2}:{b+3}], v{250+h} offset:{2048*st+512}')
        self.run(armed_ld)
        for st in range(8):
            for h in range(2):
                b = 128 + 8 * st + 4 * h; acc = [accA, accB][h]
                e(f'{MFMA} {blk(acc)}, v[8:11], {q4(b)}, {"0" if st == 0 else blk(acc)}')
        e(f"""
        v_cmp_eq_u32 vcc, 0, {vHF}
        v_cndmask_b32 v244, v{accB}, v{accA}, vcc
        """)
        self.retry(armed_chk, armed_ld, 'ARM')
        e(f"""
        buffer_store_dwordx2 v[244:245], v255, {srd(S_WS)}, 0 offen sc1
        buffer_store_dwordx2 v[240:241], v252, {srd(S_WS)}, 0 offen sc1
        s_mul_i32 {sT2}, {sUID}, 6
        s_add_u32 {sT2}, {sT2}, {sW}
        s_lshl_b32 {sT2}, {sT2}, 13
        s_add_u32 {sT2}, {sT2}, {SH}
        s_cmp_ge_u32 {sW}, 6
        s_cselect_b32 {sT2}, 0x40000000, {sT2}
        s_sub_u32 {sT3}, {sT2}, {1792 * 1024}
        s_cmp_lt_u32 {sT2}, {1792 * 1024 + SH}
        s_cselect_b32 {sT3}, 0x40000000, {sT3}
        v_lshlrev_b32 v246, 7, v0
        buffer_load_dword v247, v246, {srd(S_W2)}, {sT2} offen
        buffer_load_dword v243, v246, {srd(S_WO)}, {sT3} offen
        v_lshlrev_b32 v3, 26, v0
        v_mov_b32 v4, 1
        """)
        self.barrier()
        wa_a, wa_b, trr = self.tail_parts()
        for gi in range(4):
            for g in self.w2_dma(gi): self.run(g)
        self.run(wa_a + wa_b + self.kv_poll_setup('v42', 'v43'))
        self.barrier('w3')
        for t in trr: self.run(t)
        self.run(self.pl_ld('v42', 'v43'))
        self.x1()
        e(f'buffer_store_dword v4, v3, {srd(S_WS)}, {sFLB} offen #h')
        self.p1_end()

    def p1(self, typ):
        e = self.e
        if typ == 'K':
            e(f's_lshl_b32 {sT4}, {sG}, 7\ns_add_u32 {sT4}, {sT4}, {1024 + SH - 2048}\nv_add_u32 v12, {sT4}, v37\nv_mov_b32 v13, v12')
        elif typ == 'Q':
            e(f's_lshl_b32 {sT4}, {sG}, 8\ns_add_u32 {sT4}, {sT4}, {SH - 2048 - 2048}\nv_add_u32 v12, {sT4}, v37\nv_add_u32 v13, {128 - 1024}, v12')
        else:
            e(f'v_add_u32 v12, {13 * 128 + SH - 2048}, v38\nv_add_u32 v13, {128 - 1024}, v12')
        def chunk_dmas(c):
            if c < 8: return self.dma1(c, typ)
            return self.dma2(c, 'v22' if c == 8 else 'v11')
        for grp in chunk_dmas(0): self.run(grp)
        self.stamp('i0')
        if int(OPT.get('ipf', 1)): self.code_prefetch()
        partA = self.capture(self.setupA); partB = self.capture(lambda: self.setupB(typ))
        def groups(code):
            out = []; cur = []
            for l in code:
                cur.append(l)
                if isinstance(l, str) and l.startswith(('s_cmp', 's_sub_u32', 's_cselect')): continue
                out.append(cur); cur = []
            if cur: out.append(cur)
            return out
        def inject(code, grps, gap):
            out = []; cnt = 0; grps = list(grps)
            for g in groups(code):
                out += g; cnt += len(g)
                if grps and cnt >= gap: out += grps.pop(0); cnt = 0
            for g in grps: out += g
            return out
        nb = int(OPT.get('nb', 60))
        gB = groups(partB); k = 0; cnt = 0
        while k < len(gB) and cnt < nb: cnt += len(gB[k]); k += 1
        preB = [l for g in gB[:k] for l in g]; postB = [l for g in gB[k:] for l in g]
        self.run(inject(partA + preB, chunk_dmas(1) + chunk_dmas(2), int(OPT.get('gap', 12))))
        self.run(self.fill_stats())
        dq = chunk_dmas(3)
        self.stamp('st')
        def rd1(n):
            c, s = n >> 2, n & 3
            slot = (c % 4) * SLOT
            hi = slot >> 16; base = slot & 0xffff
            xa = (80 if hi else 2) + s; wa = (84 if hi else 6) + s
            x = 128 + 4 * n; b = 48 + 8 * (n % 4)
            return [f'ds_read_b128 {q4(x)}, v{xa} offset:{base}',
                  f'ds_read_b64_tr_b16 v[{b}:{b+1}], v{wa} offset:{base + 2048}',
                  f'ds_read_b64_tr_b16 v[{b+2}:{b+3}], v{wa} offset:{base + 2048 + 512}',
                  f'ds_read_b64_tr_b16 v[{b+4}:{b+5}], v{wa} offset:{base + 3072}',
                  f'ds_read_b64_tr_b16 v[{b+6}:{b+7}], v{wa} offset:{base + 3072 + 512}']
        self.barrier('c0')
        self.stamp(1)
        self.auto('s1', True)
        self.run(rd1(0) + rd1(1))
        armed_chk = [f'v_cmp_ne_u32 vcc, 1, v249', 's_cmp_eq_u64 vcc, 0']
        armed_ld = [f'buffer_load_dword v249, v248, {srd(S_DBG)}, 0 offen offset:64 sc1']
        fills = {n: [] for n in range(32)}
        def spread(code, n0, n1):
            g = groups(code); k = n1 - n0
            for i in range(k): fills[n0 + i] += g[len(g) * i // k:len(g) * (i + 1) // k]
        AN = int(OPT.get('an', 8))
        fills[AN - 4] += [armed_ld]
        fills[AN] += [[lambda: self.retry(armed_chk, armed_ld, 'ARM'), f'buffer_store_dwordx2 v[240:241], v252, {srd(S_WS)}, 0 offen sc1']]
        spread(postB, 0, 16)
        rowg = [f'v_lshlrev_b32 v20, 3, {vTOK}', f'buffer_load_dwordx2 v[{TF}:{TF+1}], v20, {srd(S_WS)}, {sROWG} offen sc1']
        ldA = self.cs_load(sCOLA, 32); ldB = self.cs_load(sCOLB, 40); ldC = self.cs_load(sCOLC, 88)
        def gdma():
            lab = e.newlabel('NOROWG')
            e(f"""
            s_lshr_b32 {sT2}, {sWB4K}, 2
            s_add_u32 m0, {sT2}, {L_GR}
            buffer_load_dwordx4 {vL16}, {srd(S_WS)}, {sGSRC} offen sc1 lds #gr
            s_cmp_lg_u32 {sW}, 0
            s_cbranch_scc1 {lab}
            s_lshl_b32 {sT2}, {sRB}, 14
            s_add_u32 {sT2}, {sT2}, {WS_Z + Z_ROW}
            s_mov_b32 m0, {L_GR + 8192}
            """)
            saved = list(e.vm)
            e(f'buffer_load_dwordx4 {vL16}, {srd(S_WS)}, {sT2} offen sc1 lds')
            e.vm = saved
            e.label(lab)
        grd = lines(f"""
        s_lshl_b32 {sT2}, {sTT}, 8
        s_add_u32 {sT2}, {sT2}, {L_GR + 8192}
        v_lshl_add_u32 v20, {vTOK}, 3, {sT2}
        v_add_u32 v21, {L_GR}, {vCSA}
        ds_read_b64 v[{TF}:{TF+1}], v20
        ds_read_b128 v[32:35], v21
        ds_read_b128 v[36:39], v21 offset:16
        ds_read_b128 v[40:43], v21 offset:2048
        ds_read_b128 v[44:47], v21 offset:2064
        ds_read_b128 v[88:91], v21 offset:4096
        ds_read_b128 v[92:95], v21 offset:4112
        """)
        chk = lines(f"""
        v_and_b32 v20, v{TF+1}, v33
        v_and_b32 v21, v35, v37
        v_and_b32 v20, v20, v39
        v_and_b32 v21, v21, v41
        v_and_b32 v20, v20, v43
        v_and_b32 v21, v21, v45
        v_and_b32 v20, v20, v47
        v_and_b32 v21, v21, v89
        v_and_b32 v20, v20, v91
        v_and_b32 v21, v21, v93
        v_and_b32 v20, v20, v95
        v_and_b32 v20, v20, v21
        v_cmp_ne_u32 vcc, 1, v20
        s_cmp_eq_u64 vcc, 0
        """)
        pre = lines(f"""
        v_add_f32 v32, v32, v34
        v_add_f32 v36, v36, v38
        v_add_f32 v40, v40, v42
        v_add_f32 v44, v44, v46
        v_add_f32 v88, v88, v90
        v_add_f32 v92, v92, v94
        v_add_f32 v32, v32, v36
        v_add_f32 v33, v40, v44
        v_add_f32 v34, v88, v92
        v_and_b32 v2, 0xffff0000, v{TF}
        v_rcp_f32 {vR}, v2
        v_cmp_eq_u32 vcc, 0, {vHF}
        v_cndmask_b32 v{TF+1}, 0, v{TF}, vcc
        v_and_b32 v{TF}, 0xffff, v{TF+1}
        v_lshl_or_b32 v{TF}, v{TF}, 16, v{TF}
        v_lshlrev_b32 {vBC}, 16, {vBC}
        v_lshlrev_b32 {vBX}, 16, {vBX}
        v_mov_b32 v{NF+2}, 0
        v_mov_b32 v{NF+3}, 0
        """)
        pre2 = lines(f"""
        v_mul_f32 v10, {vR}, {vR}
        v_mul_f32 v24, {f32(GA)}, {vR}
        v_mul_f32 v10, {sGB}, v10
        v_mul_f32 v10, v10, {vR}
        v_lshlrev_b32 v3, 26, v0
        v_mov_b32 v4, 1
        """)
        self.vFL, self.vF1 = 'v3', 'v4'
        bA, bB = ('v4', 'v5') if typ == 'H' else ('0', '0')
        if typ == 'H':
            fills[23] += [[f'buffer_load_ushort v4, v34, {srd(S_B1)}, 0 offen offset:{13 * 128}', f'buffer_load_ushort v5, v34, {srd(S_B1)}, 0 offen offset:{14 * 128}']]
            pre += ['v_lshlrev_b32 v4, 16, v4', 'v_lshlrev_b32 v5, 16, v5']
        r1A = [f'{MFMA} {blk(accA)}, {q4(NF)}, {q4(TF)}, {blk(accA)}']
        r1B = [f'{MFMA} {blk(accB)}, {q4(TF)}, {q4(NF)}, {blk(accB)}'] if typ == 'K' else [f'{MFMA} {blk(accB)}, {q4(NF)}, {q4(TF)}, {blk(accB)}']
        grchk = [[lambda: self.retry(chk[-2:], rowg + ldA + ldB + ldC + ['WAITVM0'] + chk[:-2], 'GR')]]
        fills[20] += [['v_mov_b32 v11, v22']]
        GD = 22
        spread(grd, 26, 27); spread(chk[:-2], 27, 28); fills[27] += grchk
        spread(pre + self.nf_build(32, bA) + r1A, 28, 29)
        spread(pre2 + self.nf_build(33, bB) + r1B, 29, 30)
        spread(self.nf_build(34, vBC) + [f'{MFMA} {blk(accC)}, {q4(NF)}, {q4(TF)}, 0'], 30, 31)
        if typ == 'K': spread(self.epi_v_pre(32), 31, 32)
        if typ == 'Q': fills[31] += [[f'v_mul_f32 v32, {f32(0.25 * LOG2E)}, {vR}']]
        for n in range(32):
            c, s = n >> 2, n & 3
            if s == 2:
                if n == GD:
                    assert not dq
                    gdma()
                if n == GD + 4: e.wait_vm_tag('gr')
                self.barrier(f'c{c+1}')
                self.stamp(f'b{c+1}')
                dq += chunk_dmas(c + 4)
            if n + 2 < 32: rd = rd1(n + 2)
            elif n == 30: rd = self.u_rd(8, 0, 0) + self.u_rd(8, 1, 1)
            else: rd = self.u_rd(8, 2, 2)
            x = 128 + 4 * n; b = 48 + 8 * (n % 4)
            ca = '0' if n == 0 else blk(accA)
            cb = '0' if n == 0 else blk(accB)
            main = [[l] for l in rd]
            main.append([f'{MFMA} {blk(accA)}, {q4(b)}, {q4(x)}, {ca}'] + (dq.pop(0) if len(dq) > 4 else []))
            mb = f'{MFMA} {blk(accB)}, {q4(x)}, {q4(b+4)}, {cb}' if typ == 'K' else f'{MFMA} {blk(accB)}, {q4(b+4)}, {q4(x)}, {cb}'
            main.append([mb] + (dq.pop(0) if dq else []))
            f = fills[n]; m = len(main)
            for i, g in enumerate(main):
                self.run(g)
                for fg in f[len(f) * i // m:len(f) * (i + 1) // m]: self.run(fg)
        self.auto('s1', False)
        self.stamp(2)
        self.auto('s2', True)
        def ustream(m0, m1):
            o = []
            for m in range(m0, m1):
                k = m + 3
                if k == 32: o += [f'v_xor_b32 v{r}, 0x10000, v{r}' for r in range(6, 10)]
                if k < 64: o += self.u_rd(8 + 2 * (k >> 5), k & 31, k)
                o.append(self.u_mfma(accC if m < 32 else accA, m & 31, m))
                if dq: o += dq.pop(0)
            return o
        is_main = lambda s: isinstance(s, str) and s.startswith('v_mfma') and any(f'], v[{d}' in s.split(',')[0] + ',' + s.split(',')[1] for d in '456')
        def spaced(grps, gapn):
            out = []
            for g in grps: out += [g] + [[]] * gapn
            return out
        def weave(valu, extra):
            out = []; extra = list(extra)
            for l in valu:
                out.append(l)
                if extra: out += extra.pop(0)
            for x in extra: out += x
            return out
        wa_a, wa_b, trr = self.tail_parts()
        pollset = self.kv_poll_setup('v42', 'v43')
        epiC = self.epi_h(accC, 64, sSTC, 'c'); epiD = self.epi_h(accA, 64, sSTD, 'h'); n3 = len(epiD)
        ldD = self.cs_load(sCOLD, 32)
        dread = [f'v_add_u32 v45, {L_GR}, {vCSA}', 'ds_read_b128 v[32:35], v45 offset:6144', 'ds_read_b128 v[36:39], v45 offset:6160']
        chkD = lines(f"""
        v_and_b32 v20, v33, v35
        v_and_b32 v20, v20, v37
        v_and_b32 v20, v20, v39
        v_cmp_ne_u32 vcc, 1, v20
        s_cmp_eq_u64 vcc, 0
        """)
        nfd = ['v_add_f32 v32, v32, v34', 'v_add_f32 v36, v36, v38', 'v_add_f32 v32, v32, v36'] + self.nf_build(32, vBX) + [f'{MFMA} {blk(accA)}, {q4(NF)}, {q4(TF)}, 0']
        self.run(ustream(0, 1))
        if typ == 'H':
            hA = self.epi_h(accA, 64, sSTA, 'ab'); hB = self.epi_h(accB, 64, sSTB, 'ab')
            self.run(interleave(ustream(1, 13), dread + hA, is_main))
            self.stamp(3)
            self.barrier('c9')
            dq += spaced(self.w2_dma(0), 1)
            self.retry(chkD, ldD, 'GD')
            self.run(interleave(ustream(13, 29), nfd + hB, is_main))
        else:
            if typ == 'K': epi = self.epi_qk(accA, vR, 'ab', sSTA) + self.epi_v(accB, 32, 'ab')
            else: epi = self.epi_qk(accA, 'v32', 'ab', sSTA) + self.epi_qk(accB, 'v32', 'ab', sSTB)
            self.run(interleave(ustream(1, 8), epi, is_main))
            self.run(dread + ustream(8, 13))
            self.stamp(3)
            self.barrier('c9')
            self.retry(chkD, ldD, 'GD')
            self.run(interleave(ustream(13, 19), nfd, is_main))
            self.barrier('ab')
            self.flag_wg(sFLB, F_1)
            dq += spaced(self.w2_dma(0), 1)
            self.run(ustream(19, 29))
        self.barrier('c10')
        dq += spaced(self.w2_dma(1), 1)
        self.run(ustream(29, 33))
        self.run(interleave(ustream(33, 45), epiC[:n3 * 5 // 8], is_main))
        self.barrier('c11')
        self.stamp(4)
        dq += spaced(self.w2_dma(2), 1)
        self.run(interleave(ustream(45, 56), epiC[n3 * 5 // 8:], is_main))
        self.run(interleave(ustream(56, 64), pollset + wa_a, is_main))
        self.run(wa_b + self.pl_ld('v42', 'v43') + epiD[:n3 // 8])
        self.barrier('c')
        self.flag_wg(sFLB, F_2)
        self.run(weave(epiD[n3 // 8:n3 * 5 // 8], self.w2_dma(3) + trr))
        self.x1()
        self.run(epiD[n3 * 5 // 8:])
        assert not any(dq), dq
        self.p1_end()

    def att(self):
        e = self.e
        KB = [36, 40]; VB = [44, 52]; P = 60; SB = [68, 84]; NM = 100; MK = 116; O = 132
        Q = 'v[32:35]'
        self.auto('att', True)
        self.vFL, self.vF1 = 'v24', 'v25'
        W = {gi: self.w2_dma(gi) for gi in range(4, 6)}
        H = {gi: self.hload(gi) for gi in range(9)}
        self.run(lines(f"""
        s_lshr_b32 {sT3}, {sR2}, 1
        s_lshl_b32 {sT3}, {sT3}, 14
        s_lshl_b32 {sT2}, {sW}, 26
        s_add_u32 {sT2}, {sT2}, {WS_Z}
        s_add_u32 {sT2}, {sT2}, {sT3}
        v_lshl_add_u32 v28, {vTOK}, 5, {sT2}
        v_lshl_add_u32 v28, {vHF}, 29, v28
        """) + self.pl_ld('v28', 'v30', F_2) + lines(f"""
        v_mov_b32 v24, v3
        v_mov_b32 v25, 1
        v_lshlrev_b32 v20, 2, {vHF}
        v_sub_u32 v20, {vTOK}, v20
        v_mov_b32 v21, {NEGBIG}
        s_lshr_b32 {sT3}, {sWB4K}, 2
        s_add_u32 {sT2}, {sT3}, {L_KST}
        v_add_u32 v2, {sT2}, {vL16}
        v_add_u32 v41, {sT3}, v2
        v_and_b32 v3, 15, v0
        v_lshl_add_u32 v3, {vHF}, 4, v3
        v_lshlrev_b32 v3, 4, v3
        v_add_u32 v3, {sT2}, v3
        v_mov_b32 v17, 0
        s_mov_b32 s90, 0xffff
        s_mov_b32 s91, 0xffff
        v_lshrrev_b32 v5, 1, v0
        v_lshlrev_b32 v5, 26, v5
        v_lshl_add_u32 v5, v0, 14, v5
        """))
        self.run([f'v_mov_b32 v{r}, {vONE}' for r in list(range(8, 12)) + list(range(44, 60))])
        self.run(lines(f"""
        ds_write_b128 v41, v[112:115]
        ds_write_b128 v41, v[116:119] offset:1024
        ds_write_b128 v41, v[120:123] offset:16384
        ds_write_b128 v41, v[124:127] offset:17408
        """))
        pairs = ['vcc', 's[86:87]', 's[88:89]']
        ml = []
        for r in range(16):
            c = 8 * (r >> 2) + (r & 3)
            ml.append(f'v_cmp_le_i32 {pairs[r % 3]}, {c}, v20')
            if r >= 2: ml.append(f'v_cndmask_b32 v{SB[0]+r-2}, v21, 0, {pairs[(r - 2) % 3]}')
        for r in (14, 15): ml.append(f'v_cndmask_b32 v{SB[0]+r}, v21, 0, {pairs[r % 3]}')
        self.run(ml)
        self.run([f'v_sub_f32 v{MK+r}, v21, v{SB[0]+r}' for r in range(16)])
        def hb():
            e('s_mov_b32 s68, 0xfff')
            self.retry(self.pl_chk('v30', sMSK), self.pl_ld('v28', 'v30', F_2), 'HB')
        self.wave0(hb)
        self.barrier('h')
        self.flag_wg(sFLB, F_3)
        self.stamp(7)
        self.run(H[0][0] + H[0][1] + H[0][2] + H[0][3])
        def kread(i, b): self.run([f'ds_read_b128 {q4(b)}, v2 offset:{1024*i}'])
        def vread(i, b):
            e(f"""
            s_mov_b64 exec, {sEX}
            ds_read_b128 {q4(b)}, v3 offset:{16384 + 1024*i}
            ds_read_b128 {q4(b+4)}, v3 offset:{16384 + 1024*i+512}
            s_mov_b64 exec, -1
            """)
        acts = [
            [W[4][0], W[4][1]],
            [W[4][2], W[4][3]],
            [H[1][0] + H[1][1], H[1][2] + H[1][3]],
            [W[5][0], W[5][1]],
            [W[5][2], W[5][3]],
            [H[2][0], H[2][1], H[2][2]],
            [self.pl_ld('v28', 'v30', F_3)], [], [],
        ]
        self.Hrest = [H[2][3]]
        self.H = H
        kread(8, KB[0]); kread(7, KB[1])
        e(f'{MFMA} {blk(SB[0])}, {q4(KB[0])}, {Q}, {blk(SB[0])}')
        vread(8, VB[0])
        e(f'v_max3_f32 v20, v{SB[0]}, v{SB[0]+1}, v{SB[0]+2}')
        e(f'v_max3_f32 v21, v{SB[0]+3}, v{SB[0]+4}, v{SB[0]+5}')
        for j in range(3, 8):
            e(f'v_max3_f32 v{20 + (j & 1)}, v{SB[0]+2*j}, v{SB[0]+2*j+1}, v{20 + (j & 1)}')
        lp2 = e.newlabel('PASS2')
        e.label(lp2)
        e(f"""
        v_max_f32 v20, v20, v21
        v_mov_b32 v21, v20
        v_permlane32_swap_b32 v20, v21
        v_max_f32 v20, v20, v21
        v_cvt_pk_bf16_f32 v21, v20, v20
        v_lshlrev_b32 v21, 16, v21
        v_sub_f32 v21, v21, v20
        v_cvt_pk_bf16_f32 v16, -v20, v21
        v_cmp_eq_u32 vcc, 0, {vHF}
        v_cndmask_b32 v16, 0, v16, vcc
        {MFMA} {blk(SB[0])}, v[8:11], v[16:19], {blk(SB[0])}
        {MFMA} {blk(NM)}, v[8:11], v[16:19], 0
        """)
        tails = {i: e.newlabel(f'TAIL{i}') for i in range(1, 9)}
        lend2 = e.newlabel('P2END')
        for n, i in enumerate(range(8, -1, -1)):
            cur = SB[n % 2]; nx = SB[(n + 1) % 2]; V = VB[n % 2]
            A = list(acts[n])
            if i > 0:
                if i - 1 == 0:
                    e(f'{MFMA} {blk(nx)}, v[8:11], v[16:19], {blk(MK)}')
                    e(f'{MFMA} {blk(nx)}, {q4(KB[(n + 1) % 2])}, {Q}, {blk(nx)}')
                else:
                    e(f'{MFMA} {blk(nx)}, {q4(KB[(n + 1) % 2])}, {Q}, {blk(NM)}')
                if i > 1: kread(i - 2, KB[n % 2])
                vread(i - 1, VB[(n + 1) % 2])
            for kb in range(2):
                for j in range(8):
                    e(f'v_exp_f32 v{cur+8*kb+j}, v{cur+8*kb+j}')
                    if j == 3 and A: self.run(A.pop(0))
                for j in range(4): e(f'v_cvt_pk_bf16_f32 v{P+4*kb+j}, v{cur+8*kb+2*j}, v{cur+8*kb+2*j+1}')
                if kb == 0 and A: self.run(A.pop(0))
                c = '0' if (n == 0 and kb == 0) else blk(O)
                e(f'{MFMA} {blk(O)}, {q4(V+4*kb)}, {q4(P+4*kb)}, {c}')
            for a in A: self.run(a)
            self.stamp(f't{n}')
            if i > 0:
                e(f's_cmp_eq_u32 {sIMIN}, {i}\ns_cbranch_scc1 {tails[i]}')
                if i == 8: exit_st = self.snap()
        e(f's_branch {lend2}')
        self.auto('att', False)
        st = self.snap()
        self.restore(exit_st)
        for i in range(8, 0, -1):
            e.label(tails[i])
            e.settle()
            for a in acts[8 - i + 1]: self.run(a)
        self.restore(st)
        e.label(lend2)
        e.wait_lg0(force=True)
        e.nop(12)
        lok = e.newlabel('SMOK')
        e(f"""
        v_mov_b32 v21, {f32(2.0**100)}
        v_cmp_nle_f32 vcc, v{O+8}, v21
        s_cmp_eq_u64 vcc, 0
        s_cbranch_scc1 {lok}
        s_cmp_lg_u32 {sREDO}, 0
        s_cbranch_scc1 {lok}
        s_mov_b32 {sREDO}, 1
        """)
        st = self.snap()
        e.raw('s_waitcnt vmcnt(0) lgkmcnt(0)'); e.vm = []; e.lg = []
        e(f'v_mov_b32 v20, {NEGBIG}\nv_mov_b32 v21, {NEGBIG}\nv_mov_b32 v30, {NEGBIG}')
        for i in range(0, 9):
            lsk = e.newlabel('RSK')
            if i < 8: e(f's_cmp_gt_u32 {sIMIN}, {i}\ns_cbranch_scc1 {lsk}')
            kread(i, KB[0])
            if i == 8:
                for r in range(16): e(f'v_sub_f32 v{SB[0]+r}, v30, v{MK+r}')
            c = blk(MK) if i == 0 else (blk(SB[0]) if i == 8 else '0')
            e(f'{MFMA} {blk(SB[0])}, {q4(KB[0])}, {Q}, {c}')
            for j in range(8):
                e(f'v_max3_f32 v{20 + (j & 1)}, v{SB[0]+2*j}, v{SB[0]+2*j+1}, v{20 + (j & 1)}')
            e.settle()
            e.label(lsk)
        kread(7, KB[1]); vread(8, VB[0])
        e('v_mov_b32 v30, 1')
        e.raw('s_waitcnt lgkmcnt(0)'); e.lg = []
        e.settle()
        e(f's_branch {lp2}')
        self.restore(st)
        e.label(lok)
        e(f'v_rcp_f32 v20, v{O+8}')
        for j in range(8): e(f'v_mul_f32 v{O+j}, v20, v{O+j}')
        for j in range(4): e(f'v_cvt_pk_bf16_f32 v{P+j}, v{O+2*j}, v{O+2*j+1}')
        e(f'buffer_store_dwordx4 {q4(P)}, {vL16}, {srd(S_WS)}, {sOST} offen sc1 #o')
        self.stamp(8)

    def g2(self):
        e = self.e
        ACC = [80, 96]
        H = self.H
        self.auto('g2', True)
        first = [True]
        def mm(gi, j, b):
            hb = self.hq(gi, j)
            assert OPT.get('drop_g2') or OPT.get('drop_att') or any(f'buffer_load_dwordx4 {q4(hb)}, {vL16}, {srd(S_WS)}, {sKX} offen' in l for l in e.lines), (gi, j)
            c = ['0' if first[0] else blk(ACC[nt]) for nt in range(2)]; first[0] = False
            return [f'{MFMA} {blk(ACC[nt])}, {q4(b+4*nt)}, {q4(hb)}, {c[nt]}' for nt in range(2)]
        vq = list(self.Hrest)
        k = 0
        for gi in range(2):
            for j in range(4):
                for l in mm(gi, j, 192 + 8 * k):
                    self.run([l])
                    if vq: self.run(vq.pop(0))
                k += 1
        self.run(lines(f"""
        v_lshrrev_b32 v35, 3, v0
        v_and_b32 v36, 7, v0
        s_lshl3_add_u32 {sT3}, {sR2}, {sW}
        s_lshl_b32 {sT3}, {sT3}, 3
        v_add_u32 v37, {sT3}, v35
        s_lshl_b32 {sT4}, {sC64}, 7
        v_lshl_add_u32 v38, v36, 4, {sT4}
        v_lshl_add_u32 v8, v37, 10, v38
        """))
        self.wave0(lambda: (e('s_mov_b32 s68, 0x1fff'), self.retry(self.pl_chk('v30', sMSK), self.pl_ld('v28', 'v30', F_3), 'HC')))
        e.wait_vm_tag('o')
        e.wait_lg0(force=True)
        e('s_barrier')
        self.flag_wg(sFLO, 0, 'v5')
        self.stamp(9)
        WB = [48, 56, 64, 72]
        steps = [(gi, j) for gi in range(2, 9) for j in range(4)]
        self.run(self.wrd(2, 0, WB[0]) + self.wrd(2, 1, WB[1]))
        W6 = self.w2_dma(6)
        vq += H[3] + H[4] + [W6[0], W6[1], W6[2], W6[3]] + H[5] + H[6]
        OPL = int(OPT.get('opl', 10))
        bar = {3: (None, 7), 7: (None, 8), 14: ('w6', None), 18: ('w8', None)}
        for k, (gi, j) in enumerate(steps):
            if k in bar:
                tag, rel = bar[k]
                while tag and vq and any(isinstance(l, str) and f'#{tag}' in l for x in vq for l in x): self.run(vq.pop(0))
                if k == 14:
                    while vq: self.run(vq.pop(0))
                    self.wave0(lambda: (e('s_mov_b32 s68, -1'), self.retry(self.pl_chk('v30', sMSK), self.pl_ld('v28', 'v30', F_O), 'OC')))
                self.barrier(tag)
                self.stamp(f'g{k}')
                if rel: vq += self.w2_dma(rel)
                if k == 14: vq = H[7] + H[8]
            if k == OPL: self.run(self.pl_ld('v28', 'v30', F_O))
            if k == 19:
                vq.append([f'buffer_load_dwordx4 v[40:43], v8, {srd(S_X)}, 0 offen', f'buffer_load_dwordx4 v[44:47], v38, {srd(S_B2)}, 0 offen'])
            if k + 2 < len(steps): self.run(self.wrd(*steps[k + 2], WB[(k + 2) % 4]))
            need = [f'#h{a}_{b}' for (a, b) in steps[k:k + 3]]
            while vq and any(isinstance(l, str) and nd in l for x in vq for l in x for nd in need): self.run(vq.pop(0))
            for l in mm(gi, j, WB[k % 4]):
                self.run([l])
                if vq: self.run(vq.pop(0))
        assert not vq, vq
        self.stamp(11)
        PS = 1056
        self.run(lines(f"""
        s_lshl1_add_u32 {sT4}, {sKQ}, {sNH}
        s_lshl_b32 {sT4}, {sT4}, 13
        v_add_u32 v9, {sT4}, {vL16}
        """))
        for nt in range(2):
            for q in range(4):
                pl = nt * 4 + q
                self.run([f'v_xor_b32 v10, {pl << 5}, v9', f'ds_write_b128 v10, v[{ACC[nt]+4*q}:{ACC[nt]+4*q+3}] offset:{pl * 1024}'])
        self.run(lines(f"""
        s_lshl_b32 {sT4}, {sKQ}, 7
        s_lshl_b32 {sT3}, {sNH}, 13
        s_add_u32 {sT4}, {sT4}, {sT3}
        v_lshl_add_u32 v9, v35, 4, {sT4}
        v_lshlrev_b32 v10, 5, v36
        v_xor_b32 v9, v9, v10
        v_lshl_add_u32 v9, v36, 10, v9
        v_add_u32 v10, 0x10000, v9
        """))
        for j in range(4):
            self.run(lines(f"""
            v_lshlrev_b32 v{112+2*j}, 16, v{40+j}
            v_and_b32 v{113+2*j}, 0xffff0000, v{40+j}
            v_lshlrev_b32 v{120+2*j}, 16, v{44+j}
            v_and_b32 v{121+2*j}, 0xffff0000, v{44+j}
            """))
        self.run([f'v_add_f32 v{112+j}, v{112+j}, v{120+j}' for j in range(8)])
        self.barrier()
        for kq in range(4):
            for hf in range(2):
                b = 48 + 8 * kq + 4 * hf
                self.run([f'ds_read_b128 v[{b}:{b+3}], v9 offset:{kq * 16384 + hf * 512}'])
        for j in range(8): self.run([f'v_add_f32 v{112+j}, v{112+j}, v{48+j}'])
        for j in range(8): self.run([f'v_add_f32 v{56+j}, v{56+j}, v{64+j}'])
        for j in range(8): self.run([f'v_add_f32 v{112+j}, v{112+j}, v{72+j}'])
        for j in range(8): self.run([f'v_add_f32 v{112+j}, v{112+j}, v{56+j}'])
        for j in range(4): self.run([f'v_cvt_pk_bf16_f32 v{48+j}, v{112+2*j}, v{112+2*j+1}'])
        e(f'buffer_store_dwordx4 v[48:51], v8, {srd(S_OUT)}, 0 offen')
        self.auto('g2', False)
        self.stamp(12)

    def prof_out(self):
        e = self.e
        e(f"""
        s_lshl3_add_u32 {sT0}, s2, {sW}
        s_lshl_b32 {sT0}, {sT0}, 8
        s_add_u32 {sT0}, {sT0}, {WS_PROF}
        v_lshlrev_b32 v2, 2, v0
        buffer_store_dword v31, v2, {srd(S_WS)}, {sT0} offen
        """)

    def build(self):
        e = self.e
        if OPT.get('diag'):
            e.raw('s_memrealtime s[6:7]')
            e.raw('s_waitcnt lgkmcnt(0)')
        if self.prof:
            e.raw('s_memrealtime s[6:7]')
            e.raw('s_memtime s[4:5]')
            e.raw('s_waitcnt lgkmcnt(0)')
            e.raw('s_mov_b32 s7, s4')
            e.raw('v_mov_b32 v31, 0')
        self.prologue()
        e(f"""
        s_cmp_ge_u32 {sTYPE}, 26
        s_cbranch_scc1 L_helper
        s_cmp_ge_u32 {sG}, 12
        s_cbranch_scc1 L_typeH
        s_cmp_ge_u32 {sG}, 8
        s_cbranch_scc1 L_typeQ
        """)
        st = self.snap()
        self.p1('K')
        e('s_branch L_att')
        self.restore(st); e.label('L_typeH'); self.p1('H'); e('s_branch L_att')
        self.restore(st); e.label('L_helper'); self.helper(); e('s_branch L_att')
        self.restore(st); e.label('L_typeQ'); self.p1('Q')
        e.label('L_att')
        if self.stop_after != 'p1':
            self.att()
            if self.stop_after != 'att':
                self.g2()
        if self.prof:
            e.raw('v_writelane_b32 v31, s6, 63')
            e.raw('v_writelane_b32 v31, s7, 60')
            e.raw('s_memtime s[4:5]')
            e.raw('s_memrealtime s[64:65]')
            e.raw('s_waitcnt lgkmcnt(0)')
            e.raw('s_sub_u32 s4, s4, s7')
            e.raw('v_writelane_b32 v31, s4, 62')
            e.raw('v_writelane_b32 v31, s64, 61')
            self.prof_out()
        if OPT.get('diag'):
            e.raw('s_memrealtime s[4:5]')
            e.raw('s_waitcnt lgkmcnt(0)')
            e.raw('s_sub_u32 s7, s4, s6')
            e.raw(f's_mul_i32 s7, s7, {int(OPT["diag"])}')
            e.raw('s_min_u32 s7, s7, 100000')
            e.label('L_diag')
            e.raw('s_memrealtime s[64:65]')
            e.raw('s_waitcnt lgkmcnt(0)')
            e.raw('s_sub_u32 s64, s64, s4')
            e.raw('s_cmp_lt_u32 s64, s7')
            e.raw('s_cbranch_scc1 L_diag')
        e.label('L_end')
        e.raw('s_endpgm')
        hdr = open('cdna_kernels/' + NAME + '.s.ref').read().split('\n')
        cm = [l for l in hdr if l.startswith(';') and '@launch' not in l]
        out = '\n'.join(cm) + f'\n; @launch grid=(256,1,1) block=(512,1,1) lds={LDS_BYTES}\n'
        out += f""".amdgcn_target "amdgcn-amd-amdhsa--gfx950"
.text
.globl {NAME}_kernel
.p2align 8
.type {NAME}_kernel,@function
{NAME}_kernel:
"""
        out += e.text()
        out += f""".section .rodata,"a"
.p2align 6
.amdhsa_kernel {NAME}_kernel
  .amdhsa_next_free_vgpr 256
  .amdhsa_next_free_sgpr 102
  .amdhsa_accum_offset 256
  .amdhsa_group_segment_fixed_size 0
  .amdhsa_kernarg_size 88
  .amdhsa_user_sgpr_count 2
  .amdhsa_user_sgpr_kernarg_segment_ptr 1
  .amdhsa_system_sgpr_workgroup_id_x 1
.end_amdhsa_kernel
"""
        return out

if __name__ == '__main__':
    import argparse
    ap = argparse.ArgumentParser()
    ap.add_argument('-o', default='k.s')
    ap.add_argument('--stop', default=None)
    ap.add_argument('--prof', default=None)
    ap.add_argument('--cyc', action='store_true')
    ap.add_argument('--opt', default='')
    a = ap.parse_args()
    for kv in a.opt.split(','):
        if kv: OPT[kv.split('=')[0]] = kv.split('=')[1]
    g = G(stop_after=a.stop, prof=a.prof.split(',') if a.prof else None, cyc=a.cyc)
    txt = g.build()
    open(a.o, 'w').write(txt)
    if g.prof: open(a.o + '.names', 'w').write(','.join(g.prof))
    print('instrs', g.e.ninstr, 'nops', g.e.nnops)
```

```python
import sys, math, struct, copy
from em import Em, lines, interleave

NAME = "parallel_sum__sliding_block__dense_activation_gelu__prompt"
OPT = {}
WS_AH = 0
AH_T = 144 * 1024
WS_K = 0x900000
WS_V = 0xB00000
WS_Q = 0xD00000
WS_Z = 0xF00000
FL_T = 1792
F_KV, F_Q, F_HB, F_HC, F_O = 0, 256, 512, 768, 1280
Z_ROW = 7168
Z_CSG = 8192
WS_PROF = 0x1000000
WS_SIZE = 0x1100000
SH = 4096
SLOT = 32768
L_KST = 131072
L_VST = 147456
L_CSP = 147456
L_RV = 149504
L_GR = 131072
L_OK = 163824
LDS_BYTES = 163840

def f32(x): return struct.unpack('<I', struct.pack('<f', x))[0]
LOG2E = 1.4426950408889634
GA = -2.0 * math.sqrt(2.0 / math.pi) * LOG2E
GB = GA * 0.044715
NEGBIG = f32(-1e30)
ONES = 0x3f803f80

S_X, S_QKV, S_W1, S_W2, S_WO, S_WS, S_OUT, S_DBG, S_B1, S_B2 = [8 + 4 * i for i in range(10)]
S_TMP = 80
def srd(b): return f's[{b}:{b+3}]'
_names = """sW sNH sTT sRB sG sT sTYPE sWB4K sCOLA sCOLB sCOLC sCOLD sT0 sT1 sKX sKW""".split()
for _i, _n in enumerate(_names): globals()[_n] = f's{48+_i}'
sT2, sT3, sT4, sT5 = 's86', 's87', 's88', 's89'
sEX = 's[90:91]'; sROW = 's90'
sFLB = 's92'; sGB = 's93'; sCNT = 's94'; sR2 = 's95'; sC64 = 's96'; sXCH = 's97'; sQTR = 's98'; sHEAD = 's99'; sKW2 = 's100'; sUID = 's101'
sPIT = 's3'; sROT = 's3'; sGSRC = 's98'; sDK = 's78'
sTA = 's64'; sRA = 's65'; sKV = 's66'; sQO = 's67'; sMSK = 's[68:69]'; sT2G = 's70'; sAH2 = 's71'; sREDO = 's72'
sRC = 's73'; sOST = 's74'; sIMIN = 's75'; sKQ = 's76'; sFLO = 's77'; sFLIP = 's78'; sWLO = 's79'
sSTA = 's80'; sSTB = 's81'; sSTC = 's82'; sSTD = 's83'; sWHI = 's84'; sROWG = 's85'
vW2 = 'v1'; vONE = 'v14'; vL16 = 'v15'; TF = 16; NF = 20; vR = 'v25'; vTOK = 'v26'; vHF = 'v27'
vBC = 'v28'; vBX = 'v29'; vCSA = 'v30'
accC, accA, accB = 80, 96, 112
def blk(b): return f'v[{b}:{b+15}]'
def q4(b): return f'v[{b}:{b+3}]'
MFMA = 'v_mfma_f32_32x32x16_bf16'
PQ, PH = 3072, 3584

class G:
    def __init__(self, stop_after=None, prof=None, cyc=False):
        self.e = Em()
        self.stop_after = stop_after
        self.prof = prof
        self.cyc = cyc
        self.auto_on = False; self.auto_n = int(OPT.get('auton', 40)); self.auto_idx = 1; self.auto_last = 0

    def stamp(self, name):
        if not self.prof: return
        name = str(name)
        if name not in self.prof: return
        idx = self.prof.index(name)
        e = self.e
        e.raw('s_memtime s[4:5]' if self.cyc else 's_memrealtime s[4:5]')
        e.raw('s_waitcnt lgkmcnt(0)'); e.lg = []
        e.raw(f'v_writelane_b32 v31, s4, {idx}'); e.t += 3
    def snap(self):
        return copy.deepcopy({k: v for k, v in self.e.__dict__.items() if k != 'lines'})
    def restore(self, s):
        uid = self.e.uid; ni = self.e.ninstr; nn = self.e.nnops
        self.e.__dict__.update(copy.deepcopy(s)); self.e.uid = uid; self.e.ninstr = ni; self.e.nnops = nn
    def run(self, ls):
        for l in ls:
            if callable(l): l(); continue
            self.e.I(l)
            if self.auto_on and self.e.ninstr - self.auto_last >= self.auto_n and not l.startswith(('s_add_u32 m0', 's_cmp', 'v_cmp', 's_mov_b64 exec', 'ds_read', 's_and_b64')) and self.auto_idx < 46:
                self.auto_last = self.e.ninstr
                if f'x{self.auto_idx}' not in self.prof: self.prof.append(f'x{self.auto_idx}')
                self.e.comment(f'AUTO {self.auto_idx}')
                self.stamp(f'x{self.auto_idx}')
                self.auto_idx += 1
    def auto(self, name, on):
        for ph in name, {'s1': 'p1', 's2': 'p1'}.get(name, name):
            if OPT.get('drop_' + ph): self.e.drop = OPT['drop_' + ph].replace('+', '|') if on else None
        if OPT.get('auto') == name:
            self.auto_on = on; self.auto_last = self.e.ninstr
            if on: self.auto_idx = 1
    def mk(self, b, lo, size, shift=0):
        if shift:
            self.e(f"""
            s_sub_u32 s{b}, s{lo}, {shift}
            s_subb_u32 s{b+1}, s{lo+1}, 0
            s_and_b32 s{b+1}, s{b+1}, 0xffff
            s_mov_b32 s{b+2}, {size + shift}
            s_mov_b32 s{b+3}, 0x20000
            """)
        else:
            self.e(f"""
            s_mov_b32 s{b}, s{lo}
            s_and_b32 s{b+1}, s{lo+1}, 0xffff
            s_mov_b32 s{b+2}, {size}
            s_mov_b32 s{b+3}, 0x20000
            """)
    def retry(self, check_lines, reload_lines, name):
        e = self.e
        lok = e.newlabel(name + 'OK'); lp = e.newlabel(name + 'LP')
        if OPT.get('nochk') and name != 'ARM': return
        ao = self.auto_on; self.auto_on = False
        self.run(check_lines)
        e(f's_cbranch_scc1 {lok}\ns_mov_b32 {sCNT}, 0')
        e.label(lp)
        st = self.snap()
        e.settle()
        e('s_sleep 2')
        self.run(reload_lines)
        e.raw('s_waitcnt vmcnt(0)'); e.vm = []
        e(f's_add_u32 {sCNT}, {sCNT}, 1')
        if self.prof:
            sites = ['ARM', 'GR', 'GD', 'KV', 'HB', 'HC', 'OC']
            e.raw(f'v_writelane_b32 v31, {sCNT}, {50 + sites.index(name)}')
        e(f's_cmp_gt_u32 {sCNT}, 0x40000\ns_cbranch_scc1 {lok}')
        self.run(check_lines)
        e(f's_cbranch_scc0 {lp}')
        e.settle()
        self.restore(st)
        e.label(lok)
        self.auto_on = ao
    def wave0(self, fn):
        e = self.e
        lab = e.newlabel('W0')
        e.settle()
        e(f's_cmp_lg_u32 {sW}, 0\ns_cbranch_scc1 {lab}')
        st = self.snap()
        fn()
        e.settle()
        self.restore(st)
        e.label(lab)
    def barrier(self, tag=None):
        if tag: self.e.wait_vm_tag(tag)
        self.e.wait_lg0(); self.e('s_barrier')

    def prologue(self):
        e = self.e
        e(f"""
        s_cmp_ge_u32 s2, 256
        s_cbranch_scc1 L_end
        s_load_dwordx16 s[64:79], s[0:1], 0
        s_load_dwordx4 s[80:83], s[0:1], 64
        s_load_dwordx2 s[84:85], s[0:1], 80
        v_lshrrev_b32 v1, 6, v0
        v_and_b32 v0, 63, v0
        v_readfirstlane_b32 {sW}, v1
        s_and_b32 {sT0}, s2, 7
        s_lshr_b32 {sT1}, s2, 3
        s_and_b32 {sRB}, {sT0}, 1
        s_and_b32 {sT2}, {sT1}, 7
        s_lshl3_add_u32 {sRB}, {sRB}, {sT2}
        s_lshr_b32 {sTYPE}, {sT1}, 4
        s_and_b32 {sG}, {sT0}, 6
        s_bfe_u32 {sT4}, {sT1}, 0x10003
        s_add_u32 {sG}, {sG}, {sT4}
        s_lshr_b32 {sNH}, {sW}, 2
        s_lshl1_add_u32 {sTT}, {sNH}, {sW}
        s_and_b32 {sTT}, {sTT}, 3
        s_lshl2_add_u32 {sT}, {sRB}, {sTT}
        s_lshl_b32 {sWB4K}, {sW}, 12
        s_and_b32 {sT2}, {sT0}, 1
        s_lshl_b32 {sT2}, {sT2}, 5
        s_add_u32 {sT2}, {sT2}, {sT1}
        s_and_b32 {sQTR}, {sT2}, 3
        s_lshr_b32 {sT2}, {sT2}, 2
        s_lshr_b32 {sT3}, {sT0}, 1
        s_lshr_b32 {sUID}, {sT2}, 1
        s_and_b32 {sT4}, {sT2}, 1
        s_lshl3_add_u32 {sUID}, {sUID}, {sT4}
        s_lshl1_add_u32 {sUID}, {sT3}, {sUID}
        s_add_u32 {sT4}, {sT3}, 48
        s_cmp_eq_u32 {sT2}, 12
        s_cselect_b32 {sUID}, {sT4}, {sUID}
        s_cmp_gt_u32 {sT2}, 12
        s_cselect_b32 {sUID}, 52, {sUID}
        s_and_b32 {sROW}, {sT0}, 1
        s_lshl2_add_u32 {sROW}, {sROW}, {sT3}
        s_lshl_b32 {sROW}, {sROW}, 5
        s_add_u32 {sROW}, {sROW}, {sT1}
        s_lshl3_add_u32 {sROW}, {sROW}, {sW}
        s_movk_i32 {sPIT}, {PQ}
        s_cmp_ge_u32 {sUID}, 24
        s_cselect_b32 {sPIT}, {PH}, {sPIT}
        s_and_b32 {sT4}, {sT1}, 3
        s_lshl2_add_u32 {sR2}, {sT0}, {sT4}
        s_lshr_b32 {sC64}, {sT1}, 2
        s_and_b32 {sHEAD}, s2, 31
        """)
        e(f"""
        v_lshrrev_b32 v32, 3, v0
        v_and_b32 v33, 7, v0
        v_lshlrev_b32 {vL16}, 4, v0
        v_mov_b32 {vONE}, {ONES}
        s_lshl_b32 {sT5}, {sW}, 4
        s_lshl_b32 {sT4}, {sRB}, 7
        s_add_u32 {sT4}, {sT4}, {sT5}
        v_add_u32 v34, {sT4}, v32
        v_lshrrev_b32 v35, 1, v32
        v_xor_b32 v35, v35, v33
        v_lshlrev_b32 v35, 4, v35
        v_lshl_add_u32 v10, v34, 10, v35
        v_xor_b32 v11, 64, v10
        v_add_u32 v11, {8192 - 1024}, v11
        v_and_b32 v35, 2, v32
        v_lshlrev_b32 v35, 1, v35
        v_xor_b32 v35, v35, v33
        v_lshlrev_b32 v35, 4, v35
        v_add_u32 v34, {sT5}, v32
        v_mad_u32_u24 v20, v34, {sPIT}, v35
        s_lshl_b32 {sT5}, {sW}, 3
        v_add_u32 v36, {sT5}, v32
        v_mul_u32_u24 v37, {PQ}, v36
        v_add_u32 v37, v37, v35
        v_mul_u32_u24 v38, {PH}, v36
        v_add_u32 v38, v38, v35
        v_lshl_add_u32 {vW2}, v36, 10, v35
        s_lshl_b32 {sT4}, {sC64}, 7
        s_add_u32 {sT4}, {sT4}, {SH}
        v_add_u32 {vW2}, {sT4}, {vW2}
        """)
        e.wait_lg0()
        self.mk(S_X, 64, 2048 * 1024)
        self.mk(S_QKV, 66, 512 * PQ, SH)
        self.mk(S_W1, 72, 512 * PH, SH)
        self.mk(S_WS, 84, WS_SIZE)
        self.mk(S_OUT, 80, 2048 * 1024)
        self.mk(S_DBG, 82, 256)
        self.stamp('ka')
        lab = e.newlabel('NORST')
        e(f"""
        s_or_b32 {sT0}, {sG}, {sTYPE}
        s_cmp_lg_u32 {sT0}, 0
        s_cbranch_scc1 {lab}
        s_lshl3_add_u32 {sT0}, {sRB}, {sW}
        s_lshl_b32 {sT0}, {sT0}, 11
        s_add_u32 {sT0}, {sT0}, {WS_Z}
        v_mov_b32 v40, 0
        v_mov_b32 v41, 0
        v_mov_b32 v42, 0
        v_mov_b32 v43, 0
        buffer_store_dwordx4 v[40:43], {vL16}, {srd(S_WS)}, {sT0} offen sc1 #zero
        buffer_store_dwordx4 v[40:43], {vL16}, {srd(S_WS)}, {sT0} offen offset:1024 sc1 #zero
        """)
        e.settle()
        e.label(lab)

    def stats_loads(self):
        self.e(f"""
        s_lshl_b32 {sT0}, {sROW}, 10
        buffer_load_dwordx4 v[240:243], {vL16}, {srd(S_X)}, {sT0} offen
        s_cmp_ge_u32 {sUID}, 24
        s_cselect_b32 s{S_TMP}, s{S_W1}, s{S_QKV}
        s_cselect_b32 s{S_TMP+1}, s{S_W1+1}, s{S_QKV+1}
        s_cselect_b32 s{S_TMP+2}, s{S_W1+2}, s{S_QKV+2}
        s_mov_b32 s{S_TMP+3}, 0x20000
        s_cselect_b32 {sT1}, 24, 0
        s_sub_u32 {sT1}, {sUID}, {sT1}
        s_lshl_b32 {sT1}, {sT1}, 7
        s_lshl_b32 {sT0}, {sQTR}, 7
        s_mul_i32 {sT0}, {sT0}, {sPIT}
        s_add_u32 {sT0}, {sT0}, {sT1}
        s_add_u32 {sT0}, {sT0}, {SH}
        s_lshl3_add_u32 {sT1}, {sPIT}, {sT0}
        s_sub_u32 {sT1}, {sT1}, 1024
        s_lshr_b32 {sT2}, {sWB4K}, 1
        s_add_u32 m0, {sT2}, {L_KST}
        buffer_load_dwordx4 v20, {srd(S_TMP)}, {sT0} offen lds #cs
        buffer_load_dwordx4 v20, {srd(S_TMP)}, {sT1} offen offset:1024 lds #cs
        """)

    def code_prefetch(self):
        e = self.e
        lab = e.newlabel('NOIPF')
        e(f"""
        s_cmp_lg_u32 {sW}, 2
        s_cbranch_scc1 {lab}
        s_getpc_b64 s[4:5]
        """)
        l2 = e.newlabel('PCREF')
        e.label(l2)
        e(f"""
        s_sub_u32 s4, s4, {l2}-{NAME}_kernel
        s_subb_u32 s5, s5, 0
        s_bfe_u32 {sT0}, s2, 0x20003
        s_lshl_b32 {sT0}, {sT0}, 13
        v_lshlrev_b32 v44, 7, v0
        v_add_u32 v44, {sT0}, v44
        v_min_u32 v44, L_end-{NAME}_kernel, v44
        """)
        saved = list(e.vm)
        e(f'global_load_dword v45, v44, s[4:5]')
        e.vm = saved
        e.label(lab)

    def csg_off(self, dst, scol, isq):
        return f"""
        s_lshr_b32 {sT2}, {scol}, 7
        s_add_u32 {sT2}, {sT2}, {0 if isq else 24}
        s_lshr_b32 {sT3}, {sT2}, 2
        s_lshl_b32 {sT3}, {sT3}, 14
        s_and_b32 {sT2}, {sT2}, 3
        s_lshl_b32 {sT2}, {sT2}, 11
        s_add_u32 {sT2}, {sT2}, {sT3}
        s_add_u32 {dst}, {sT2}, {WS_Z + Z_CSG}
        """

    def setup(self, typ):
        e = self.e
        self.mk(S_WO, 68, 512 * 1024, SH)
        self.mk(S_B1, 74, 1792 * 2)
        self.mk(S_W2, 76, 1792 * 1024, SH)
        self.mk(S_B2, 78, 1024)
        e(f"""
        v_and_b32 {vTOK}, 31, v0
        v_lshrrev_b32 {vHF}, 5, v0
        v_bfe_u32 v34, {vTOK}, 1, 3
        v_xor_b32 v34, v34, {vHF}
        v_lshlrev_b32 v34, 4, v34
        v_and_b32 v35, 15, v0
        v_lshl_add_u32 v34, v35, 7, v34
        v_bfe_u32 v35, v0, 4, 1
        v_lshl_add_u32 v34, v35, 12, v34
        s_lshl_b32 {sT4}, {sTT}, 13
        s_lshl_b32 {sT5}, {sNH}, 6
        s_or_b32 {sT4}, {sT4}, {sT5}
        v_xor_b32 v34, {sT4}, v34
        v_bfe_u32 v36, v0, 2, 2
        v_bfe_u32 v33, v0, 1, 1
        v_lshl_add_u32 v32, v35, 1, v33
        v_and_b32 v33, 2, v36
        v_lshlrev_b32 v33, 1, v33
        v_xor_b32 v32, v32, v33
        v_lshlrev_b32 v32, 4, v32
        v_and_b32 v33, 1, v0
        v_lshl_add_u32 v32, v33, 3, v32
        v_lshl_add_u32 v32, v36, 7, v32
        v_lshl_add_u32 v250, {vHF}, 10, v32
        s_lshr_b32 {sT4}, {sWB4K}, 1
        s_add_u32 {sT4}, {sT4}, {L_KST}
        v_add_u32 v250, {sT4}, v250
        v_xor_b32 v251, 64, v250
        v_lshl_add_u32 v35, {vHF}, 12, v32
        s_lshl_b32 {sT4}, {sNH}, 14
        s_or_b32 {sT4}, {sT4}, {sT5}
        v_xor_b32 v35, {sT4}, v35
        """)
        for s in range(4):
            e(f"""
            v_xor_b32 v{2+s}, {s << 5}, v34
            v_xor_b32 v{6+s}, {s << 13}, v35
            v_add_u32 v{80+s}, 0x10000, v{2+s}
            v_add_u32 v{84+s}, 0x10000, v{6+s}
            """)
        e(f"""
        s_mov_b32 {sGB}, {f32(GB)}
        v_mov_b32 v{TF+2}, 0
        v_mov_b32 v{TF+3}, 0
        s_lshl_b32 {sT4}, {sNH}, 10
        v_lshl_add_u32 {vCSA}, {vTOK}, 5, {sT4}
        s_lshl_b32 {sFLB}, {sRB}, 14
        s_lshl_b32 {sT5}, {sG}, 5
        s_add_u32 {sFLB}, {sFLB}, {sT5}
        s_add_u32 {sFLB}, {sFLB}, {WS_Z}
        s_lshr_b32 {sT1}, {sROW}, 7
        s_lshl_b32 {sT1}, {sT1}, 14
        s_and_b32 {sT0}, {sROW}, 127
        s_lshl3_add_u32 {sT0}, {sT0}, {sT1}
        s_add_u32 {sT0}, {sT0}, {WS_Z + Z_ROW}
        v_lshl_add_u32 v252, v0, 26, {sT0}
        s_lshl_b32 {sT0}, {sW}, 2
        s_add_u32 {sT0}, {sT0}, {L_CSP}
        v_lshl_add_u32 v253, v0, 5, {sT0}
        v_lshlrev_b32 v254, 5, v0
        v_add_u32 v254, {L_CSP}, v254
        v_and_b32 v248, 15, v0
        v_lshlrev_b32 v248, 2, v248
        s_lshr_b32 {sT2}, {sUID}, 2
        s_lshl_b32 {sT2}, {sT2}, 14
        s_and_b32 {sT3}, {sUID}, 3
        s_lshl_b32 {sT3}, {sT3}, 11
        s_add_u32 {sT2}, {sT2}, {sT3}
        s_lshl3_add_u32 {sT2}, {sQTR}, {sT2}
        s_add_u32 {sT2}, {sT2}, {WS_Z + Z_CSG}
        s_cmp_ge_u32 {sUID}, 52
        s_cselect_b32 {sT3}, 1, {sW}
        s_lshl_b32 {sT3}, {sT3}, 26
        s_add_u32 {sT2}, {sT2}, {sT3}
        v_lshl_add_u32 v255, v0, 5, {sT2}
        """)
        e(f"""
        s_lshl_b32 {sT4}, {sNH}, 6
        v_lshl_add_u32 v34, {vTOK}, 1, {sT4}
        buffer_load_ushort {vBC}, v34, {srd(S_B1)}, {sCOLC} offen
        s_xor_b32 {sXCH}, {sNH}, {sG}
        s_and_b32 {sXCH}, {sXCH}, 1
        s_lshl_b32 {sXCH}, {sXCH}, 6
        """)
        if typ == 1:
            e(f'v_xor_b32 v34, {sXCH}, v34\nbuffer_load_ushort {vBX}, v34, {srd(S_B1)}, {sCOLD} offen')
        else:
            e(f'buffer_load_ushort {vBX}, v34, {srd(S_B1)}, {sCOLB} offen')
        e(f"""
        s_lshl1_add_u32 {sT2}, {sG}, {sNH}
        s_lshl_b32 {sT2}, {sT2}, 17
        s_lshl_b32 {sT3}, {sT}, 10
        s_add_u32 {sT2}, {sT2}, {sT3}
        s_add_u32 {sSTA}, {sT2}, {WS_K if typ == 1 else WS_Q}
        s_mul_i32 {sT4}, {sT}, {AH_T}
        s_lshl_b32 {sT3}, {sNH}, 11
        s_add_u32 {sT3}, {sT3}, {sT4}
        s_lshl_b32 {sT5}, {sCOLC}, 5
        s_add_u32 {sSTC}, {sT5}, {sT3}
        """)
        if typ == 1:
            e(f"""
            s_add_u32 {sSTB}, {sT2}, {WS_V}
            s_and_b32 {sT3}, {sG}, 1
            s_lshl1_add_u32 {sT3}, {sT3}, {sNH}
            s_lshl_b32 {sT3}, {sT3}, 10
            s_add_u32 {sT3}, {sT3}, {sT4}
            s_lshl_b32 {sT5}, {sCOLD}, 5
            s_add_u32 {sSTD}, {sT5}, {sT3}
            """)
        else:
            e(f"""
            s_lshl_b32 {sT5}, {sCOLB}, 5
            s_add_u32 {sSTB}, {sT5}, {sT3}
            """)
        e(f"""
        s_lshl_b32 {sROWG}, {sRB}, 14
        s_lshl_b32 {sT3}, {sTT}, 8
        s_add_u32 {sROWG}, {sROWG}, {sT3}
        s_add_u32 {sROWG}, {sROWG}, {WS_Z + Z_ROW}
        """)
        e(f"""
        s_add_u32 {sT4}, {sCOLC}, {SH - 3072}
        v_add_u32 v22, {sT4}, v38
        """)
        if typ == 1:
            e(f"""
            v_lshrrev_b32 v32, 2, v0
            v_mul_u32_u24 v23, {PH}, v32
            v_and_b32 v32, 3, v0
            v_lshl_add_u32 v23, v32, 4, v23
            s_and_b32 {sT4}, {sG}, 1
            s_lshl_b32 {sT4}, {sT4}, 6
            s_add_u32 {sT4}, {sT4}, {sCOLD}
            s_add_u32 {sT4}, {sT4}, {SH}
            v_add_u32 v23, {sT4}, v23
            s_lshl_b32 {sDK}, {sW}, 7
            s_add_u32 {sDK}, {sDK}, {sROT if OPT.get('rot', 'none') != 'none' else 0}
            s_and_b32 {sDK}, {sDK}, 1023
            s_mul_i32 {sDK}, {sDK}, {PH // 2}
            """)
        e(self.csg_off(sCOLA, sCOLA, True)); e(self.csg_off(sCOLB, sCOLB, typ == 1)); e(self.csg_off(sCOLC, sCOLC, False))
        if typ == 1: e(self.csg_off(sCOLD, sCOLD, False))
        e(f"""
        s_lshr_b32 {sT2}, {sW}, 1
        s_mov_b32 {sGSRC}, {sCOLA}
        s_cmp_eq_u32 {sT2}, 1
        s_cselect_b32 {sGSRC}, {sCOLB}, {sGSRC}
        s_cmp_eq_u32 {sT2}, 2
        s_cselect_b32 {sGSRC}, {sCOLC}, {sGSRC}
        s_cmp_eq_u32 {sT2}, 3
        s_cselect_b32 {sGSRC}, {sCOLD if typ == 1 else sCOLC}, {sGSRC}
        s_and_b32 {sT2}, {sW}, 1
        s_lshl_b32 {sT2}, {sT2}, 10
        s_add_u32 {sGSRC}, {sGSRC}, {sT2}
        """)
        e(f"""
        s_lshr_b32 {sRA}, s2, 5
        s_lshl_b32 {sTA}, {sRA}, 3
        s_sub_u32 {sKV}, {sTA}, 8
        s_add_u32 {sTA}, {sTA}, {sW}
        s_sub_u32 {sIMIN}, 8, {sTA}
        s_cmp_gt_u32 {sTA}, 8
        s_cselect_b32 {sIMIN}, 0, {sIMIN}
        s_lshl1_add_u32 {sKV}, {sW}, {sKV}
        s_lshl_b32 {sKV}, {sKV}, 10
        s_lshl_b32 {sT1}, {sHEAD}, 16
        s_add_u32 {sKV}, {sKV}, {sT1}
        s_add_u32 {sKV}, {sKV}, {WS_K}
        s_lshl_b32 {sQO}, {sTA}, 10
        s_add_u32 {sQO}, {sQO}, {sT1}
        s_add_u32 {sQO}, {sQO}, {WS_Q}
        s_lshl1_add_u32 {sT2G}, {sR2}, {sNH}
        s_and_b32 {sKQ}, {sW}, 3
        s_mul_i32 {sAH2}, {sT2G}, {AH_T}
        s_lshl_b32 {sT1}, {sKQ}, 12
        s_add_u32 {sAH2}, {sAH2}, {sT1}
        s_mov_b32 {sREDO}, {1 if OPT.get('nofb') else 0}
        s_lshl_b32 {sFLO}, {sRA}, 15
        s_lshl_b32 {sT1}, {sHEAD}, 5
        s_add_u32 {sFLO}, {sFLO}, {sT1}
        s_add_u32 {sFLO}, {sFLO}, {WS_Z + F_O}
        s_mul_i32 {sOST}, {sTA}, {AH_T}
        s_lshl_b32 {sT1}, {sHEAD}, 10
        s_add_u32 {sOST}, {sOST}, {sT1}
        s_add_u32 {sOST}, {sOST}, {112 * 1024}
        s_mov_b32 s40, 0x41065410
        s_mov_b32 s41, 5
        ; rotation seed rc = (c64 + 2*(r64&3)) ; class1 uses rc&1 ; class2 uses rc mod 5
        s_and_b32 {sT1}, {sR2}, 3
        s_or_b32 {sRC}, {sC64}, {int(OPT.get('rcor', 4))}
        s_lshl1_add_u32 {sRC}, {sT1}, {sRC}
        s_mul_i32 {sT1}, {sRC}, 52
        s_lshr_b32 {sT1}, {sT1}, 8
        s_mul_i32 {sT1}, {sT1}, 5
        s_sub_u32 {sT1}, {sRC}, {sT1}
        s_add_u32 {sRC}, {sC64}, {sR2}
        s_and_b32 {sRC}, {sRC}, 1
        s_lshl3_add_u32 {sRC}, {sRC}, {sT1}
        """)

    def fill_stats(self):
        o = lines(f"""
        WAITVM cs
        ds_read_b64_tr_b16 v[232:233], v250
        ds_read_b64_tr_b16 v[234:235], v250 offset:512
        ds_read_b64_tr_b16 v[236:237], v251
        ds_read_b64_tr_b16 v[238:239], v251 offset:512
        v_dot2_f32_bf16 v244, v240, {vONE}, 0
        v_dot2_f32_bf16 v245, v240, v240, 0
        """)
        for j in range(1, 4):
            o += [f'v_dot2_f32_bf16 v244, v{240+j}, {vONE}, v244', f'v_dot2_f32_bf16 v245, v{240+j}, v{240+j}, v245']
        o += [f'v_dot2_f32_bf16 v228, v232, {vONE}, 0', f'v_dot2_f32_bf16 v229, v236, {vONE}, 0']
        for j in range(1, 4):
            o += [f'v_dot2_f32_bf16 v228, v{232+j}, {vONE}, v228', f'v_dot2_f32_bf16 v229, v{236+j}, {vONE}, v229']
        for dpp in ('quad_perm:[1,0,3,2]', 'quad_perm:[2,3,0,1]', 'row_half_mirror', 'row_mirror'):
            o += [f'v_add_f32_dpp v244, v244, v244 {dpp} row_mask:0xf bank_mask:0xf',
                  f'v_add_f32_dpp v245, v245, v245 {dpp} row_mask:0xf bank_mask:0xf']
            if dpp.startswith('quad_perm:[1'):
                o += ['v_permlane32_swap_b32 v228, v229', 'v_add_f32 v228, v228, v229', 'ds_write_b32 v253, v228']
        for sw in ('v_permlane16_swap_b32', 'v_permlane32_swap_b32'):
            o += lines(f"""
            v_mov_b32 v246, v244
            v_mov_b32 v247, v245
            {sw} v244, v246
            {sw} v245, v247
            v_add_f32 v244, v244, v246
            v_add_f32 v245, v245, v247
            """)
        o += lines(f"""
        v_mul_f32 v244, {f32(1/512)}, v244
        v_mul_f32 v245, {f32(1/512)}, v245
        v_fma_f32 v245, -v244, v244, v245
        v_max_f32 v245, 0, v245
        v_cvt_pk_bf16_f32 v246, v245, v245
        v_lshlrev_b32 v246, 16, v246
        v_add_f32 v246, {f32(1e-5)}, v246
        v_cvt_pk_bf16_f32 v246, v246, v246
        v_lshlrev_b32 v246, 16, v246
        v_sqrt_f32 v246, v246
        v_cvt_pk_bf16_f32 v240, -v244, v246
        v_mov_b32 v241, 1
        """)
        return o

    def fill_cs2(self):
        return lines(f"""
        ds_read_b128 v[232:235], v254
        ds_read_b128 v[236:239], v254 offset:16
        v_add_f32 v232, v232, v233
        v_add_f32 v234, v234, v235
        v_add_f32 v236, v236, v237
        v_add_f32 v238, v238, v239
        v_add_f32 v232, v232, v234
        v_add_f32 v236, v236, v238
        v_add_f32 v244, v232, v236
        v_mov_b32 v245, 1
        """)

    def dma1(self, c, typ):
        slot = (c % 4) * SLOT
        if OPT.get('rot', 'none') == 'none':
            kx = [f's_movk_i32 {sKX}, {128 * c}']; kq = [f's_mov_b32 {sKW}, {64 * PQ * c}']; kh = [f's_mov_b32 {sKW}, {64 * PH * c}']
        else:
            kx = [f's_add_u32 {sKX}, {sROT}, {128 * c}', f's_and_b32 {sKX}, {sKX}, 1023']
            kq = [f's_mul_i32 {sKW}, {sKX}, {PQ // 2}']; kh = [f's_mul_i32 {sKW}, {sKX}, {PH // 2}']
        g0 = [f's_add_u32 m0, {sWB4K}, {slot}'] + kx + [f'buffer_load_dwordx4 v10, {srd(S_X)}, {sKX} offen lds #c{c}']
        g1 = [f'buffer_load_dwordx4 v11, {srd(S_X)}, {sKX} offen offset:1024 lds #c{c}']
        g2 = kq + [f'buffer_load_dwordx4 v12, {srd(S_QKV)}, {sKW} offen offset:2048 lds #c{c}']
        if typ == 1:
            g3 = [f'buffer_load_dwordx4 v13, {srd(S_QKV)}, {sKW} offen offset:3072 lds #c{c}']
        else:
            g3 = kh + [f'buffer_load_dwordx4 v13, {srd(S_W1)}, {sKW} offen offset:3072 lds #c{c}']
        return [g0, g1, g2, g3]
    def dma2(self, c, half, vo):
        slot = (c % 4) * SLOT
        out = []
        for i in range(4):
            cc = 4 * half + i
            g = [f's_add_u32 m0, {sWB4K}, {slot}'] if i == 0 else []
            if OPT.get('rot', 'none') == 'none':
                g += [f's_mov_b32 {sKW}, {64 * PH * cc + 1024 * (3 - i)}']
            else:
                g += [f's_add_u32 {sKX}, {sROT}, {128 * cc}', f's_and_b32 {sKX}, {sKX}, 1023', f's_mul_i32 {sKW}, {sKX}, {PH // 2}']
                if i < 3: g += [f's_add_u32 {sKW}, {sKW}, {1024 * (3 - i)}']
            g += [f'buffer_load_dwordx4 {vo}, {srd(S_W1)}, {sKW} offen offset:{1024*i} lds #c{c}']
            out.append(g)
        return out

    def grp_idx(self, gi):
        if gi < 2 or gi >= 7:
            b = 2 if gi < 2 else 7
            k = gi if gi < 2 else gi - 7
            return [f's_bfe_u32 {sT0}, {sRC}, 0x10003', f's_xor_b32 {sT0}, {sT0}, {k}', f's_add_u32 {sT0}, {sT0}, {b}']
        return [f's_and_b32 {sT0}, {sRC}, 7', f's_add_u32 {sT0}, {sT0}, {gi - 2}', f's_lshl_b32 {sT0}, {sT0}, 2',
                f's_lshr_b64 s[{sT0[1:]}:{sT1[1:]}], s[40:41], {sT0}', f's_and_b32 {sT0}, {sT0}, 15']
    def wpos(self, gi):
        return [3, 0, 2, 1, 3, 0, 4, 2, 1][gi]
    def w2_dma(self, gi):
        out = []
        g = self.grp_idx(gi)
        if gi >= 7: g = g[:-1]
        g += [f's_add_u32 m0, {sWB4K}, {self.wpos(gi) * SLOT}', f's_lshl_b32 {sKW2}, {sT0}, 18']
        sr = S_W2 if gi < 7 else S_WO
        for i in range(4):
            if i: g = [f's_add_u32 {sKW2}, {sKW2}, {65536 - 1024}']
            g.append(f'buffer_load_dwordx4 {vW2}, {srd(sr)}, {sKW2} offen offset:{1024*i} lds #w{gi}')
            out.append(g)
        return out
    def hq(self, gi, j):
        tab = {0: [148, 152, 156, 160], 1: [164, 168, 172, 176], 2: [180, 184, 188, 112], 3: [116, 120, 124, 128], 4: [132, 136, 140, 144],
               5: [192, 196, 200, 204], 6: [208, 212, 216, 220], 7: [224, 228, 232, 236], 8: [240, 244, 248, 252]}
        return tab[gi][j]
    def hload(self, gi):
        out = []
        for j in range(4):
            g = []
            if j == 0: g = self.grp_idx(gi) + [f's_lshl_b32 {sKX}, {sT0}, 14', f's_add_u32 {sKX}, {sKX}, {sAH2}']
            g.append(f'buffer_load_dwordx4 {q4(self.hq(gi, j))}, {vL16}, {srd(S_WS)}, {sKX} offen offset:{1024*j} sc1 #h{gi}_{j}')
            out.append(g)
        return out
    def wrd(self, gi, j, b):
        pos = self.wpos(gi)
        a0, a1 = self.WA2[2 * (pos >> 1)], self.WA2[2 * (pos >> 1) + 1]
        off = (pos & 1) * SLOT + 8192 * j
        return [f'ds_read_b64_tr_b16 v[{b}:{b+1}], {a0} offset:{off}',
                f'ds_read_b64_tr_b16 v[{b+2}:{b+3}], {a0} offset:{off + 4096}',
                f'ds_read_b64_tr_b16 v[{b+4}:{b+5}], {a1} offset:{off}',
                f'ds_read_b64_tr_b16 v[{b+6}:{b+7}], {a1} offset:{off + 4096}']

    def cs_load(self, soff, dst):
        return [f'buffer_load_dwordx4 v[{dst}:{dst+3}], {vCSA}, {srd(S_WS)}, {soff} offen sc1',
                f'buffer_load_dwordx4 v[{dst+4}:{dst+7}], {vCSA}, {srd(S_WS)}, {soff} offen offset:16 sc1']
    def nf_build(self, cs, bias):
        return lines(f"""
        v_cvt_pk_bf16_f32 v46, v{cs}, v{cs}
        v_lshlrev_b32 v46, 16, v46
        v_sub_f32 v46, v{cs}, v46
        v_cvt_pk_bf16_f32 v{NF}, v{cs}, v46
        v_and_b32 v47, 0xffff0000, v{NF}
        v_sub_f32 v46, v46, v47
        v_cvt_pk_bf16_f32 v{NF+1}, v46, {bias}
        """)
    def epi_qk(self, acc, rreg, tag):
        o = []
        for h in range(2):
            a = acc + 8 * h
            for i in range(8): o.append(f'v_mul_f32 v{a+i}, {rreg}, v{a+i}')
            for i in range(4): o.append(f'v_cvt_pk_bf16_f32 v{a+i}, v{a+2*i}, v{a+2*i+1}')
            if h: o.append(f's_add_u32 {sSTA}, {sSTA}, 65536')
            o.append(f'buffer_store_dwordx4 {q4(a)}, {vL16}, {srd(S_WS)}, {sSTA} offen sc1 #{tag}')
        return o
    def epi_v_pre(self, tmp):
        o = lines(f"""
        s_lshr_b32 {sT2}, {sWB4K}, 5
        s_add_u32 {sT2}, {sT2}, {L_RV}
        v_lshl_add_u32 v12, {vTOK}, 2, {sT2}
        v_lshl_add_u32 v13, {vHF}, 4, {sT2}
        ds_write_b32 v12, {vR}
        """)
        for q in range(4): o.append(f'ds_read_b128 v[{tmp+4*q}:{tmp+4*q+3}], v13 offset:{32*q}')
        o += lines(f"""
        v_bfe_u32 v12, v0, 4, 1
        v_and_b32 v13, 15, v0
        v_lshl_add_u32 v13, {vHF}, 4, v13
        v_lshlrev_b32 v13, 4, v13
        v_lshl_add_u32 v12, v12, 16, v13
        """)
        return o
    def epi_v(self, acc, tmp, tag):
        o = []
        for h in range(2):
            a = acc + 8 * h
            for i in range(8): o.append(f'v_mul_f32 v{a+i}, v{tmp+8*h+i}, v{a+i}')
            for i in range(4): o.append(f'v_cvt_pk_bf16_f32 v{a+i}, v{a+2*i}, v{a+2*i+1}')
            o.append(f'buffer_store_dwordx4 {q4(a)}, v12, {srd(S_WS)}, {sSTB} offen offset:{512*h} sc1 #{tag}')
        return o
    def epi_h(self, acc, tmp, soff, tag, halves=2):
        o = []
        for half in range(halves):
            a = acc + 8 * half
            for i in range(8): o.append(f'v_mul_f32 v{tmp+i}, v{a+i}, v{a+i}')
            for i in range(8): o.append(f'v_fma_f32 v{tmp+i}, v{tmp+i}, v10, v24')
            for i in range(8): o.append(f'v_mul_f32 v{tmp+i}, v{tmp+i}, v{a+i}')
            for i in range(8): o.append(f'v_exp_f32 v{tmp+i}, v{tmp+i}')
            for i in range(8): o.append(f'v_fma_f32 v{tmp+i}, v{tmp+i}, v2, v2')
            for i in range(8): o.append(f'v_rcp_f32 v{tmp+i}, v{tmp+i}')
            for i in range(8): o.append(f'v_mul_f32 v{a+i}, v{a+i}, v{tmp+i}')
            for i in range(4): o.append(f'v_cvt_pk_bf16_f32 v{a+i}, v{a+2*i}, v{a+2*i+1}')
            o.append(f'buffer_store_dwordx4 {q4(a)}, {vL16}, {srd(S_WS)}, {soff} offen offset:{1024*half} sc1 #{tag}')
        return o
    def flag_wg(self, base_s, off, vaddr=None):
        self.wave0(lambda: self.e(f'buffer_store_dword {self.vF1}, {vaddr or self.vFL}, {srd(S_WS)}, {base_s} offen offset:{off} sc1'))
    def u_rd(self, c0, m, nb):
        c = c0 + (m >> 4); k = m & 15
        base = ((c % 4) * SLOT & 0xffff) + 1024 * (k >> 2); s = k & 3
        b = 48 + 4 * (nb % 4)
        return [f'ds_read_b64_tr_b16 v[{b}:{b+1}], v{6+s} offset:{base}',
                f'ds_read_b64_tr_b16 v[{b+2}:{b+3}], v{6+s} offset:{base + 512}']
    def u_mfma(self, acc, m, nb):
        b = 48 + 4 * (nb % 4); x = 128 + 4 * m
        return f'{MFMA} {blk(acc)}, {q4(b)}, {q4(x)}, {blk(acc)}'
    def fl_addr(self, vT, vtmp):
        return lines(f"""
        v_ashrrev_i32 {vtmp}, 2, {vT}
        v_lshlrev_b32 {vtmp}, 14, {vtmp}
        v_and_b32 {vT}, 3, {vT}
        v_mul_u32_u24 {vT}, {FL_T}, {vT}
        v_add_u32 {vT}, {vT}, {vtmp}
        """)
    def kv_poll_setup(self, va, vt):
        return lines(f"""
        s_lshl_b32 {sT4}, {sRA}, 1
        s_sub_u32 {sT4}, {sT4}, 2
        v_add_u32 {va}, {sT4}, v0
        v_lshlrev_b32 {va}, 14, {va}
        v_add_u32 {vt}, {F_Q - 2 * 16384}, {va}
        v_cmp_gt_u32 vcc, 4, v0
        v_cndmask_b32 {va}, {vt}, {va}, vcc
        s_lshr_b32 {sT5}, {sHEAD}, 2
        s_lshl_b32 {sT5}, {sT5}, 5
        s_add_u32 {sT5}, {sT5}, {WS_Z}
        s_lshl_b32 {sT4}, {sW}, 26
        s_add_u32 {sT5}, {sT5}, {sT4}
        v_add_u32 {va}, {sT5}, {va}
        v_cmp_le_u32 vcc, 6, v0
        v_mov_b32 {vt}, 0x40000000
        v_cndmask_b32 {va}, {va}, {vt}, vcc
        s_cmp_eq_u32 {sRA}, 0
        s_cselect_b32 s68, 60, 63
        s_mov_b32 s69, 0
        """)
    def kv_loads(self):
        return lines(f"""
        s_add_u32 {sT5}, {sKV}, {WS_V - WS_K}
        buffer_load_dwordx4 v[112:115], {vL16}, {srd(S_WS)}, {sKV} offen sc1
        buffer_load_dwordx4 v[116:119], {vL16}, {srd(S_WS)}, {sKV} offen offset:1024 sc1
        buffer_load_dwordx4 v[32:35], {vL16}, {srd(S_WS)}, {sQO} offen sc1
        buffer_load_dwordx4 v[120:123], {vL16}, {srd(S_WS)}, {sT5} offen sc1
        buffer_load_dwordx4 v[124:127], {vL16}, {srd(S_WS)}, {sT5} offen offset:1024 sc1
        """)
    def pl_ld(self, vaddr, vdst, off=0):
        return [f'buffer_load_dword {vdst}, {vaddr}, {srd(S_WS)}, 0 offen offset:{off} sc1 #kvp']
    def pl_chk(self, vdst, mask):
        if mask == '-1': return [f'v_cmp_ne_u32 vcc, 1, {vdst}', 's_cmp_eq_u64 vcc, 0']
        return [f'v_cmp_ne_u32 vcc, 1, {vdst}', f's_andn2_b64 vcc, {mask}, vcc', f's_cmp_eq_u64 vcc, {mask}']

    def p1(self, typ):
        e = self.e
        if typ == 1:
            e(f"""
            s_lshl_b32 {sCOLC}, {sG}, 7
            s_add_u32 {sCOLA}, {sCOLC}, 1024
            s_add_u32 {sCOLB}, {sCOLC}, 2048
            s_lshr_b32 {sCOLD}, {sG}, 1
            s_add_u32 {sCOLD}, {sCOLD}, 24
            s_lshl_b32 {sCOLD}, {sCOLD}, 7
            s_add_u32 {sT4}, {sCOLA}, {SH - 2048}
            v_add_u32 v12, {sT4}, v37
            v_mov_b32 v13, v12
            """)
        else:
            e(f"""
            s_lshl_b32 {sCOLA}, {sG}, 7
            s_add_u32 {sCOLB}, {sCOLA}, 1024
            s_add_u32 {sCOLC}, {sCOLA}, 2048
            s_add_u32 {sT4}, {sCOLA}, {SH - 2048}
            v_add_u32 v12, {sT4}, v37
            v_add_u32 v13, {sT4}, v38
            """)
        def arm():
            lab = e.newlabel('NOARM')
            e(f"""
            s_or_b32 {sT0}, {sG}, {sW}
            s_cmp_lg_u32 {sT0}, 0
            s_cbranch_scc1 {lab}
            s_lshl_b32 {sT0}, {sRB}, 2
            v_lshl_add_u32 v32, v0, 26, {sT0}
            v_mov_b32 v33, 1
            """)
            saved = list(e.vm)
            e(f'buffer_store_dword v33, v32, {srd(S_DBG)}, 0 offen offset:64 sc1')
            e.vm = saved
            e.label(lab)
        def chunk_dmas(c):
            if c < 8: return self.dma1(c, typ)
            if c < 10: return self.dma2(c, c - 8, 'v22')
            if typ == 1 and c == 10:
                out = []
                for i in range(4):
                    g = [f's_add_u32 m0, {sWB4K}, {2 * SLOT}'] if i == 0 else [f's_add_u32 {sDK}, {sDK}, {16 * PH - 1024}']
                    out.append(g + [f'buffer_load_dwordx4 v23, {srd(S_W1)}, {sDK} offen offset:{1024*i} lds #c10'])
                return out
            if typ == 2 and c == 10: return self.w2_dma(2)
            if c == 11: return self.w2_dma(0)
            return []
        SL = int(OPT.get('sl', -1))
        if SL < 0:
            self.stats_loads()
            e(f"""
            s_lshr_b32 {sT0}, s2, 3
            s_lshr_b32 {sT1}, s2, 6
            s_lshl1_add_u32 {sT0}, {sT1}, {sT0}
            s_and_b32 {sT0}, {sT0}, 7
            s_lshl_b32 {sROT}, {sT0}, 7
            """)
        for grp in chunk_dmas(0): self.run(grp)
        self.stamp('i0')
        if int(OPT.get('ipf', 1)): self.code_prefetch()
        cap = []
        origI = e.I
        e.I = lambda l, tag=None: cap.append(l)
        self.setup(typ)
        del e.__dict__['I']
        ia = max(i for i, l in enumerate(cap) if l.startswith('v_lshl_add_u32 v255')) + 1
        partA, partB = cap[18:ia], cap[:18] + cap[ia:]
        def inject(code, groups, gap):
            out = []; cnt = 0; groups = list(groups)
            for l in code:
                out.append(l); cnt += 1
                if groups and cnt >= gap and not l.startswith(('s_cmp', 's_cselect', 's_sub_u32')):
                    out += groups.pop(0); cnt = 0
            for g in groups: out += g
            return out
        def pieces(code, n):
            out = []; k = (len(code) + n - 1) // n; cur = []
            for l in code:
                cur.append(l)
                if len(cur) >= k and not l.startswith(('s_cmp', 's_cselect', 's_sub_u32')):
                    out.append(cur); cur = []
            if cur: out.append(cur)
            return out
        late = int(OPT.get('late', 1))
        lateB = []
        if late:
            self.run(inject(partA, chunk_dmas(1) + chunk_dmas(2), int(OPT.get('gap', 20))))
            e.wait_vm_tag('zero')
            dq = chunk_dmas(3)
            lateB = pieces(partB, 8)
        else:
            self.run(inject(partA + partB, chunk_dmas(1) + chunk_dmas(2) + chunk_dmas(3), int(OPT.get('gap', 30))))
            e.wait_vm_tag('zero')
            e('s_barrier')
            if typ == 1: arm()
            self.run(self.fill_stats())
            dq = []
        self.stamp('st')
        def rd1(n):
            c, s = n >> 2, n & 3
            slot = (c % 4) * SLOT
            hi = slot >> 16; base = slot & 0xffff
            xa = (80 if hi else 2) + s; wa = (84 if hi else 6) + s
            x = 128 + 4 * n; b = 48 + 8 * (n % 4)
            return [f'ds_read_b128 {q4(x)}, v{xa} offset:{base}',
                  f'ds_read_b64_tr_b16 v[{b}:{b+1}], v{wa} offset:{base + 2048}',
                  f'ds_read_b64_tr_b16 v[{b+2}:{b+3}], v{wa} offset:{base + 2048 + 512}',
                  f'ds_read_b64_tr_b16 v[{b+4}:{b+5}], v{wa} offset:{base + 3072}',
                  f'ds_read_b64_tr_b16 v[{b+6}:{b+7}], v{wa} offset:{base + 3072 + 512}']
        if OPT.get('prio'):
            lab = e.newlabel('NOPRIO')
            e(f's_cmp_eq_u32 {sNH}, {1 - int(OPT["prio"]) % 2}\ns_cbranch_scc1 {lab}\ns_setprio 1')
            e.label(lab)
        self.barrier('c0')
        self.stamp(1)
        self.auto('s1', True)
        self.run(rd1(0) + rd1(1))
        armed_chk = [f'v_cmp_ne_u32 vcc, 1, v249', 's_cmp_eq_u64 vcc, 0']
        armed_ld = [f'buffer_load_dword v249, v248, {srd(S_DBG)}, 0 offen offset:64 sc1']
        fills = {}
        if late and SL >= 0:
            if typ == 1: arm()
            for g in dq: self.run(g)
            dq = []
            self.stats_loads()
            fs = self.fill_stats(); hfs = len(fs) // 2
            order = [0, 1, 2, 3, 6, 7, 8, 9]
            for i, p in enumerate(lateB): fills[order[i]] = p
            fills[4] = fs[:hfs]; fills[5] = fs[hfs:]
            fills[6] = self.fill_cs2() + fills[6]
            fills[7] = fills[7] + armed_ld
        elif late:
            if typ == 1: arm()
            fs = self.fill_stats(); hfs = len(fs) // 2
            fills[0] = fs[:hfs]; fills[1] = fs[hfs:]
            fills[2] = self.fill_cs2()
            for i, p in enumerate(lateB): fills[3 + i] = p
            fills[7] = fills[7] + armed_ld
        else:
            fills[1] = self.fill_cs2()
            fills[5] = armed_ld
        AN = int(OPT.get('an', 11 if late else 9))
        fills[AN] = fills.get(AN, []) + [lambda: self.retry(armed_chk, armed_ld, 'ARM'),
                    f'buffer_store_dwordx2 v[240:241], v252, {srd(S_WS)}, 0 offen sc1',
                    f'buffer_store_dwordx2 v[244:245], v255, {srd(S_WS)}, 0 offen sc1']
        def warm():
            lab = e.newlabel('NOWARM')
            e(f"""
            s_cmp_gt_u32 {sW}, 1
            s_cbranch_scc1 {lab}
            s_lshl_b32 s4, {sW}, 8
            s_add_u32 s4, s4, s2
            s_lshl_b32 s4, s4, 13
            s_add_u32 s4, s4, {SH}
            s_sub_u32 s5, s4, {1792 * 1024}
            s_cmp_lt_u32 s4, {1792 * 1024 + SH}
            s_cselect_b32 s5, 0x40000000, s5
            v_lshlrev_b32 v226, 7, v0
            """)
            saved = list(e.vm)
            e(f"""
            buffer_load_dword v227, v226, {srd(S_W2)}, s4 offen
            buffer_load_dword v225, v226, {srd(S_WO)}, s5 offen
            """)
            e.vm = saved
            e.label(lab)
        WN = int(OPT.get('warm', 13))
        if WN >= 0: fills[WN] = fills.get(WN, []) + [warm]
        rowg = [f'v_lshlrev_b32 v20, 3, {vTOK}', f'buffer_load_dwordx2 v[{TF}:{TF+1}], v20, {srd(S_WS)}, {sROWG} offen sc1']
        ldA = self.cs_load(sCOLA, 32); ldB = self.cs_load(sCOLB, 40); ldC = self.cs_load(sCOLC, 88)
        GL = int(OPT.get('gl', 21))
        def gdma():
            lab = e.newlabel('NOROWG')
            e(f"""
            s_lshr_b32 {sT2}, {sWB4K}, 2
            s_add_u32 m0, {sT2}, {L_GR}
            buffer_load_dwordx4 {vL16}, {srd(S_WS)}, {sGSRC} offen sc1 lds #gr
            s_cmp_lg_u32 {sW}, 0
            s_cbranch_scc1 {lab}
            s_lshl_b32 {sT2}, {sRB}, 14
            s_add_u32 {sT2}, {sT2}, {WS_Z + Z_ROW}
            s_mov_b32 m0, {L_GR + 8192}
            """)
            saved = list(e.vm)
            e(f'buffer_load_dwordx4 {vL16}, {srd(S_WS)}, {sT2} offen sc1 lds')
            e.raw('s_waitcnt vmcnt(63)')
            e.vm = saved
            e.label(lab)
        self.gdma = gdma
        grd = lines(f"""
        s_lshl_b32 {sT2}, {sTT}, 8
        s_add_u32 {sT2}, {sT2}, {L_GR + 8192}
        v_lshl_add_u32 v20, {vTOK}, 3, {sT2}
        v_add_u32 v21, {L_GR}, {vCSA}
        ds_read_b64 v[{TF}:{TF+1}], v20
        ds_read_b128 v[32:35], v21
        ds_read_b128 v[36:39], v21 offset:16
        ds_read_b128 v[40:43], v21 offset:2048
        ds_read_b128 v[44:47], v21 offset:2064
        ds_read_b128 v[88:91], v21 offset:4096
        ds_read_b128 v[92:95], v21 offset:4112
        """)
        fills[26] = grd
        chk = lines(f"""
        v_and_b32 v20, v{TF+1}, v33
        v_and_b32 v21, v35, v37
        v_and_b32 v20, v20, v39
        v_and_b32 v21, v21, v41
        v_and_b32 v20, v20, v43
        v_and_b32 v21, v21, v45
        v_and_b32 v20, v20, v47
        v_and_b32 v21, v21, v89
        v_and_b32 v20, v20, v91
        v_and_b32 v21, v21, v93
        v_and_b32 v20, v20, v95
        v_and_b32 v20, v20, v21
        v_cmp_ne_u32 vcc, 1, v20
        s_cmp_eq_u64 vcc, 0
        """)
        pre = lines(f"""
        v_add_f32 v32, v32, v34
        v_add_f32 v36, v36, v38
        v_add_f32 v40, v40, v42
        v_add_f32 v44, v44, v46
        v_add_f32 v88, v88, v90
        v_add_f32 v92, v92, v94
        v_add_f32 v32, v32, v36
        v_add_f32 v33, v40, v44
        v_add_f32 v34, v88, v92
        v_and_b32 v2, 0xffff0000, v{TF}
        v_rcp_f32 {vR}, v2
        v_cmp_eq_u32 vcc, 0, {vHF}
        v_cndmask_b32 v{TF+1}, 0, v{TF}, vcc
        v_and_b32 v{TF}, 0xffff, v{TF+1}
        v_lshl_or_b32 v{TF}, v{TF}, 16, v{TF}
        v_mov_b32 v11, v23
        v_mov_b32 v{NF+2}, 0
        v_mov_b32 v{NF+3}, 0
        v_lshlrev_b32 {vBC}, 16, {vBC}
        v_lshlrev_b32 {vBX}, 16, {vBX}
        """)
        pre2 = lines(f"""
        v_mul_f32 v10, {vR}, {vR}
        v_mul_f32 v24, {f32(GA)}, {vR}
        v_mul_f32 v10, {sGB}, v10
        v_mul_f32 v10, v10, {vR}
        v_lshlrev_b32 v3, 26, v0
        v_mov_b32 v4, 1
        """)
        self.vFL, self.vF1 = 'v3', 'v4'
        fills[27] = [lambda: self.retry(chk, rowg + ldA + ldB + ldC, 'GR')] + pre
        fills[28] = self.nf_build(32, '0') + [f'{MFMA} {blk(accA)}, {q4(NF)}, {q4(TF)}, {blk(accA)}']
        if typ == 1:
            fills[29] = pre2 + self.nf_build(33, '0') + [f'{MFMA} {blk(accB)}, {q4(TF)}, {q4(NF)}, {blk(accB)}']
        else:
            fills[29] = pre2 + self.nf_build(33, vBX) + [f'{MFMA} {blk(accB)}, {q4(NF)}, {q4(TF)}, {blk(accB)}']
        fills[30] = self.nf_build(34, vBC) + [f'{MFMA} {blk(accC)}, {q4(NF)}, {q4(TF)}, 0']
        if typ == 1: fills[31] = self.epi_v_pre(32)
        else: fills[31] = [f'v_mul_f32 v32, {f32(0.25 * LOG2E)}, {vR}']
        for n in range(32):
            c, s = n >> 2, n & 3
            if s == 2:
                if n == 22:
                    assert not dq
                    gdma()
                if n == 26:
                    idx = max(i for i, o in enumerate(e.vm) if o.get('tag') == 'gr')
                    e._wait(vm=len(e.vm) - 1 - idx)
                self.barrier(f'c{c+1}')
                self.stamp(f'b{c+1}')
                new = chunk_dmas(c + 4)
                if n >= 26: new = [[l.replace('v23,', 'v11,') if n > 27 else l for l in g] for g in new]
                dq += new
            if n + 2 < 32: self.run(rd1(n + 2))
            elif n == 30: self.run(self.u_rd(8, 0, 0) + self.u_rd(8, 1, 1))
            else: self.run(self.u_rd(8, 2, 2))
            x = 128 + 4 * n; b = 48 + 8 * (n % 4)
            ca = '0' if n == 0 else blk(accA)
            cb = '0' if n == 0 else blk(accB)
            def pop():
                g = dq.pop(0)
                if n > 27: g = [l.replace('v23,', 'v11,') for l in g]
                self.run(g)
            self.run([f'{MFMA} {blk(accA)}, {q4(b)}, {q4(x)}, {ca}'])
            if len(dq) > 4: pop()
            if typ == 1: self.run([f'{MFMA} {blk(accB)}, {q4(x)}, {q4(b+4)}, {cb}'])
            else: self.run([f'{MFMA} {blk(accB)}, {q4(b+4)}, {q4(x)}, {cb}'])
            if dq: pop()
            self.run(fills.get(n, []))
        self.auto('s1', False)
        self.stamp(2)
        self.auto('s2', True)
        def ustream(c0, acc, ms, allms):
            o = []
            for m in ms:
                k = allms.index(m)
                if k + 3 < len(allms): o += self.u_rd(c0, allms[k + 3], k + 3)
                o.append(self.u_mfma(acc, m, k))
                if dq: o += dq.pop(0)
            return o
        def is_main(acc):
            return lambda s: isinstance(s, str) and s.startswith('v_mfma') and any(f'{blk(acc)}, v[{d}' in s for d in '456')
        allC = list(range(32))
        epi3 = self.epi_h(accC, 64, sSTC, 'h')
        n3 = len(epi3)
        pollset = self.kv_poll_setup('v42', 'v43')
        self.WA2 = ['v6', 'v7', 'v12', 'v13', 'v22', 'v23']
        wa_a = lines(f"""
        v_bfe_u32 v39, v0, 2, 2
        v_lshl_add_u32 v38, {vHF}, 2, v39
        v_lshlrev_b32 v38, 7, v38
        v_bfe_u32 v36, v0, 4, 1
        v_bfe_u32 v37, v0, 1, 1
        v_lshl_add_u32 v36, v36, 1, v37
        v_and_b32 v37, 2, v39
        v_lshlrev_b32 v37, 1, v37
        v_xor_b32 v36, v36, v37
        v_lshl_add_u32 v38, v36, 4, v38
        v_and_b32 v37, 1, v0
        v_lshl_add_u32 v38, v37, 3, v38
        s_lshl_b32 {sT3}, {sKQ}, 10
        v_add_u32 v38, {sT3}, v38
        """)
        wa_b = lines(f"""
        v_mov_b32 v6, v38
        v_xor_b32 v7, 64, v38
        v_add_u32 v12, 0x10000, v6
        v_add_u32 v13, 0x10000, v7
        v_add_u32 v22, 0x20000, v6
        v_add_u32 v23, 0x20000, v7
        """)
        def weave(valu, extra):
            out = []; extra = list(extra)
            for l in valu:
                out.append(l)
                if extra: out += extra.pop(0)
            for x in extra: out += x
            return out
        trr = []
        k = 0
        for gi in range(2):
            for j in range(4):
                trr += [[x] for x in self.wrd(gi, j, 192 + 8 * k)]; k += 1
        def x1():
            self.wave0(lambda: self.retry(self.pl_chk('v43', sMSK), self.pl_ld('v42', 'v43'), 'KV'))
            self.barrier()
            self.run(self.kv_loads())
            self.stamp(6)
        def spaced(groups, gapn):
            out = []
            for g in groups: out += [g] + [[]] * gapn
            return out
        if typ == 2:
            hh = self.epi_h(accB, 64, sSTB, 'hb')
            epi = self.epi_qk(accA, 'v32', 'kv') + hh[:len(hh) // 3]
            epi2 = hh[len(hh) // 3:] + pollset + wa_a
            self.run(ustream(8, accC, allC[0:1], allC))
            self.run(interleave(ustream(8, accC, allC[1:13], allC), epi, is_main(accC)))
            self.stamp(3)
            self.barrier('kv')
            self.flag_wg(sFLB, F_Q)
            dq += spaced(self.w2_dma(1), 1)
            self.run(interleave(ustream(8, accC, allC[13:32], allC), epi2, is_main(accC)))
            self.run(wa_b)
            self.barrier('hb')
            self.flag_wg(sFLB, F_HB)
            self.stamp(4)
            self.run(weave(epi3[:n3 // 2], self.w2_dma(3) + [self.pl_ld('v42', 'v43')] + trr))
            x1()
            self.run(epi3[n3 // 2:])
        else:
            epi = self.epi_qk(accA, vR, 'kv') + self.epi_v(accB, 32, 'kv')
            ldD = self.cs_load(sCOLD, 32)
            self.run(ustream(8, accC, allC[0:1], allC))
            self.run(interleave(ustream(8, accC, allC[1:8], allC), epi, is_main(accC)))
            self.run([f's_lshl_b32 {sT4}, {sXCH}, 4', f'v_xor_b32 {vCSA}, {sT4}, {vCSA}', f'v_add_u32 v21, {L_GR}, {vCSA}',
                      'ds_read_b128 v[32:35], v21 offset:6144', 'ds_read_b128 v[36:39], v21 offset:6160'])
            self.run(interleave(ustream(8, accC, allC[8:13], allC), pollset, is_main(accC)))
            self.stamp(3)
            self.barrier('c10')
            chkD = lines(f"""
            v_and_b32 v20, v33, v35
            v_and_b32 v20, v20, v37
            v_and_b32 v20, v20, v39
            v_cmp_ne_u32 vcc, 1, v20
            s_cmp_eq_u64 vcc, 0
            """)
            self.retry(chkD, ldD, 'GD')
            nfd = ['v_add_f32 v32, v32, v34', 'v_add_f32 v36, v36, v38', 'v_add_f32 v32, v32, v36'] + self.nf_build(32, vBX) + lines(f"""
            s_sub_u32 {sT4}, {sNH}, 1
            v_and_b32 v{NF}, {sT4}, v{NF}
            v_and_b32 v{NF+1}, {sT4}, v{NF+1}
            {MFMA} {blk(accA)}, {q4(NF)}, {q4(TF)}, 0
            s_lshl1_add_u32 {sT4}, {sTT}, {sNH}
            s_lshl_b32 {sT4}, {sT4}, 12
            s_add_u32 {sT4}, {sT4}, {L_KST}
            v_add_u32 v40, {sT4}, {vL16}
            s_lshl_b32 {sT5}, {sNH}, 11
            s_sub_u32 {sT4}, {sT4}, {sT5}
            v_add_u32 v41, {sT4}, {vL16}
            v_bfe_u32 v44, v0, 2, 2
            v_lshl_add_u32 v44, {vHF}, 3, v44
            v_lshlrev_b32 v44, 6, v44
            v_bfe_u32 v45, v0, 4, 1
            v_lshl_add_u32 v44, v45, 5, v44
            v_and_b32 v45, 3, v0
            v_lshl_add_u32 v44, v45, 3, v44
            s_add_u32 {sT5}, {sT5}, {2 * SLOT}
            v_add_u32 v44, {sT5}, v44
            """) + wa_a
            self.run(interleave(ustream(8, accC, allC[13:21], allC), nfd, is_main(accC)))
            self.barrier('kv')
            self.flag_wg(sFLB, F_KV)
            dq += spaced(self.w2_dma(1), 1)
            self.run(ustream(8, accC, allC[21:29], allC))
            self.barrier()
            self.stamp(4)
            allD = [m for m in range(32) if (m & 3) < 2]
            def d_rd(m, nb):
                b = 48 + 4 * (nb % 4); off = 4096 * (m >> 2) + 1024 * (m & 1)
                return [f'ds_read_b64_tr_b16 v[{b}:{b+1}], v44 offset:{off}', f'ds_read_b64_tr_b16 v[{b+2}:{b+3}], v44 offset:{off + 256}']
            W3 = self.w2_dma(3)
            self.run(d_rd(allD[0], 0) + [self.u_mfma(accC, 29, 1)] + d_rd(allD[1], 1) + W3[0] + [self.u_mfma(accC, 30, 2)]
                     + d_rd(allD[2], 2) + W3[1] + [self.u_mfma(accC, 31, 3)] + wa_b)
            ds = []
            for k, m in enumerate(allD):
                if k + 3 < 16: ds += d_rd(allD[k + 3], k + 3)
                ds.append(self.u_mfma(accA, m, k))
                if k in (1, 4): ds += W3[2 + (k == 4)]
                if k == 8: ds += self.pl_ld('v42', 'v43')
            self.run(interleave(ds, epi3[:n3 // 2], is_main(accA)))
            xw = [f'ds_write_b128 v40, {q4(accA + 4*q)} offset:{1024*q}' for q in range(4)]
            self.run(epi3[n3 // 2:n3 * 5 // 8] + xw)
            self.barrier('w1')
            self.run(lines(f"""
            ds_read_b128 {q4(accA)}, v41
            ds_read_b128 {q4(accA+4)}, v41 offset:1024
            ds_read_b128 {q4(accA+8)}, v41 offset:4096
            ds_read_b128 {q4(accA+12)}, v41 offset:5120
            """))
            self.run(weave(epi3[n3 * 5 // 8:], self.w2_dma(2) + trr))
            x1()
            self.run([f'v_add_f32 v{accA+i}, v{accA+i}, v{accA+8+i}' for i in range(8)] + self.epi_h(accA, 64, sSTD, 'h', halves=1))
        tl = e.vm[-6:]
        assert [bool(o['dst']) for o in tl] == [True] * 5 + [False] and tl[-1]['tag'] == 'h', tl
        e.vm = tl
        assert not any(dq), dq
        e.wait_lg0(force=True)
        e.settle()
        e(f's_add_u32 {sFLB}, {sFLB}, {F_HC + (256 if typ == 2 else 0)}')
        self.auto('s2', False)
        self.stamp(5)

    def att(self):
        e = self.e
        KB = [36, 40]; VB = [44, 52]; P = 60; SB = [68, 84]; NM = 100; MK = 116; O = 132
        Q = 'v[32:35]'
        self.auto('att', True)
        self.vFL, self.vF1 = 'v24', 'v25'
        W = {gi: self.w2_dma(gi) for gi in range(4, 6)}
        H = {gi: self.hload(gi) for gi in range(9)}
        self.run(['v_mov_b32 v24, v3', 'v_mov_b32 v25, 1'])
        self.run(lines(f"""
        v_lshlrev_b32 v20, 2, {vHF}
        v_sub_u32 v20, {vTOK}, v20
        v_mov_b32 v21, {NEGBIG}
        s_lshr_b32 {sT2}, {sWB4K}, 2
        s_add_u32 {sT2}, {sT2}, {L_KST}
        v_add_u32 v2, {sT2}, {vL16}
        s_lshr_b32 {sT3}, {sWB4K}, 2
        v_add_u32 v41, {sT3}, v2
        v_and_b32 v3, 15, v0
        v_lshl_add_u32 v3, {vHF}, 4, v3
        v_lshlrev_b32 v3, 4, v3
        v_add_u32 v3, {sT2}, v3
        v_mov_b32 v17, 0
        """))
        pairs = ['vcc', 's[86:87]', 's[88:89]']
        ml = []
        for r in range(16):
            c = 8 * (r >> 2) + (r & 3)
            ml.append(f'v_cmp_le_i32 {pairs[r % 3]}, {c}, v20')
            if r >= 2: ml.append(f'v_cndmask_b32 v{SB[0]+r-2}, v21, 0, {pairs[(r - 2) % 3]}')
        for r in (14, 15): ml.append(f'v_cndmask_b32 v{SB[0]+r}, v21, 0, {pairs[r % 3]}')
        self.run(ml)
        self.run([f'v_mov_b32 v{r}, {vONE}' for r in list(range(8, 12)) + list(range(44, 60))])
        self.run(lines(f"""
        s_lshr_b32 {sT3}, {sR2}, 1
        s_lshl_b32 {sT3}, {sT3}, 14
        s_lshl_b32 {sT2}, {sW}, 26
        s_add_u32 {sT2}, {sT2}, {WS_Z}
        s_add_u32 {sT2}, {sT2}, {sT3}
        v_lshl_add_u32 v28, {vTOK}, 5, {sT2}
        v_lshl_add_u32 v28, {vHF}, 29, v28
        s_mov_b32 s90, 0xffff
        s_mov_b32 s91, 0xffff
        v_mov_b32 v29, {L_KST}
        v_lshrrev_b32 v5, 1, v0
        v_lshlrev_b32 v5, 26, v5
        v_lshl_add_u32 v5, v0, 14, v5
        s_mov_b32 s68, 0xff
        """) + self.pl_ld('v28', 'v30', F_HB))
        self.run(lines(f"""
        ds_write_b128 v41, v[112:115]
        ds_write_b128 v41, v[116:119] offset:1024
        ds_write_b128 v41, v[120:123] offset:16384
        ds_write_b128 v41, v[124:127] offset:17408
        """))
        self.run([f'v_sub_f32 v{MK+r}, v21, v{SB[0]+r}' for r in range(16)])
        def hb():
            e(f'ds_write_b32 v29, v17')
            self.retry(self.pl_chk('v30', sMSK), self.pl_ld('v28', 'v30', F_HB), 'HB')
            e.wait_lg0()
        self.wave0(hb)
        self.barrier('h')
        self.flag_wg(sFLB, 0)
        self.stamp(7)
        def kread(i, b): self.run([f'ds_read_b128 {q4(b)}, v2 offset:{1024*i}'])
        def vread(i, b):
            e(f"""
            s_mov_b64 exec, {sEX}
            ds_read_b128 {q4(b)}, v3 offset:{16384 + 1024*i}
            ds_read_b128 {q4(b+4)}, v3 offset:{16384 + 1024*i+512}
            s_mov_b64 exec, -1
            """)
        def hc0():
            def f():
                e('s_mov_b32 s68, 0xffff')
                self.retry(self.pl_chk('v30', sMSK), self.pl_ld('v28', 'v30', F_HC), 'HC')
                e(f'ds_write_b32 v29, v25')
            self.wave0(f)
        def hcw():
            lp = e.newlabel('HCW'); lo = e.newlabel('HCD')
            e.settle()
            e(f's_mov_b32 {sCNT}, 0')
            e.label(lp)
            e.raw(f'ds_read_b32 v21, v29')
            e.raw(f's_add_u32 {sCNT}, {sCNT}, 1')
            e.raw('s_waitcnt lgkmcnt(0)'); e.lg = []
            e.raw(f'v_readfirstlane_b32 {sT2}, v21')
            e.raw(f's_cmp_gt_u32 {sCNT}, 0x1000000')
            e.raw(f's_cbranch_scc1 {lo}')
            e.raw(f's_cmp_eq_u32 {sT2}, 0')
            e.raw(f's_cbranch_scc1 {lp}')
            e.label(lo)
            e.t += 6
        hcp = int(OPT.get('hcp', 7))
        acts = [
            [H[0][0] + H[0][1], H[0][2] + H[0][3], W[4][0]],
            [W[4][1], W[4][2], W[4][3]],
            [H[1][0] + H[1][1], H[1][2] + H[1][3]],
            [W[5][0], W[5][1]],
            [W[5][2], W[5][3]],
            [], [], [], [],
        ]
        acts[hcp - 2].append(self.pl_ld('v28', 'v30', F_HC))
        acts[hcp].append([hc0])
        if hcp + 1 <= 8:
            acts[hcp + 1] += [[hcw], H[2][0], H[2][1], H[2][2]]
            self.Hrest = [H[2][3]] + H[3] + H[4]
        else:
            self.Hrest = [[hcw]] + H[2] + H[3] + H[4]
        self.H = H
        kread(8, KB[0]); kread(7, KB[1])
        e(f'{MFMA} {blk(SB[0])}, {q4(KB[0])}, {Q}, {blk(SB[0])}')
        vread(8, VB[0])
        e(f'v_max3_f32 v20, v{SB[0]}, v{SB[0]+1}, v{SB[0]+2}')
        e(f'v_max3_f32 v21, v{SB[0]+3}, v{SB[0]+4}, v{SB[0]+5}')
        for j in range(3, 8):
            e(f'v_max3_f32 v{20 + (j & 1)}, v{SB[0]+2*j}, v{SB[0]+2*j+1}, v{20 + (j & 1)}')
        lp2 = e.newlabel('PASS2')
        e.label(lp2)
        e(f"""
        v_max_f32 v20, v20, v21
        v_mov_b32 v21, v20
        v_permlane32_swap_b32 v20, v21
        v_max_f32 v20, v20, v21
        v_cvt_pk_bf16_f32 v21, v20, v20
        v_lshlrev_b32 v21, 16, v21
        v_sub_f32 v21, v21, v20
        v_cvt_pk_bf16_f32 v16, -v20, v21
        v_cmp_eq_u32 vcc, 0, {vHF}
        v_cndmask_b32 v16, 0, v16, vcc
        {MFMA} {blk(SB[0])}, v[8:11], v[16:19], {blk(SB[0])}
        {MFMA} {blk(NM)}, v[8:11], v[16:19], 0
        """)
        tails = {i: e.newlabel(f'TAIL{i}') for i in range(1, 9)}
        lend2 = e.newlabel('P2END')
        for n, i in enumerate(range(8, -1, -1)):
            cur = SB[n % 2]; nx = SB[(n + 1) % 2]; V = VB[n % 2]
            A = list(acts[n])
            if i > 0:
                if i - 1 == 0:
                    e(f'{MFMA} {blk(nx)}, v[8:11], v[16:19], {blk(MK)}')
                    e(f'{MFMA} {blk(nx)}, {q4(KB[(n + 1) % 2])}, {Q}, {blk(nx)}')
                else:
                    e(f'{MFMA} {blk(nx)}, {q4(KB[(n + 1) % 2])}, {Q}, {blk(NM)}')
                if i > 1: kread(i - 2, KB[n % 2])
                vread(i - 1, VB[(n + 1) % 2])
            for kb in range(2):
                for j in range(8):
                    e(f'v_exp_f32 v{cur+8*kb+j}, v{cur+8*kb+j}')
                    if j == 3 and A: self.run(A.pop(0))
                for j in range(4): e(f'v_cvt_pk_bf16_f32 v{P+4*kb+j}, v{cur+8*kb+2*j}, v{cur+8*kb+2*j+1}')
                if kb == 0 and A: self.run(A.pop(0))
                c = '0' if (n == 0 and kb == 0) else blk(O)
                e(f'{MFMA} {blk(O)}, {q4(V+4*kb)}, {q4(P+4*kb)}, {c}')
            for a in A: self.run(a)
            self.stamp(f't{n}')
            if i > 0:
                e(f's_cmp_eq_u32 {sIMIN}, {i}\ns_cbranch_scc1 {tails[i]}')
                if i == 8: exit_st = self.snap()
        e(f's_branch {lend2}')
        self.auto('att', False)
        st = self.snap()
        self.restore(exit_st)
        for i in range(8, 0, -1):
            e.label(tails[i])
            e.settle()
            for a in acts[8 - i + 1]: self.run(a)
        self.restore(st)
        e.label(lend2)
        e.wait_lg0(force=True)
        e.nop(12)
        lok = e.newlabel('SMOK')
        e(f"""
        v_mov_b32 v21, {f32(2.0**30)}
        v_cmp_nle_f32 vcc, v{O+8}, v21
        s_cmp_eq_u64 vcc, 0
        s_cbranch_scc1 {lok}
        s_cmp_lg_u32 {sREDO}, 0
        s_cbranch_scc1 {lok}
        s_mov_b32 {sREDO}, 1
        """)
        st = self.snap()
        e.raw('s_waitcnt vmcnt(0) lgkmcnt(0)'); e.vm = []; e.lg = []
        e(f'v_mov_b32 v20, {NEGBIG}\nv_mov_b32 v21, {NEGBIG}\nv_mov_b32 v30, {NEGBIG}')
        for i in range(0, 9):
            lsk = e.newlabel('RSK')
            if i < 8: e(f's_cmp_gt_u32 {sIMIN}, {i}\ns_cbranch_scc1 {lsk}')
            kread(i, KB[0])
            if i == 8:
                for r in range(16): e(f'v_sub_f32 v{SB[0]+r}, v30, v{MK+r}')
            c = blk(MK) if i == 0 else (blk(SB[0]) if i == 8 else '0')
            e(f'{MFMA} {blk(SB[0])}, {q4(KB[0])}, {Q}, {c}')
            for j in range(8):
                e(f'v_max3_f32 v{20 + (j & 1)}, v{SB[0]+2*j}, v{SB[0]+2*j+1}, v{20 + (j & 1)}')
            e.settle()
            e.label(lsk)
        kread(7, KB[1]); vread(8, VB[0])
        e('v_mov_b32 v30, 1')
        e.raw('s_waitcnt lgkmcnt(0)'); e.lg = []
        e.settle()
        e(f's_branch {lp2}')
        self.restore(st)
        e.label(lok)
        e(f'v_rcp_f32 v20, v{O+8}')
        for j in range(8): e(f'v_mul_f32 v{O+j}, v20, v{O+j}')
        for j in range(4): e(f'v_cvt_pk_bf16_f32 v{P+j}, v{O+2*j}, v{O+2*j+1}')
        e(f'buffer_store_dwordx4 {q4(P)}, {vL16}, {srd(S_WS)}, {sOST} offen sc1 #o')
        self.stamp(8)

    def g2(self):
        e = self.e
        ACC = [80, 96]
        H = self.H
        self.auto('g2', True)
        first = [True]
        def mm(gi, j, b):
            hb = self.hq(gi, j)
            assert OPT.get('drop_g2') or OPT.get('drop_att') or any(f'buffer_load_dwordx4 {q4(hb)}, {vL16}, {srd(S_WS)}, {sKX} offen' in l for l in e.lines), (gi, j)
            c = ['0' if first[0] else blk(ACC[nt]) for nt in range(2)]; first[0] = False
            return [f'{MFMA} {blk(ACC[nt])}, {q4(b+4*nt)}, {q4(hb)}, {c[nt]}' for nt in range(2)]
        vq = list(self.Hrest)
        k = 0
        for gi in range(2):
            for j in range(4):
                for l in mm(gi, j, 192 + 8 * k):
                    self.run([l])
                    if vq: self.run(vq.pop(0))
                k += 1
        self.run(lines(f"""
        v_lshrrev_b32 v35, 3, v0
        v_and_b32 v36, 7, v0
        s_lshl3_add_u32 {sT3}, {sR2}, {sW}
        s_lshl_b32 {sT3}, {sT3}, 3
        v_add_u32 v37, {sT3}, v35
        s_lshl_b32 {sT4}, {sC64}, 7
        v_lshl_add_u32 v38, v36, 4, {sT4}
        v_lshl_add_u32 v8, v37, 10, v38
        """))
        e.wait_vm_tag('o')
        e.wait_lg0(force=True)
        e('s_barrier')
        self.flag_wg(sFLO, 0, 'v5')
        self.stamp(9)
        WB = [48, 56, 64, 72]
        steps = [(gi, j) for gi in range(2, 9) for j in range(4)]
        self.run(self.wrd(2, 0, WB[0]) + self.wrd(2, 1, WB[1]))
        W6 = self.w2_dma(6)
        vq += [W6[0], W6[1], W6[2], W6[3]] + H[5] + H[6]
        OPL = int(OPT.get('opl', 10))
        bar = {3: (None, 7), 7: (None, 8), 14: ('w6', None), 18: ('w8', None)}
        for k, (gi, j) in enumerate(steps):
            if k in bar:
                tag, rel = bar[k]
                while tag and vq and any(isinstance(l, str) and f'#{tag}' in l for x in vq for l in x): self.run(vq.pop(0))
                if k == 14:
                    while vq: self.run(vq.pop(0))
                    self.wave0(lambda: (e('s_mov_b32 s68, -1'), self.retry(self.pl_chk('v30', sMSK), self.pl_ld('v28', 'v30', F_O), 'OC')))
                self.barrier(tag)
                self.stamp(f'g{k}')
                if rel: vq += self.w2_dma(rel)
                if k == 14: vq = H[7] + H[8]
            if k == OPL: self.run(self.pl_ld('v28', 'v30', F_O))
            if k == 19:
                vq.append([f'buffer_load_dwordx4 v[40:43], v8, {srd(S_X)}, 0 offen', f'buffer_load_dwordx4 v[44:47], v38, {srd(S_B2)}, 0 offen'])
            if k + 2 < len(steps): self.run(self.wrd(*steps[k + 2], WB[(k + 2) % 4]))
            need = [f'#h{a}_{b}' for (a, b) in steps[k:k + 3]]
            while vq and any(isinstance(l, str) and nd in l for x in vq for l in x for nd in need): self.run(vq.pop(0))
            for l in mm(gi, j, WB[k % 4]):
                self.run([l])
                if vq: self.run(vq.pop(0))
        assert not vq, vq
        self.stamp(11)
        PS = 1056
        self.run(lines(f"""
        s_lshl1_add_u32 {sT4}, {sKQ}, {sNH}
        s_lshl_b32 {sT4}, {sT4}, 13
        s_lshr_b32 {sT3}, {sKQ}, 1
        s_lshl_b32 {sT3}, {sT3}, 16
        s_add_u32 {sT4}, {sT4}, {sT3}
        v_add_u32 v9, {sT4}, {vL16}
        """))
        for nt in range(2):
            for q in range(4):
                pl = nt * 4 + q
                self.run([f'v_xor_b32 v10, {pl << 5}, v9', f'ds_write_b128 v10, v[{ACC[nt]+4*q}:{ACC[nt]+4*q+3}] offset:{pl * 1024}'])
        self.run(lines(f"""
        s_lshl_b32 {sT4}, {sKQ}, 7
        s_lshl_b32 {sT3}, {sNH}, 13
        s_add_u32 {sT4}, {sT4}, {sT3}
        v_lshl_add_u32 v9, v35, 4, {sT4}
        v_lshlrev_b32 v10, 5, v36
        v_xor_b32 v9, v9, v10
        v_lshl_add_u32 v9, v36, 10, v9
        v_add_u32 v10, 0x10000, v9
        """))
        for j in range(4):
            self.run(lines(f"""
            v_lshlrev_b32 v{112+2*j}, 16, v{40+j}
            v_and_b32 v{113+2*j}, 0xffff0000, v{40+j}
            v_lshlrev_b32 v{120+2*j}, 16, v{44+j}
            v_and_b32 v{121+2*j}, 0xffff0000, v{44+j}
            """))
        self.run([f'v_add_f32 v{112+j}, v{112+j}, v{120+j}' for j in range(8)])
        self.barrier()
        for kq in range(4):
            for hf in range(2):
                b = 48 + 8 * kq + 4 * hf
                self.run([f'ds_read_b128 v[{b}:{b+3}], v{9 + (kq >> 1)} offset:{kq * 16384 + hf * 512}'])
        for j in range(8): self.run([f'v_add_f32 v{112+j}, v{112+j}, v{48+j}'])
        for j in range(8): self.run([f'v_add_f32 v{56+j}, v{56+j}, v{64+j}'])
        for j in range(8): self.run([f'v_add_f32 v{112+j}, v{112+j}, v{72+j}'])
        for j in range(8): self.run([f'v_add_f32 v{112+j}, v{112+j}, v{56+j}'])
        for j in range(4): self.run([f'v_cvt_pk_bf16_f32 v{48+j}, v{112+2*j}, v{112+2*j+1}'])
        e(f'buffer_store_dwordx4 v[48:51], v8, {srd(S_OUT)}, 0 offen')
        self.auto('g2', False)
        self.stamp(12)

    def prof_out(self):
        e = self.e
        e(f"""
        s_lshl3_add_u32 {sT0}, s2, {sW}
        s_lshl_b32 {sT0}, {sT0}, 8
        s_add_u32 {sT0}, {sT0}, {WS_PROF}
        v_lshlrev_b32 v2, 2, v0
        buffer_store_dword v31, v2, {srd(S_WS)}, {sT0} offen
        """)

    def build(self):
        e = self.e
        if OPT.get('diag'):
            e.raw('s_memrealtime s[6:7]')
            e.raw('s_waitcnt lgkmcnt(0)')
        if self.prof:
            e.raw('s_memrealtime s[6:7]')
            e.raw('s_memtime s[4:5]')
            e.raw('s_waitcnt lgkmcnt(0)')
            e.raw('s_mov_b32 s7, s4')
            e.raw('v_mov_b32 v31, 0')
        self.prologue()
        e(f"""
        s_cmp_eq_u32 {sTYPE}, 1
        s_cbranch_scc1 L_type2
        """)
        st = self.snap()
        self.p1(1)
        e('s_branch L_att')
        self.restore(st)
        e.label('L_type2')
        self.p1(2)
        e.label('L_att')
        if self.stop_after != 'p1':
            self.att()
            if self.stop_after != 'att':
                self.g2()
        if self.prof:
            e.raw('v_writelane_b32 v31, s6, 63')
            e.raw('v_writelane_b32 v31, s7, 60')
            e.raw('s_memtime s[4:5]')
            e.raw('s_memrealtime s[64:65]')
            e.raw('s_waitcnt lgkmcnt(0)')
            e.raw('s_sub_u32 s4, s4, s7')
            e.raw('v_writelane_b32 v31, s4, 62')
            e.raw('v_writelane_b32 v31, s64, 61')
            self.prof_out()
        if OPT.get('diag'):
            e.raw('s_memrealtime s[4:5]')
            e.raw('s_waitcnt lgkmcnt(0)')
            e.raw('s_sub_u32 s7, s4, s6')
            e.raw(f's_mul_i32 s7, s7, {int(OPT["diag"])}')
            e.raw('s_min_u32 s7, s7, 100000')
            e.label('L_diag')
            e.raw('s_memrealtime s[64:65]')
            e.raw('s_waitcnt lgkmcnt(0)')
            e.raw('s_sub_u32 s64, s64, s4')
            e.raw('s_cmp_lt_u32 s64, s7')
            e.raw('s_cbranch_scc1 L_diag')
        e.label('L_end')
        e.raw('s_endpgm')
        hdr = open('cdna_kernels/' + NAME + '.s.ref').read().split('\n')
        cm = [l for l in hdr if l.startswith(';') and '@launch' not in l]
        out = '\n'.join(cm) + f'\n; @launch grid=(256,1,1) block=(512,1,1) lds={LDS_BYTES}\n'
        out += f""".amdgcn_target "amdgcn-amd-amdhsa--gfx950"
.text
.globl {NAME}_kernel
.p2align 8
.type {NAME}_kernel,@function
{NAME}_kernel:
"""
        out += e.text()
        out += f""".section .rodata,"a"
.p2align 6
.amdhsa_kernel {NAME}_kernel
  .amdhsa_next_free_vgpr 256
  .amdhsa_next_free_sgpr 102
  .amdhsa_accum_offset 256
  .amdhsa_group_segment_fixed_size 0
  .amdhsa_kernarg_size 88
  .amdhsa_user_sgpr_count 2
  .amdhsa_user_sgpr_kernarg_segment_ptr 1
  .amdhsa_system_sgpr_workgroup_id_x 1
.end_amdhsa_kernel
"""
        return out

if __name__ == '__main__':
    import argparse
    ap = argparse.ArgumentParser()
    ap.add_argument('-o', default='k.s')
    ap.add_argument('--stop', default=None)
    ap.add_argument('--prof', default=None)
    ap.add_argument('--cyc', action='store_true')
    ap.add_argument('--opt', default='')
    a = ap.parse_args()
    for kv in a.opt.split(','):
        if kv: OPT[kv.split('=')[0]] = kv.split('=')[1]
    g = G(stop_after=a.stop, prof=a.prof.split(',') if a.prof else None, cyc=a.cyc)
    txt = g.build()
    open(a.o, 'w').write(txt)
    if g.prof: open(a.o + '.names', 'w').write(','.join(g.prof))
    print('instrs', g.e.ninstr, 'nops', g.e.nnops)
```
